```python
import torch

def _softmax(x, axis=-1):
    return torch.softmax(x, dim=axis)
def _gelu(x):
    return torch.nn.functional.gelu(x, approximate="tanh")
def _silu(x):
    return torch.nn.functional.silu(x)
def _sigmoid(x):
    return torch.sigmoid(x)
def _layernorm(x, axis=-1, eps=1e-5):
    m = x.mean(dim=axis, keepdim=True)
    v = x.var(dim=axis, keepdim=True, unbiased=False)
    return (x - m) / torch.sqrt(v + eps)
def _scatter_add(tgt, idx, src, axis=0):
    return tgt.clone().index_add_(axis, idx, src)
def _segment_sum(src, seg, n):
    out = torch.zeros((n,) + src.shape[1:], dtype=src.dtype)
    return out.index_add_(0, seg, src)
def _pad(x, pw):
    flat = tuple(v for pair in reversed(pw) for v in pair)
    return torch.nn.functional.pad(x, flat)

kernel_name = 'standalone__edm_precond__diffusion'

def setup_inputs():

    _w = (lambda a: (lambda t: t.to(torch.bfloat16) if t.is_floating_point() else t)(torch.as_tensor(a)))
    B, C, HW = 2, 512, 64
    return {
        "x": _w((lambda *s: torch.randn(*s, dtype=torch.bfloat16) * 0.4)(B, C, HW, HW)),
        "sigma": _w((lambda _x: torch.exp(torch.as_tensor(_x)))((lambda *s: torch.randn(*s, dtype=torch.bfloat16) * 3.2)(B))),
        "w_in": _w((lambda *s: torch.randn(*s, dtype=torch.bfloat16) * 3.2)(C, C) * (C ** -0.5)),
        "w_emb": _w((lambda *s: torch.randn(*s, dtype=torch.bfloat16) * 3.2)(1, C)),
        "w_out": _w((lambda *s: torch.randn(*s, dtype=torch.bfloat16) * 3.2)(C, C) * (C ** -0.5)),
    }

def reference(x, sigma, w_in, w_emb, w_out):
    B, C, H, W = x.shape
    sigma_data = 0.5
    s = sigma.reshape(B, 1, 1, 1)
    denom = s * s + sigma_data * sigma_data
    c_skip = (sigma_data * sigma_data) / denom
    c_out  = s * sigma_data / torch.sqrt(denom)
    c_in   = 1.0 / torch.sqrt(denom)
    c_noise = 0.25 * torch.log(sigma).reshape(B, 1)
    h = torch.einsum("bchw,cd->bdhw", c_in * x, w_in)
    h = h + (c_noise @ w_emb).reshape(B, C, 1, 1)
    h = _silu(h)
    Fx = torch.einsum("bchw,cd->bdhw", h, w_out)
    return c_skip * x + c_out * Fx
```

```python
import sys, json

P = dict(ntx=0, outpol="sc1", D=3, stamps=0, wo_touch=16, codepf=1,
         fl=(2, 3, 10, 22),
         chk=(22, 34, 46, 64),
         name="standalone__edm_precond__diffusion")
for a in sys.argv[1:]:
    k, v = a.split("=", 1)
    try: P[k] = json.loads(v)
    except Exception: P[k] = v

POL = {"plain": "", "sc1": " sc1", "nt": " nt", "ntsc1": " sc1 nt"}
FLAG_OFF = 0x800000
WS_BYTES = 0x808000
STAMP_OFF = 0x900000
LDS_MISC = 131072
LDS_BIAS = LDS_MISC
LDS_RDY = LDS_MISC + 2048
LDS_STG = LDS_MISC + 4096
LDS_TOTAL = LDS_STG + 4 * 2 * 2560

class Prog:
    def __init__(s):
        s.l = []; s.lq = []; s.vq = []; s.smem = False; s.nst = 0; s.tail = []
    def e(s, t): s.l.append("    " + t)
    def lab(s, t): s.l.append(t + ":")
    def c(s, t): s.l.append("    ; " + t)
    def lds(s, t, tag):
        s.e(t); s.lq.append(tag)
        assert len(s.lq) <= 15, "too many LDS ops outstanding"
    def vm(s, t, tag):
        s.e(t); s.vq.append(tag); assert len(s.vq) <= 63
    def need(s, *tags):
        idx = max([i for i, t in enumerate(s.lq) if t in tags], default=-1)
        if idx < 0: return False
        n = len(s.lq) - 1 - idx
        if s.smem: n = 0; s.smem = False
        s.e(f"s_waitcnt lgkmcnt({n})"); s.lq = s.lq[len(s.lq) - n:] if n else []
        return True
    def vneed(s, *tags):
        idx = max([i for i, t in enumerate(s.vq) if t in tags], default=-1)
        if idx < 0: return False
        n = len(s.vq) - 1 - idx
        s.e(f"s_waitcnt vmcnt({n})"); s.vq = s.vq[len(s.vq) - n:] if n else []
        return True
    def stamp(s):
        if P["stamps"]:
            s.e(f"s_memtime s[{60 + 2 * s.nst}:{61 + 2 * s.nst}]"); s.nst += 1; s.smem = True
            assert s.nst <= 20
    def dump_stamps(s):
        if not P["stamps"]: return
        s.e("s_waitcnt lgkmcnt(0) vmcnt(0)")
        s.e("v_mov_b32 v14, 0")
        for i in range(1, s.nst):
            s.e(f"s_sub_u32 s{60+2*i}, s{60+2*i}, s60")
            s.e(f"v_writelane_b32 v14, s{60+2*i}, {i}")
        s.e("s_lshl_b32 s3, s2, 11")
        s.e(f"s_add_u32 s3, s3, {STAMP_OFF}")
        s.e("v_lshl_add_u32 v15, v0, 2, s3")
        s.e("global_store_dword v15, v14, s[18:19]")

def q4(r): return f"v[{r}:{r+3}]"
def q2(r): return f"v[{r}:{r+1}]"
def q16(r): return f"v[{r}:{r+15}]"

S_W, S_Q, S_GL, S_G, S_B = 22, 23, 24, 25, 26
S_TILE = 27
SRD_A, SRD_B, SRD_C, SRD_D = 28, 32, 36, 40
S_T0, S_T1, S_T2, S_T3 = 44, 45, 46, 47
S_S1, S_IK = 48, 50
S_MSK = 52
S_PM = (54, 55, 56, 57)
S_CNT = 58

def srd(p, d, lo, nbytes):
    p.e(f"s_mov_b32 s{d}, s{lo}"); p.e(f"s_mov_b32 s{d+1}, s{lo+1}")
    p.e(f"s_mov_b32 s{d+2}, {hex(nbytes)}"); p.e(f"s_mov_b32 s{d+3}, 0x20000")
def sq(d): return f"s[{d}:{d+3}]"

h = Prog()
h.stamp()
h.e("s_load_dwordx16 s[4:19], s[0:1], 0")
h.e("s_cmp_ge_u32 s2, 0x100")
h.e("s_cbranch_scc1 L_exit")
h.e("v_lshrrev_b32 v2, 6, v0")
h.e("v_and_b32 v1, 63, v0")
h.e(f"v_readfirstlane_b32 s{S_W}, v2")
h.e(f"s_lshr_b32 s{S_T0}, s2, 3")
if P["codepf"]:
    h.c("pull this kernel's code into the L2 (one 64-byte piece per wave)")
    h.e("s_getpc_b64 s[20:21]")
    h.lab("L_pc")
    h.e(f"s_lshl_b32 s{S_T1}, s{S_T0}, 3")
    h.e(f"v_add_lshl_u32 v3, v2, s{S_T1}, 6")
    h.e("v_min_u32 v3, L_end-L_pc-4, v3")
    h.e("global_load_dword v15, v3, s[20:21]")
h.e(f"s_and_b32 s{S_Q}, s{S_T0}, 3")
h.e(f"s_lshr_b32 s{S_GL}, s{S_T0}, 2")
h.e(f"s_and_b32 s{S_T1}, s2, 7")
h.e(f"s_lshl_b32 s{S_G}, s{S_GL}, 3")
h.e(f"s_add_u32 s{S_G}, s{S_G}, s{S_T1}")
h.e(f"s_lshr_b32 s{S_B}, s{S_G}, 5")
h.e(f"s_lshl_b32 s{S_TILE}, s{S_B}, 22")
h.e(f"s_and_b32 s{S_T1}, s{S_G}, 31")
h.e(f"s_lshl_b32 s{S_T1}, s{S_T1}, 8")
h.e(f"s_add_u32 s{S_TILE}, s{S_TILE}, s{S_T1}")
h.e(f"s_cmp_lt_u32 s{S_W}, 4")
h.e("s_cbranch_scc1 L_compute")

L = Prog(); L.nst = h.nst
if P["codepf"]: L.vq.append("code")
L.c("---------------- loader waves")
L.e(f"s_sub_u32 s{S_W}, s{S_W}, 4")
L.e("v_lshrrev_b32 v4, 4, v1")
L.e("v_lshlrev_b32 v4, 6, v4")
L.e("v_and_b32 v6, 3, v1")
L.e("v_lshl_add_u32 v4, v6, 4, v4")
L.e("v_bfe_u32 v5, v1, 2, 2")
L.e(f"s_lshl_b32 s{S_T0}, s{S_W}, 2")
L.e(f"v_add_u32 v5, s{S_T0}, v5")
L.e("v_lshl_add_u32 v2, v5, 13, v4")
L.e(f"v_add_u32 v2, s{S_TILE}, v2")
L.e("v_lshl_add_u32 v3, v5, 10, v4")
L.e(f"s_lshl_b32 s{S_T0}, s{S_Q}, 8")
L.e(f"v_add_u32 v3, s{S_T0}, v3")
L.e(f"s_lshl_b32 s{S_T3}, s{S_W}, 10")
L.e(f"s_mov_b32 s{S_T0}, 0")
L.e(f"s_mov_b32 s{S_T1}, 0")
L.e(f"s_lshl_b32 s{S_T2}, s{S_Q}, 17")
L.e("s_waitcnt lgkmcnt(0)")
srd(L, SRD_A, 4, 0x800000); srd(L, SRD_B, 8, 0x80000)
ntx = " nt" if P["ntx"] else ""
def ld_chunk(n):
    if n < 16:
        for s in (2 * n, 2 * n + 1):
            base = (s % 16) * 8192
            L.e(f"s_add_u32 m0, s{S_T3}, {base}")
            if s: L.e(f"s_add_u32 s{S_T0}, s{S_T0}, 0x20000")
            else: L.e("s_nop 0")
            L.vm(f"buffer_load_dwordx4 v2, {sq(SRD_A)}, s{S_T0} offen{ntx} lds", ("c", n))
            L.e(f"s_add_u32 m0, s{S_T3}, {base + 4096}")
            if s: L.e(f"s_add_u32 s{S_T1}, s{S_T1}, 0x4000")
            else: L.e("s_nop 0")
            L.vm(f"buffer_load_dwordx4 v3, {sq(SRD_B)}, s{S_T1} offen lds", ("c", n))
    else:
        for p in range(4 * (n - 16), 4 * (n - 16) + 4):
            L.e(f"s_add_u32 m0, s{S_T3}, {p * 4096}")
            if p:
                L.e(f"s_add_u32 s{S_T2}, s{S_T2}, 0x4000")
                L.e(f"s_and_b32 s{S_T2}, s{S_T2}, 0x7ffff")
            else: L.e("s_nop 0")
            L.vm(f"buffer_load_dwordx4 v3, {sq(SRD_C)}, s{S_T2} offen lds", ("c", n))
D = P["D"]
for n in range(D): ld_chunk(n)
L.stamp()
srd(L, SRD_C, 12, 0x80000)
L.c("ready word of this wave pair = 0; addresses of the group's debug word and flag line")
L.e(f"s_lshl_b32 s{S_CNT}, s{S_W}, 2")
L.e(f"s_add_u32 s{S_CNT}, s{S_CNT}, {LDS_RDY}")
L.e(f"v_mov_b32 v8, s{S_CNT}")
L.e("v_mov_b32 v9, 0")
L.e("ds_write_b32 v8, v9")
L.e(f"s_lshl_b32 s{S_CNT}, s{S_G}, 2")
L.e(f"v_mov_b32 v10, s{S_CNT}")
L.e(f"s_add_u32 s{S_CNT}, s{S_CNT}, s{S_W}")
L.e(f"s_lshl_b32 s{S_CNT}, s{S_CNT}, 7")
L.e(f"s_add_u32 s{S_CNT}, s{S_CNT}, {FLAG_OFF}")
L.e(f"v_mov_b32 v11, s{S_CNT}")
L.e("s_waitcnt lgkmcnt(0)")
nxt = D
for c in range(16):
    L.vneed(("c", c))
    if c in (0, 8, 15): L.stamp()
    L.e("s_barrier")
    if c == 11:
        L.vm("global_load_dword v12, v10, s[16:17] sc1", "dbg")
    lim = c + D
    while nxt <= lim:
        ld_chunk(nxt); nxt += 1
L.c("the group's flag words were cleared in this launch before anyone stores or polls them")
L.vneed("dbg")
L.e(f"s_mov_b32 s{S_CNT}, 0")
L.lab("L_dbg")
L.e(f"v_readfirstlane_b32 s{S_T0}, v12")
L.e(f"s_cmp_lg_u32 s{S_T0}, 0")
L.e("s_cbranch_scc1 L_dbg_ok")
L.e("global_load_dword v12, v10, s[16:17] sc1")
L.e("s_waitcnt vmcnt(0)")
L.e(f"s_add_u32 s{S_CNT}, s{S_CNT}, 1")
L.e(f"s_cmp_lt_u32 s{S_CNT}, 0x100000")
L.e("s_cbranch_scc1 L_dbg")
L.lab("L_dbg_ok")
L.e("s_barrier")
while nxt < 24:
    ld_chunk(nxt); nxt += 1
L.e("s_waitcnt vmcnt(0)"); L.vq = []
L.stamp()
L.e("s_barrier")
L.e(f"s_mov_b32 s{S_CNT}, 0")
L.lab("L_poll")
L.e("global_load_dwordx4 v[16:19], v11, s[18:19] sc1")
L.e(f"s_add_u32 s{S_CNT}, s{S_CNT}, 1")
L.e("s_waitcnt vmcnt(0)")
L.e("v_min_u32 v16, v16, v17")
L.e("v_min3_u32 v16, v16, v18, v19")
L.e("ds_write_b32 v8, v16")
L.e(f"v_readfirstlane_b32 s{S_T0}, v16")
L.e(f"s_cmp_ge_u32 s{S_CNT}, 0x100000")
L.e("s_cbranch_scc1 L_poll_done")
L.e(f"s_cmp_lt_u32 s{S_T0}, 4")
L.e("s_cbranch_scc1 L_poll")
L.lab("L_poll_done")
L.stamp()
L.dump_stamps()
L.lab("L_exit")
L.e("s_endpgm")

C = Prog(); C.nst = h.nst
if P["codepf"]: C.vq.append("code")
aW0, aW1, aX0, aX1, VO0, VO1, VFL, VFV, VSW, VSR, VOUT, VRDY, VT0, VT1 = 2, 3, 4, 5, 6, 7, 8, 9, 10, 11, 12, 13, 14, 15
RA, RB, RF, RX, RS, RH = 16, 80, 144, 184, 216, 224
SRD_WS, SRD_OUT, SRD_DBG, SRD_WO = SRD_A, SRD_B, SRD_C, SRD_D
C.lab("L_compute")
C.c("---------------- compute waves")
T = RH
C.e(f"v_lshrrev_b32 v{T}, 5, v1")
C.e(f"v_bfe_u32 v{T+1}, v1, 2, 2")
C.e(f"v_lshlrev_b32 v{T+1}, 6, v{T+1}")
C.e(f"v_lshl_add_u32 v{aW0}, v{T}, 10, v{T+1}")
C.e(f"v_bfe_u32 v{T+1}, v1, 4, 1")
C.e(f"v_lshl_add_u32 v{aW0}, v{T+1}, 5, v{aW0}")
C.e(f"v_and_b32 v{T+1}, 3, v1")
C.e(f"v_lshl_add_u32 v{aW0}, v{T+1}, 3, v{aW0}")
C.e(f"v_add_u32 v{aW1}, 0x10000, v{aW0}")
C.e(f"s_lshl_b32 s{S_T0}, s{S_W}, 8")
C.e(f"v_add_u32 v{aX0}, s{S_T0}, v{aW0}")
C.e(f"v_add_u32 v{aX1}, s{S_T0}, v{aW1}")
C.e(f"v_lshlrev_b32 v{VO0}, 4, v1")
C.e(f"v_add_u32 v{VO1}, 0x1000, v{VO0}")
C.e(f"s_lshl_b32 s{S_T0}, s{S_Q}, 8")
C.e(f"v_lshl_add_u32 v{T+2}, v1, 2, s{S_T0}")
C.e(f"s_lshl_b32 s{S_T0}, s{S_B}, 1")
C.e(f"v_mov_b32 v{T+3}, s{S_T0}")
C.e(f"s_or_b32 s{S_T0}, s{S_Q}, s{S_W}")
C.e(f"s_cmp_eq_u32 s{S_T0}, 0")
C.e(f"s_cselect_b32 s{S_T0}, 4, 0")
C.e(f"s_cselect_b32 s{S_T1}, 1, 0")
C.e(f"s_lshl_b32 s{S_T2}, s{S_G}, 9")
C.e(f"s_add_u32 s{S_T2}, s{S_T2}, {FLAG_OFF}")
C.e(f"v_lshl_add_u32 v{T+4}, v1, 7, s{S_T2}")
C.e(f"v_cmp_gt_u32 vcc, s{S_T0}, v1")
C.e(f"v_mov_b32 v{T+8}, 0"); C.e(f"v_mov_b32 v{T+9}, 0")
C.e(f"v_cndmask_b32 v{T+4}, 2.0, v{T+4}, vcc")
C.e(f"v_cmp_gt_u32 vcc, s{S_T1}, v1")
C.e(f"v_mov_b32 v{T+10}, 0"); C.e(f"v_mov_b32 v{T+11}, 0")
C.e(f"s_lshl_b32 s{S_T0}, s{S_G}, 2")
C.e(f"v_mov_b32 v{T+5}, s{S_T0}")
C.e(f"v_cndmask_b32 v{T+5}, 2.0, v{T+5}, vcc")
C.e("s_waitcnt lgkmcnt(0)")
srd(C, SRD_WS, 18, WS_BYTES)
C.vm(f"buffer_store_dwordx4 {q4(T+8)}, v{T+4}, {sq(SRD_WS)}, 0 offen sc1", "clr")
C.vm(f"global_load_ushort v{T+6}, v{T+3}, s[6:7]", "sig")
C.vm(f"global_load_dword v{T+7}, v{T+2}, s[10:11]", "emb")
srd(C, SRD_OUT, 14, 0x800000); srd(C, SRD_DBG, 16, 256); srd(C, SRD_WO, 12, 0x80000)
C.e(f"s_lshl_b32 s{S_T0}, s{S_W}, 7")
C.e(f"s_add_u32 s{S_T2}, s{S_T2}, s{S_T0}")
C.e(f"s_lshl_b32 s{S_T0}, s{S_Q}, 2")
C.e(f"s_add_u32 s{S_T2}, s{S_T2}, s{S_T0}")
C.e(f"v_mov_b32 v{VFL}, s{S_T2}")
C.e("v_cmp_eq_u32 vcc, 0, v1")
for m in range(4):
    C.e(f"s_add_u32 s{S_T0}, s{S_Q}, {m}")
    C.e(f"s_and_b32 s{S_T0}, s{S_T0}, 3")
    C.e(f"s_lshl_b32 s{S_T1}, s{S_G}, 2")
    C.e(f"s_add_u32 s{S_T0}, s{S_T0}, s{S_T1}")
    C.e(f"s_lshl_b32 s{S_T0}, s{S_T0}, 2")
    C.e(f"s_add_u32 s{S_T0}, s{S_T0}, s{S_W}")
    C.e(f"s_lshl_b32 s{S_PM[m]}, s{S_T0}, 13")
C.e(f"v_cndmask_b32 v{VFL}, 2.0, v{VFL}, vcc")
C.e(f"s_mul_i32 s{S_T0}, s{S_W}, 5120")
C.e(f"s_add_u32 s{S_T0}, s{S_T0}, {LDS_STG}")
C.e(f"v_and_b32 v{T+12}, 31, v1")
C.e(f"v_mul_u32_u24 v{VSW}, 80, v{T+12}")
C.e(f"v_lshl_add_u32 v{VSW}, v{T}, 3, v{VSW}")
C.e(f"v_add_u32 v{VSW}, s{S_T0}, v{VSW}")
C.e(f"v_lshrrev_b32 v{T+13}, 2, v1")
C.e(f"v_mul_u32_u24 v{VSR}, 80, v{T+13}")
C.e(f"v_lshl_add_u32 v{VSR}, v{T+1}, 4, v{VSR}")
C.e(f"v_add_u32 v{VSR}, s{S_T0}, v{VSR}")
C.e(f"s_lshl_b32 s{S_T0}, s{S_Q}, 20")
C.e(f"s_add_u32 s{S_T0}, s{S_T0}, s{S_TILE}")
C.e(f"s_lshl_b32 s{S_T1}, s{S_W}, 6")
C.e(f"s_add_u32 s{S_T0}, s{S_T0}, s{S_T1}")
C.e(f"v_lshlrev_b32 v{VOUT}, 13, v{T+13}")
C.e(f"v_lshl_add_u32 v{VOUT}, v{T+1}, 4, v{VOUT}")
C.e(f"v_add_u32 v{VOUT}, s{S_T0}, v{VOUT}")
C.e(f"s_lshl_b32 s{S_T0}, s{S_W}, 2")
C.e(f"s_add_u32 s{S_T0}, s{S_T0}, {LDS_RDY}")
C.e(f"v_mov_b32 v{VRDY}, s{S_T0}")
C.e(f"s_lshl_b32 s{S_T0}, s{S_GL}, 16")
C.e(f"s_lshl_b32 s{S_T1}, s{S_W}, 14")
C.e(f"s_add_u32 s{S_T0}, s{S_T0}, s{S_T1}")
C.e(f"s_lshl_b32 s{S_T1}, s{S_Q}, 8")
C.e(f"s_add_u32 s{S_T0}, s{S_T0}, s{S_T1}")
C.e(f"v_lshlrev_b32 v{T+14}, 10, v{T+13}")
C.e(f"v_lshl_add_u32 v{T+14}, v{T+1}, 6, v{T+14}")
C.e(f"v_add_u32 v{T+14}, s{S_T0}, v{T+14}")
C.e(f"s_lshl_b32 s{S_T0}, s{S_W}, 9")
C.e(f"s_add_u32 s{S_T0}, s{S_T0}, {LDS_BIAS}")
C.e(f"v_lshl_add_u32 v{T+15}, v1, 3, s{S_T0}")
C.e(f"v_lshl_add_u32 v{T+16}, v{T}, 4, s{S_T0}")
C.e(f"v_lshrrev_b32 v{T+17}, 1, v{T+12}")
C.e(f"v_lshlrev_b32 v{T+18}, 1, v{T}")
C.e(f"v_sub_u32 v{T+17}, v{T+17}, v{T+18}")
C.e(f"v_and_b32 v{T+18}, 1, v1")
C.e(f"v_lshlrev_b32 v{T+18}, 4, v{T+18}")

sg, a, b2, cs, cn = T + 6, T + 20, T + 21, T + 22, T + 23
def rnd(r): return [f"v_cvt_pk_bf16_f32 v{r}, v{r}, v{r}", f"v_lshlrev_b32 v{r}, 16, v{r}"]
F = []
F.append(lambda: C.vneed("clr", "sig", "emb"))
F.append(f"v_mov_b32 v{T+8}, 1")
F.append(lambda: C.vm(f"buffer_store_dword v{T+8}, v{T+5}, {sq(SRD_DBG)}, 0 offen sc1", "dbgst"))
F += [f"v_lshlrev_b32 v{sg}, 16, v{sg}", f"v_mul_f32 v{a}, v{sg}, v{sg}"] + rnd(a)
F += [f"v_add_f32 v{a}, 0x3e800000, v{a}"] + rnd(a)
F += [f"v_rcp_f32 v{cs}, v{a}", f"v_sqrt_f32 v{a}, v{a}"] + rnd(cs) + rnd(a)
F += [f"v_mul_f32 v{cs}, 0x3e800000, v{cs}", f"v_rcp_f32 v{a}, v{a}", f"v_lshrrev_b32 v{cs}, 16, v{cs}"]
F += [f"v_mul_f32 v{b2}, 0.5, v{sg}", f"v_mul_f32 v{b2}, v{b2}, v{a}"] + rnd(b2) + rnd(a)
F += [f"v_log_f32 v{cn}, v{sg}", f"v_mul_f32 v{a}, 0xbfb8aa3b, v{a}", f"v_mul_f32 v{cn}, 0x3f317218, v{cn}"] + rnd(cn)
F += [f"v_max_f32 v{b2}, 0x03800000, v{b2}", f"v_mul_f32 v{b2}, 0xbf317218, v{b2}", f"v_rcp_f32 v{b2}, v{b2}"]
F += [f"v_mul_f32 v{cn}, 0x3e800000, v{cn}"]
F += [f"v_readfirstlane_b32 s{S_S1}, v{a}", f"v_readfirstlane_b32 s{S_S1+1}, v{a}",
      f"v_readfirstlane_b32 s{S_IK}, v{b2}", f"v_readfirstlane_b32 s{S_IK+1}, v{b2}"]
e0, e1 = T + 24, T + 25
F += [f"v_lshlrev_b32 v{e0}, 16, v{T+7}", f"v_and_b32 v{e1}, 0xffff0000, v{T+7}",
      f"v_mul_f32 v{e0}, v{cn}, v{e0}", f"v_mul_f32 v{e1}, v{cn}, v{e1}",
      f"v_cvt_pk_bf16_f32 v{e1}, v{e0}, v{e1}", f"v_lshlrev_b32 v{e0}, 16, v{e1}", f"v_and_b32 v{e1}, 0xffff0000, v{e1}",
      f"v_mul_f32 v{e0}, 0xbfb8aa3b, v{e0}", f"v_mul_f32 v{e1}, 0xbfb8aa3b, v{e1}"]
F.append(("lds", f"ds_write_b64 v{T+15}, {q2(e0)}", "biasw"))
for i in range(16):
    F.append(("lds", f"ds_read_b128 {q4(RB + 4 * i)}, v{T+16} offset:{i * 32}", "bias"))
F.append(f"v_lshlrev_b32 v{cs}, v{T+18}, v{cs}")
for t in range(2):
    for d in range(4):
        F.append(f"v_cmp_eq_u32 vcc, {8 * t + (0, 1, 4, 5)[d]}, v{T+17}")
        F.append(f"v_cndmask_b32 v{RS + 4 * t + d}, 0, v{cs}, vcc")
F_START = 8
assert len(F) + F_START <= 124, len(F)

def rd_x(s, i):
    base = (s % 16) * 8192; a_ = aX0 if base < 65536 else aX1
    r = RF + 20 * (s & 1) + 2 * i
    C.lds(f"ds_read_b64_tr_b16 {q2(r)}, v{a_} offset:{base % 65536 + 2048 * i}", ("x", s))
def rd_w(s, j, i):
    base = (s % 16) * 8192; a_ = aW0 if base < 65536 else aW1
    r = RF + 20 * (s & 1) + 4 + 4 * j + 2 * i
    C.lds(f"ds_read_b64_tr_b16 {q2(r)}, v{a_} offset:{base % 65536 + 4096 + 256 * j + 2048 * i}", ("w", s, j))
def reads(s): return [lambda i=i: rd_x(s, i) for i in range(2)] + [lambda j=j, i=i: rd_w(s, j, i) for j in range(4) for i in range(2)]

C.stamp()
C.e("s_barrier")
C.stamp()
for r in reads(0): r()
gap = 0
for s in range(32):
    if s % 2 == 1 and s < 31: C.e("s_barrier")
    if s % 8 == 0:
        C.e(f"s_cmp_eq_u32 s{S_Q}, {s // 8}")
        C.e(f"s_cselect_b64 s[{S_MSK}:{S_MSK+1}], -1, 0")
    rl = reads(s + 1) if s < 31 else []
    split = (3, 3, 2, 2)
    for j in range(4):
        C.need(("x", s), ("w", s, j))
        fb = RF + 20 * (s & 1)
        cin = "0" if s == 0 else q16(RA + 16 * j)
        C.e(f"v_mfma_f32_32x32x16_bf16 {q16(RA + 16 * j)}, {q4(fb + 4 + 4 * j)}, {q4(fb)}, {cin}")
        for _ in range(split[j]):
            if rl: rl.pop(0)()
        f = F.pop(0) if (gap >= F_START and F) else None
        if f is not None and not isinstance(f, str):
            if isinstance(f, tuple): C.lds(f[1], f[2])
            else: f()
            f = None
        if s == P["wo_touch"] and j == 0:
            C.vm(f"buffer_load_dword v{VT1}, v{T+14}, {sq(SRD_WO)}, 0 offen", "touch")
        if j < 3: C.need(("x", s), ("w", s, j + 1))
        elif s < 31 and not (s % 2 == 0): C.need(("x", s + 1), ("w", s + 1, 0))
        if f: C.e(f)
        xr = RX + 4 * (s % 8) + j
        C.e(f"v_cndmask_b32 v{xr}, v{xr}, v{fb + j}, s[{S_MSK}:{S_MSK+1}]")
        gap += 1
assert not F
C.need("bias")
assert not C.lq
C.e("s_barrier")
C.stamp()
C.e("s_nop 7")

def flag(j):
    C.vneed(("st", j))
    C.e(f"v_mov_b32 v{VFV}, {j + 1}")
    C.vm(f"buffer_store_dword v{VFV}, v{VFL}, {sq(SRD_WS)}, 0 offen sc1", ("fl", j))

C.c("---- h = c_out * silu(c_in * acc + bias), two elements per packed op")
for blk in range(4):
    A_, B_ = RA + 16 * blk, RB + 16 * blk
    for g in range(0, 16, 4):
        for o in (0, 2): C.e(f"v_pk_fma_f32 {q2(B_+g+o)}, {q2(A_+g+o)}, s[{S_S1}:{S_S1+1}], {q2(B_+g+o)}")
        for o in range(4): C.e(f"v_exp_f32 v{A_+g+o}, v{B_+g+o}")
        if g:
            for o in (0, 2): C.e(f"v_cvt_pk_bf16_f32 v{RH + 8*blk + (g-4+o)//2}, v{A_+g-4+o}, v{A_+g-4+o+1}")
        else: C.e("s_nop 0")
        for o in (0, 2): C.e(f"v_pk_fma_f32 {q2(A_+g+o)}, {q2(A_+g+o)}, s[{S_IK}:{S_IK+1}], s[{S_IK}:{S_IK+1}]")
        for o in range(4): C.e(f"v_rcp_f32 v{A_+g+o}, v{A_+g+o}")
        if g == 8:
            fr = 2 * blk
            C.vm(f"buffer_store_dwordx4 {q4(RH + 4*fr)}, v{VO0 if fr < 4 else VO1}, {sq(SRD_WS)}, s{S_PM[0]} offen offset:{(fr % 4) * 1024} sc1", ("st", blk))
        else: C.e("s_nop 0")
        for o in (0, 2): C.e(f"v_pk_mul_f32 {q2(A_+g+o)}, {q2(A_+g+o)}, {q2(B_+g+o)}")
    for o in (0, 2): C.e(f"v_cvt_pk_bf16_f32 v{RH + 8*blk + (12+o)//2}, v{A_+12+o}, v{A_+12+o+1}")
    fr = 2 * blk + 1
    C.vm(f"buffer_store_dwordx4 {q4(RH + 4*fr)}, v{VO0 if fr < 4 else VO1}, {sq(SRD_WS)}, s{S_PM[0]} offen offset:{(fr % 4) * 1024} sc1", ("st", blk))
    for j in range(4):
        if P["fl"][j] == blk: flag(j)
C.stamp()
C.e("s_barrier")
C.stamp()

quads = [RB + 4 * i for i in range(16)] + [RX + 4 * i for i in range(8)]
def hq(j, m, t): return quads[6 * j + 2 * (m - 1) + t]
units = []
for t in range(2):
    for blk in range(4): units.append((blk, RX + 4 * (2 * blk + t), ("sel", t), t == 0, None))
for ks in range(8):
    for blk in range(4): units.append((blk, RH + 4 * ks, (ks, blk), False, None))
for j in range(3):
    for m in (1, 2, 3):
        for t in range(2):
            for blk in range(4): units.append((blk, hq(j, m, t), (8 * m + 2 * j + t, blk), False, (j, m, t)))
for blk in range(4):
    for m in (1, 2, 3):
        for t in range(2): units.append((blk, hq(3, m, t), (8 * m + 6 + t, blk), False, (3, m, t)))
wl = [i for i, u in enumerate(units) if u[2][0] != "sel"]
slot = {i: RF + 4 * (n % 10) for n, i in enumerate(wl)}
def rd_o(i):
    p, blk = units[i][2]; base = p * 4096; a_ = aW0 if base < 65536 else aW1
    for k in range(2):
        C.lds(f"ds_read_b64_tr_b16 {q2(slot[i] + 2 * k)}, v{a_} offset:{base % 65536 + 256 * blk + 2048 * k}", ("o", i))
PF = 4
last = {blk: max(i for i, u in enumerate(units) if u[0] == blk) for blk in range(4)}
opol = POL[P["outpol"]]
def epi(blk):
    tmp = RB + 8 * blk; dat = RH + 8 * blk; so = (blk & 1) * 2560; r = []
    for g in range(4):
        for o in (0, 2): r.append(("v", f"v_cvt_pk_bf16_f32 v{tmp + 2*g + o//2}, v{RA + 16*blk + 4*g + o}, v{RA + 16*blk + 4*g + o + 1}"))
    for g in range(4): r.append(("m", lambda g=g: C.lds(f"ds_write_b64 v{VSW}, {q2(tmp + 2*g)} offset:{so + 16*g}", ("sw", blk))))
    for k in range(2): r.append(("m", lambda k=k: C.lds(f"ds_read_b128 {q4(dat + 4*k)}, v{VSR} offset:{so + 1280*k}", ("sr", blk, k))))
    def st(k):
        C.e(f"s_mov_b32 s{S_T0}, {hex((32 * blk + 16 * k) * 8192)}")
        C.need(("sr", blk, k))
        C.vm(f"buffer_store_dwordx4 {q4(dat + 4*k)}, v{VOUT}, {sq(SRD_OUT)}, s{S_T0} offen{opol}", ("out", blk))
    r.append(("d", None))
    for k in range(2): r.append(("m", lambda k=k: st(k)))
    return r
pend = []
nrd = 0
for i, u in enumerate(units):
    blk, ar, wf, first, stg = u
    if stg is not None: C.vneed(("pl",) + stg)
    if wf[0] == "sel": br = RS + 4 * wf[1]
    else:
        C.need(("o", i)); br = slot[i]
    C.e(f"v_mfma_f32_32x32x16_bf16 {q16(RA + 16*blk)}, {q4(ar)}, {q4(br)}, {'0' if first else q16(RA + 16*blk)}")
    if nrd < len(wl) and wl[nrd] <= i + PF + (0 if i >= 4 else 4 - i + 0):
        rd_o(wl[nrd]); nrd += 1
    for j in range(4):
        if P["fl"][j] - 4 == i: flag(j)
        if P["chk"][j] - 2 == i: C.lds(f"ds_read_b32 v{VT0}, v{VRDY}", ("rdy", j))
        if P["chk"][j] == i:
            C.need(("rdy", j))
            C.e(f"v_readfirstlane_b32 s{S_T1}, v{VT0}")
            C.e(f"s_cmp_gt_u32 s{S_T1}, {j}")
            C.e(f"s_cbranch_scc0 L_spin{j}")
            C.lab(f"L_back{j}")
            C.stamp()
            for m in (1, 2, 3):
                for t in range(2):
                    fr = 2 * j + t
                    C.vm(f"buffer_load_dwordx4 {q4(hq(j, m, t))}, v{VO0 if fr < 4 else VO1}, {sq(SRD_WS)}, s{S_PM[m]} offen offset:{(fr % 4) * 1024} sc1", ("pl", j, m, t))
            C.tail += [f"L_spin{j}:", f"    s_mov_b32 s{S_CNT}, 0", f"L_spin{j}_l:",
                       f"    ds_read_b32 v{VT0}, v{VRDY}", f"    s_add_u32 s{S_CNT}, s{S_CNT}, 1", "    s_waitcnt lgkmcnt(0)",
                       f"    v_readfirstlane_b32 s{S_T1}, v{VT0}", f"    s_cmp_ge_u32 s{S_CNT}, 0x800000", f"    s_cbranch_scc1 L_back{j}",
                       f"    s_cmp_gt_u32 s{S_T1}, {j}", f"    s_cbranch_scc0 L_spin{j}_l", f"    s_branch L_back{j}"]
    if i == last[blk]: pend.append([i + 3, epi(blk)])
    budget = 4
    while pend and pend[0][0] <= i and budget > 0:
        items = pend[0][1]
        if not items: pend.pop(0); continue
        k, x = items[0]
        if k == "d": items.pop(0); pend[0][0] = i + 1; break
        if k == "m" and len(C.lq) >= 14: break
        items.pop(0)
        if k == "v": C.e(x)
        else: x()
        budget -= 1
        if items and k == "v" and items[0][0] == "m": break
C.stamp()
C.e("s_nop 11")
for _, items in pend:
    for k, x in items:
        if k == "v": C.e(x)
        elif k == "m": x()
C.stamp()
if P["stamps"]:
    C.e("s_waitcnt vmcnt(0)"); C.stamp()
C.dump_stamps()
C.e("s_endpgm")

nm = P["name"]
hdr = open("standalone__edm_precond__diffusion.s.ref").read().split("; Override")[0]
out = [hdr.rstrip(),
       "; generated by gen/gen.py  " + " ".join(sys.argv[1:]),
       f"; @launch grid=(256,1,1) block=(512,1,1) lds={LDS_TOTAL}",
       '.amdgcn_target "amdgcn-amd-amdhsa--gfx950"', ".text", f".globl {nm}_kernel", ".p2align 8",
       f".type {nm}_kernel,@function", f"{nm}_kernel:"]
out += h.l + L.l + C.l + C.tail + ["L_end:"]
out += ['.section .rodata,"a"', ".p2align 6", f".amdhsa_kernel {nm}_kernel",
        "  .amdhsa_next_free_vgpr 256", "  .amdhsa_next_free_sgpr 102", "  .amdhsa_accum_offset 256",
        "  .amdhsa_group_segment_fixed_size 0", "  .amdhsa_kernarg_size 64", "  .amdhsa_user_sgpr_count 2",
        "  .amdhsa_user_sgpr_kernarg_segment_ptr 1", "  .amdhsa_system_sgpr_workgroup_id_x 1", ".end_amdhsa_kernel"]
print("\n".join(out))
```

```python
import sys, json

P = dict(ntx=0, outpol="sc1", D=3, stamps=0, wo_touch=16, codepf=1,
         fl=(2, 3, 10, 22),
         chk=(22, 34, 46, 64),
         name="standalone__edm_precond__diffusion")
for a in sys.argv[1:]:
    k, v = a.split("=", 1)
    try: P[k] = json.loads(v)
    except Exception: P[k] = v

POL = {"plain": "", "sc1": " sc1", "nt": " nt", "ntsc1": " sc1 nt"}
FLAG_OFF = 0x800000
WS_BYTES = 0x808000
STAMP_OFF = 0x900000
LDS_MISC = 131072
LDS_BIAS = LDS_MISC
LDS_RDY = LDS_MISC + 2048
LDS_STG = LDS_MISC + 4096
LDS_TOTAL = LDS_STG + 4 * 2 * 2560

class Prog:
    def __init__(s):
        s.l = []; s.lq = []; s.vq = []; s.smem = False; s.nst = 0; s.tail = []
    def e(s, t): s.l.append("    " + t)
    def lab(s, t): s.l.append(t + ":")
    def c(s, t): s.l.append("    ; " + t)
    def lds(s, t, tag):
        s.e(t); s.lq.append(tag)
        assert len(s.lq) <= 15, "too many LDS ops outstanding"
    def vm(s, t, tag):
        s.e(t); s.vq.append(tag); assert len(s.vq) <= 63
    def need(s, *tags):
        idx = max([i for i, t in enumerate(s.lq) if t in tags], default=-1)
        if idx < 0: return False
        n = len(s.lq) - 1 - idx
        if s.smem: n = 0; s.smem = False
        s.e(f"s_waitcnt lgkmcnt({n})"); s.lq = s.lq[len(s.lq) - n:] if n else []
        return True
    def vneed(s, *tags):
        idx = max([i for i, t in enumerate(s.vq) if t in tags], default=-1)
        if idx < 0: return False
        n = len(s.vq) - 1 - idx
        s.e(f"s_waitcnt vmcnt({n})"); s.vq = s.vq[len(s.vq) - n:] if n else []
        return True
    def stamp(s):
        if P["stamps"]:
            s.e(f"s_memtime s[{60 + 2 * s.nst}:{61 + 2 * s.nst}]"); s.nst += 1; s.smem = True
            assert s.nst <= 20
    def dump_stamps(s):
        if not P["stamps"]: return
        s.e("s_waitcnt lgkmcnt(0) vmcnt(0)")
        s.e("v_mov_b32 v14, 0")
        for i in range(1, s.nst):
            s.e(f"s_sub_u32 s{60+2*i}, s{60+2*i}, s60")
            s.e(f"v_writelane_b32 v14, s{60+2*i}, {i}")
        s.e("s_lshl_b32 s3, s2, 11")
        s.e(f"s_add_u32 s3, s3, {STAMP_OFF}")
        s.e("v_lshl_add_u32 v15, v0, 2, s3")
        s.e("global_store_dword v15, v14, s[18:19]")

def q4(r): return f"v[{r}:{r+3}]"
def q2(r): return f"v[{r}:{r+1}]"
def q16(r): return f"v[{r}:{r+15}]"

S_W, S_Q, S_GL, S_G, S_B = 22, 23, 24, 25, 26
S_TILE = 27
SRD_A, SRD_B, SRD_C, SRD_D = 28, 32, 36, 40
S_T0, S_T1, S_T2, S_T3 = 44, 45, 46, 47
S_S1, S_IK = 48, 50
S_MSK = 52
S_PM = (54, 55, 56, 57)
S_CNT = 58

def srd(p, d, lo, nbytes):
    p.e(f"s_mov_b32 s{d}, s{lo}"); p.e(f"s_mov_b32 s{d+1}, s{lo+1}")
    p.e(f"s_mov_b32 s{d+2}, {hex(nbytes)}"); p.e(f"s_mov_b32 s{d+3}, 0x20000")
def sq(d): return f"s[{d}:{d+3}]"

h = Prog()
h.stamp()
h.e("s_load_dwordx16 s[4:19], s[0:1], 0")
h.e("s_cmp_ge_u32 s2, 0x100")
h.e("s_cbranch_scc1 L_exit")
h.e("v_lshrrev_b32 v2, 6, v0")
h.e("v_and_b32 v1, 63, v0")
h.e(f"v_readfirstlane_b32 s{S_W}, v2")
h.e(f"s_lshr_b32 s{S_T0}, s2, 3")
if P["codepf"]:
    h.c("pull this kernel's code into the L2 (one 64-byte piece per wave)")
    h.e("s_getpc_b64 s[20:21]")
    h.lab("L_pc")
    h.e(f"s_lshl_b32 s{S_T1}, s{S_T0}, 3")
    h.e(f"v_add_lshl_u32 v3, v2, s{S_T1}, 6")
    h.e("v_min_u32 v3, L_end-L_pc-4, v3")
    h.e("global_load_dword v15, v3, s[20:21]")
h.e(f"s_and_b32 s{S_Q}, s{S_T0}, 3")
h.e(f"s_lshr_b32 s{S_GL}, s{S_T0}, 2")
h.e(f"s_and_b32 s{S_T1}, s2, 7")
h.e(f"s_lshl_b32 s{S_G}, s{S_GL}, 3")
h.e(f"s_add_u32 s{S_G}, s{S_G}, s{S_T1}")
h.e(f"s_lshr_b32 s{S_B}, s{S_G}, 5")
h.e(f"s_lshl_b32 s{S_TILE}, s{S_B}, 22")
h.e(f"s_and_b32 s{S_T1}, s{S_G}, 31")
h.e(f"s_lshl_b32 s{S_T1}, s{S_T1}, 8")
h.e(f"s_add_u32 s{S_TILE}, s{S_TILE}, s{S_T1}")
h.e(f"s_cmp_lt_u32 s{S_W}, 4")
h.e("s_cbranch_scc1 L_compute")

L = Prog(); L.nst = h.nst
if P["codepf"]: L.vq.append("code")
L.c("---------------- loader waves")
L.e(f"s_sub_u32 s{S_W}, s{S_W}, 4")
L.e("v_lshrrev_b32 v4, 4, v1")
L.e("v_lshlrev_b32 v4, 6, v4")
L.e("v_and_b32 v6, 3, v1")
L.e("v_lshl_add_u32 v4, v6, 4, v4")
L.e("v_bfe_u32 v5, v1, 2, 2")
L.e(f"s_lshl_b32 s{S_T0}, s{S_W}, 2")
L.e(f"v_add_u32 v5, s{S_T0}, v5")
L.e("v_lshl_add_u32 v2, v5, 13, v4")
L.e(f"v_add_u32 v2, s{S_TILE}, v2")
L.e("v_lshl_add_u32 v3, v5, 10, v4")
L.e(f"s_lshl_b32 s{S_T0}, s{S_Q}, 8")
L.e(f"v_add_u32 v3, s{S_T0}, v3")
L.e(f"s_lshl_b32 s{S_T3}, s{S_W}, 10")
L.e(f"s_mov_b32 s{S_T0}, 0")
L.e(f"s_mov_b32 s{S_T1}, 0")
L.e(f"s_lshl_b32 s{S_T2}, s{S_Q}, 17")
L.e("s_waitcnt lgkmcnt(0)")
srd(L, SRD_A, 4, 0x800000); srd(L, SRD_B, 8, 0x80000)
ntx = " nt" if P["ntx"] else ""
def ld_chunk(n):
    if n < 16:
        for s in (2 * n, 2 * n + 1):
            base = (s % 16) * 8192
            L.e(f"s_add_u32 m0, s{S_T3}, {base}")
            if s: L.e(f"s_add_u32 s{S_T0}, s{S_T0}, 0x20000")
            else: L.e("s_nop 0")
            L.vm(f"buffer_load_dwordx4 v2, {sq(SRD_A)}, s{S_T0} offen{ntx} lds", ("c", n))
            L.e(f"s_add_u32 m0, s{S_T3}, {base + 4096}")
            if s: L.e(f"s_add_u32 s{S_T1}, s{S_T1}, 0x4000")
            else: L.e("s_nop 0")
            L.vm(f"buffer_load_dwordx4 v3, {sq(SRD_B)}, s{S_T1} offen lds", ("c", n))
    else:
        for p in range(4 * (n - 16), 4 * (n - 16) + 4):
            L.e(f"s_add_u32 m0, s{S_T3}, {p * 4096}")
            if p:
                L.e(f"s_add_u32 s{S_T2}, s{S_T2}, 0x4000")
                L.e(f"s_and_b32 s{S_T2}, s{S_T2}, 0x7ffff")
            else: L.e("s_nop 0")
            L.vm(f"buffer_load_dwordx4 v3, {sq(SRD_C)}, s{S_T2} offen lds", ("c", n))
D = P["D"]
for n in range(D): ld_chunk(n)
L.stamp()
srd(L, SRD_C, 12, 0x80000)
L.c("ready word of this wave pair = 0; addresses of the group's debug word and flag line")
L.e(f"s_lshl_b32 s{S_CNT}, s{S_W}, 2")
L.e(f"s_add_u32 s{S_CNT}, s{S_CNT}, {LDS_RDY}")
L.e(f"v_mov_b32 v8, s{S_CNT}")
L.e("v_mov_b32 v9, 0")
L.e("ds_write_b32 v8, v9")
L.e(f"s_lshl_b32 s{S_CNT}, s{S_G}, 2")
L.e(f"v_mov_b32 v10, s{S_CNT}")
L.e(f"s_add_u32 s{S_CNT}, s{S_CNT}, s{S_W}")
L.e(f"s_lshl_b32 s{S_CNT}, s{S_CNT}, 7")
L.e(f"s_add_u32 s{S_CNT}, s{S_CNT}, {FLAG_OFF}")
L.e(f"v_mov_b32 v11, s{S_CNT}")
L.e("s_waitcnt lgkmcnt(0)")
nxt = D
for c in range(16):
    L.vneed(("c", c))
    if c in (0, 8, 15): L.stamp()
    L.e("s_barrier")
    if c == 11:
        L.vm("global_load_dword v12, v10, s[16:17] sc1", "dbg")
    lim = c + D
    while nxt <= lim:
        ld_chunk(nxt); nxt += 1
L.c("the group's flag words were cleared in this launch before anyone stores or polls them")
L.vneed("dbg")
L.e(f"s_mov_b32 s{S_CNT}, 0")
L.lab("L_dbg")
L.e(f"v_readfirstlane_b32 s{S_T0}, v12")
L.e(f"s_cmp_lg_u32 s{S_T0}, 0")
L.e("s_cbranch_scc1 L_dbg_ok")
L.e("global_load_dword v12, v10, s[16:17] sc1")
L.e("s_waitcnt vmcnt(0)")
L.e(f"s_add_u32 s{S_CNT}, s{S_CNT}, 1")
L.e(f"s_cmp_lt_u32 s{S_CNT}, 0x100000")
L.e("s_cbranch_scc1 L_dbg")
L.lab("L_dbg_ok")
L.e("s_barrier")
while nxt < 24:
    ld_chunk(nxt); nxt += 1
L.e("s_waitcnt vmcnt(0)"); L.vq = []
L.stamp()
L.e("s_barrier")
L.e(f"s_mov_b32 s{S_CNT}, 0")
L.lab("L_poll")
L.e("global_load_dwordx4 v[16:19], v11, s[18:19] sc1")
L.e(f"s_add_u32 s{S_CNT}, s{S_CNT}, 1")
L.e("s_waitcnt vmcnt(0)")
L.e("v_min_u32 v16, v16, v17")
L.e("v_min3_u32 v16, v16, v18, v19")
L.e("ds_write_b32 v8, v16")
L.e(f"v_readfirstlane_b32 s{S_T0}, v16")
L.e(f"s_cmp_ge_u32 s{S_CNT}, 0x100000")
L.e("s_cbranch_scc1 L_poll_done")
L.e(f"s_cmp_lt_u32 s{S_T0}, 4")
L.e("s_cbranch_scc1 L_poll")
L.lab("L_poll_done")
L.stamp()
L.dump_stamps()
L.lab("L_exit")
L.e("s_endpgm")

C = Prog(); C.nst = h.nst
if P["codepf"]: C.vq.append("code")
aW0, aW1, aX0, aX1, VO0, VO1, VFL, VFV, VSW, VSR, VOUT, VRDY, VT0, VT1 = 2, 3, 4, 5, 6, 7, 8, 9, 10, 11, 12, 13, 14, 15
RA, RB, RF, RX, RS, RH = 16, 80, 144, 184, 216, 224
SRD_WS, SRD_OUT, SRD_DBG, SRD_WO = SRD_A, SRD_B, SRD_C, SRD_D
C.lab("L_compute")
C.c("---------------- compute waves")
T = RH
C.e(f"v_lshrrev_b32 v{T}, 5, v1")
C.e(f"v_bfe_u32 v{T+1}, v1, 2, 2")
C.e(f"v_lshlrev_b32 v{T+1}, 6, v{T+1}")
C.e(f"v_lshl_add_u32 v{aW0}, v{T}, 10, v{T+1}")
C.e(f"v_bfe_u32 v{T+1}, v1, 4, 1")
C.e(f"v_lshl_add_u32 v{aW0}, v{T+1}, 5, v{aW0}")
C.e(f"v_and_b32 v{T+1}, 3, v1")
C.e(f"v_lshl_add_u32 v{aW0}, v{T+1}, 3, v{aW0}")
C.e(f"v_add_u32 v{aW1}, 0x10000, v{aW0}")
C.e(f"s_lshl_b32 s{S_T0}, s{S_W}, 8")
C.e(f"v_add_u32 v{aX0}, s{S_T0}, v{aW0}")
C.e(f"v_add_u32 v{aX1}, s{S_T0}, v{aW1}")
C.e(f"v_lshlrev_b32 v{VO0}, 4, v1")
C.e(f"v_add_u32 v{VO1}, 0x1000, v{VO0}")
C.e(f"s_lshl_b32 s{S_T0}, s{S_Q}, 8")
C.e(f"v_lshl_add_u32 v{T+2}, v1, 2, s{S_T0}")
C.e(f"s_lshl_b32 s{S_T0}, s{S_B}, 1")
C.e(f"v_mov_b32 v{T+3}, s{S_T0}")
C.e(f"s_or_b32 s{S_T0}, s{S_Q}, s{S_W}")
C.e(f"s_cmp_eq_u32 s{S_T0}, 0")
C.e(f"s_cselect_b32 s{S_T0}, 4, 0")
C.e(f"s_cselect_b32 s{S_T1}, 1, 0")
C.e(f"s_lshl_b32 s{S_T2}, s{S_G}, 9")
C.e(f"s_add_u32 s{S_T2}, s{S_T2}, {FLAG_OFF}")
C.e(f"v_lshl_add_u32 v{T+4}, v1, 7, s{S_T2}")
C.e(f"v_cmp_gt_u32 vcc, s{S_T0}, v1")
C.e(f"v_mov_b32 v{T+8}, 0"); C.e(f"v_mov_b32 v{T+9}, 0")
C.e(f"v_cndmask_b32 v{T+4}, 2.0, v{T+4}, vcc")
C.e(f"v_cmp_gt_u32 vcc, s{S_T1}, v1")
C.e(f"v_mov_b32 v{T+10}, 0"); C.e(f"v_mov_b32 v{T+11}, 0")
C.e(f"s_lshl_b32 s{S_T0}, s{S_G}, 2")
C.e(f"v_mov_b32 v{T+5}, s{S_T0}")
C.e(f"v_cndmask_b32 v{T+5}, 2.0, v{T+5}, vcc")
C.e("s_waitcnt lgkmcnt(0)")
srd(C, SRD_WS, 18, WS_BYTES)
C.vm(f"buffer_store_dwordx4 {q4(T+8)}, v{T+4}, {sq(SRD_WS)}, 0 offen sc1", "clr")
C.vm(f"global_load_ushort v{T+6}, v{T+3}, s[6:7]", "sig")
C.vm(f"global_load_dword v{T+7}, v{T+2}, s[10:11]", "emb")
srd(C, SRD_OUT, 14, 0x800000); srd(C, SRD_DBG, 16, 256); srd(C, SRD_WO, 12, 0x80000)
C.e(f"s_lshl_b32 s{S_T0}, s{S_W}, 7")
C.e(f"s_add_u32 s{S_T2}, s{S_T2}, s{S_T0}")
C.e(f"s_lshl_b32 s{S_T0}, s{S_Q}, 2")
C.e(f"s_add_u32 s{S_T2}, s{S_T2}, s{S_T0}")
C.e(f"v_mov_b32 v{VFL}, s{S_T2}")
C.e("v_cmp_eq_u32 vcc, 0, v1")
for m in range(4):
    C.e(f"s_add_u32 s{S_T0}, s{S_Q}, {m}")
    C.e(f"s_and_b32 s{S_T0}, s{S_T0}, 3")
    C.e(f"s_lshl_b32 s{S_T1}, s{S_G}, 2")
    C.e(f"s_add_u32 s{S_T0}, s{S_T0}, s{S_T1}")
    C.e(f"s_lshl_b32 s{S_T0}, s{S_T0}, 2")
    C.e(f"s_add_u32 s{S_T0}, s{S_T0}, s{S_W}")
    C.e(f"s_lshl_b32 s{S_PM[m]}, s{S_T0}, 13")
C.e(f"v_cndmask_b32 v{VFL}, 2.0, v{VFL}, vcc")
C.e(f"s_mul_i32 s{S_T0}, s{S_W}, 5120")
C.e(f"s_add_u32 s{S_T0}, s{S_T0}, {LDS_STG}")
C.e(f"v_and_b32 v{T+12}, 31, v1")
C.e(f"v_mul_u32_u24 v{VSW}, 80, v{T+12}")
C.e(f"v_lshl_add_u32 v{VSW}, v{T}, 3, v{VSW}")
C.e(f"v_add_u32 v{VSW}, s{S_T0}, v{VSW}")
C.e(f"v_lshrrev_b32 v{T+13}, 2, v1")
C.e(f"v_mul_u32_u24 v{VSR}, 80, v{T+13}")
C.e(f"v_lshl_add_u32 v{VSR}, v{T+1}, 4, v{VSR}")
C.e(f"v_add_u32 v{VSR}, s{S_T0}, v{VSR}")
C.e(f"s_lshl_b32 s{S_T0}, s{S_Q}, 20")
C.e(f"s_add_u32 s{S_T0}, s{S_T0}, s{S_TILE}")
C.e(f"s_lshl_b32 s{S_T1}, s{S_W}, 6")
C.e(f"s_add_u32 s{S_T0}, s{S_T0}, s{S_T1}")
C.e(f"v_lshlrev_b32 v{VOUT}, 13, v{T+13}")
C.e(f"v_lshl_add_u32 v{VOUT}, v{T+1}, 4, v{VOUT}")
C.e(f"v_add_u32 v{VOUT}, s{S_T0}, v{VOUT}")
C.e(f"s_lshl_b32 s{S_T0}, s{S_W}, 2")
C.e(f"s_add_u32 s{S_T0}, s{S_T0}, {LDS_RDY}")
C.e(f"v_mov_b32 v{VRDY}, s{S_T0}")
C.e(f"s_lshl_b32 s{S_T0}, s{S_GL}, 16")
C.e(f"s_lshl_b32 s{S_T1}, s{S_W}, 14")
C.e(f"s_add_u32 s{S_T0}, s{S_T0}, s{S_T1}")
C.e(f"s_lshl_b32 s{S_T1}, s{S_Q}, 8")
C.e(f"s_add_u32 s{S_T0}, s{S_T0}, s{S_T1}")
C.e(f"v_lshlrev_b32 v{T+14}, 10, v{T+13}")
C.e(f"v_lshl_add_u32 v{T+14}, v{T+1}, 6, v{T+14}")
C.e(f"v_add_u32 v{T+14}, s{S_T0}, v{T+14}")
C.e(f"s_lshl_b32 s{S_T0}, s{S_W}, 9")
C.e(f"s_add_u32 s{S_T0}, s{S_T0}, {LDS_BIAS}")
C.e(f"v_lshl_add_u32 v{T+15}, v1, 3, s{S_T0}")
C.e(f"v_lshl_add_u32 v{T+16}, v{T}, 4, s{S_T0}")
C.e(f"v_lshrrev_b32 v{T+17}, 1, v{T+12}")
C.e(f"v_lshlrev_b32 v{T+18}, 1, v{T}")
C.e(f"v_sub_u32 v{T+17}, v{T+17}, v{T+18}")
C.e(f"v_and_b32 v{T+18}, 1, v1")
C.e(f"v_lshlrev_b32 v{T+18}, 4, v{T+18}")

sg, a, b2, cs, cn = T + 6, T + 20, T + 21, T + 22, T + 23
def rnd(r): return [f"v_cvt_pk_bf16_f32 v{r}, v{r}, v{r}", f"v_lshlrev_b32 v{r}, 16, v{r}"]
F = []
F.append(lambda: C.vneed("clr", "sig", "emb"))
F.append(f"v_mov_b32 v{T+8}, 1")
F.append(lambda: C.vm(f"buffer_store_dword v{T+8}, v{T+5}, {sq(SRD_DBG)}, 0 offen sc1", "dbgst"))
F += [f"v_lshlrev_b32 v{sg}, 16, v{sg}", f"v_mul_f32 v{a}, v{sg}, v{sg}"] + rnd(a)
F += [f"v_add_f32 v{a}, 0x3e800000, v{a}"] + rnd(a)
F += [f"v_rcp_f32 v{cs}, v{a}", f"v_sqrt_f32 v{a}, v{a}"] + rnd(cs) + rnd(a)
F += [f"v_mul_f32 v{cs}, 0x3e800000, v{cs}", f"v_rcp_f32 v{a}, v{a}", f"v_lshrrev_b32 v{cs}, 16, v{cs}"]
F += [f"v_mul_f32 v{b2}, 0.5, v{sg}", f"v_mul_f32 v{b2}, v{b2}, v{a}"] + rnd(b2) + rnd(a)
F += [f"v_log_f32 v{cn}, v{sg}", f"v_mul_f32 v{a}, 0xbfb8aa3b, v{a}", f"v_mul_f32 v{cn}, 0x3f317218, v{cn}"] + rnd(cn)
F += [f"v_max_f32 v{b2}, 0x03800000, v{b2}", f"v_mul_f32 v{b2}, 0xbf317218, v{b2}", f"v_rcp_f32 v{b2}, v{b2}"]
F += [f"v_mul_f32 v{cn}, 0x3e800000, v{cn}"]
F += [f"v_readfirstlane_b32 s{S_S1}, v{a}", f"v_readfirstlane_b32 s{S_S1+1}, v{a}",
      f"v_readfirstlane_b32 s{S_IK}, v{b2}", f"v_readfirstlane_b32 s{S_IK+1}, v{b2}"]
e0, e1 = T + 24, T + 25
F += [f"v_lshlrev_b32 v{e0}, 16, v{T+7}", f"v_and_b32 v{e1}, 0xffff0000, v{T+7}",
      f"v_mul_f32 v{e0}, v{cn}, v{e0}", f"v_mul_f32 v{e1}, v{cn}, v{e1}",
      f"v_cvt_pk_bf16_f32 v{e1}, v{e0}, v{e1}", f"v_lshlrev_b32 v{e0}, 16, v{e1}", f"v_and_b32 v{e1}, 0xffff0000, v{e1}",
      f"v_mul_f32 v{e0}, 0xbfb8aa3b, v{e0}", f"v_mul_f32 v{e1}, 0xbfb8aa3b, v{e1}"]
F.append(("lds", f"ds_write_b64 v{T+15}, {q2(e0)}", "biasw"))
for i in range(16):
    F.append(("lds", f"ds_read_b128 {q4(RB + 4 * i)}, v{T+16} offset:{i * 32}", "bias"))
F.append(f"v_lshlrev_b32 v{cs}, v{T+18}, v{cs}")
for t in range(2):
    for d in range(4):
        F.append(f"v_cmp_eq_u32 vcc, {8 * t + (0, 1, 4, 5)[d]}, v{T+17}")
        F.append(f"v_cndmask_b32 v{RS + 4 * t + d}, 0, v{cs}, vcc")
F_START = 8
assert len(F) + F_START <= 124, len(F)

def rd_x(s, i):
    base = (s % 16) * 8192; a_ = aX0 if base < 65536 else aX1
    r = RF + 20 * (s & 1) + 2 * i
    C.lds(f"ds_read_b64_tr_b16 {q2(r)}, v{a_} offset:{base % 65536 + 2048 * i}", ("x", s))
def rd_w(s, j, i):
    base = (s % 16) * 8192; a_ = aW0 if base < 65536 else aW1
    r = RF + 20 * (s & 1) + 4 + 4 * j + 2 * i
    C.lds(f"ds_read_b64_tr_b16 {q2(r)}, v{a_} offset:{base % 65536 + 4096 + 256 * j + 2048 * i}", ("w", s, j))
def reads(s): return [lambda i=i: rd_x(s, i) for i in range(2)] + [lambda j=j, i=i: rd_w(s, j, i) for j in range(4) for i in range(2)]

C.stamp()
C.e("s_barrier")
C.stamp()
for r in reads(0): r()
gap = 0
for s in range(32):
    if s % 2 == 1 and s < 31: C.e("s_barrier")
    if s % 8 == 0:
        C.e(f"s_cmp_eq_u32 s{S_Q}, {s // 8}")
        C.e(f"s_cselect_b64 s[{S_MSK}:{S_MSK+1}], -1, 0")
    rl = reads(s + 1) if s < 31 else []
    split = (3, 3, 2, 2)
    for j in range(4):
        C.need(("x", s), ("w", s, j))
        fb = RF + 20 * (s & 1)
        cin = "0" if s == 0 else q16(RA + 16 * j)
        C.e(f"v_mfma_f32_32x32x16_bf16 {q16(RA + 16 * j)}, {q4(fb + 4 + 4 * j)}, {q4(fb)}, {cin}")
        for _ in range(split[j]):
            if rl: rl.pop(0)()
        f = F.pop(0) if (gap >= F_START and F) else None
        if f is not None and not isinstance(f, str):
            if isinstance(f, tuple): C.lds(f[1], f[2])
            else: f()
            f = None
        if s == P["wo_touch"] and j == 0:
            C.vm(f"buffer_load_dword v{VT1}, v{T+14}, {sq(SRD_WO)}, 0 offen", "touch")
        if j < 3: C.need(("x", s), ("w", s, j + 1))
        elif s < 31 and not (s % 2 == 0): C.need(("x", s + 1), ("w", s + 1, 0))
        if f: C.e(f)
        xr = RX + 4 * (s % 8) + j
        C.e(f"v_cndmask_b32 v{xr}, v{xr}, v{fb + j}, s[{S_MSK}:{S_MSK+1}]")
        gap += 1
assert not F
C.need("bias")
assert not C.lq
C.e("s_barrier")
C.stamp()
C.e("s_nop 7")

def flag(j):
    C.vneed(("st", j))
    C.e(f"v_mov_b32 v{VFV}, {j + 1}")
    C.vm(f"buffer_store_dword v{VFV}, v{VFL}, {sq(SRD_WS)}, 0 offen sc1", ("fl", j))

C.c("---- h = c_out * silu(c_in * acc + bias), two elements per packed op")
for blk in range(4):
    A_, B_ = RA + 16 * blk, RB + 16 * blk
    for g in range(0, 16, 4):
        for o in (0, 2): C.e(f"v_pk_fma_f32 {q2(B_+g+o)}, {q2(A_+g+o)}, s[{S_S1}:{S_S1+1}], {q2(B_+g+o)}")
        for o in range(4): C.e(f"v_exp_f32 v{A_+g+o}, v{B_+g+o}")
        if g:
            for o in (0, 2): C.e(f"v_cvt_pk_bf16_f32 v{RH + 8*blk + (g-4+o)//2}, v{A_+g-4+o}, v{A_+g-4+o+1}")
        else: C.e("s_nop 0")
        for o in (0, 2): C.e(f"v_pk_fma_f32 {q2(A_+g+o)}, {q2(A_+g+o)}, s[{S_IK}:{S_IK+1}], s[{S_IK}:{S_IK+1}]")
        for o in range(4): C.e(f"v_rcp_f32 v{A_+g+o}, v{A_+g+o}")
        if g == 8:
            fr = 2 * blk
            C.vm(f"buffer_store_dwordx4 {q4(RH + 4*fr)}, v{VO0 if fr < 4 else VO1}, {sq(SRD_WS)}, s{S_PM[0]} offen offset:{(fr % 4) * 1024} sc1", ("st", blk))
        else: C.e("s_nop 0")
        for o in (0, 2): C.e(f"v_pk_mul_f32 {q2(A_+g+o)}, {q2(A_+g+o)}, {q2(B_+g+o)}")
    for o in (0, 2): C.e(f"v_cvt_pk_bf16_f32 v{RH + 8*blk + (12+o)//2}, v{A_+12+o}, v{A_+12+o+1}")
    fr = 2 * blk + 1
    C.vm(f"buffer_store_dwordx4 {q4(RH + 4*fr)}, v{VO0 if fr < 4 else VO1}, {sq(SRD_WS)}, s{S_PM[0]} offen offset:{(fr % 4) * 1024} sc1", ("st", blk))
    for j in range(4):
        if P["fl"][j] == blk: flag(j)
C.stamp()
C.e("s_barrier")
C.stamp()

quads = [RB + 4 * i for i in range(16)] + [RX + 4 * i for i in range(8)]
def hq(j, m, t): return quads[6 * j + 2 * (m - 1) + t]
units = []
for t in range(2):
    for blk in range(4): units.append((blk, RX + 4 * (2 * blk + t), ("sel", t), t == 0, None))
for ks in range(8):
    for blk in range(4): units.append((blk, RH + 4 * ks, (ks, blk), False, None))
for j in range(3):
    for m in (1, 2, 3):
        for t in range(2):
            for blk in range(4): units.append((blk, hq(j, m, t), (8 * m + 2 * j + t, blk), False, (j, m, t)))
for blk in range(4):
    for m in (1, 2, 3):
        for t in range(2): units.append((blk, hq(3, m, t), (8 * m + 6 + t, blk), False, (3, m, t)))
wl = [i for i, u in enumerate(units) if u[2][0] != "sel"]
slot = {i: RF + 4 * (n % 10) for n, i in enumerate(wl)}
def rd_o(i):
    p, blk = units[i][2]; base = p * 4096; a_ = aW0 if base < 65536 else aW1
    for k in range(2):
        C.lds(f"ds_read_b64_tr_b16 {q2(slot[i] + 2 * k)}, v{a_} offset:{base % 65536 + 256 * blk + 2048 * k}", ("o", i))
PF = 4
last = {blk: max(i for i, u in enumerate(units) if u[0] == blk) for blk in range(4)}
opol = POL[P["outpol"]]
def epi(blk):
    tmp = RB + 8 * blk; dat = RH + 8 * blk; so = (blk & 1) * 2560; r = []
    for g in range(4):
        for o in (0, 2): r.append(("v", f"v_cvt_pk_bf16_f32 v{tmp + 2*g + o//2}, v{RA + 16*blk + 4*g + o}, v{RA + 16*blk + 4*g + o + 1}"))
    for g in range(4): r.append(("m", lambda g=g: C.lds(f"ds_write_b64 v{VSW}, {q2(tmp + 2*g)} offset:{so + 16*g}", ("sw", blk))))
    for k in range(2): r.append(("m", lambda k=k: C.lds(f"ds_read_b128 {q4(dat + 4*k)}, v{VSR} offset:{so + 1280*k}", ("sr", blk, k))))
    def st(k):
        C.e(f"s_mov_b32 s{S_T0}, {hex((32 * blk + 16 * k) * 8192)}")
        C.need(("sr", blk, k))
        C.vm(f"buffer_store_dwordx4 {q4(dat + 4*k)}, v{VOUT}, {sq(SRD_OUT)}, s{S_T0} offen{opol}", ("out", blk))
    r.append(("d", None))
    for k in range(2): r.append(("m", lambda k=k: st(k)))
    return r
pend = []
nrd = 0
for i, u in enumerate(units):
    blk, ar, wf, first, stg = u
    if stg is not None: C.vneed(("pl",) + stg)
    if wf[0] == "sel": br = RS + 4 * wf[1]
    else:
        C.need(("o", i)); br = slot[i]
    C.e(f"v_mfma_f32_32x32x16_bf16 {q16(RA + 16*blk)}, {q4(ar)}, {q4(br)}, {'0' if first else q16(RA + 16*blk)}")
    if nrd < len(wl) and wl[nrd] <= i + PF + (0 if i >= 4 else 4 - i + 0):
        rd_o(wl[nrd]); nrd += 1
    for j in range(4):
        if P["fl"][j] - 4 == i: flag(j)
        if P["chk"][j] - 2 == i: C.lds(f"ds_read_b32 v{VT0}, v{VRDY}", ("rdy", j))
        if P["chk"][j] == i:
            C.need(("rdy", j))
            C.e(f"v_readfirstlane_b32 s{S_T1}, v{VT0}")
            C.e(f"s_cmp_gt_u32 s{S_T1}, {j}")
            C.e(f"s_cbranch_scc0 L_spin{j}")
            C.lab(f"L_back{j}")
            C.stamp()
            for m in (1, 2, 3):
                for t in range(2):
                    fr = 2 * j + t
                    C.vm(f"buffer_load_dwordx4 {q4(hq(j, m, t))}, v{VO0 if fr < 4 else VO1}, {sq(SRD_WS)}, s{S_PM[m]} offen offset:{(fr % 4) * 1024} sc1", ("pl", j, m, t))
            C.tail += [f"L_spin{j}:", f"    s_mov_b32 s{S_CNT}, 0", f"L_spin{j}_l:",
                       f"    ds_read_b32 v{VT0}, v{VRDY}", f"    s_add_u32 s{S_CNT}, s{S_CNT}, 1", "    s_waitcnt lgkmcnt(0)",
                       f"    v_readfirstlane_b32 s{S_T1}, v{VT0}", f"    s_cmp_ge_u32 s{S_CNT}, 0x800000", f"    s_cbranch_scc1 L_back{j}",
                       f"    s_cmp_gt_u32 s{S_T1}, {j}", f"    s_cbranch_scc0 L_spin{j}_l", f"    s_branch L_back{j}"]
    if i == last[blk]: pend.append([i + 3, epi(blk)])
    budget = 4
    while pend and pend[0][0] <= i and budget > 0:
        items = pend[0][1]
        if not items: pend.pop(0); continue
        k, x = items[0]
        if k == "d": items.pop(0); pend[0][0] = i + 1; break
        if k == "m" and len(C.lq) >= 14: break
        items.pop(0)
        if k == "v": C.e(x)
        else: x()
        budget -= 1
        if items and k == "v" and items[0][0] == "m": break
C.stamp()
C.e("s_nop 11")
for _, items in pend:
    for k, x in items:
        if k == "v": C.e(x)
        elif k == "m": x()
C.stamp()
if P["stamps"]:
    C.e("s_waitcnt vmcnt(0)"); C.stamp()
if P.get("pad"):
    C.e(f"s_mov_b32 s{S_CNT}, {P['pad']}")
    C.lab("L_pad")
    for _ in range(4): C.e(f"v_mfma_f32_32x32x16_bf16 {q16(RA)}, {q4(RF)}, {q4(RF)}, {q16(RA)}")
    C.e(f"s_sub_u32 s{S_CNT}, s{S_CNT}, 1")
    C.e(f"s_cmp_lg_u32 s{S_CNT}, 0")
    C.e("s_cbranch_scc1 L_pad")
C.dump_stamps()
C.e("s_endpgm")

nm = P["name"]
hdr = open("standalone__edm_precond__diffusion.s.ref").read().split("; Override")[0]
out = [hdr.rstrip(),
       "; generated by gen/gen.py  " + " ".join(sys.argv[1:]),
       f"; @launch grid=(256,1,1) block=(512,1,1) lds={LDS_TOTAL}",
       '.amdgcn_target "amdgcn-amd-amdhsa--gfx950"', ".text", f".globl {nm}_kernel", ".p2align 8",
       f".type {nm}_kernel,@function", f"{nm}_kernel:"]
out += h.l + L.l + C.l + C.tail + ["L_end:"]
out += ['.section .rodata,"a"', ".p2align 6", f".amdhsa_kernel {nm}_kernel",
        "  .amdhsa_next_free_vgpr 256", "  .amdhsa_next_free_sgpr 102", "  .amdhsa_accum_offset 256",
        "  .amdhsa_group_segment_fixed_size 0", "  .amdhsa_kernarg_size 64", "  .amdhsa_user_sgpr_count 2",
        "  .amdhsa_user_sgpr_kernarg_segment_ptr 1", "  .amdhsa_system_sgpr_workgroup_id_x 1", ".end_amdhsa_kernel"]
print("\n".join(out))
```

```python
import sys, json

P = dict(ntx=0, outpol="sc1", D=3, stamps=0, wo_touch=16, codepf=1,
         fl=(2, 3, 10, 22),
         chk=(22, 34, 46, 64),
         name="standalone__edm_precond__diffusion")
for a in sys.argv[1:]:
    k, v = a.split("=", 1)
    try: P[k] = json.loads(v)
    except Exception: P[k] = v

POL = {"plain": "", "sc1": " sc1", "nt": " nt", "ntsc1": " sc1 nt"}
FLAG_OFF = 0x800000
WS_BYTES = 0x808000
STAMP_OFF = 0x900000
LDS_MISC = 131072
LDS_BIAS = LDS_MISC
LDS_RDY = LDS_MISC + 2048
LDS_STG = LDS_MISC + 4096
LDS_TOTAL = LDS_STG + 4 * 2 * 2560

class Prog:
    def __init__(s):
        s.l = []; s.lq = []; s.vq = []; s.smem = False; s.nst = 0; s.tail = []
    def e(s, t): s.l.append("    " + t)
    def lab(s, t): s.l.append(t + ":")
    def c(s, t): s.l.append("    ; " + t)
    def lds(s, t, tag):
        s.e(t); s.lq.append(tag)
        assert len(s.lq) <= 15, "too many LDS ops outstanding"
    def vm(s, t, tag):
        s.e(t); s.vq.append(tag); assert len(s.vq) <= 63
    def need(s, *tags):
        idx = max([i for i, t in enumerate(s.lq) if t in tags], default=-1)
        if idx < 0: return False
        n = len(s.lq) - 1 - idx
        if s.smem: n = 0; s.smem = False
        s.e(f"s_waitcnt lgkmcnt({n})"); s.lq = s.lq[len(s.lq) - n:] if n else []
        return True
    def vneed(s, *tags):
        idx = max([i for i, t in enumerate(s.vq) if t in tags], default=-1)
        if idx < 0: return False
        n = len(s.vq) - 1 - idx
        s.e(f"s_waitcnt vmcnt({n})"); s.vq = s.vq[len(s.vq) - n:] if n else []
        return True
    def stamp(s):
        if P["stamps"]:
            s.e(f"s_memtime s[{60 + 2 * s.nst}:{61 + 2 * s.nst}]"); s.nst += 1; s.smem = True
            assert s.nst <= 20
    def dump_stamps(s):
        if not P["stamps"]: return
        s.e("s_waitcnt lgkmcnt(0) vmcnt(0)")
        s.e("v_mov_b32 v14, 0")
        for i in range(1, s.nst):
            s.e(f"s_sub_u32 s{60+2*i}, s{60+2*i}, s60")
            s.e(f"v_writelane_b32 v14, s{60+2*i}, {i}")
        s.e("s_lshl_b32 s3, s2, 11")
        s.e(f"s_add_u32 s3, s3, {STAMP_OFF}")
        s.e("v_lshl_add_u32 v15, v0, 2, s3")
        s.e("global_store_dword v15, v14, s[18:19]")

def q4(r): return f"v[{r}:{r+3}]"
def q2(r): return f"v[{r}:{r+1}]"
def q16(r): return f"v[{r}:{r+15}]"

S_W, S_Q, S_GL, S_G, S_B = 22, 23, 24, 25, 26
S_TILE = 27
SRD_A, SRD_B, SRD_C, SRD_D = 28, 32, 36, 40
S_T0, S_T1, S_T2, S_T3 = 44, 45, 46, 47
S_S1, S_IK = 48, 50
S_MSK = 52
S_PM = (54, 55, 56, 57)
S_CNT = 58

def srd(p, d, lo, nbytes):
    p.e(f"s_mov_b32 s{d}, s{lo}"); p.e(f"s_mov_b32 s{d+1}, s{lo+1}")
    p.e(f"s_mov_b32 s{d+2}, {hex(nbytes)}"); p.e(f"s_mov_b32 s{d+3}, 0x20000")
def sq(d): return f"s[{d}:{d+3}]"

h = Prog()
h.stamp()
if P.get("rt"): h.e("s_memrealtime s[100:101]")
h.e("s_load_dwordx16 s[4:19], s[0:1], 0")
h.e("s_cmp_ge_u32 s2, 0x100")
h.e("s_cbranch_scc1 L_exit")
h.e("v_lshrrev_b32 v2, 6, v0")
h.e("v_and_b32 v1, 63, v0")
h.e(f"v_readfirstlane_b32 s{S_W}, v2")
h.e(f"s_lshr_b32 s{S_T0}, s2, 3")
if P["codepf"]:
    h.c("pull this kernel's code into the L2 (one 64-byte piece per wave)")
    h.e("s_getpc_b64 s[20:21]")
    h.lab("L_pc")
    h.e(f"s_lshl_b32 s{S_T1}, s{S_T0}, 3")
    h.e(f"v_add_lshl_u32 v3, v2, s{S_T1}, 6")
    h.e("v_min_u32 v3, L_end-L_pc-4, v3")
    h.e("global_load_dword v15, v3, s[20:21]")
h.e(f"s_and_b32 s{S_Q}, s{S_T0}, 3")
h.e(f"s_lshr_b32 s{S_GL}, s{S_T0}, 2")
h.e(f"s_and_b32 s{S_T1}, s2, 7")
h.e(f"s_lshl_b32 s{S_G}, s{S_GL}, 3")
h.e(f"s_add_u32 s{S_G}, s{S_G}, s{S_T1}")
h.e(f"s_lshr_b32 s{S_B}, s{S_G}, 5")
h.e(f"s_lshl_b32 s{S_TILE}, s{S_B}, 22")
h.e(f"s_and_b32 s{S_T1}, s{S_G}, 31")
h.e(f"s_lshl_b32 s{S_T1}, s{S_T1}, 8")
h.e(f"s_add_u32 s{S_TILE}, s{S_TILE}, s{S_T1}")
h.e(f"s_cmp_lt_u32 s{S_W}, 4")
h.e("s_cbranch_scc1 L_compute")

L = Prog(); L.nst = h.nst
if P["codepf"]: L.vq.append("code")
L.c("---------------- loader waves")
L.e(f"s_sub_u32 s{S_W}, s{S_W}, 4")
L.e("v_lshrrev_b32 v4, 4, v1")
L.e("v_lshlrev_b32 v4, 6, v4")
L.e("v_and_b32 v6, 3, v1")
L.e("v_lshl_add_u32 v4, v6, 4, v4")
L.e("v_bfe_u32 v5, v1, 2, 2")
L.e(f"s_lshl_b32 s{S_T0}, s{S_W}, 2")
L.e(f"v_add_u32 v5, s{S_T0}, v5")
L.e("v_lshl_add_u32 v2, v5, 13, v4")
L.e(f"v_add_u32 v2, s{S_TILE}, v2")
L.e("v_lshl_add_u32 v3, v5, 10, v4")
L.e(f"s_lshl_b32 s{S_T0}, s{S_Q}, 8")
L.e(f"v_add_u32 v3, s{S_T0}, v3")
L.e(f"s_lshl_b32 s{S_T3}, s{S_W}, 10")
L.e(f"s_mov_b32 s{S_T0}, 0")
L.e(f"s_mov_b32 s{S_T1}, 0")
L.e(f"s_lshl_b32 s{S_T2}, s{S_Q}, 17")
L.e("s_waitcnt lgkmcnt(0)")
srd(L, SRD_A, 4, 0x800000); srd(L, SRD_B, 8, 0x80000)
ntx = " nt" if P["ntx"] else ""
def ld_chunk(n):
    if n < 16:
        for s in (2 * n, 2 * n + 1):
            base = (s % 16) * 8192
            L.e(f"s_add_u32 m0, s{S_T3}, {base}")
            if s: L.e(f"s_add_u32 s{S_T0}, s{S_T0}, 0x20000")
            else: L.e("s_nop 0")
            L.vm(f"buffer_load_dwordx4 v2, {sq(SRD_A)}, s{S_T0} offen{ntx} lds", ("c", n))
            L.e(f"s_add_u32 m0, s{S_T3}, {base + 4096}")
            if s: L.e(f"s_add_u32 s{S_T1}, s{S_T1}, 0x4000")
            else: L.e("s_nop 0")
            L.vm(f"buffer_load_dwordx4 v3, {sq(SRD_B)}, s{S_T1} offen lds", ("c", n))
    else:
        for p in range(4 * (n - 16), 4 * (n - 16) + 4):
            L.e(f"s_add_u32 m0, s{S_T3}, {p * 4096}")
            if p:
                L.e(f"s_add_u32 s{S_T2}, s{S_T2}, 0x4000")
                L.e(f"s_and_b32 s{S_T2}, s{S_T2}, 0x7ffff")
            else: L.e("s_nop 0")
            L.vm(f"buffer_load_dwordx4 v3, {sq(SRD_C)}, s{S_T2} offen lds", ("c", n))
D = P["D"]
for n in range(D): ld_chunk(n)
L.stamp()
srd(L, SRD_C, 12, 0x80000)
L.c("ready word of this wave pair = 0; addresses of the group's debug word and flag line")
L.e(f"s_lshl_b32 s{S_CNT}, s{S_W}, 2")
L.e(f"s_add_u32 s{S_CNT}, s{S_CNT}, {LDS_RDY}")
L.e(f"v_mov_b32 v8, s{S_CNT}")
L.e("v_mov_b32 v9, 0")
L.e("ds_write_b32 v8, v9")
L.e(f"s_lshl_b32 s{S_CNT}, s{S_G}, 2")
L.e(f"v_mov_b32 v10, s{S_CNT}")
L.e(f"s_add_u32 s{S_CNT}, s{S_CNT}, s{S_W}")
L.e(f"s_lshl_b32 s{S_CNT}, s{S_CNT}, 7")
L.e(f"s_add_u32 s{S_CNT}, s{S_CNT}, {FLAG_OFF}")
L.e(f"v_mov_b32 v11, s{S_CNT}")
L.e("s_waitcnt lgkmcnt(0)")
nxt = D
for c in range(16):
    L.vneed(("c", c))
    if c in (0, 8, 15): L.stamp()
    L.e("s_barrier")
    if c == 11:
        L.vm("global_load_dword v12, v10, s[16:17] sc1", "dbg")
    lim = c + D
    while nxt <= lim:
        ld_chunk(nxt); nxt += 1
L.c("the group's flag words were cleared in this launch before anyone stores or polls them")
L.vneed("dbg")
L.e(f"s_mov_b32 s{S_CNT}, 0")
L.lab("L_dbg")
L.e(f"v_readfirstlane_b32 s{S_T0}, v12")
L.e(f"s_cmp_lg_u32 s{S_T0}, 0")
L.e("s_cbranch_scc1 L_dbg_ok")
L.e("global_load_dword v12, v10, s[16:17] sc1")
L.e("s_waitcnt vmcnt(0)")
L.e(f"s_add_u32 s{S_CNT}, s{S_CNT}, 1")
L.e(f"s_cmp_lt_u32 s{S_CNT}, 0x100000")
L.e("s_cbranch_scc1 L_dbg")
L.lab("L_dbg_ok")
L.e("s_barrier")
while nxt < 24:
    ld_chunk(nxt); nxt += 1
L.e("s_waitcnt vmcnt(0)"); L.vq = []
L.stamp()
L.e("s_barrier")
L.e(f"s_mov_b32 s{S_CNT}, 0")
L.lab("L_poll")
L.e("global_load_dwordx4 v[16:19], v11, s[18:19] sc1")
L.e(f"s_add_u32 s{S_CNT}, s{S_CNT}, 1")
L.e("s_waitcnt vmcnt(0)")
L.e("v_min_u32 v16, v16, v17")
L.e("v_min3_u32 v16, v16, v18, v19")
L.e("ds_write_b32 v8, v16")
L.e(f"v_readfirstlane_b32 s{S_T0}, v16")
L.e(f"s_cmp_ge_u32 s{S_CNT}, 0x100000")
L.e("s_cbranch_scc1 L_poll_done")
L.e(f"s_cmp_lt_u32 s{S_T0}, 4")
L.e("s_cbranch_scc1 L_poll")
L.lab("L_poll_done")
L.stamp()
L.dump_stamps()
L.lab("L_exit")
L.e("s_endpgm")

C = Prog(); C.nst = h.nst
if P["codepf"]: C.vq.append("code")
aW0, aW1, aX0, aX1, VO0, VO1, VFL, VFV, VSW, VSR, VOUT, VRDY, VT0, VT1 = 2, 3, 4, 5, 6, 7, 8, 9, 10, 11, 12, 13, 14, 15
RA, RB, RF, RX, RS, RH = 16, 80, 144, 184, 216, 224
SRD_WS, SRD_OUT, SRD_DBG, SRD_WO = SRD_A, SRD_B, SRD_C, SRD_D
C.lab("L_compute")
C.c("---------------- compute waves")
T = RH
C.e(f"v_lshrrev_b32 v{T}, 5, v1")
C.e(f"v_bfe_u32 v{T+1}, v1, 2, 2")
C.e(f"v_lshlrev_b32 v{T+1}, 6, v{T+1}")
C.e(f"v_lshl_add_u32 v{aW0}, v{T}, 10, v{T+1}")
C.e(f"v_bfe_u32 v{T+1}, v1, 4, 1")
C.e(f"v_lshl_add_u32 v{aW0}, v{T+1}, 5, v{aW0}")
C.e(f"v_and_b32 v{T+1}, 3, v1")
C.e(f"v_lshl_add_u32 v{aW0}, v{T+1}, 3, v{aW0}")
C.e(f"v_add_u32 v{aW1}, 0x10000, v{aW0}")
C.e(f"s_lshl_b32 s{S_T0}, s{S_W}, 8")
C.e(f"v_add_u32 v{aX0}, s{S_T0}, v{aW0}")
C.e(f"v_add_u32 v{aX1}, s{S_T0}, v{aW1}")
C.e(f"v_lshlrev_b32 v{VO0}, 4, v1")
C.e(f"v_add_u32 v{VO1}, 0x1000, v{VO0}")
C.e(f"s_lshl_b32 s{S_T0}, s{S_Q}, 8")
C.e(f"v_lshl_add_u32 v{T+2}, v1, 2, s{S_T0}")
C.e(f"s_lshl_b32 s{S_T0}, s{S_B}, 1")
C.e(f"v_mov_b32 v{T+3}, s{S_T0}")
C.e(f"s_or_b32 s{S_T0}, s{S_Q}, s{S_W}")
C.e(f"s_cmp_eq_u32 s{S_T0}, 0")
C.e(f"s_cselect_b32 s{S_T0}, 4, 0")
C.e(f"s_cselect_b32 s{S_T1}, 1, 0")
C.e(f"s_lshl_b32 s{S_T2}, s{S_G}, 9")
C.e(f"s_add_u32 s{S_T2}, s{S_T2}, {FLAG_OFF}")
C.e(f"v_lshl_add_u32 v{T+4}, v1, 7, s{S_T2}")
C.e(f"v_cmp_gt_u32 vcc, s{S_T0}, v1")
C.e(f"v_mov_b32 v{T+8}, 0"); C.e(f"v_mov_b32 v{T+9}, 0")
C.e(f"v_cndmask_b32 v{T+4}, 2.0, v{T+4}, vcc")
C.e(f"v_cmp_gt_u32 vcc, s{S_T1}, v1")
C.e(f"v_mov_b32 v{T+10}, 0"); C.e(f"v_mov_b32 v{T+11}, 0")
C.e(f"s_lshl_b32 s{S_T0}, s{S_G}, 2")
C.e(f"v_mov_b32 v{T+5}, s{S_T0}")
C.e(f"v_cndmask_b32 v{T+5}, 2.0, v{T+5}, vcc")
C.e("s_waitcnt lgkmcnt(0)")
srd(C, SRD_WS, 18, WS_BYTES)
C.vm(f"buffer_store_dwordx4 {q4(T+8)}, v{T+4}, {sq(SRD_WS)}, 0 offen sc1", "clr")
C.vm(f"global_load_ushort v{T+6}, v{T+3}, s[6:7]", "sig")
C.vm(f"global_load_dword v{T+7}, v{T+2}, s[10:11]", "emb")
srd(C, SRD_OUT, 14, 0x800000); srd(C, SRD_DBG, 16, 256); srd(C, SRD_WO, 12, 0x80000)
C.e(f"s_lshl_b32 s{S_T0}, s{S_W}, 7")
C.e(f"s_add_u32 s{S_T2}, s{S_T2}, s{S_T0}")
C.e(f"s_lshl_b32 s{S_T0}, s{S_Q}, 2")
C.e(f"s_add_u32 s{S_T2}, s{S_T2}, s{S_T0}")
C.e(f"v_mov_b32 v{VFL}, s{S_T2}")
C.e("v_cmp_eq_u32 vcc, 0, v1")
for m in range(4):
    C.e(f"s_add_u32 s{S_T0}, s{S_Q}, {m}")
    C.e(f"s_and_b32 s{S_T0}, s{S_T0}, 3")
    C.e(f"s_lshl_b32 s{S_T1}, s{S_G}, 2")
    C.e(f"s_add_u32 s{S_T0}, s{S_T0}, s{S_T1}")
    C.e(f"s_lshl_b32 s{S_T0}, s{S_T0}, 2")
    C.e(f"s_add_u32 s{S_T0}, s{S_T0}, s{S_W}")
    C.e(f"s_lshl_b32 s{S_PM[m]}, s{S_T0}, 13")
C.e(f"v_cndmask_b32 v{VFL}, 2.0, v{VFL}, vcc")
C.e(f"s_mul_i32 s{S_T0}, s{S_W}, 5120")
C.e(f"s_add_u32 s{S_T0}, s{S_T0}, {LDS_STG}")
C.e(f"v_and_b32 v{T+12}, 31, v1")
C.e(f"v_mul_u32_u24 v{VSW}, 80, v{T+12}")
C.e(f"v_lshl_add_u32 v{VSW}, v{T}, 3, v{VSW}")
C.e(f"v_add_u32 v{VSW}, s{S_T0}, v{VSW}")
C.e(f"v_lshrrev_b32 v{T+13}, 2, v1")
C.e(f"v_mul_u32_u24 v{VSR}, 80, v{T+13}")
C.e(f"v_lshl_add_u32 v{VSR}, v{T+1}, 4, v{VSR}")
C.e(f"v_add_u32 v{VSR}, s{S_T0}, v{VSR}")
C.e(f"s_lshl_b32 s{S_T0}, s{S_Q}, 20")
C.e(f"s_add_u32 s{S_T0}, s{S_T0}, s{S_TILE}")
C.e(f"s_lshl_b32 s{S_T1}, s{S_W}, 6")
C.e(f"s_add_u32 s{S_T0}, s{S_T0}, s{S_T1}")
C.e(f"v_lshlrev_b32 v{VOUT}, 13, v{T+13}")
C.e(f"v_lshl_add_u32 v{VOUT}, v{T+1}, 4, v{VOUT}")
C.e(f"v_add_u32 v{VOUT}, s{S_T0}, v{VOUT}")
C.e(f"s_lshl_b32 s{S_T0}, s{S_W}, 2")
C.e(f"s_add_u32 s{S_T0}, s{S_T0}, {LDS_RDY}")
C.e(f"v_mov_b32 v{VRDY}, s{S_T0}")
C.e(f"s_lshl_b32 s{S_T0}, s{S_GL}, 16")
C.e(f"s_lshl_b32 s{S_T1}, s{S_W}, 14")
C.e(f"s_add_u32 s{S_T0}, s{S_T0}, s{S_T1}")
C.e(f"s_lshl_b32 s{S_T1}, s{S_Q}, 8")
C.e(f"s_add_u32 s{S_T0}, s{S_T0}, s{S_T1}")
C.e(f"v_lshlrev_b32 v{T+14}, 10, v{T+13}")
C.e(f"v_lshl_add_u32 v{T+14}, v{T+1}, 6, v{T+14}")
C.e(f"v_add_u32 v{T+14}, s{S_T0}, v{T+14}")
C.e(f"s_lshl_b32 s{S_T0}, s{S_W}, 9")
C.e(f"s_add_u32 s{S_T0}, s{S_T0}, {LDS_BIAS}")
C.e(f"v_lshl_add_u32 v{T+15}, v1, 3, s{S_T0}")
C.e(f"v_lshl_add_u32 v{T+16}, v{T}, 4, s{S_T0}")
C.e(f"v_lshrrev_b32 v{T+17}, 1, v{T+12}")
C.e(f"v_lshlrev_b32 v{T+18}, 1, v{T}")
C.e(f"v_sub_u32 v{T+17}, v{T+17}, v{T+18}")
C.e(f"v_and_b32 v{T+18}, 1, v1")
C.e(f"v_lshlrev_b32 v{T+18}, 4, v{T+18}")

sg, a, b2, cs, cn = T + 6, T + 20, T + 21, T + 22, T + 23
def rnd(r): return [f"v_cvt_pk_bf16_f32 v{r}, v{r}, v{r}", f"v_lshlrev_b32 v{r}, 16, v{r}"]
F = []
F.append(lambda: C.vneed("clr", "sig", "emb"))
F.append(f"v_mov_b32 v{T+8}, 1")
F.append(lambda: C.vm(f"buffer_store_dword v{T+8}, v{T+5}, {sq(SRD_DBG)}, 0 offen sc1", "dbgst"))
F += [f"v_lshlrev_b32 v{sg}, 16, v{sg}", f"v_mul_f32 v{a}, v{sg}, v{sg}"] + rnd(a)
F += [f"v_add_f32 v{a}, 0x3e800000, v{a}"] + rnd(a)
F += [f"v_rcp_f32 v{cs}, v{a}", f"v_sqrt_f32 v{a}, v{a}"] + rnd(cs) + rnd(a)
F += [f"v_mul_f32 v{cs}, 0x3e800000, v{cs}", f"v_rcp_f32 v{a}, v{a}", f"v_lshrrev_b32 v{cs}, 16, v{cs}"]
F += [f"v_mul_f32 v{b2}, 0.5, v{sg}", f"v_mul_f32 v{b2}, v{b2}, v{a}"] + rnd(b2) + rnd(a)
F += [f"v_log_f32 v{cn}, v{sg}", f"v_mul_f32 v{a}, 0xbfb8aa3b, v{a}", f"v_mul_f32 v{cn}, 0x3f317218, v{cn}"] + rnd(cn)
F += [f"v_max_f32 v{b2}, 0x03800000, v{b2}", f"v_mul_f32 v{b2}, 0xbf317218, v{b2}", f"v_rcp_f32 v{b2}, v{b2}"]
F += [f"v_mul_f32 v{cn}, 0x3e800000, v{cn}"]
F += [f"v_readfirstlane_b32 s{S_S1}, v{a}", f"v_readfirstlane_b32 s{S_S1+1}, v{a}",
      f"v_readfirstlane_b32 s{S_IK}, v{b2}", f"v_readfirstlane_b32 s{S_IK+1}, v{b2}"]
e0, e1 = T + 24, T + 25
F += [f"v_lshlrev_b32 v{e0}, 16, v{T+7}", f"v_and_b32 v{e1}, 0xffff0000, v{T+7}",
      f"v_mul_f32 v{e0}, v{cn}, v{e0}", f"v_mul_f32 v{e1}, v{cn}, v{e1}",
      f"v_cvt_pk_bf16_f32 v{e1}, v{e0}, v{e1}", f"v_lshlrev_b32 v{e0}, 16, v{e1}", f"v_and_b32 v{e1}, 0xffff0000, v{e1}",
      f"v_mul_f32 v{e0}, 0xbfb8aa3b, v{e0}", f"v_mul_f32 v{e1}, 0xbfb8aa3b, v{e1}"]
F.append(("lds", f"ds_write_b64 v{T+15}, {q2(e0)}", "biasw"))
for i in range(16):
    F.append(("lds", f"ds_read_b128 {q4(RB + 4 * i)}, v{T+16} offset:{i * 32}", "bias"))
F.append(f"v_lshlrev_b32 v{cs}, v{T+18}, v{cs}")
for t in range(2):
    for d in range(4):
        F.append(f"v_cmp_eq_u32 vcc, {8 * t + (0, 1, 4, 5)[d]}, v{T+17}")
        F.append(f"v_cndmask_b32 v{RS + 4 * t + d}, 0, v{cs}, vcc")
F_START = 8
assert len(F) + F_START <= 124, len(F)

def rd_x(s, i):
    base = (s % 16) * 8192; a_ = aX0 if base < 65536 else aX1
    r = RF + 20 * (s & 1) + 2 * i
    C.lds(f"ds_read_b64_tr_b16 {q2(r)}, v{a_} offset:{base % 65536 + 2048 * i}", ("x", s))
def rd_w(s, j, i):
    base = (s % 16) * 8192; a_ = aW0 if base < 65536 else aW1
    r = RF + 20 * (s & 1) + 4 + 4 * j + 2 * i
    C.lds(f"ds_read_b64_tr_b16 {q2(r)}, v{a_} offset:{base % 65536 + 4096 + 256 * j + 2048 * i}", ("w", s, j))
def reads(s): return [lambda i=i: rd_x(s, i) for i in range(2)] + [lambda j=j, i=i: rd_w(s, j, i) for j in range(4) for i in range(2)]

C.stamp()
C.e("s_barrier")
C.stamp()
for r in reads(0): r()
gap = 0
for s in range(32):
    if s % 2 == 1 and s < 31: C.e("s_barrier")
    if s % 8 == 0:
        C.e(f"s_cmp_eq_u32 s{S_Q}, {s // 8}")
        C.e(f"s_cselect_b64 s[{S_MSK}:{S_MSK+1}], -1, 0")
    rl = reads(s + 1) if s < 31 else []
    split = (3, 3, 2, 2)
    for j in range(4):
        C.need(("x", s), ("w", s, j))
        fb = RF + 20 * (s & 1)
        cin = "0" if s == 0 else q16(RA + 16 * j)
        C.e(f"v_mfma_f32_32x32x16_bf16 {q16(RA + 16 * j)}, {q4(fb + 4 + 4 * j)}, {q4(fb)}, {cin}")
        for _ in range(split[j]):
            if rl: rl.pop(0)()
        f = F.pop(0) if (gap >= F_START and F) else None
        if f is not None and not isinstance(f, str):
            if isinstance(f, tuple): C.lds(f[1], f[2])
            else: f()
            f = None
        if s == P["wo_touch"] and j == 0:
            C.vm(f"buffer_load_dword v{VT1}, v{T+14}, {sq(SRD_WO)}, 0 offen", "touch")
        if j < 3: C.need(("x", s), ("w", s, j + 1))
        elif s < 31 and not (s % 2 == 0): C.need(("x", s + 1), ("w", s + 1, 0))
        if f: C.e(f)
        xr = RX + 4 * (s % 8) + j
        C.e(f"v_cndmask_b32 v{xr}, v{xr}, v{fb + j}, s[{S_MSK}:{S_MSK+1}]")
        gap += 1
assert not F
C.need("bias")
assert not C.lq
C.e("s_barrier")
C.stamp()
C.e("s_nop 7")

def flag(j):
    C.vneed(("st", j))
    C.e(f"v_mov_b32 v{VFV}, {j + 1}")
    C.vm(f"buffer_store_dword v{VFV}, v{VFL}, {sq(SRD_WS)}, 0 offen sc1", ("fl", j))

C.c("---- h = c_out * silu(c_in * acc + bias), two elements per packed op")
for blk in range(4):
    A_, B_ = RA + 16 * blk, RB + 16 * blk
    for g in range(0, 16, 4):
        for o in (0, 2): C.e(f"v_pk_fma_f32 {q2(B_+g+o)}, {q2(A_+g+o)}, s[{S_S1}:{S_S1+1}], {q2(B_+g+o)}")
        for o in range(4): C.e(f"v_exp_f32 v{A_+g+o}, v{B_+g+o}")
        if g:
            for o in (0, 2): C.e(f"v_cvt_pk_bf16_f32 v{RH + 8*blk + (g-4+o)//2}, v{A_+g-4+o}, v{A_+g-4+o+1}")
        else: C.e("s_nop 0")
        for o in (0, 2): C.e(f"v_pk_fma_f32 {q2(A_+g+o)}, {q2(A_+g+o)}, s[{S_IK}:{S_IK+1}], s[{S_IK}:{S_IK+1}]")
        for o in range(4): C.e(f"v_rcp_f32 v{A_+g+o}, v{A_+g+o}")
        if g == 8:
            fr = 2 * blk
            C.vm(f"buffer_store_dwordx4 {q4(RH + 4*fr)}, v{VO0 if fr < 4 else VO1}, {sq(SRD_WS)}, s{S_PM[0]} offen offset:{(fr % 4) * 1024} sc1", ("st", blk))
        else: C.e("s_nop 0")
        for o in (0, 2): C.e(f"v_pk_mul_f32 {q2(A_+g+o)}, {q2(A_+g+o)}, {q2(B_+g+o)}")
    for o in (0, 2): C.e(f"v_cvt_pk_bf16_f32 v{RH + 8*blk + (12+o)//2}, v{A_+12+o}, v{A_+12+o+1}")
    fr = 2 * blk + 1
    C.vm(f"buffer_store_dwordx4 {q4(RH + 4*fr)}, v{VO0 if fr < 4 else VO1}, {sq(SRD_WS)}, s{S_PM[0]} offen offset:{(fr % 4) * 1024} sc1", ("st", blk))
    for j in range(4):
        if P["fl"][j] == blk: flag(j)
C.stamp()
C.e("s_barrier")
C.stamp()

quads = [RB + 4 * i for i in range(16)] + [RX + 4 * i for i in range(8)]
def hq(j, m, t): return quads[6 * j + 2 * (m - 1) + t]
units = []
for t in range(2):
    for blk in range(4): units.append((blk, RX + 4 * (2 * blk + t), ("sel", t), t == 0, None))
for ks in range(8):
    for blk in range(4): units.append((blk, RH + 4 * ks, (ks, blk), False, None))
for j in range(3):
    for m in (1, 2, 3):
        for t in range(2):
            for blk in range(4): units.append((blk, hq(j, m, t), (8 * m + 2 * j + t, blk), False, (j, m, t)))
for blk in range(4):
    for m in (1, 2, 3):
        for t in range(2): units.append((blk, hq(3, m, t), (8 * m + 6 + t, blk), False, (3, m, t)))
wl = [i for i, u in enumerate(units) if u[2][0] != "sel"]
slot = {i: RF + 4 * (n % 10) for n, i in enumerate(wl)}
def rd_o(i):
    p, blk = units[i][2]; base = p * 4096; a_ = aW0 if base < 65536 else aW1
    for k in range(2):
        C.lds(f"ds_read_b64_tr_b16 {q2(slot[i] + 2 * k)}, v{a_} offset:{base % 65536 + 256 * blk + 2048 * k}", ("o", i))
PF = 4
last = {blk: max(i for i, u in enumerate(units) if u[0] == blk) for blk in range(4)}
opol = POL[P["outpol"]]
def epi(blk):
    tmp = RB + 8 * blk; dat = RH + 8 * blk; so = (blk & 1) * 2560; r = []
    for g in range(4):
        for o in (0, 2): r.append(("v", f"v_cvt_pk_bf16_f32 v{tmp + 2*g + o//2}, v{RA + 16*blk + 4*g + o}, v{RA + 16*blk + 4*g + o + 1}"))
    for g in range(4): r.append(("m", lambda g=g: C.lds(f"ds_write_b64 v{VSW}, {q2(tmp + 2*g)} offset:{so + 16*g}", ("sw", blk))))
    for k in range(2): r.append(("m", lambda k=k: C.lds(f"ds_read_b128 {q4(dat + 4*k)}, v{VSR} offset:{so + 1280*k}", ("sr", blk, k))))
    def st(k):
        C.e(f"s_mov_b32 s{S_T0}, {hex((32 * blk + 16 * k) * 8192)}")
        C.need(("sr", blk, k))
        C.vm(f"buffer_store_dwordx4 {q4(dat + 4*k)}, v{VOUT}, {sq(SRD_OUT)}, s{S_T0} offen{opol}", ("out", blk))
    r.append(("d", None))
    for k in range(2): r.append(("m", lambda k=k: st(k)))
    return r
pend = []
nrd = 0
for i, u in enumerate(units):
    blk, ar, wf, first, stg = u
    if stg is not None: C.vneed(("pl",) + stg)
    if wf[0] == "sel": br = RS + 4 * wf[1]
    else:
        C.need(("o", i)); br = slot[i]
    C.e(f"v_mfma_f32_32x32x16_bf16 {q16(RA + 16*blk)}, {q4(ar)}, {q4(br)}, {'0' if first else q16(RA + 16*blk)}")
    if nrd < len(wl) and wl[nrd] <= i + PF + (0 if i >= 4 else 4 - i + 0):
        rd_o(wl[nrd]); nrd += 1
    for j in range(4):
        if P["fl"][j] - 4 == i: flag(j)
        if P["chk"][j] - 2 == i: C.lds(f"ds_read_b32 v{VT0}, v{VRDY}", ("rdy", j))
        if P["chk"][j] == i:
            C.need(("rdy", j))
            C.e(f"v_readfirstlane_b32 s{S_T1}, v{VT0}")
            C.e(f"s_cmp_gt_u32 s{S_T1}, {j}")
            C.e(f"s_cbranch_scc0 L_spin{j}")
            C.lab(f"L_back{j}")
            C.stamp()
            for m in (1, 2, 3):
                for t in range(2):
                    fr = 2 * j + t
                    C.vm(f"buffer_load_dwordx4 {q4(hq(j, m, t))}, v{VO0 if fr < 4 else VO1}, {sq(SRD_WS)}, s{S_PM[m]} offen offset:{(fr % 4) * 1024} sc1", ("pl", j, m, t))
            C.tail += [f"L_spin{j}:", f"    s_mov_b32 s{S_CNT}, 0", f"L_spin{j}_l:",
                       f"    ds_read_b32 v{VT0}, v{VRDY}", f"    s_add_u32 s{S_CNT}, s{S_CNT}, 1", "    s_waitcnt lgkmcnt(0)",
                       f"    v_readfirstlane_b32 s{S_T1}, v{VT0}", f"    s_cmp_ge_u32 s{S_CNT}, 0x800000", f"    s_cbranch_scc1 L_back{j}",
                       f"    s_cmp_gt_u32 s{S_T1}, {j}", f"    s_cbranch_scc0 L_spin{j}_l", f"    s_branch L_back{j}"]
    if i == last[blk]: pend.append([i + 3, epi(blk)])
    budget = 4
    while pend and pend[0][0] <= i and budget > 0:
        items = pend[0][1]
        if not items: pend.pop(0); continue
        k, x = items[0]
        if k == "d": items.pop(0); pend[0][0] = i + 1; break
        if k == "m" and len(C.lq) >= 14: break
        items.pop(0)
        if k == "v": C.e(x)
        else: x()
        budget -= 1
        if items and k == "v" and items[0][0] == "m": break
C.stamp()
C.e("s_nop 11")
for _, items in pend:
    for k, x in items:
        if k == "v": C.e(x)
        elif k == "m": x()
C.stamp()
if P["stamps"]:
    C.e("s_waitcnt vmcnt(0)"); C.stamp()
if P.get("pad"):
    C.e(f"s_mov_b32 s{S_CNT}, {P['pad']}")
    C.lab("L_pad")
    if P.get("padk") == "nop":
        for _ in range(8): C.e("s_nop 15")
    elif P.get("padk") == "rt":
        pass
    else:
        for _ in range(4): C.e(f"v_mfma_f32_32x32x16_bf16 {q16(RA)}, {q4(RF)}, {q4(RF)}, {q16(RA)}")
    C.e(f"s_sub_u32 s{S_CNT}, s{S_CNT}, 1")
    C.e(f"s_cmp_lg_u32 s{S_CNT}, 0")
    C.e("s_cbranch_scc1 L_pad")
if P.get("rt"):
    C.e("s_waitcnt vmcnt(0)")
    C.lab("L_rt")
    C.e("s_memrealtime s[98:99]")
    C.e("s_waitcnt lgkmcnt(0)")
    C.e("s_sub_u32 s98, s98, s100")
    C.e(f"s_cmp_lt_u32 s98, {P['rt']}")
    C.e("s_cbranch_scc1 L_rt")
C.dump_stamps()
C.e("s_endpgm")

nm = P["name"]
hdr = open("standalone__edm_precond__diffusion.s.ref").read().split("; Override")[0]
out = [hdr.rstrip(),
       "; generated by gen/gen.py  " + " ".join(sys.argv[1:]),
       f"; @launch grid=(256,1,1) block=(512,1,1) lds={LDS_TOTAL}",
       '.amdgcn_target "amdgcn-amd-amdhsa--gfx950"', ".text", f".globl {nm}_kernel", ".p2align 8",
       f".type {nm}_kernel,@function", f"{nm}_kernel:"]
out += h.l + L.l + C.l + C.tail + ["L_end:"]
out += ['.section .rodata,"a"', ".p2align 6", f".amdhsa_kernel {nm}_kernel",
        "  .amdhsa_next_free_vgpr 256", "  .amdhsa_next_free_sgpr 102", "  .amdhsa_accum_offset 256",
        "  .amdhsa_group_segment_fixed_size 0", "  .amdhsa_kernarg_size 64", "  .amdhsa_user_sgpr_count 2",
        "  .amdhsa_user_sgpr_kernarg_segment_ptr 1", "  .amdhsa_system_sgpr_workgroup_id_x 1", ".end_amdhsa_kernel"]
print("\n".join(out))
```

```python
import sys, json

P = dict(ntx=0, outpol="sc1", D=3, stamps=0, wo_touch=16, codepf=1,
         fl=(2, 3, 10, 22),
         chk=(22, 34, 46, 64),
         name="standalone__edm_precond__diffusion")
for a in sys.argv[1:]:
    k, v = a.split("=", 1)
    try: P[k] = json.loads(v)
    except Exception: P[k] = v

POL = {"plain": "", "sc1": " sc1", "nt": " nt", "ntsc1": " sc1 nt"}
FLAG_OFF = 0x800000
WS_BYTES = 0x808000
STAMP_OFF = 0x900000
LDS_MISC = 131072
LDS_BIAS = LDS_MISC
LDS_RDY = LDS_MISC + 2048
LDS_STG = LDS_MISC + 4096
LDS_TOTAL = LDS_STG + 4 * 2 * 2560

class Prog:
    def __init__(s):
        s.l = []; s.lq = []; s.vq = []; s.smem = False; s.nst = 0; s.tail = []
    def e(s, t): s.l.append("    " + t)
    def lab(s, t): s.l.append(t + ":")
    def c(s, t): s.l.append("    ; " + t)
    def lds(s, t, tag):
        s.e(t); s.lq.append(tag)
        assert len(s.lq) <= 15, "too many LDS ops outstanding"
    def vm(s, t, tag):
        s.e(t); s.vq.append(tag); assert len(s.vq) <= 63
    def need(s, *tags):
        idx = max([i for i, t in enumerate(s.lq) if t in tags], default=-1)
        if idx < 0: return False
        n = len(s.lq) - 1 - idx
        if s.smem: n = 0; s.smem = False
        s.e(f"s_waitcnt lgkmcnt({n})"); s.lq = s.lq[len(s.lq) - n:] if n else []
        return True
    def vneed(s, *tags):
        idx = max([i for i, t in enumerate(s.vq) if t in tags], default=-1)
        if idx < 0: return False
        n = len(s.vq) - 1 - idx
        s.e(f"s_waitcnt vmcnt({n})"); s.vq = s.vq[len(s.vq) - n:] if n else []
        return True
    def stamp(s):
        if "probe" in P:
            if s.nst == P["probe"] and s.l and getattr(s, "is_c", False):
                s.e("s_memrealtime s[96:97]"); s.smem = True
            s.nst += 1
        if P["stamps"]:
            s.e(f"s_memtime s[{60 + 2 * s.nst}:{61 + 2 * s.nst}]"); s.nst += 1; s.smem = True
            assert s.nst <= 20
    def dump_stamps(s):
        if not P["stamps"]: return
        s.e("s_waitcnt lgkmcnt(0) vmcnt(0)")
        s.e("v_mov_b32 v14, 0")
        for i in range(1, s.nst):
            s.e(f"s_sub_u32 s{60+2*i}, s{60+2*i}, s60")
            s.e(f"v_writelane_b32 v14, s{60+2*i}, {i}")
        s.e("s_lshl_b32 s3, s2, 11")
        s.e(f"s_add_u32 s3, s3, {STAMP_OFF}")
        s.e("v_lshl_add_u32 v15, v0, 2, s3")
        s.e("global_store_dword v15, v14, s[18:19]")

def q4(r): return f"v[{r}:{r+3}]"
def q2(r): return f"v[{r}:{r+1}]"
def q16(r): return f"v[{r}:{r+15}]"

S_W, S_Q, S_GL, S_G, S_B = 22, 23, 24, 25, 26
S_TILE = 27
SRD_A, SRD_B, SRD_C, SRD_D = 28, 32, 36, 40
S_T0, S_T1, S_T2, S_T3 = 44, 45, 46, 47
S_S1, S_IK = 48, 50
S_MSK = 52
S_PM = (54, 55, 56, 57)
S_CNT = 58

def srd(p, d, lo, nbytes):
    p.e(f"s_mov_b32 s{d}, s{lo}"); p.e(f"s_mov_b32 s{d+1}, s{lo+1}")
    p.e(f"s_mov_b32 s{d+2}, {hex(nbytes)}"); p.e(f"s_mov_b32 s{d+3}, 0x20000")
def sq(d): return f"s[{d}:{d+3}]"

h = Prog()
h.stamp()
if P.get("rt") or "probe" in P: h.e("s_memrealtime s[100:101]")
h.e("s_load_dwordx16 s[4:19], s[0:1], 0")
h.e("s_cmp_ge_u32 s2, 0x100")
h.e("s_cbranch_scc1 L_exit")
h.e("v_lshrrev_b32 v2, 6, v0")
h.e("v_and_b32 v1, 63, v0")
h.e(f"v_readfirstlane_b32 s{S_W}, v2")
h.e(f"s_lshr_b32 s{S_T0}, s2, 3")
if P["codepf"]:
    h.c("pull this kernel's code into the L2 (one 64-byte piece per wave)")
    h.e("s_getpc_b64 s[20:21]")
    h.lab("L_pc")
    h.e(f"s_lshl_b32 s{S_T1}, s{S_T0}, 3")
    h.e(f"v_add_lshl_u32 v3, v2, s{S_T1}, 6")
    h.e("v_min_u32 v3, L_end-L_pc-4, v3")
    h.e("global_load_dword v15, v3, s[20:21]")
h.e(f"s_and_b32 s{S_Q}, s{S_T0}, 3")
h.e(f"s_lshr_b32 s{S_GL}, s{S_T0}, 2")
h.e(f"s_and_b32 s{S_T1}, s2, 7")
h.e(f"s_lshl_b32 s{S_G}, s{S_GL}, 3")
h.e(f"s_add_u32 s{S_G}, s{S_G}, s{S_T1}")
h.e(f"s_lshr_b32 s{S_B}, s{S_G}, 5")
h.e(f"s_lshl_b32 s{S_TILE}, s{S_B}, 22")
h.e(f"s_and_b32 s{S_T1}, s{S_G}, 31")
h.e(f"s_lshl_b32 s{S_T1}, s{S_T1}, 8")
h.e(f"s_add_u32 s{S_TILE}, s{S_TILE}, s{S_T1}")
h.e(f"s_cmp_lt_u32 s{S_W}, 4")
h.e("s_cbranch_scc1 L_compute")

L = Prog(); L.nst = h.nst
if P["codepf"]: L.vq.append("code")
L.c("---------------- loader waves")
L.e(f"s_sub_u32 s{S_W}, s{S_W}, 4")
L.e("v_lshrrev_b32 v4, 4, v1")
L.e("v_lshlrev_b32 v4, 6, v4")
L.e("v_and_b32 v6, 3, v1")
L.e("v_lshl_add_u32 v4, v6, 4, v4")
L.e("v_bfe_u32 v5, v1, 2, 2")
L.e(f"s_lshl_b32 s{S_T0}, s{S_W}, 2")
L.e(f"v_add_u32 v5, s{S_T0}, v5")
L.e("v_lshl_add_u32 v2, v5, 13, v4")
L.e(f"v_add_u32 v2, s{S_TILE}, v2")
L.e("v_lshl_add_u32 v3, v5, 10, v4")
L.e(f"s_lshl_b32 s{S_T0}, s{S_Q}, 8")
L.e(f"v_add_u32 v3, s{S_T0}, v3")
L.e(f"s_lshl_b32 s{S_T3}, s{S_W}, 10")
L.e(f"s_mov_b32 s{S_T0}, 0")
L.e(f"s_mov_b32 s{S_T1}, 0")
L.e(f"s_lshl_b32 s{S_T2}, s{S_Q}, 17")
L.e("s_waitcnt lgkmcnt(0)")
srd(L, SRD_A, 4, 0x800000); srd(L, SRD_B, 8, 0x80000)
ntx = " nt" if P["ntx"] else ""
def ld_chunk(n):
    if n < 16:
        for s in (2 * n, 2 * n + 1):
            base = (s % 16) * 8192
            L.e(f"s_add_u32 m0, s{S_T3}, {base}")
            if s: L.e(f"s_add_u32 s{S_T0}, s{S_T0}, 0x20000")
            else: L.e("s_nop 0")
            L.vm(f"buffer_load_dwordx4 v2, {sq(SRD_A)}, s{S_T0} offen{ntx} lds", ("c", n))
            L.e(f"s_add_u32 m0, s{S_T3}, {base + 4096}")
            if s: L.e(f"s_add_u32 s{S_T1}, s{S_T1}, 0x4000")
            else: L.e("s_nop 0")
            L.vm(f"buffer_load_dwordx4 v3, {sq(SRD_B)}, s{S_T1} offen lds", ("c", n))
    else:
        for p in range(4 * (n - 16), 4 * (n - 16) + 4):
            L.e(f"s_add_u32 m0, s{S_T3}, {p * 4096}")
            if p:
                L.e(f"s_add_u32 s{S_T2}, s{S_T2}, 0x4000")
                L.e(f"s_and_b32 s{S_T2}, s{S_T2}, 0x7ffff")
            else: L.e("s_nop 0")
            L.vm(f"buffer_load_dwordx4 v3, {sq(SRD_C)}, s{S_T2} offen lds", ("c", n))
D = P["D"]
for n in range(D): ld_chunk(n)
L.stamp()
srd(L, SRD_C, 12, 0x80000)
L.c("ready word of this wave pair = 0; addresses of the group's debug word and flag line")
L.e(f"s_lshl_b32 s{S_CNT}, s{S_W}, 2")
L.e(f"s_add_u32 s{S_CNT}, s{S_CNT}, {LDS_RDY}")
L.e(f"v_mov_b32 v8, s{S_CNT}")
L.e("v_mov_b32 v9, 0")
L.e("ds_write_b32 v8, v9")
L.e(f"s_lshl_b32 s{S_CNT}, s{S_G}, 2")
L.e(f"v_mov_b32 v10, s{S_CNT}")
L.e(f"s_add_u32 s{S_CNT}, s{S_CNT}, s{S_W}")
L.e(f"s_lshl_b32 s{S_CNT}, s{S_CNT}, 7")
L.e(f"s_add_u32 s{S_CNT}, s{S_CNT}, {FLAG_OFF}")
L.e(f"v_mov_b32 v11, s{S_CNT}")
L.e("s_waitcnt lgkmcnt(0)")
nxt = D
for c in range(16):
    L.vneed(("c", c))
    if c in (0, 8, 15): L.stamp()
    L.e("s_barrier")
    if c == 11:
        L.vm("global_load_dword v12, v10, s[16:17] sc1", "dbg")
    lim = c + D
    while nxt <= lim:
        ld_chunk(nxt); nxt += 1
L.c("the group's flag words were cleared in this launch before anyone stores or polls them")
L.vneed("dbg")
L.e(f"s_mov_b32 s{S_CNT}, 0")
L.lab("L_dbg")
L.e(f"v_readfirstlane_b32 s{S_T0}, v12")
L.e(f"s_cmp_lg_u32 s{S_T0}, 0")
L.e("s_cbranch_scc1 L_dbg_ok")
L.e("global_load_dword v12, v10, s[16:17] sc1")
L.e("s_waitcnt vmcnt(0)")
L.e(f"s_add_u32 s{S_CNT}, s{S_CNT}, 1")
L.e(f"s_cmp_lt_u32 s{S_CNT}, 0x100000")
L.e("s_cbranch_scc1 L_dbg")
L.lab("L_dbg_ok")
L.e("s_barrier")
while nxt < 24:
    ld_chunk(nxt); nxt += 1
L.e("s_waitcnt vmcnt(0)"); L.vq = []
L.stamp()
L.e("s_barrier")
L.e(f"s_mov_b32 s{S_CNT}, 0")
L.lab("L_poll")
L.e("global_load_dwordx4 v[16:19], v11, s[18:19] sc1")
L.e(f"s_add_u32 s{S_CNT}, s{S_CNT}, 1")
L.e("s_waitcnt vmcnt(0)")
L.e("v_min_u32 v16, v16, v17")
L.e("v_min3_u32 v16, v16, v18, v19")
L.e("ds_write_b32 v8, v16")
L.e(f"v_readfirstlane_b32 s{S_T0}, v16")
L.e(f"s_cmp_ge_u32 s{S_CNT}, 0x100000")
L.e("s_cbranch_scc1 L_poll_done")
L.e(f"s_cmp_lt_u32 s{S_T0}, 4")
L.e("s_cbranch_scc1 L_poll")
L.lab("L_poll_done")
L.stamp()
L.dump_stamps()
L.lab("L_exit")
L.e("s_endpgm")

C = Prog(); C.nst = h.nst; C.is_c = True
if P["codepf"]: C.vq.append("code")
aW0, aW1, aX0, aX1, VO0, VO1, VFL, VFV, VSW, VSR, VOUT, VRDY, VT0, VT1 = 2, 3, 4, 5, 6, 7, 8, 9, 10, 11, 12, 13, 14, 15
RA, RB, RF, RX, RS, RH = 16, 80, 144, 184, 216, 224
SRD_WS, SRD_OUT, SRD_DBG, SRD_WO = SRD_A, SRD_B, SRD_C, SRD_D
C.lab("L_compute")
C.c("---------------- compute waves")
T = RH
C.e(f"v_lshrrev_b32 v{T}, 5, v1")
C.e(f"v_bfe_u32 v{T+1}, v1, 2, 2")
C.e(f"v_lshlrev_b32 v{T+1}, 6, v{T+1}")
C.e(f"v_lshl_add_u32 v{aW0}, v{T}, 10, v{T+1}")
C.e(f"v_bfe_u32 v{T+1}, v1, 4, 1")
C.e(f"v_lshl_add_u32 v{aW0}, v{T+1}, 5, v{aW0}")
C.e(f"v_and_b32 v{T+1}, 3, v1")
C.e(f"v_lshl_add_u32 v{aW0}, v{T+1}, 3, v{aW0}")
C.e(f"v_add_u32 v{aW1}, 0x10000, v{aW0}")
C.e(f"s_lshl_b32 s{S_T0}, s{S_W}, 8")
C.e(f"v_add_u32 v{aX0}, s{S_T0}, v{aW0}")
C.e(f"v_add_u32 v{aX1}, s{S_T0}, v{aW1}")
C.e(f"v_lshlrev_b32 v{VO0}, 4, v1")
C.e(f"v_add_u32 v{VO1}, 0x1000, v{VO0}")
C.e(f"s_lshl_b32 s{S_T0}, s{S_Q}, 8")
C.e(f"v_lshl_add_u32 v{T+2}, v1, 2, s{S_T0}")
C.e(f"s_lshl_b32 s{S_T0}, s{S_B}, 1")
C.e(f"v_mov_b32 v{T+3}, s{S_T0}")
C.e(f"s_or_b32 s{S_T0}, s{S_Q}, s{S_W}")
C.e(f"s_cmp_eq_u32 s{S_T0}, 0")
C.e(f"s_cselect_b32 s{S_T0}, 4, 0")
C.e(f"s_cselect_b32 s{S_T1}, 1, 0")
C.e(f"s_lshl_b32 s{S_T2}, s{S_G}, 9")
C.e(f"s_add_u32 s{S_T2}, s{S_T2}, {FLAG_OFF}")
C.e(f"v_lshl_add_u32 v{T+4}, v1, 7, s{S_T2}")
C.e(f"v_cmp_gt_u32 vcc, s{S_T0}, v1")
C.e(f"v_mov_b32 v{T+8}, 0"); C.e(f"v_mov_b32 v{T+9}, 0")
C.e(f"v_cndmask_b32 v{T+4}, 2.0, v{T+4}, vcc")
C.e(f"v_cmp_gt_u32 vcc, s{S_T1}, v1")
C.e(f"v_mov_b32 v{T+10}, 0"); C.e(f"v_mov_b32 v{T+11}, 0")
C.e(f"s_lshl_b32 s{S_T0}, s{S_G}, 2")
C.e(f"v_mov_b32 v{T+5}, s{S_T0}")
C.e(f"v_cndmask_b32 v{T+5}, 2.0, v{T+5}, vcc")
C.e("s_waitcnt lgkmcnt(0)")
srd(C, SRD_WS, 18, WS_BYTES)
C.vm(f"buffer_store_dwordx4 {q4(T+8)}, v{T+4}, {sq(SRD_WS)}, 0 offen sc1", "clr")
C.vm(f"global_load_ushort v{T+6}, v{T+3}, s[6:7]", "sig")
C.vm(f"global_load_dword v{T+7}, v{T+2}, s[10:11]", "emb")
srd(C, SRD_OUT, 14, 0x800000); srd(C, SRD_DBG, 16, 256); srd(C, SRD_WO, 12, 0x80000)
C.e(f"s_lshl_b32 s{S_T0}, s{S_W}, 7")
C.e(f"s_add_u32 s{S_T2}, s{S_T2}, s{S_T0}")
C.e(f"s_lshl_b32 s{S_T0}, s{S_Q}, 2")
C.e(f"s_add_u32 s{S_T2}, s{S_T2}, s{S_T0}")
C.e(f"v_mov_b32 v{VFL}, s{S_T2}")
C.e("v_cmp_eq_u32 vcc, 0, v1")
for m in range(4):
    C.e(f"s_add_u32 s{S_T0}, s{S_Q}, {m}")
    C.e(f"s_and_b32 s{S_T0}, s{S_T0}, 3")
    C.e(f"s_lshl_b32 s{S_T1}, s{S_G}, 2")
    C.e(f"s_add_u32 s{S_T0}, s{S_T0}, s{S_T1}")
    C.e(f"s_lshl_b32 s{S_T0}, s{S_T0}, 2")
    C.e(f"s_add_u32 s{S_T0}, s{S_T0}, s{S_W}")
    C.e(f"s_lshl_b32 s{S_PM[m]}, s{S_T0}, 13")
C.e(f"v_cndmask_b32 v{VFL}, 2.0, v{VFL}, vcc")
C.e(f"s_mul_i32 s{S_T0}, s{S_W}, 5120")
C.e(f"s_add_u32 s{S_T0}, s{S_T0}, {LDS_STG}")
C.e(f"v_and_b32 v{T+12}, 31, v1")
C.e(f"v_mul_u32_u24 v{VSW}, 80, v{T+12}")
C.e(f"v_lshl_add_u32 v{VSW}, v{T}, 3, v{VSW}")
C.e(f"v_add_u32 v{VSW}, s{S_T0}, v{VSW}")
C.e(f"v_lshrrev_b32 v{T+13}, 2, v1")
C.e(f"v_mul_u32_u24 v{VSR}, 80, v{T+13}")
C.e(f"v_lshl_add_u32 v{VSR}, v{T+1}, 4, v{VSR}")
C.e(f"v_add_u32 v{VSR}, s{S_T0}, v{VSR}")
C.e(f"s_lshl_b32 s{S_T0}, s{S_Q}, 20")
C.e(f"s_add_u32 s{S_T0}, s{S_T0}, s{S_TILE}")
C.e(f"s_lshl_b32 s{S_T1}, s{S_W}, 6")
C.e(f"s_add_u32 s{S_T0}, s{S_T0}, s{S_T1}")
C.e(f"v_lshlrev_b32 v{VOUT}, 13, v{T+13}")
C.e(f"v_lshl_add_u32 v{VOUT}, v{T+1}, 4, v{VOUT}")
C.e(f"v_add_u32 v{VOUT}, s{S_T0}, v{VOUT}")
C.e(f"s_lshl_b32 s{S_T0}, s{S_W}, 2")
C.e(f"s_add_u32 s{S_T0}, s{S_T0}, {LDS_RDY}")
C.e(f"v_mov_b32 v{VRDY}, s{S_T0}")
C.e(f"s_lshl_b32 s{S_T0}, s{S_GL}, 16")
C.e(f"s_lshl_b32 s{S_T1}, s{S_W}, 14")
C.e(f"s_add_u32 s{S_T0}, s{S_T0}, s{S_T1}")
C.e(f"s_lshl_b32 s{S_T1}, s{S_Q}, 8")
C.e(f"s_add_u32 s{S_T0}, s{S_T0}, s{S_T1}")
C.e(f"v_lshlrev_b32 v{T+14}, 10, v{T+13}")
C.e(f"v_lshl_add_u32 v{T+14}, v{T+1}, 6, v{T+14}")
C.e(f"v_add_u32 v{T+14}, s{S_T0}, v{T+14}")
C.e(f"s_lshl_b32 s{S_T0}, s{S_W}, 9")
C.e(f"s_add_u32 s{S_T0}, s{S_T0}, {LDS_BIAS}")
C.e(f"v_lshl_add_u32 v{T+15}, v1, 3, s{S_T0}")
C.e(f"v_lshl_add_u32 v{T+16}, v{T}, 4, s{S_T0}")
C.e(f"v_lshrrev_b32 v{T+17}, 1, v{T+12}")
C.e(f"v_lshlrev_b32 v{T+18}, 1, v{T}")
C.e(f"v_sub_u32 v{T+17}, v{T+17}, v{T+18}")
C.e(f"v_and_b32 v{T+18}, 1, v1")
C.e(f"v_lshlrev_b32 v{T+18}, 4, v{T+18}")

sg, a, b2, cs, cn = T + 6, T + 20, T + 21, T + 22, T + 23
def rnd(r): return [f"v_cvt_pk_bf16_f32 v{r}, v{r}, v{r}", f"v_lshlrev_b32 v{r}, 16, v{r}"]
F = []
F.append(lambda: C.vneed("clr", "sig", "emb"))
F.append(f"v_mov_b32 v{T+8}, 1")
F.append(lambda: C.vm(f"buffer_store_dword v{T+8}, v{T+5}, {sq(SRD_DBG)}, 0 offen sc1", "dbgst"))
F += [f"v_lshlrev_b32 v{sg}, 16, v{sg}", f"v_mul_f32 v{a}, v{sg}, v{sg}"] + rnd(a)
F += [f"v_add_f32 v{a}, 0x3e800000, v{a}"] + rnd(a)
F += [f"v_rcp_f32 v{cs}, v{a}", f"v_sqrt_f32 v{a}, v{a}"] + rnd(cs) + rnd(a)
F += [f"v_mul_f32 v{cs}, 0x3e800000, v{cs}", f"v_rcp_f32 v{a}, v{a}", f"v_lshrrev_b32 v{cs}, 16, v{cs}"]
F += [f"v_mul_f32 v{b2}, 0.5, v{sg}", f"v_mul_f32 v{b2}, v{b2}, v{a}"] + rnd(b2) + rnd(a)
F += [f"v_log_f32 v{cn}, v{sg}", f"v_mul_f32 v{a}, 0xbfb8aa3b, v{a}", f"v_mul_f32 v{cn}, 0x3f317218, v{cn}"] + rnd(cn)
F += [f"v_max_f32 v{b2}, 0x03800000, v{b2}", f"v_mul_f32 v{b2}, 0xbf317218, v{b2}", f"v_rcp_f32 v{b2}, v{b2}"]
F += [f"v_mul_f32 v{cn}, 0x3e800000, v{cn}"]
F += [f"v_readfirstlane_b32 s{S_S1}, v{a}", f"v_readfirstlane_b32 s{S_S1+1}, v{a}",
      f"v_readfirstlane_b32 s{S_IK}, v{b2}", f"v_readfirstlane_b32 s{S_IK+1}, v{b2}"]
e0, e1 = T + 24, T + 25
F += [f"v_lshlrev_b32 v{e0}, 16, v{T+7}", f"v_and_b32 v{e1}, 0xffff0000, v{T+7}",
      f"v_mul_f32 v{e0}, v{cn}, v{e0}", f"v_mul_f32 v{e1}, v{cn}, v{e1}",
      f"v_cvt_pk_bf16_f32 v{e1}, v{e0}, v{e1}", f"v_lshlrev_b32 v{e0}, 16, v{e1}", f"v_and_b32 v{e1}, 0xffff0000, v{e1}",
      f"v_mul_f32 v{e0}, 0xbfb8aa3b, v{e0}", f"v_mul_f32 v{e1}, 0xbfb8aa3b, v{e1}"]
F.append(("lds", f"ds_write_b64 v{T+15}, {q2(e0)}", "biasw"))
for i in range(16):
    F.append(("lds", f"ds_read_b128 {q4(RB + 4 * i)}, v{T+16} offset:{i * 32}", "bias"))
F.append(f"v_lshlrev_b32 v{cs}, v{T+18}, v{cs}")
for t in range(2):
    for d in range(4):
        F.append(f"v_cmp_eq_u32 vcc, {8 * t + (0, 1, 4, 5)[d]}, v{T+17}")
        F.append(f"v_cndmask_b32 v{RS + 4 * t + d}, 0, v{cs}, vcc")
F_START = 8
assert len(F) + F_START <= 124, len(F)

def rd_x(s, i):
    base = (s % 16) * 8192; a_ = aX0 if base < 65536 else aX1
    r = RF + 20 * (s & 1) + 2 * i
    C.lds(f"ds_read_b64_tr_b16 {q2(r)}, v{a_} offset:{base % 65536 + 2048 * i}", ("x", s))
def rd_w(s, j, i):
    base = (s % 16) * 8192; a_ = aW0 if base < 65536 else aW1
    r = RF + 20 * (s & 1) + 4 + 4 * j + 2 * i
    C.lds(f"ds_read_b64_tr_b16 {q2(r)}, v{a_} offset:{base % 65536 + 4096 + 256 * j + 2048 * i}", ("w", s, j))
def reads(s): return [lambda i=i: rd_x(s, i) for i in range(2)] + [lambda j=j, i=i: rd_w(s, j, i) for j in range(4) for i in range(2)]

C.stamp()
C.e("s_barrier")
C.stamp()
for r in reads(0): r()
gap = 0
for s in range(32):
    if s % 2 == 1 and s < 31: C.e("s_barrier")
    if s % 8 == 0:
        C.e(f"s_cmp_eq_u32 s{S_Q}, {s // 8}")
        C.e(f"s_cselect_b64 s[{S_MSK}:{S_MSK+1}], -1, 0")
    rl = reads(s + 1) if s < 31 else []
    split = (3, 3, 2, 2)
    for j in range(4):
        C.need(("x", s), ("w", s, j))
        fb = RF + 20 * (s & 1)
        cin = "0" if s == 0 else q16(RA + 16 * j)
        C.e(f"v_mfma_f32_32x32x16_bf16 {q16(RA + 16 * j)}, {q4(fb + 4 + 4 * j)}, {q4(fb)}, {cin}")
        for _ in range(split[j]):
            if rl: rl.pop(0)()
        f = F.pop(0) if (gap >= F_START and F) else None
        if f is not None and not isinstance(f, str):
            if isinstance(f, tuple): C.lds(f[1], f[2])
            else: f()
            f = None
        if s == P["wo_touch"] and j == 0:
            C.vm(f"buffer_load_dword v{VT1}, v{T+14}, {sq(SRD_WO)}, 0 offen", "touch")
        if j < 3: C.need(("x", s), ("w", s, j + 1))
        elif s < 31 and not (s % 2 == 0): C.need(("x", s + 1), ("w", s + 1, 0))
        if f: C.e(f)
        xr = RX + 4 * (s % 8) + j
        C.e(f"v_cndmask_b32 v{xr}, v{xr}, v{fb + j}, s[{S_MSK}:{S_MSK+1}]")
        gap += 1
assert not F
C.need("bias")
assert not C.lq
C.e("s_barrier")
C.stamp()
C.e("s_nop 7")

def flag(j):
    C.vneed(("st", j))
    C.e(f"v_mov_b32 v{VFV}, {j + 1}")
    C.vm(f"buffer_store_dword v{VFV}, v{VFL}, {sq(SRD_WS)}, 0 offen sc1", ("fl", j))

C.c("---- h = c_out * silu(c_in * acc + bias), two elements per packed op")
for blk in range(4):
    A_, B_ = RA + 16 * blk, RB + 16 * blk
    for g in range(0, 16, 4):
        for o in (0, 2): C.e(f"v_pk_fma_f32 {q2(B_+g+o)}, {q2(A_+g+o)}, s[{S_S1}:{S_S1+1}], {q2(B_+g+o)}")
        for o in range(4): C.e(f"v_exp_f32 v{A_+g+o}, v{B_+g+o}")
        if g:
            for o in (0, 2): C.e(f"v_cvt_pk_bf16_f32 v{RH + 8*blk + (g-4+o)//2}, v{A_+g-4+o}, v{A_+g-4+o+1}")
        else: C.e("s_nop 0")
        for o in (0, 2): C.e(f"v_pk_fma_f32 {q2(A_+g+o)}, {q2(A_+g+o)}, s[{S_IK}:{S_IK+1}], s[{S_IK}:{S_IK+1}]")
        for o in range(4): C.e(f"v_rcp_f32 v{A_+g+o}, v{A_+g+o}")
        if g == 8:
            fr = 2 * blk
            C.vm(f"buffer_store_dwordx4 {q4(RH + 4*fr)}, v{VO0 if fr < 4 else VO1}, {sq(SRD_WS)}, s{S_PM[0]} offen offset:{(fr % 4) * 1024} sc1", ("st", blk))
        else: C.e("s_nop 0")
        for o in (0, 2): C.e(f"v_pk_mul_f32 {q2(A_+g+o)}, {q2(A_+g+o)}, {q2(B_+g+o)}")
    for o in (0, 2): C.e(f"v_cvt_pk_bf16_f32 v{RH + 8*blk + (12+o)//2}, v{A_+12+o}, v{A_+12+o+1}")
    fr = 2 * blk + 1
    C.vm(f"buffer_store_dwordx4 {q4(RH + 4*fr)}, v{VO0 if fr < 4 else VO1}, {sq(SRD_WS)}, s{S_PM[0]} offen offset:{(fr % 4) * 1024} sc1", ("st", blk))
    for j in range(4):
        if P["fl"][j] == blk: flag(j)
C.stamp()
C.e("s_barrier")
C.stamp()

quads = [RB + 4 * i for i in range(16)] + [RX + 4 * i for i in range(8)]
def hq(j, m, t): return quads[6 * j + 2 * (m - 1) + t]
units = []
for t in range(2):
    for blk in range(4): units.append((blk, RX + 4 * (2 * blk + t), ("sel", t), t == 0, None))
for ks in range(8):
    for blk in range(4): units.append((blk, RH + 4 * ks, (ks, blk), False, None))
for j in range(3):
    for m in (1, 2, 3):
        for t in range(2):
            for blk in range(4): units.append((blk, hq(j, m, t), (8 * m + 2 * j + t, blk), False, (j, m, t)))
for blk in range(4):
    for m in (1, 2, 3):
        for t in range(2): units.append((blk, hq(3, m, t), (8 * m + 6 + t, blk), False, (3, m, t)))
wl = [i for i, u in enumerate(units) if u[2][0] != "sel"]
slot = {i: RF + 4 * (n % 10) for n, i in enumerate(wl)}
def rd_o(i):
    p, blk = units[i][2]; base = p * 4096; a_ = aW0 if base < 65536 else aW1
    for k in range(2):
        C.lds(f"ds_read_b64_tr_b16 {q2(slot[i] + 2 * k)}, v{a_} offset:{base % 65536 + 256 * blk + 2048 * k}", ("o", i))
PF = 4
last = {blk: max(i for i, u in enumerate(units) if u[0] == blk) for blk in range(4)}
opol = POL[P["outpol"]]
def epi(blk):
    tmp = RB + 8 * blk; dat = RH + 8 * blk; so = (blk & 1) * 2560; r = []
    for g in range(4):
        for o in (0, 2): r.append(("v", f"v_cvt_pk_bf16_f32 v{tmp + 2*g + o//2}, v{RA + 16*blk + 4*g + o}, v{RA + 16*blk + 4*g + o + 1}"))
    for g in range(4): r.append(("m", lambda g=g: C.lds(f"ds_write_b64 v{VSW}, {q2(tmp + 2*g)} offset:{so + 16*g}", ("sw", blk))))
    for k in range(2): r.append(("m", lambda k=k: C.lds(f"ds_read_b128 {q4(dat + 4*k)}, v{VSR} offset:{so + 1280*k}", ("sr", blk, k))))
    def st(k):
        C.e(f"s_mov_b32 s{S_T0}, {hex((32 * blk + 16 * k) * 8192)}")
        C.need(("sr", blk, k))
        C.vm(f"buffer_store_dwordx4 {q4(dat + 4*k)}, v{VOUT}, {sq(SRD_OUT)}, s{S_T0} offen{opol}", ("out", blk))
    r.append(("d", None))
    for k in range(2): r.append(("m", lambda k=k: st(k)))
    return r
pend = []
nrd = 0
for i, u in enumerate(units):
    blk, ar, wf, first, stg = u
    if stg is not None: C.vneed(("pl",) + stg)
    if wf[0] == "sel": br = RS + 4 * wf[1]
    else:
        C.need(("o", i)); br = slot[i]
    C.e(f"v_mfma_f32_32x32x16_bf16 {q16(RA + 16*blk)}, {q4(ar)}, {q4(br)}, {'0' if first else q16(RA + 16*blk)}")
    if nrd < len(wl) and wl[nrd] <= i + PF + (0 if i >= 4 else 4 - i + 0):
        rd_o(wl[nrd]); nrd += 1
    for j in range(4):
        if P["fl"][j] - 4 == i: flag(j)
        if P["chk"][j] - 2 == i: C.lds(f"ds_read_b32 v{VT0}, v{VRDY}", ("rdy", j))
        if P["chk"][j] == i:
            C.need(("rdy", j))
            C.e(f"v_readfirstlane_b32 s{S_T1}, v{VT0}")
            C.e(f"s_cmp_gt_u32 s{S_T1}, {j}")
            C.e(f"s_cbranch_scc0 L_spin{j}")
            C.lab(f"L_back{j}")
            C.stamp()
            for m in (1, 2, 3):
                for t in range(2):
                    fr = 2 * j + t
                    C.vm(f"buffer_load_dwordx4 {q4(hq(j, m, t))}, v{VO0 if fr < 4 else VO1}, {sq(SRD_WS)}, s{S_PM[m]} offen offset:{(fr % 4) * 1024} sc1", ("pl", j, m, t))
            C.tail += [f"L_spin{j}:", f"    s_mov_b32 s{S_CNT}, 0", f"L_spin{j}_l:",
                       f"    ds_read_b32 v{VT0}, v{VRDY}", f"    s_add_u32 s{S_CNT}, s{S_CNT}, 1", "    s_waitcnt lgkmcnt(0)",
                       f"    v_readfirstlane_b32 s{S_T1}, v{VT0}", f"    s_cmp_ge_u32 s{S_CNT}, 0x800000", f"    s_cbranch_scc1 L_back{j}",
                       f"    s_cmp_gt_u32 s{S_T1}, {j}", f"    s_cbranch_scc0 L_spin{j}_l", f"    s_branch L_back{j}"]
    if i == last[blk]: pend.append([i + 3, epi(blk)])
    budget = 4
    while pend and pend[0][0] <= i and budget > 0:
        items = pend[0][1]
        if not items: pend.pop(0); continue
        k, x = items[0]
        if k == "d": items.pop(0); pend[0][0] = i + 1; break
        if k == "m" and len(C.lq) >= 14: break
        items.pop(0)
        if k == "v": C.e(x)
        else: x()
        budget -= 1
        if items and k == "v" and items[0][0] == "m": break
C.stamp()
C.e("s_nop 11")
for _, items in pend:
    for k, x in items:
        if k == "v": C.e(x)
        elif k == "m": x()
C.stamp()
if P["stamps"] or "probe" in P:
    C.e("s_waitcnt vmcnt(0)"); C.stamp()
if "probe" in P:
    C.e("s_waitcnt lgkmcnt(0)")
    C.e("s_sub_u32 s96, s96, s100")
    C.e("s_lshl_b32 s96, s96, 2")
    C.e("s_add_u32 s96, s96, 2000")
    if "pwg" in P:
        C.e(f"s_cmp_eq_u32 s2, {P['pwg']}")
        C.e("s_cselect_b32 s96, s96, 0")
    C.lab("L_rt")
    C.e("s_memrealtime s[98:99]")
    C.e("s_waitcnt lgkmcnt(0)")
    C.e("s_sub_u32 s98, s98, s100")
    C.e("s_cmp_lt_u32 s98, s96")
    C.e("s_cbranch_scc1 L_rt")
if P.get("pad"):
    C.e(f"s_mov_b32 s{S_CNT}, {P['pad']}")
    C.lab("L_pad")
    if P.get("padk") == "nop":
        for _ in range(8): C.e("s_nop 15")
    elif P.get("padk") == "rt":
        pass
    else:
        for _ in range(4): C.e(f"v_mfma_f32_32x32x16_bf16 {q16(RA)}, {q4(RF)}, {q4(RF)}, {q16(RA)}")
    C.e(f"s_sub_u32 s{S_CNT}, s{S_CNT}, 1")
    C.e(f"s_cmp_lg_u32 s{S_CNT}, 0")
    C.e("s_cbranch_scc1 L_pad")
if P.get("rt"):
    C.e("s_waitcnt vmcnt(0)")
    C.lab("L_rt")
    C.e("s_memrealtime s[98:99]")
    C.e("s_waitcnt lgkmcnt(0)")
    C.e("s_sub_u32 s98, s98, s100")
    C.e(f"s_cmp_lt_u32 s98, {P['rt']}")
    C.e("s_cbranch_scc1 L_rt")
C.dump_stamps()
C.e("s_endpgm")

nm = P["name"]
hdr = open("standalone__edm_precond__diffusion.s.ref").read().split("; Override")[0]
out = [hdr.rstrip(),
       "; generated by gen/gen.py  " + " ".join(sys.argv[1:]),
       f"; @launch grid=(256,1,1) block=(512,1,1) lds={LDS_TOTAL}",
       '.amdgcn_target "amdgcn-amd-amdhsa--gfx950"', ".text", f".globl {nm}_kernel", ".p2align 8",
       f".type {nm}_kernel,@function", f"{nm}_kernel:"]
out += h.l + L.l + C.l + C.tail + ["L_end:"]
out += ['.section .rodata,"a"', ".p2align 6", f".amdhsa_kernel {nm}_kernel",
        "  .amdhsa_next_free_vgpr 256", "  .amdhsa_next_free_sgpr 102", "  .amdhsa_accum_offset 256",
        "  .amdhsa_group_segment_fixed_size 0", "  .amdhsa_kernarg_size 64", "  .amdhsa_user_sgpr_count 2",
        "  .amdhsa_user_sgpr_kernarg_segment_ptr 1", "  .amdhsa_system_sgpr_workgroup_id_x 1", ".end_amdhsa_kernel"]
print("\n".join(out))
```

```python
import sys, json

P = dict(ntx=0, outpol="sc1", D=3, rot=1, pre16=19, thr=4, b16=0, stamps=0, codepf=1, tlb=0, order=1, wo_touch=5, ldpol="sc1",
         fl=(2, 3, 14, 26),
         chk=(24, 36, 48, 60),
         name="standalone__edm_precond__diffusion")
for a in sys.argv[1:]:
    k, v = a.split("=", 1)
    try: P[k] = json.loads(v)
    except Exception: P[k] = v

POL = {"plain": "", "sc1": " sc1", "nt": " nt", "ntsc1": " sc1 nt"}
FLAG_OFF = 0x800000
ANN_OFF = 0x808000
WS_BYTES = 0x80c000
HC0, HK0, HC1, HK1 = 0x9E3779B1, 0x7F4A7C15, 0x85EBCA77, 0xC2B2AE3D
STAMP_OFF = 0x900000
LDS_MISC = 131072
LDS_BIAS = LDS_MISC
LDS_RDY = LDS_MISC + 2048
LDS_STG = LDS_MISC + 4096
LDS_TOTAL = LDS_STG + 4 * 2 * 2560

class Prog:
    def __init__(s):
        s.l = []; s.lq = []; s.vq = []; s.smem = False; s.nst = 0; s.tail = []; s.is_c = False
    def e(s, t): s.l.append("    " + t)
    def lab(s, t): s.l.append(t + ":")
    def c(s, t): s.l.append("    ; " + t)
    def lds(s, t, tag):
        s.e(t); s.lq.append(tag)
        assert len(s.lq) <= 15, "too many LDS ops outstanding"
    def vm(s, t, tag):
        s.e(t); s.vq.append(tag); assert len(s.vq) <= 63
    def need(s, *tags):
        idx = max([i for i, t in enumerate(s.lq) if t in tags], default=-1)
        if idx < 0: return False
        n = len(s.lq) - 1 - idx
        if s.smem: n = 0; s.smem = False
        s.e(f"s_waitcnt lgkmcnt({n})"); s.lq = s.lq[len(s.lq) - n:] if n else []
        return True
    def vneed(s, *tags):
        idx = max([i for i, t in enumerate(s.vq) if t in tags], default=-1)
        if idx < 0: return False
        n = len(s.vq) - 1 - idx
        s.e(f"s_waitcnt vmcnt({n})"); s.vq = s.vq[len(s.vq) - n:] if n else []
        return True
    def stamp(s):
        if "probe" in P:
            if s.nst == P["probe"] and s.is_c:
                s.e("s_memrealtime s[96:97]"); s.smem = True
            s.nst += 1
        if P["stamps"]:
            s.e(f"s_memtime s[{64 + 2 * s.nst}:{65 + 2 * s.nst}]"); s.nst += 1; s.smem = True
            assert s.nst <= 19
    def dump_stamps(s):
        if not P["stamps"]: return
        s.e("s_waitcnt lgkmcnt(0) vmcnt(0)")
        s.e("v_mov_b32 v14, 0")
        for i in range(1, s.nst):
            s.e(f"s_sub_u32 s{64+2*i}, s{64+2*i}, s64")
            s.e(f"v_writelane_b32 v14, s{64+2*i}, {i}")
        s.e("s_lshl_b32 s3, s2, 11")
        s.e(f"s_add_u32 s3, s3, {STAMP_OFF}")
        s.e("v_lshl_add_u32 v15, v0, 2, s3")
        s.e("global_store_dword v15, v14, s[18:19]")

def q4(r): return f"v[{r}:{r+3}]"
def q2(r): return f"v[{r}:{r+1}]"
def q16(r): return f"v[{r}:{r+15}]"
def sq(d): return f"s[{d}:{d+3}]"

S_EP, S_EN = 20, 21
S_W, S_Q, S_GL, S_G, S_R, S_TILE = 22, 23, 24, 25, 26, 27
SRD_A, SRD_B, SRD_C = 28, 32, 36
S_OB = (40, 41, 42, 43)
S_T0, S_T1, S_T2, S_T3 = 44, 45, 46, 47
S_S1, S_IK, S_MSK = 48, 50, 52
S_PM = (54, 55, 56, 57)
S_CNT, S_H0, S_H1 = 58, 59, 60
S_N, S_LB, S_XO, S_WO = 40, 41, 42, 43

h = Prog()
h.stamp()
if P.get("rt") or "probe" in P: h.e("s_memrealtime s[100:101]")
h.e("s_load_dwordx16 s[4:19], s[0:1], 0")
h.e("s_cmp_ge_u32 s2, 0x100")
h.e("s_cbranch_scc1 L_exit")
h.e("v_lshrrev_b32 v2, 6, v0")
h.e("v_and_b32 v1, 63, v0")
h.e(f"v_readfirstlane_b32 s{S_W}, v2")
h.e(f"s_lshr_b32 s{S_T0}, s2, 3")
if P["codepf"]:
    h.c("pull this kernel's code into the L2 (one 64-byte piece per wave)")
    h.e("s_getpc_b64 s[20:21]")
    h.lab("L_pc")
    h.e(f"s_lshl_b32 s{S_T1}, s{S_T0}, 3")
    h.e(f"v_add_lshl_u32 v3, v2, s{S_T1}, 6")
    h.e("v_min_u32 v3, L_end-L_pc-4, v3")
    h.e("global_load_dword v15, v3, s[20:21]")
h.e(f"s_and_b32 s{S_Q}, s{S_T0}, 3")
h.e(f"s_lshr_b32 s{S_GL}, s{S_T0}, 2")
h.e(f"s_and_b32 s{S_T1}, s2, 7")
h.e(f"s_lshl_b32 s{S_G}, s{S_GL}, 3")
h.e(f"s_add_u32 s{S_G}, s{S_G}, s{S_T1}")
h.e(f"s_lshr_b32 s{S_T0}, s{S_G}, 5")
h.e(f"s_lshl_b32 s{S_TILE}, s{S_T0}, 22")
h.e(f"s_and_b32 s{S_T1}, s{S_G}, 31")
h.e(f"s_lshl_b32 s{S_T1}, s{S_T1}, 8")
h.e(f"s_add_u32 s{S_TILE}, s{S_TILE}, s{S_T1}")
if P["rot"]:
    h.e(f"s_add_u32 s{S_R}, s{S_Q}, s{S_GL}")
    h.e(f"s_and_b32 s{S_R}, s{S_R}, 3")
else: h.e(f"s_mov_b32 s{S_R}, 0")
h.e(f"s_cmp_lt_u32 s{S_W}, 4")
h.e("s_cbranch_scc1 L_compute")

L = Prog(); L.nst = h.nst
D = P["D"]
ntx = " nt" if P["ntx"] else ""
L.c("---------------- loader waves: wave 4+i brings rows 4i..4i+3 of every 16-row step")
L.e("v_lshrrev_b32 v4, 4, v1")
L.e("v_and_b32 v6, 3, v1")
L.e("v_lshlrev_b32 v6, 4, v6")
L.e("v_bfe_u32 v5, v0, 2, 2")
L.e("v_and_b32 v2, 3, v2")
L.e("v_lshl_add_u32 v5, v2, 2, v5")
L.e("v_lshl_add_u32 v7, v4, 6, v6")
L.e("v_lshl_add_u32 v2, v5, 13, v7")
L.e(f"v_add_u32 v2, s{S_TILE}, v2")
L.e(f"s_lshl_b32 s{S_T0}, s{S_Q}, 8")
L.e(f"v_lshl_add_u32 v5, v5, 10, s{S_T0}")
L.e("v_add_u32 v3, v5, v7")
L.e(f"s_and_b32 s{S_LB}, s{S_W}, 3")
L.e(f"s_lshl_b32 s{S_LB}, s{S_LB}, 10")
L.e(f"s_mov_b32 s{S_N}, 0")
L.e(f"s_mov_b32 s{SRD_A+2}, 0x800000"); L.e(f"s_mov_b32 s{SRD_A+3}, 0x20000")
L.e(f"s_mov_b32 s{SRD_B+2}, 0x80000"); L.e(f"s_mov_b32 s{SRD_B+3}, 0x20000")
L.e("s_waitcnt lgkmcnt(0)")
L.e(f"s_mov_b64 s[{SRD_A}:{SRD_A+1}], s[4:5]")
L.e(f"s_mov_b64 s[{SRD_B}:{SRD_B+1}], s[8:9]")
L.lab("L_ld1")
L.c("chunk n = two 16-row steps; within every four chunks the order is rotated per workgroup")
L.e(f"s_add_u32 s{S_T0}, s{S_N}, s{S_R}")
L.e(f"s_and_b32 s{S_T0}, s{S_T0}, 3")
L.e(f"s_and_b32 s{S_T1}, s{S_N}, 12")
L.e(f"s_or_b32 s{S_T0}, s{S_T0}, s{S_T1}")
L.e(f"s_mov_b32 m0, s{S_LB}")
L.e(f"s_lshl_b32 s{S_XO}, s{S_T0}, 18")
L.e(f"buffer_load_dwordx4 v2, {sq(SRD_A)}, s{S_XO} offen{ntx} lds")
L.e(f"s_add_u32 m0, s{S_LB}, 0x1000")
L.e(f"s_lshl_b32 s{S_WO}, s{S_T0}, 15")
L.e(f"buffer_load_dwordx4 v3, {sq(SRD_B)}, s{S_WO} offen lds")
L.e(f"s_add_u32 m0, s{S_LB}, 0x2000")
L.e(f"s_add_u32 s{S_XO}, s{S_XO}, 0x20000")
L.e(f"buffer_load_dwordx4 v2, {sq(SRD_A)}, s{S_XO} offen{ntx} lds")
L.e(f"s_add_u32 m0, s{S_LB}, 0x3000")
L.e(f"s_add_u32 s{S_WO}, s{S_WO}, 0x4000")
L.e(f"buffer_load_dwordx4 v3, {sq(SRD_B)}, s{S_WO} offen lds")
L.e(f"s_add_u32 s{S_LB}, s{S_LB}, 0x4000")
L.e(f"s_and_b32 s{S_LB}, s{S_LB}, 0x1ffff")
L.e(f"s_add_u32 s{S_N}, s{S_N}, 1")
L.e(f"s_cmp_lt_u32 s{S_N}, {D}")
L.e("s_cbranch_scc1 L_ld1")
L.e(f"s_waitcnt vmcnt({4 * (D - 1)})")
L.e("s_barrier")
L.e(f"s_cmp_lt_u32 s{S_N}, 16")
L.e("s_cbranch_scc1 L_ld1")
L.stamp()
L.c("w_out: positions start at this member's own rows; column blocks rotated like the x chunks")
L.e(f"v_add_u32 v4, s{S_R}, v4")
L.e("v_and_b32 v4, 3, v4")
L.e("v_lshl_add_u32 v7, v4, 6, v6")
L.e("v_add_u32 v3, v5, v7")
L.e(f"s_mov_b64 s[{SRD_B}:{SRD_B+1}], s[12:13]")
L.e(f"s_lshl_b32 s{S_WO}, s{S_Q}, 17")
L.e("v_and_b32 v8, 7, v1")
L.e("v_lshlrev_b32 v8, 2, v8")
L.e(f"v_add_u32 v8, {LDS_RDY}, v8")
L.e("v_mov_b32 v9, 0")
L.e("ds_write_b32 v8, v9")
L.vq = [("c", n) for n in range(16 - D + 1, 16) for _ in range(4)]
def ld_wo(n):
    for p in range(4):
        L.e(f"s_add_u32 m0, s{S_LB}, {hex(((n - 16) * 4 + p) * 4096)}")
        if n > 16 or p: L.e(f"s_add_u32 s{S_WO}, s{S_WO}, 0x4000")
        else: L.e("s_waitcnt lgkmcnt(0)")
        if p == 0 and n % 2 == 0 and n > 16: L.e(f"s_and_b32 s{S_WO}, s{S_WO}, 0x7ffff")
        L.vm(f"buffer_load_dwordx4 v3, {sq(SRD_B)}, s{S_WO} offen lds", ("c", n))
def throttle():
    if len(L.vq) > P["thr"]:
        L.e(f"s_waitcnt vmcnt({P['thr']})"); L.vq = L.vq[len(L.vq) - P["thr"]:]
nxt = 16
for c in range(16 - D + 1, 16):
    ld_wo(nxt); nxt += 1
    L.vneed(("c", c))
    L.e("s_barrier")
L.stamp()
while nxt <= P["pre16"]:
    throttle(); ld_wo(nxt); nxt += 1
assert 18 <= nxt <= 22
L.vneed(("c", 17))
L.stamp()
L.e("s_barrier")
while nxt < 24:
    throttle(); ld_wo(nxt); nxt += 1
L.e(f"s_lshl_b32 s{S_T0}, s{S_W}, 2")
L.e(f"s_add_u32 s{S_T0}, s{S_T0}, {LDS_RDY}")
L.e(f"v_mov_b32 v8, s{S_T0}")
L.e("v_mov_b32 v9, 4")
L.e("s_waitcnt vmcnt(0)")
L.e("ds_write_b32 v8, v9")
L.stamp()
L.e(f"s_cmp_lg_u32 s{S_W}, 4")
L.e("s_cbranch_scc1 L_fin")
L.c("wave 4: relay the members' progress words into LDS")
L.e("v_and_b32 v11, 3, v1")
L.e("v_lshlrev_b32 v8, 2, v11")
L.e(f"v_add_u32 v8, {LDS_RDY}, v8")
L.e(f"s_lshl_b32 s{S_T0}, s{S_G}, 9")
L.e(f"s_add_u32 s{S_T0}, s{S_T0}, {FLAG_OFF}")
L.e(f"v_lshl_add_u32 v11, v11, 7, s{S_T0}")
L.e(f"v_mov_b32 v13, {LDS_RDY + 16}")
L.e(f"s_mov_b32 s{S_CNT}, 0")
L.lab("L_poll")
L.e("global_load_dwordx4 v[16:19], v11, s[18:19] sc1")
L.e(f"s_add_u32 s{S_CNT}, s{S_CNT}, 1")
L.e("ds_read_b128 v[20:23], v13")
L.e("s_waitcnt vmcnt(0) lgkmcnt(0)")
L.e("v_min3_u32 v16, v16, v17, v18")
L.e("v_min3_u32 v21, v21, v22, v23")
L.e("v_min3_u32 v16, v16, v19, v21")
L.e("ds_write_b32 v8, v16")
L.e("v_cmp_gt_u32 vcc, 4, v16")
L.e(f"s_cmp_ge_u32 s{S_CNT}, 0x100000")
L.e("s_cbranch_scc1 L_fin")
L.e("s_cmp_lg_u64 vcc, 0")
L.e("s_cbranch_scc1 L_poll")
L.lab("L_fin")
L.stamp()
L.dump_stamps()
L.lab("L_exit")
L.e("s_endpgm")

C = Prog(); C.nst = h.nst; C.is_c = True
if P["codepf"]: C.vq.append("code")
aW0, aW1, aX0, aX1, VO0, VO1, VFL, VFV, VSW, VSR, VOUT, VRDY, VT0, VT1 = 2, 3, 4, 5, 6, 7, 8, 9, 10, 11, 12, 13, 14, 15
RA, RB, RF, RX, RS, RH = 16, 80, 144, 184, 216, 224
SRD_WS, SRD_OUT, SRD_WO = SRD_A, SRD_B, SRD_C
C.lab("L_compute")
C.c("---------------- compute waves")
T = RH
vH, vC, vEMBA, vSIGA, vCLRA, vANNA, vSIG, vEMB, vZ, vEP, vANN, vJ, vL4, vTCH, vBW, vBR, vZZ, vSH = \
    T, T+1, T+2, T+3, T+4, T+5, T+6, T+7, T+8, T+9, T+10, T+12, T+13, T+14, T+15, T+16, T+17, T+18
vCHK, vCHA = T + 26, T + 28
C.e(f"v_lshrrev_b32 v{vH}, 5, v1")
C.e(f"v_bfe_u32 v{vC}, v1, 2, 2")
C.e(f"v_lshlrev_b32 v{vC}, 6, v{vC}")
C.e(f"v_lshl_add_u32 v{aW0}, v{vH}, 10, v{vC}")
C.e(f"v_bfe_u32 v{vC}, v1, 4, 1")
C.e(f"v_lshl_add_u32 v{aW0}, v{vC}, 5, v{aW0}")
C.e(f"v_and_b32 v{vC}, 3, v1")
C.e(f"v_lshl_add_u32 v{aW0}, v{vC}, 3, v{aW0}")
C.e(f"s_lshl_b32 s{S_T0}, s{S_W}, 8")
C.e(f"v_add_u32 v{aX0}, s{S_T0}, v{aW0}")
C.e(f"s_lshl_b32 s{S_T0}, s{S_Q}, 8")
C.e(f"v_lshl_add_u32 v{vEMBA}, v1, 2, s{S_T0}")
C.e(f"s_lshr_b32 s{S_T0}, s{S_TILE}, 21")
C.e(f"v_mov_b32 v{vSIGA}, s{S_T0}")
C.c("wave 0 resets this workgroup's four progress words (lanes 0-3), then announces that under this launch's tag")
C.e(f"s_lshl_b32 s{S_T2}, s{S_G}, 9")
C.e(f"s_add_u32 s{S_T2}, s{S_T2}, {FLAG_OFF}")
C.e(f"s_lshl_b32 s{S_T3}, s{S_Q}, 2")
C.e(f"s_add_u32 s{S_T2}, s{S_T2}, s{S_T3}")
C.e(f"v_lshrrev_b32 v{vL4}, 2, v0")
C.e(f"v_lshl_add_u32 v{vCLRA}, v{vC}, 7, s{S_T2}")
C.e(f"v_lshl_add_u32 v{vCLRA}, v{vL4}, 24, v{vCLRA}")
C.e(f"v_mov_b32 v{vZ}, 0")
C.e(f"s_lshl_b32 s{S_EP}, s{S_G}, 8")
C.e(f"s_add_u32 s{S_EP}, s{S_EP}, {ANN_OFF}")
C.e(f"s_mov_b32 s{SRD_WS+2}, {hex(WS_BYTES)}"); C.e(f"s_mov_b32 s{SRD_WS+3}, 0x20000")
C.e("s_waitcnt lgkmcnt(0)")
C.e(f"s_mov_b64 s[{SRD_WS}:{SRD_WS+1}], s[18:19]")
C.vm(f"buffer_store_dword v{vZ}, v{vCLRA}, {sq(SRD_WS)}, 0 offen sc1", "clr")
C.vm(f"buffer_load_dword v{vEP}, v{vZ}, {sq(SRD_WS)}, s{S_EP} offen sc1", "ep")
C.vm(f"global_load_ushort v{vSIG}, v{vSIGA}, s[6:7]", "sig")
C.vm(f"global_load_dword v{vEMB}, v{vEMBA}, s[10:11]", "emb")

F = []
def f2(*x): F.append("\n    ".join(x))
f2(f"v_add_u32 v{aW1}, 0x10000, v{aW0}", f"v_add_u32 v{aX1}, 0x10000, v{aX0}")
f2(f"s_mov_b64 s[{SRD_WO}:{SRD_WO+1}], s[12:13]", f"s_mov_b32 s{SRD_WO+2}, 0x80000")
f2(f"s_mov_b32 s{SRD_WO+3}, 0x20000", f"v_bfe_u32 v{vL4}, v1, 2, 4")
f2(f"s_lshl_b32 s{S_T0}, s{S_GL}, 16", f"s_lshl_b32 s{S_T1}, s{S_W}, 14")
f2(f"s_add_u32 s{S_T0}, s{S_T0}, s{S_T1}", f"s_lshl_b32 s{S_T1}, s{S_Q}, 8")
f2(f"s_add_u32 s{S_T0}, s{S_T0}, s{S_T1}", f"v_lshl_add_u32 v{vTCH}, v{vL4}, 10, s{S_T0}")
f2(f"v_lshl_add_u32 v{vTCH}, v{vC}, 6, v{vTCH}", f"v_lshlrev_b32 v{vANNA}, 23, v0")
N_EARLY = len(F)
F.append(lambda: C.vneed("clr", "ep", "sig", "emb"))
f2(f"v_readfirstlane_b32 s{S_T3}, v{vEP}")
f2(f"s_mul_i32 s{S_H0}, s{S_T3}, {hex(HC0)}", f"s_add_u32 s{S_H0}, s{S_H0}, {hex(HK0)}")
f2(f"s_mul_i32 s{S_H1}, s{S_T3}, {hex(HC1)}", f"s_add_u32 s{S_H1}, s{S_H1}, {hex(HK1)}")
f2(f"v_mov_b32 v{vANN}, s{S_H0}", f"v_mov_b32 v{vANN+1}, s{S_H1}")
f2(f"s_lshl_b32 s{S_T0}, s{S_Q}, 3", f"s_add_u32 s{S_T0}, s{S_T0}, s{S_EP}")
F.append(lambda: C.vm(f"buffer_store_dwordx2 {q2(vANN)}, v{vANNA}, {sq(SRD_WS)}, s{S_T0} offen offset:128 sc1", "ann"))
f2(f"s_add_u32 s{S_EN}, s{S_T3}, 1", f"v_lshlrev_b32 v{vCHA}, 3, v{vC}")
sg, a, b2, cs, cn = vSIG, T + 20, T + 21, T + 22, T + 23
def rnd(r): return [f"v_cvt_pk_bf16_f32 v{r}, v{r}, v{r}\n    v_lshlrev_b32 v{r}, 16, v{r}"]
F += [f"v_lshlrev_b32 v{sg}, 16, v{sg}\n    v_mul_f32 v{a}, v{sg}, v{sg}"] + rnd(a)
F += [f"v_add_f32 v{a}, 0x3e800000, v{a}"] + rnd(a)
F += [f"v_rcp_f32 v{cs}, v{a}", f"v_sqrt_f32 v{a}, v{a}"] + rnd(cs) + rnd(a)
F += [f"v_mul_f32 v{cs}, 0x3e800000, v{cs}", f"v_rcp_f32 v{a}, v{a}", f"v_lshrrev_b32 v{cs}, 16, v{cs}\n    v_mul_f32 v{b2}, 0.5, v{sg}"]
F += [f"v_mul_f32 v{b2}, v{b2}, v{a}"] + rnd(b2) + rnd(a)
F += [f"v_log_f32 v{cn}, v{sg}", f"v_mul_f32 v{a}, 0xbfb8aa3b, v{a}", f"v_mul_f32 v{cn}, 0x3f317218, v{cn}"] + rnd(cn)
F += [f"v_max_f32 v{b2}, 0x03800000, v{b2}", f"v_mul_f32 v{b2}, 0xbf317218, v{b2}", f"v_rcp_f32 v{b2}, v{b2}"]
F += [f"v_mul_f32 v{cn}, 0x3e800000, v{cn}"]
f2(f"v_readfirstlane_b32 s{S_S1}, v{a}", f"v_readfirstlane_b32 s{S_S1+1}, v{a}")
f2(f"v_readfirstlane_b32 s{S_IK}, v{b2}", f"v_readfirstlane_b32 s{S_IK+1}, v{b2}")
e0, e1 = T + 24, T + 25
f2(f"v_lshlrev_b32 v{e0}, 16, v{vEMB}", f"v_and_b32 v{e1}, 0xffff0000, v{vEMB}")
f2(f"v_mul_f32 v{e0}, v{cn}, v{e0}", f"v_mul_f32 v{e1}, v{cn}, v{e1}")
f2(f"v_cvt_pk_bf16_f32 v{e1}, v{e0}, v{e1}", f"v_lshlrev_b32 v{e0}, 16, v{e1}")
f2(f"v_and_b32 v{e1}, 0xffff0000, v{e1}", f"v_mul_f32 v{e0}, 0xbfb8aa3b, v{e0}")
f2(f"s_lshl_b32 s{S_T0}, s{S_W}, 9", f"v_mul_f32 v{e1}, 0xbfb8aa3b, v{e1}")
f2(f"s_add_u32 s{S_T0}, s{S_T0}, {LDS_BIAS}", f"v_lshl_add_u32 v{vBW}, v1, 3, s{S_T0}")
f2(f"v_lshl_add_u32 v{vBR}, v{vH}, 4, s{S_T0}", f"v_and_b32 v{vJ}, 31, v1")
F.append(("lds", f"ds_write_b64 v{vBW}, {q2(e0)}", "biasw"))
for i in range(16):
    F.append(("lds", f"ds_read_b128 {q4(RB + 4 * i)}, v{vBR} offset:{i * 32}", "bias"))
f2(f"v_lshrrev_b32 v{vZZ}, 1, v{vJ}", f"v_lshlrev_b32 v{vSH}, 1, v{vH}")
f2(f"v_sub_u32 v{vZZ}, v{vZZ}, v{vSH}", f"v_and_b32 v{vSH}, 1, v1")
f2(f"v_lshlrev_b32 v{vSH}, 4, v{vSH}", f"v_lshlrev_b32 v{cs}, v{vSH}, v{cs}")
sel = [(t, d) for t in range(2) for d in range(4)]
f2(f"v_cmp_eq_u32 vcc, 0, v{vZZ}")
for n, (t, d) in enumerate(sel):
    x = [f"v_cndmask_b32 v{RS + 4 * t + d}, 0, v{cs}, vcc"]
    if n < 7: x.append(f"v_cmp_eq_u32 vcc, {8 * sel[n+1][0] + (0, 1, 4, 5)[sel[n+1][1]]}, v{vZZ}")
    f2(*x)
F.append(lambda: C.vm(f"buffer_load_dwordx2 {q2(vCHK)}, v{vCHA}, {sq(SRD_WS)}, s{S_EP} offen offset:128 sc1", "chk"))
f2(f"v_lshlrev_b32 v{VO0}, 4, v1", f"v_add_u32 v{VO1}, 0x1000, v{VO0}")
f2(f"s_lshl_b32 s{S_T0}, s{S_W}, 7", f"s_add_u32 s{S_T2}, s{S_T2}, s{S_T0}")
f2(f"v_lshl_add_u32 v{VFL}, v1, 24, s{S_T2}")
f2(f"s_lshl_b32 s{S_T1}, s{S_G}, 4", f"s_add_u32 s{S_T1}, s{S_T1}, s{S_W}")
for m in range(4):
    f2(f"s_add_u32 s{S_T0}, s{S_Q}, {m}", f"s_and_b32 s{S_T0}, s{S_T0}, 3")
    f2(f"s_lshl2_add_u32 s{S_T0}, s{S_T0}, s{S_T1}", f"s_lshl_b32 s{S_PM[m]}, s{S_T0}, 13")
f2(f"s_mul_i32 s{S_T0}, s{S_W}, 5120", f"s_add_u32 s{S_T0}, s{S_T0}, {LDS_STG}")
f2(f"v_mul_u32_u24 v{VSW}, 80, v{vJ}", f"v_lshl_add_u32 v{VSW}, v{vH}, 3, v{VSW}")
f2(f"v_add_u32 v{VSW}, s{S_T0}, v{VSW}", f"v_mul_u32_u24 v{VSR}, 80, v{vL4}")
f2(f"v_lshl_add_u32 v{VSR}, v{vC}, 4, v{VSR}", f"v_add_u32 v{VSR}, s{S_T0}, v{VSR}")
f2(f"s_lshl_b32 s{S_T0}, s{S_Q}, 20", f"s_add_u32 s{S_T0}, s{S_T0}, s{S_TILE}")
f2(f"s_lshl_b32 s{S_T1}, s{S_W}, 6", f"s_add_u32 s{S_T0}, s{S_T0}, s{S_T1}")
f2(f"v_lshl_add_u32 v{VOUT}, v{vL4}, 13, s{S_T0}", f"v_lshl_add_u32 v{VOUT}, v{vC}, 4, v{VOUT}")
for j in range(4):
    f2(f"s_add_u32 s{S_T0}, s{S_R}, {j}", f"s_and_b32 s{S_T0}, s{S_T0}, 3", f"s_lshl_b32 s{S_OB[j]}, s{S_T0}, 18")
f2(f"s_mov_b64 s[{SRD_OUT}:{SRD_OUT+1}], s[14:15]", f"s_mov_b32 s{SRD_OUT+2}, 0x800000")
f2(f"s_mov_b32 s{SRD_OUT+3}, 0x20000", f"s_lshl_b32 s{S_T0}, s{S_W}, 2")
f2(f"s_add_u32 s{S_T0}, s{S_T0}, {LDS_RDY}", f"v_mov_b32 v{VRDY}, s{S_T0}")
if P["tlb"]:
    F.append(lambda: C.vm(f"buffer_load_dword v{VT0}, v{vZ}, {sq(SRD_WS)}, s{S_PM[0]} offen", "tlb"))
    F.append(lambda: C.vm(f"buffer_load_dword v{VT0}, v{vZ}, {sq(SRD_OUT)}, s{S_TILE} offen", "tlb"))
F_WAIT = 10
assert len(F) + F_WAIT - N_EARLY <= 124, len(F)

def rd_x(s, i):
    base = (s % 16) * 8192; a_ = aX0 if base < 65536 else aX1
    r = RF + 20 * (s & 1) + 2 * i
    C.lds(f"ds_read_b64_tr_b16 {q2(r)}, v{a_} offset:{base % 65536 + 2048 * i}", ("x", s))
def rd_w(s, j, i):
    base = (s % 16) * 8192; a_ = aW0 if base < 65536 else aW1
    r = RF + 20 * (s & 1) + 4 + 4 * j + 2 * i
    C.lds(f"ds_read_b64_tr_b16 {q2(r)}, v{a_} offset:{base % 65536 + 4096 + 256 * j + 2048 * i}", ("w", s, j))
def reads(s): return [lambda i=i: rd_x(s, i) for i in range(2)] + [lambda j=j, i=i: rd_w(s, j, i) for j in range(4) for i in range(2)]

C.stamp()
C.e("s_barrier")
C.stamp()
for r in reads(0): r()
gap = 0; nf = 0
for s in range(32):
    if s % 2 == 1 and s < 31:
        C.e("s_barrier")
        if (s + 1) // 2 == P["wo_touch"]:
            C.vm(f"buffer_load_dword v{VT1}, v{vTCH}, {sq(SRD_WO)}, 0 offen", "touch")
    if s % 8 == 0:
        C.e(f"s_cmp_eq_u32 s{S_Q}, {s // 8}")
        C.e(f"s_cselect_b64 s[{S_MSK}:{S_MSK+1}], -1, 0")
        if s: C.stamp()
    rl = reads(s + 1) if s < 31 else []
    split = (3, 3, 2, 2)
    for j in range(4):
        C.need(("x", s), ("w", s, j))
        fb = RF + 20 * (s & 1)
        cin = "0" if s == 0 else q16(RA + 16 * j)
        C.e(f"v_mfma_f32_32x32x16_bf16 {q16(RA + 16 * j)}, {q4(fb + 4 + 4 * j)}, {q4(fb)}, {cin}")
        for _ in range(split[j]):
            if rl: rl.pop(0)()
        f = None
        if F and (nf < N_EARLY or gap >= F_WAIT): f = F.pop(0); nf += 1
        if f is not None and not isinstance(f, str):
            if isinstance(f, tuple): C.lds(f[1], f[2])
            else: f()
            f = None
        if j < 3: C.need(("x", s), ("w", s, j + 1))
        elif s < 31 and not (s % 2 == 0): C.need(("x", s + 1), ("w", s + 1, 0))
        if f: C.e(f)
        xr = RX + 4 * (s % 8) + j
        C.e(f"v_cndmask_b32 v{xr}, v{xr}, v{fb + j}, s[{S_MSK}:{S_MSK+1}]")
        gap += 1
assert not F
C.need("bias")
assert not C.lq
C.stamp()
C.c("all four members have reset their progress words in this launch")
C.vneed("chk", "tlb", "touch")
C.lab("L_ann")
C.e(f"v_cmp_ne_u32 vcc, s{S_H0}, v{vCHK}")
C.e(f"v_cmp_ne_u32 s[{S_MSK}:{S_MSK+1}], s{S_H1}, v{vCHK+1}")
C.e("s_nop 1")
C.e(f"s_or_b64 vcc, vcc, s[{S_MSK}:{S_MSK+1}]")
C.e("s_cbranch_scc1 L_ann_wait")
C.lab("L_ann_ok")
C.tail += ["L_ann_wait:", f"    s_mov_b32 s{S_CNT}, 0", "L_ann_l:",
           f"    buffer_load_dwordx2 {q2(vCHK)}, v{vCHA}, {sq(SRD_WS)}, s{S_EP} offen offset:128 sc1",
           f"    s_add_u32 s{S_CNT}, s{S_CNT}, 1", "    s_waitcnt vmcnt(0)",
           f"    v_cmp_ne_u32 vcc, s{S_H0}, v{vCHK}", f"    v_cmp_ne_u32 s[{S_MSK}:{S_MSK+1}], s{S_H1}, v{vCHK+1}",
           f"    s_cmp_ge_u32 s{S_CNT}, 0x100000", "    s_cbranch_scc1 L_ann_ok",
           f"    s_or_b64 vcc, vcc, s[{S_MSK}:{S_MSK+1}]", "    s_cbranch_scc1 L_ann_l", "    s_branch L_ann_ok"]
def flag(j):
    C.vneed(("st", j))
    C.e(f"v_mov_b32 v{VFV}, {j + 1}")
    C.vm(f"buffer_store_dword v{VFV}, v{VFL}, {sq(SRD_WS)}, 0 offen sc1", ("fl", j))
def hstore(fr, tag):
    C.vm(f"buffer_store_dwordx4 {q4(RH + 4*fr)}, v{VO0 if fr < 4 else VO1}, {sq(SRD_WS)}, s{S_PM[0]} offen offset:{(fr % 4) * 1024} sc1", tag)
if P["b16"] < 0: C.e("s_barrier")
C.c("---- h = c_out * silu(c_in * acc + bias), two elements per packed op")
for blk in range(4):
    A_, B_ = RA + 16 * blk, RB + 16 * blk
    for g in range(0, 16, 4):
        for o in (0, 2): C.e(f"v_pk_fma_f32 {q2(B_+g+o)}, {q2(A_+g+o)}, s[{S_S1}:{S_S1+1}], {q2(B_+g+o)}")
        for o in range(4): C.e(f"v_exp_f32 v{A_+g+o}, v{B_+g+o}")
        if g:
            for o in (0, 2): C.e(f"v_cvt_pk_bf16_f32 v{RH + 8*blk + (g-4+o)//2}, v{A_+g-4+o}, v{A_+g-4+o+1}")
        for o in (0, 2): C.e(f"v_pk_fma_f32 {q2(A_+g+o)}, {q2(A_+g+o)}, s[{S_IK}:{S_IK+1}], s[{S_IK}:{S_IK+1}]")
        for o in range(4): C.e(f"v_rcp_f32 v{A_+g+o}, v{A_+g+o}")
        if g == 8: hstore(2 * blk, ("st", blk))
        for o in (0, 2): C.e(f"v_pk_mul_f32 {q2(A_+g+o)}, {q2(A_+g+o)}, {q2(B_+g+o)}")
    for o in (0, 2): C.e(f"v_cvt_pk_bf16_f32 v{RH + 8*blk + (12+o)//2}, v{A_+12+o}, v{A_+12+o+1}")
    hstore(2 * blk + 1, ("st", blk))
    if blk == P["b16"]: C.e("s_barrier")
    for j in range(4):
        if P["fl"][j] == blk: flag(j)
    if blk in (1, 3): C.stamp()

quads = [RB + 4 * i for i in range(16)] + [RX + 4 * i for i in range(8)]
def hq(j, m, t): return quads[6 * j + 2 * (m - 1) + t]
units = []
for t in range(2):
    for blk in range(4): units.append((blk, RX + 4 * (2 * blk + t), ("sel", t), t == 0, None))
for ks in range(8):
    for blk in range(4): units.append((blk, RH + 4 * ks, (ks, blk), False, None))
def ru(blk, j, m, t): units.append((blk, hq(j, m, t), (8 * m + 2 * j + t, blk), False, (j, m, t)))
MT = [(m, t) for m in (1, 2, 3) for t in range(2)]
if P["order"] == 0:
    for j in range(3):
        for m, t in MT:
            for blk in range(4): ru(blk, j, m, t)
    for blk in range(4):
        for m, t in MT: ru(blk, 3, m, t)
elif P["order"] == 1:
    for j in range(3):
        for m, t in MT:
            for blk in (0, 1): ru(blk, j, m, t)
    for blk in (0, 1):
        for m, t in MT: ru(blk, 3, m, t)
    for blk in (2, 3):
        for j in range(4):
            for m, t in MT: ru(blk, j, m, t)
elif P["order"] == 2:
    for j in range(2):
        for m, t in MT:
            for blk in range(4): ru(blk, j, m, t)
    for blk in range(4):
        for j in (2, 3):
            for m, t in MT: ru(blk, j, m, t)
elif P["order"] == 3:
    for m, t in MT:
        for blk in range(4): ru(blk, 0, m, t)
    for blk in range(4):
        for j in (1, 2, 3):
            for m, t in MT: ru(blk, j, m, t)
wl = [i for i, u in enumerate(units) if u[2][0] != "sel"]
slot = {i: RF + 4 * (n % 10) for n, i in enumerate(wl)}
def rd_o(i):
    p, blk = units[i][2]; base = p * 4096; a_ = aW0 if base < 65536 else aW1
    for k in range(2):
        C.lds(f"ds_read_b64_tr_b16 {q2(slot[i] + 2 * k)}, v{a_} offset:{base % 65536 + 256 * blk + 2048 * k}", ("o", i))
PF = 4
first_remote = min(i for i, u in enumerate(units) if u[4] is not None)
assert P["chk"][0] < first_remote - PF
for j in range(4):
    assert P["chk"][j] < min(i for i, u in enumerate(units) if u[4] is not None and u[4][0] == j)
    assert P["fl"][j] - 4 <= P["chk"][j]
last = {blk: max(i for i, u in enumerate(units) if u[0] == blk) for blk in range(4)}
opol = POL[P["outpol"]]; ldpol = POL[P["ldpol"]]
def epi(blk):
    tmp = RS; dat = RA + 16 * blk; so = (blk & 1) * 2560
    def cvt(g): return [("v", f"v_cvt_pk_bf16_f32 v{tmp + 2*g + o//2}, v{RA + 16*blk + 4*g + o}, v{RA + 16*blk + 4*g + o + 1}") for o in (0, 2)]
    def wr(g): return ("m", lambda: C.lds(f"ds_write_b64 v{VSW}, {q2(tmp + 2*g)} offset:{so + 16*g}", ("sw", blk)))
    def rd(k): return ("m", lambda: C.lds(f"ds_read_b128 {q4(dat + 4*k)}, v{VSR} offset:{so + 1280*k}", ("sr", blk, k)))
    def st(k):
        def f():
            if k: C.e(f"s_add_u32 s{S_OB[blk]}, s{S_OB[blk]}, 0x20000")
            C.need(("sr", blk, k))
            C.vm(f"buffer_store_dwordx4 {q4(dat + 4*k)}, v{VOUT}, {sq(SRD_OUT)}, s{S_OB[blk]} offen{opol}", ("out", blk))
        return ("m", f)
    return [cvt(0) + cvt(1)[:1], [wr(0)] + cvt(1)[1:] + cvt(2)[:1], [wr(1)] + cvt(2)[1:] + cvt(3)[:1], [wr(2)] + cvt(3)[1:], [wr(3), rd(0)], [rd(1)],
            [], [], [], [st(0)], [st(1)]]
sched = {}
def put(i, b):
    sched.setdefault(i, []).append(b)
busy_until = 0
for blk in sorted(range(4), key=lambda b: last[b]):
    t0 = max(last[blk] + 3, busy_until)
    for n, b in enumerate(epi(blk)): put(t0 + n, b)
    busy_until = t0 + 6
nrd = 0
NU = len(units)
def pre_wait(i):
    if i >= NU: return
    if units[i][4] is not None: C.vneed(("pl",) + units[i][4])
    if units[i][2][0] != "sel": C.need(("o", i))
for i, u in enumerate(units):
    blk, ar, wf, first, stg = u
    pre_wait(i)
    br = RS + 4 * wf[1] if wf[0] == "sel" else slot[i]
    C.e(f"v_mfma_f32_32x32x16_bf16 {q16(RA + 16*blk)}, {q4(ar)}, {q4(br)}, {'0' if first else q16(RA + 16*blk)}")
    if nrd < len(wl) and wl[nrd] <= i + PF:
        rd_o(wl[nrd]); nrd += 1
    items = [x for b in sched.pop(i, []) for x in b]
    for k, x in items:
        if k == "m": x()
    for j in range(4):
        if P["fl"][j] - 4 == i: flag(j)
        if P["chk"][j] - 3 == i: C.lds(f"ds_read_b32 v{VT0}, v{VRDY}", ("rdy", j))
        if P["chk"][j] - 1 == i:
            C.need(("rdy", j))
            items.append(("v", f"v_readfirstlane_b32 s{S_T1}, v{VT0}"))
        if P["chk"][j] == i:
            C.e(f"s_cmp_gt_u32 s{S_T1}, {j}")
            C.e(f"s_cbranch_scc0 L_spin{j}")
            C.lab(f"L_back{j}")
            C.stamp()
            C.tail += [f"L_spin{j}:", f"    s_mov_b32 s{S_CNT}, 0", f"L_spin{j}_l:",
                       f"    ds_read_b32 v{VT0}, v{VRDY}", f"    s_add_u32 s{S_CNT}, s{S_CNT}, 1", "    s_waitcnt lgkmcnt(0)",
                       f"    v_readfirstlane_b32 s{S_T1}, v{VT0}", f"    s_cmp_ge_u32 s{S_CNT}, 0x800000", f"    s_cbranch_scc1 L_back{j}",
                       f"    s_cmp_gt_u32 s{S_T1}, {j}", f"    s_cbranch_scc0 L_spin{j}_l", f"    s_branch L_back{j}"]
        if 0 <= i - P["chk"][j] < 3:
            m = i - P["chk"][j] + 1
            for t in range(2):
                fr = 2 * j + t
                C.vm(f"buffer_load_dwordx4 {q4(hq(j, m, t))}, v{VO0 if fr < 4 else VO1}, {sq(SRD_WS)}, s{S_PM[m]} offen offset:{(fr % 4) * 1024}{ldpol}", ("pl", j, m, t))
    if i == P["chk"][3] + 4:
        C.c("member 0 moves the group's epoch on (every member read it long ago: their progress words came after it)")
        C.e(f"s_lshl_b32 s{S_T1}, s{S_Q}, 28")
        items += [("v", f"v_lshl_or_b32 v{VT1}, v0, 23, s{S_T1}"), ("v", f"v_mov_b32 v{VT0}, s{S_EN}")]
    if i == P["chk"][3] + 5:
        C.vm(f"buffer_store_dword v{VT0}, v{VT1}, {sq(SRD_WS)}, s{S_EP} offen sc1", "epst")
    pre_wait(i + 1)
    for k, x in items:
        if k == "v": C.e(x)
C.stamp()
C.e("s_nop 11")
for i in sorted(sched):
    for b in sched[i]:
        for k, x in sorted(b, key=lambda y: y[0]):
            if k == "v": C.e(x)
            else: x()
C.stamp()
if P["stamps"] or "probe" in P:
    C.e("s_waitcnt vmcnt(0)"); C.stamp()
if "probe" in P or P.get("rt"):
    C.e("s_waitcnt lgkmcnt(0)")
    if "probe" in P:
        C.e("s_sub_u32 s96, s96, s100"); C.e("s_lshl_b32 s96, s96, 2"); C.e("s_add_u32 s96, s96, 2000")
    else: C.e(f"s_mov_b32 s96, {P['rt']}")
    C.lab("L_rt")
    C.e("s_memrealtime s[98:99]"); C.e("s_waitcnt lgkmcnt(0)"); C.e("s_sub_u32 s98, s98, s100")
    C.e("s_cmp_lt_u32 s98, s96"); C.e("s_cbranch_scc1 L_rt")
C.dump_stamps()
C.e("s_endpgm")

nm = P["name"]
hdr = open("standalone__edm_precond__diffusion.s.ref").read().split("; Override")[0]
out = [hdr.rstrip(),
       "; generated by gen/gen.py  " + " ".join(sys.argv[1:]),
       f"; @launch grid=(256,1,1) block=(512,1,1) lds={LDS_TOTAL}",
       '.amdgcn_target "amdgcn-amd-amdhsa--gfx950"', ".text", f".globl {nm}_kernel", ".p2align 8",
       f".type {nm}_kernel,@function", f"{nm}_kernel:"]
out += h.l + L.l + C.l + C.tail + ["L_end:"]
out += ['.section .rodata,"a"', ".p2align 6", f".amdhsa_kernel {nm}_kernel",
        "  .amdhsa_next_free_vgpr 256", "  .amdhsa_next_free_sgpr 102", "  .amdhsa_accum_offset 256",
        "  .amdhsa_group_segment_fixed_size 0", "  .amdhsa_kernarg_size 64", "  .amdhsa_user_sgpr_count 2",
        "  .amdhsa_user_sgpr_kernarg_segment_ptr 1", "  .amdhsa_system_sgpr_workgroup_id_x 1", ".end_amdhsa_kernel"]
print("\n".join(out))
```

```python
import sys, json

P = dict(ntx=0, outpol="sc1", D=3, rot=1, pre16=19, thr=4, b16=0, stamps=0, codepf=1, tlb=0, order=1, wo_touch=5, ldpol="nt", hpol="plain", pf=(), pfpol="nt", wb=1, prime=1,
         fl=(1, 2, 3, 12),
         chk=(12, 18, 24, 30),
         name="standalone__edm_precond__diffusion")
for a in sys.argv[1:]:
    k, v = a.split("=", 1)
    try: P[k] = json.loads(v)
    except Exception: P[k] = v

POL = {"plain": "", "sc1": " sc1", "nt": " nt", "ntsc1": " sc1 nt"}
FLAG_OFF = 0x800000
ANN_OFF = 0x808000
WS_BYTES = 0x80c000
HC0, HK0, HC1, HK1 = 0x9E3779B1, 0x7F4A7C15, 0x85EBCA77, 0xC2B2AE3D
STAMP_OFF = 0x900000
LDS_MISC = 131072
LDS_BIAS = LDS_MISC
LDS_RDY = LDS_MISC + 2048
LDS_STG = LDS_MISC + 4096
LDS_TOTAL = LDS_STG + 4 * 2 * 2560

class Prog:
    def __init__(s):
        s.l = []; s.lq = []; s.vq = []; s.smem = False; s.nst = 0; s.tail = []; s.is_c = False
    def e(s, t): s.l.append("    " + t)
    def lab(s, t): s.l.append(t + ":")
    def c(s, t): s.l.append("    ; " + t)
    def lds(s, t, tag):
        s.e(t); s.lq.append(tag)
        assert len(s.lq) <= 15, "too many LDS ops outstanding"
    def vm(s, t, tag):
        s.e(t); s.vq.append(tag); assert len(s.vq) <= 63
    def need(s, *tags):
        idx = max([i for i, t in enumerate(s.lq) if t in tags], default=-1)
        if idx < 0: return False
        n = len(s.lq) - 1 - idx
        if s.smem: n = 0; s.smem = False
        s.e(f"s_waitcnt lgkmcnt({n})"); s.lq = s.lq[len(s.lq) - n:] if n else []
        return True
    def vneed(s, *tags):
        idx = max([i for i, t in enumerate(s.vq) if t in tags], default=-1)
        if idx < 0: return False
        n = len(s.vq) - 1 - idx
        s.e(f"s_waitcnt vmcnt({n})"); s.vq = s.vq[len(s.vq) - n:] if n else []
        return True
    def stamp(s):
        if "probe" in P:
            if s.nst == P["probe"] and s.is_c:
                s.e("s_memrealtime s[96:97]"); s.smem = True
            s.nst += 1
        if P["stamps"]:
            s.e(f"s_memtime s[{64 + 2 * s.nst}:{65 + 2 * s.nst}]"); s.nst += 1; s.smem = True
            assert s.nst <= 19
    def dump_stamps(s):
        if not P["stamps"]: return
        s.e("s_waitcnt lgkmcnt(0) vmcnt(0)")
        s.e("v_mov_b32 v14, 0")
        for i in range(1, s.nst):
            s.e(f"s_sub_u32 s{64+2*i}, s{64+2*i}, s64")
            s.e(f"v_writelane_b32 v14, s{64+2*i}, {i}")
        s.e("s_lshl_b32 s3, s2, 11")
        s.e(f"s_add_u32 s3, s3, {STAMP_OFF}")
        s.e("v_lshl_add_u32 v15, v0, 2, s3")
        s.e("global_store_dword v15, v14, s[18:19]")

def q4(r): return f"v[{r}:{r+3}]"
def q2(r): return f"v[{r}:{r+1}]"
def q16(r): return f"v[{r}:{r+15}]"
def sq(d): return f"s[{d}:{d+3}]"

S_EP, S_EN = 20, 21
S_W, S_Q, S_GL, S_G, S_R, S_TILE = 22, 23, 24, 25, 26, 27
SRD_A, SRD_B, SRD_C = 28, 32, 36
S_OB = (40, 41, 42, 43)
S_T0, S_T1, S_T2, S_T3 = 44, 45, 46, 47
S_S1, S_IK, S_MSK = 48, 50, 52
S_PM = (54, 55, 56, 57)
S_CNT, S_H0, S_H1, S_XCC, S_PS, S_MODE = 58, 59, 60, 61, 62, 63
S_N, S_LB, S_XO, S_WO = 40, 41, 42, 43

h = Prog()
h.stamp()
if P.get("rt") or "probe" in P: h.e("s_memrealtime s[100:101]")
h.e("s_load_dwordx16 s[4:19], s[0:1], 0")
h.e("s_cmp_ge_u32 s2, 0x100")
h.e("s_cbranch_scc1 L_exit")
h.e("v_lshrrev_b32 v2, 6, v0")
h.e("v_and_b32 v1, 63, v0")
h.e(f"v_readfirstlane_b32 s{S_W}, v2")
h.e(f"s_lshr_b32 s{S_T0}, s2, 3")
if P["codepf"]:
    h.c("pull this kernel's code into the L2 (one 64-byte piece per wave)")
    h.e("s_getpc_b64 s[20:21]")
    h.lab("L_pc")
    h.e(f"s_lshl_b32 s{S_T1}, s{S_T0}, 3")
    h.e(f"v_add_lshl_u32 v3, v2, s{S_T1}, 6")
    h.e("v_min_u32 v3, L_end-L_pc-4, v3")
    h.e("global_load_dword v15, v3, s[20:21]")
h.e(f"s_and_b32 s{S_Q}, s{S_T0}, 3")
h.e(f"s_lshr_b32 s{S_GL}, s{S_T0}, 2")
h.e(f"s_and_b32 s{S_T1}, s2, 7")
h.e(f"s_lshl_b32 s{S_G}, s{S_GL}, 3")
h.e(f"s_add_u32 s{S_G}, s{S_G}, s{S_T1}")
h.e(f"s_lshr_b32 s{S_T0}, s{S_G}, 5")
h.e(f"s_lshl_b32 s{S_TILE}, s{S_T0}, 22")
h.e(f"s_and_b32 s{S_T1}, s{S_G}, 31")
h.e(f"s_lshl_b32 s{S_T1}, s{S_T1}, 8")
h.e(f"s_add_u32 s{S_TILE}, s{S_TILE}, s{S_T1}")
if P["rot"]:
    h.e(f"s_add_u32 s{S_R}, s{S_Q}, s{S_GL}")
    h.e(f"s_and_b32 s{S_R}, s{S_R}, 3")
else: h.e(f"s_mov_b32 s{S_R}, 0")
h.e(f"s_cmp_lt_u32 s{S_W}, 4")
h.e("s_cbranch_scc1 L_compute")

L = Prog(); L.nst = h.nst
D = P["D"]
ntx = " nt" if P["ntx"] else ""
L.c("---------------- loader waves: wave 4+i brings rows 4i..4i+3 of every 16-row step")
L.e("v_lshrrev_b32 v4, 4, v1")
L.e("v_and_b32 v6, 3, v1")
L.e("v_lshlrev_b32 v6, 4, v6")
L.e("v_bfe_u32 v5, v0, 2, 2")
L.e("v_and_b32 v2, 3, v2")
L.e("v_lshl_add_u32 v5, v2, 2, v5")
L.e("v_lshl_add_u32 v7, v4, 6, v6")
L.e("v_lshl_add_u32 v2, v5, 13, v7")
L.e(f"v_add_u32 v2, s{S_TILE}, v2")
L.e(f"s_lshl_b32 s{S_T0}, s{S_Q}, 8")
L.e(f"v_lshl_add_u32 v5, v5, 10, s{S_T0}")
L.e("v_add_u32 v3, v5, v7")
L.e(f"s_and_b32 s{S_LB}, s{S_W}, 3")
L.e(f"s_lshl_b32 s{S_LB}, s{S_LB}, 10")
L.e(f"s_mov_b32 s{S_N}, 0")
L.e(f"s_mov_b32 s{SRD_A+2}, 0x800000"); L.e(f"s_mov_b32 s{SRD_A+3}, 0x20000")
L.e(f"s_mov_b32 s{SRD_B+2}, 0x80000"); L.e(f"s_mov_b32 s{SRD_B+3}, 0x20000")
L.e("s_waitcnt lgkmcnt(0)")
L.e(f"s_mov_b64 s[{SRD_A}:{SRD_A+1}], s[4:5]")
L.e(f"s_mov_b64 s[{SRD_B}:{SRD_B+1}], s[8:9]")
L.lab("L_ld1")
L.c("chunk n = two 16-row steps; within every four chunks the order is rotated per workgroup")
L.e(f"s_add_u32 s{S_T0}, s{S_N}, s{S_R}")
L.e(f"s_and_b32 s{S_T0}, s{S_T0}, 3")
L.e(f"s_and_b32 s{S_T1}, s{S_N}, 12")
L.e(f"s_or_b32 s{S_T0}, s{S_T0}, s{S_T1}")
L.e(f"s_mov_b32 m0, s{S_LB}")
L.e(f"s_lshl_b32 s{S_XO}, s{S_T0}, 18")
L.e(f"buffer_load_dwordx4 v2, {sq(SRD_A)}, s{S_XO} offen{ntx} lds")
L.e(f"s_add_u32 m0, s{S_LB}, 0x1000")
L.e(f"s_lshl_b32 s{S_WO}, s{S_T0}, 15")
L.e(f"buffer_load_dwordx4 v3, {sq(SRD_B)}, s{S_WO} offen lds")
L.e(f"s_add_u32 m0, s{S_LB}, 0x2000")
L.e(f"s_add_u32 s{S_XO}, s{S_XO}, 0x20000")
L.e(f"buffer_load_dwordx4 v2, {sq(SRD_A)}, s{S_XO} offen{ntx} lds")
L.e(f"s_add_u32 m0, s{S_LB}, 0x3000")
L.e(f"s_add_u32 s{S_WO}, s{S_WO}, 0x4000")
L.e(f"buffer_load_dwordx4 v3, {sq(SRD_B)}, s{S_WO} offen lds")
L.e(f"s_add_u32 s{S_LB}, s{S_LB}, 0x4000")
L.e(f"s_and_b32 s{S_LB}, s{S_LB}, 0x1ffff")
L.e(f"s_add_u32 s{S_N}, s{S_N}, 1")
L.e(f"s_cmp_lt_u32 s{S_N}, {D}")
L.e("s_cbranch_scc1 L_ld1")
L.e(f"s_waitcnt vmcnt({4 * (D - 1)})")
L.e("s_barrier")
L.e(f"s_cmp_lt_u32 s{S_N}, 16")
L.e("s_cbranch_scc1 L_ld1")
L.stamp()
L.c("w_out: positions start at this member's own rows; column blocks rotated like the x chunks")
L.e(f"v_add_u32 v4, s{S_R}, v4")
L.e("v_and_b32 v4, 3, v4")
L.e("v_lshl_add_u32 v7, v4, 6, v6")
L.e("v_add_u32 v3, v5, v7")
L.e(f"s_mov_b64 s[{SRD_B}:{SRD_B+1}], s[12:13]")
L.e(f"s_lshl_b32 s{S_WO}, s{S_Q}, 17")
L.e("v_and_b32 v8, 7, v1")
L.e("v_lshlrev_b32 v8, 2, v8")
L.e(f"v_add_u32 v8, {LDS_RDY}, v8")
L.e("v_mov_b32 v9, 0")
L.e("ds_write_b32 v8, v9")
L.vq = [("c", n) for n in range(16 - D + 1, 16) for _ in range(4)]
def ld_wo(n):
    for p in range(4):
        L.e(f"s_add_u32 m0, s{S_LB}, {hex(((n - 16) * 4 + p) * 4096)}")
        if n > 16 or p: L.e(f"s_add_u32 s{S_WO}, s{S_WO}, 0x4000")
        else: L.e("s_waitcnt lgkmcnt(0)")
        if p == 0 and n % 2 == 0 and n > 16: L.e(f"s_and_b32 s{S_WO}, s{S_WO}, 0x7ffff")
        L.vm(f"buffer_load_dwordx4 v3, {sq(SRD_B)}, s{S_WO} offen lds", ("c", n))
def throttle():
    if len(L.vq) > P["thr"]:
        L.e(f"s_waitcnt vmcnt({P['thr']})"); L.vq = L.vq[len(L.vq) - P["thr"]:]
nxt = 16
for c in range(16 - D + 1, 16):
    ld_wo(nxt); nxt += 1
    L.vneed(("c", c))
    L.e("s_barrier")
L.stamp()
while nxt <= P["pre16"]:
    throttle(); ld_wo(nxt); nxt += 1
assert 18 <= nxt <= 22
L.vneed(("c", 17))
L.stamp()
L.e("v_and_b32 v11, 3, v1")
L.e(f"s_lshl_b32 s{S_T0}, s{S_G}, 9")
L.e(f"s_add_u32 s{S_T0}, s{S_T0}, {FLAG_OFF}")
L.e(f"v_lshl_add_u32 v12, v11, 7, s{S_T0}")
L.e("s_barrier")
if P["prime"]: L.vm("global_load_dword v16, v12, s[18:19] sc1", "prime")
while nxt < 24:
    throttle(); ld_wo(nxt); nxt += 1
L.e(f"s_lshl_b32 s{S_T0}, s{S_W}, 2")
L.e(f"s_add_u32 s{S_T0}, s{S_T0}, {LDS_RDY}")
L.e(f"v_mov_b32 v8, s{S_T0}")
L.e("v_mov_b32 v9, 4")
L.e("s_waitcnt vmcnt(0)")
L.e("ds_write_b32 v8, v9")
L.stamp()
L.e(f"s_cmp_lg_u32 s{S_W}, 4")
L.e("s_cbranch_scc1 L_fin")
L.c("wave 4: relay the members' progress words into LDS")
L.e("v_lshlrev_b32 v8, 2, v11")
L.e(f"v_add_u32 v8, {LDS_RDY}, v8")
L.e(f"v_mov_b32 v13, {LDS_RDY + 16}")
L.e(f"s_mov_b32 s{S_CNT}, 0")
L.lab("L_poll")
L.e("global_load_dwordx4 v[16:19], v12, s[18:19] sc1")
L.e(f"s_add_u32 s{S_CNT}, s{S_CNT}, 1")
L.e("ds_read_b128 v[20:23], v13")
L.e("s_waitcnt vmcnt(0) lgkmcnt(0)")
L.e("v_min3_u32 v16, v16, v17, v18")
L.e("v_min3_u32 v21, v21, v22, v23")
L.e("v_min3_u32 v16, v16, v19, v21")
L.e("ds_write_b32 v8, v16")
L.e("v_cmp_gt_u32 vcc, 4, v16")
L.e(f"s_cmp_ge_u32 s{S_CNT}, 0x100000")
L.e("s_cbranch_scc1 L_fin")
L.e("s_cmp_lg_u64 vcc, 0")
L.e("s_cbranch_scc1 L_poll")
if P["wb"]:
    L.c("one wave per XCD starts writing the hand-off lines back now, so that the launch does not end on them")
    L.e("s_cmp_ge_u32 s2, 8")
    L.e("s_cbranch_scc1 L_fin")
    if P["wb"] > 1: L.e(f"s_sleep {P['wb']}")
    L.e("buffer_wbl2 sc1")
    L.e("s_waitcnt vmcnt(0)")
L.lab("L_fin")
L.stamp()
L.dump_stamps()
L.lab("L_exit")
L.e("s_endpgm")

C = Prog(); C.nst = h.nst; C.is_c = True
if P["codepf"]: C.vq.append("code")
aW0, aW1, aX0, aX1, VO0, VO1, VFL, VFV, VSW, VSR, VOUT, VRDY, VT0, VT1 = 2, 3, 4, 5, 6, 7, 8, 9, 10, 11, 12, 13, 14, 15
RA, RB, RF, RX, RS, RH = 16, 80, 144, 184, 216, 224
SRD_WS, SRD_OUT, SRD_WO = SRD_A, SRD_B, SRD_C
C.lab("L_compute")
C.c("---------------- compute waves")
T = RH
vH, vC, vEMBA, vSIGA, vCLRA, vANNA, vSIG, vEMB, vZ, vEP, vANN, vJ, vL4, vTCH, vBW, vBR, vZZ, vSH = \
    T, T+1, T+2, T+3, T+4, T+5, T+6, T+7, T+8, T+9, T+10, T+12, T+13, T+14, T+15, T+16, T+17, T+18
vCHK, vCHA, vPF = T + 26, T + 28, T + 29
C.e(f"v_lshrrev_b32 v{vH}, 5, v1")
C.e(f"v_bfe_u32 v{vC}, v1, 2, 2")
C.e(f"v_lshlrev_b32 v{vC}, 6, v{vC}")
C.e(f"v_lshl_add_u32 v{aW0}, v{vH}, 10, v{vC}")
C.e(f"v_bfe_u32 v{vC}, v1, 4, 1")
C.e(f"v_lshl_add_u32 v{aW0}, v{vC}, 5, v{aW0}")
C.e(f"v_and_b32 v{vC}, 3, v1")
C.e(f"v_lshl_add_u32 v{aW0}, v{vC}, 3, v{aW0}")
C.e(f"s_lshl_b32 s{S_T0}, s{S_W}, 8")
C.e(f"v_add_u32 v{aX0}, s{S_T0}, v{aW0}")
C.e(f"s_lshl_b32 s{S_T0}, s{S_Q}, 8")
C.e(f"v_lshl_add_u32 v{vEMBA}, v1, 2, s{S_T0}")
C.e(f"s_lshr_b32 s{S_T0}, s{S_TILE}, 21")
C.e(f"v_mov_b32 v{vSIGA}, s{S_T0}")
C.c("wave 0 resets this workgroup's four progress words (lanes 0-3), then announces that under this launch's tag")
C.e(f"s_lshl_b32 s{S_T2}, s{S_G}, 9")
C.e(f"s_add_u32 s{S_T2}, s{S_T2}, {FLAG_OFF}")
C.e(f"s_lshl_b32 s{S_T3}, s{S_Q}, 2")
C.e(f"s_add_u32 s{S_T2}, s{S_T2}, s{S_T3}")
C.e(f"v_lshrrev_b32 v{vL4}, 2, v0")
C.e(f"v_lshl_add_u32 v{vCLRA}, v{vC}, 7, s{S_T2}")
C.e(f"v_lshl_add_u32 v{vCLRA}, v{vL4}, 24, v{vCLRA}")
C.e(f"v_mov_b32 v{vZ}, 0")
C.e(f"s_lshl_b32 s{S_EP}, s{S_G}, 8")
C.e(f"s_add_u32 s{S_EP}, s{S_EP}, {ANN_OFF}")
C.e(f"s_mov_b32 s{SRD_WS+2}, {hex(WS_BYTES)}"); C.e(f"s_mov_b32 s{SRD_WS+3}, 0x20000")
C.e(f"s_lshl_b32 s{S_T1}, s{S_G}, 4")
C.e(f"s_add_u32 s{S_T1}, s{S_T1}, s{S_W}")
C.e(f"s_lshl2_add_u32 s{S_T0}, s{S_Q}, s{S_T1}")
C.e(f"s_lshl_b32 s{S_PS}, s{S_T0}, 13")
C.e(f"v_lshlrev_b32 v{vPF}, {7 if len(P['pf']) <= 1 else 6 if len(P['pf']) == 2 else 5}, v1")
C.e(f"s_getreg_b32 s{S_XCC}, hwreg(HW_REG_XCC_ID, 0, 4)")
C.e("s_waitcnt lgkmcnt(0)")
C.e(f"s_mov_b64 s[{SRD_WS}:{SRD_WS+1}], s[18:19]")
C.vm(f"buffer_store_dword v{vZ}, v{vCLRA}, {sq(SRD_WS)}, 0 offen sc1", "clr")
C.vm(f"buffer_load_dword v{vEP}, v{vZ}, {sq(SRD_WS)}, s{S_EP} offen sc1", "ep")
C.vm(f"global_load_ushort v{vSIG}, v{vSIGA}, s[6:7]", "sig")
C.vm(f"global_load_dword v{vEMB}, v{vEMBA}, s[10:11]", "emb")

F = []
def f2(*x): F.append("\n    ".join(x))
f2(f"v_add_u32 v{aW1}, 0x10000, v{aW0}", f"v_add_u32 v{aX1}, 0x10000, v{aX0}")
f2(f"s_mov_b64 s[{SRD_WO}:{SRD_WO+1}], s[12:13]", f"s_mov_b32 s{SRD_WO+2}, 0x80000")
f2(f"s_mov_b32 s{SRD_WO+3}, 0x20000", f"v_bfe_u32 v{vL4}, v1, 2, 4")
f2(f"s_lshl_b32 s{S_T0}, s{S_GL}, 16", f"s_lshl_b32 s{S_T1}, s{S_W}, 14")
f2(f"s_add_u32 s{S_T0}, s{S_T0}, s{S_T1}", f"s_lshl_b32 s{S_T1}, s{S_Q}, 8")
f2(f"s_add_u32 s{S_T0}, s{S_T0}, s{S_T1}", f"v_lshl_add_u32 v{vTCH}, v{vL4}, 10, s{S_T0}")
f2(f"v_lshl_add_u32 v{vTCH}, v{vC}, 6, v{vTCH}", f"v_lshlrev_b32 v{vANNA}, 24, v0")
N_EARLY = len(F)
F.append(lambda: C.vneed("clr", "ep", "sig", "emb"))
f2(f"v_readfirstlane_b32 s{S_T3}, v{vEP}")
f2(f"s_mul_i32 s{S_H0}, s{S_T3}, {hex(HC0)}", f"s_add_u32 s{S_H0}, s{S_H0}, {hex(HK0)}")
f2(f"s_mul_i32 s{S_H1}, s{S_T3}, {hex(HC1)}", f"s_add_u32 s{S_H1}, s{S_H1}, {hex(HK1)}")
f2(f"s_add_u32 s{S_H0}, s{S_H0}, s{S_XCC}", f"s_add_u32 s{S_H1}, s{S_H1}, s{S_XCC}")
f2(f"v_mov_b32 v{vANN}, s{S_H0}", f"v_mov_b32 v{vANN+1}, s{S_H1}")
f2(f"s_lshl_b32 s{S_T0}, s{S_Q}, 3", f"s_add_u32 s{S_T0}, s{S_T0}, s{S_EP}")
F.append(lambda: C.vm(f"buffer_store_dwordx2 {q2(vANN)}, v{vANNA}, {sq(SRD_WS)}, s{S_T0} offen offset:128 sc1", "ann"))
f2(f"s_mov_b32 s{S_MODE}, 0")
f2(f"s_add_u32 s{S_EN}, s{S_T3}, 1", f"v_lshlrev_b32 v{vCHA}, 3, v{vC}")
sg, a, b2, cs, cn = vSIG, T + 20, T + 21, T + 22, T + 23
def rnd(r): return [f"v_cvt_pk_bf16_f32 v{r}, v{r}, v{r}\n    v_lshlrev_b32 v{r}, 16, v{r}"]
F += [f"v_lshlrev_b32 v{sg}, 16, v{sg}\n    v_mul_f32 v{a}, v{sg}, v{sg}"] + rnd(a)
F += [f"v_add_f32 v{a}, 0x3e800000, v{a}"] + rnd(a)
F += [f"v_rcp_f32 v{cs}, v{a}", f"v_sqrt_f32 v{a}, v{a}"] + rnd(cs) + rnd(a)
F += [f"v_mul_f32 v{cs}, 0x3e800000, v{cs}", f"v_rcp_f32 v{a}, v{a}", f"v_lshrrev_b32 v{cs}, 16, v{cs}\n    v_mul_f32 v{b2}, 0.5, v{sg}"]
F += [f"v_mul_f32 v{b2}, v{b2}, v{a}"] + rnd(b2) + rnd(a)
F += [f"v_log_f32 v{cn}, v{sg}", f"v_mul_f32 v{a}, 0xbfb8aa3b, v{a}", f"v_mul_f32 v{cn}, 0x3f317218, v{cn}"] + rnd(cn)
F += [f"v_max_f32 v{b2}, 0x03800000, v{b2}", f"v_mul_f32 v{b2}, 0xbf317218, v{b2}", f"v_rcp_f32 v{b2}, v{b2}"]
F += [f"v_mul_f32 v{cn}, 0x3e800000, v{cn}"]
f2(f"v_readfirstlane_b32 s{S_S1}, v{a}", f"v_readfirstlane_b32 s{S_S1+1}, v{a}")
f2(f"v_readfirstlane_b32 s{S_IK}, v{b2}", f"v_readfirstlane_b32 s{S_IK+1}, v{b2}")
e0, e1 = T + 24, T + 25
f2(f"v_lshlrev_b32 v{e0}, 16, v{vEMB}", f"v_and_b32 v{e1}, 0xffff0000, v{vEMB}")
f2(f"v_mul_f32 v{e0}, v{cn}, v{e0}", f"v_mul_f32 v{e1}, v{cn}, v{e1}")
f2(f"v_cvt_pk_bf16_f32 v{e1}, v{e0}, v{e1}", f"v_lshlrev_b32 v{e0}, 16, v{e1}")
f2(f"v_and_b32 v{e1}, 0xffff0000, v{e1}", f"v_mul_f32 v{e0}, 0xbfb8aa3b, v{e0}")
f2(f"s_lshl_b32 s{S_T0}, s{S_W}, 9", f"v_mul_f32 v{e1}, 0xbfb8aa3b, v{e1}")
f2(f"s_add_u32 s{S_T0}, s{S_T0}, {LDS_BIAS}", f"v_lshl_add_u32 v{vBW}, v1, 3, s{S_T0}")
f2(f"v_lshl_add_u32 v{vBR}, v{vH}, 4, s{S_T0}", f"v_and_b32 v{vJ}, 31, v1")
F.append(("lds", f"ds_write_b64 v{vBW}, {q2(e0)}", "biasw"))
for i in range(16):
    F.append(("lds", f"ds_read_b128 {q4(RB + 4 * i)}, v{vBR} offset:{i * 32}", "bias"))
f2(f"v_lshrrev_b32 v{vZZ}, 1, v{vJ}", f"v_lshlrev_b32 v{vSH}, 1, v{vH}")
f2(f"v_sub_u32 v{vZZ}, v{vZZ}, v{vSH}", f"v_and_b32 v{vSH}, 1, v1")
f2(f"v_lshlrev_b32 v{vSH}, 4, v{vSH}", f"v_lshlrev_b32 v{cs}, v{vSH}, v{cs}")
sel = [(t, d) for t in range(2) for d in range(4)]
f2(f"v_cmp_eq_u32 vcc, 0, v{vZZ}")
for n, (t, d) in enumerate(sel):
    x = [f"v_cndmask_b32 v{RS + 4 * t + d}, 0, v{cs}, vcc"]
    if n < 7: x.append(f"v_cmp_eq_u32 vcc, {8 * sel[n+1][0] + (0, 1, 4, 5)[sel[n+1][1]]}, v{vZZ}")
    f2(*x)
F.append(lambda: C.vm(f"buffer_load_dwordx2 {q2(vCHK)}, v{vCHA}, {sq(SRD_WS)}, s{S_EP} offen offset:128 sc1", "chk"))
f2(f"v_lshlrev_b32 v{VO0}, 4, v1", f"v_add_u32 v{VO1}, 0x1000, v{VO0}")
f2(f"s_lshl_b32 s{S_T0}, s{S_W}, 7", f"s_add_u32 s{S_T2}, s{S_T2}, s{S_T0}")
f2(f"v_lshl_add_u32 v{VFL}, v1, 24, s{S_T2}")
f2(f"s_lshl_b32 s{S_T1}, s{S_G}, 4", f"s_add_u32 s{S_T1}, s{S_T1}, s{S_W}")
for m in range(4):
    f2(f"s_add_u32 s{S_T0}, s{S_Q}, {m}", f"s_and_b32 s{S_T0}, s{S_T0}, 3")
    f2(f"s_lshl2_add_u32 s{S_T0}, s{S_T0}, s{S_T1}", f"s_lshl_b32 s{S_PM[m]}, s{S_T0}, 13")
f2(f"s_mul_i32 s{S_T0}, s{S_W}, 5120", f"s_add_u32 s{S_T0}, s{S_T0}, {LDS_STG}")
f2(f"v_mul_u32_u24 v{VSW}, 80, v{vJ}", f"v_lshl_add_u32 v{VSW}, v{vH}, 3, v{VSW}")
f2(f"v_add_u32 v{VSW}, s{S_T0}, v{VSW}", f"v_mul_u32_u24 v{VSR}, 80, v{vL4}")
f2(f"v_lshl_add_u32 v{VSR}, v{vC}, 4, v{VSR}", f"v_add_u32 v{VSR}, s{S_T0}, v{VSR}")
f2(f"s_lshl_b32 s{S_T0}, s{S_Q}, 20", f"s_add_u32 s{S_T0}, s{S_T0}, s{S_TILE}")
f2(f"s_lshl_b32 s{S_T1}, s{S_W}, 6", f"s_add_u32 s{S_T0}, s{S_T0}, s{S_T1}")
f2(f"v_lshl_add_u32 v{VOUT}, v{vL4}, 13, s{S_T0}", f"v_lshl_add_u32 v{VOUT}, v{vC}, 4, v{VOUT}")
for j in range(4):
    f2(f"s_add_u32 s{S_T0}, s{S_R}, {j}", f"s_and_b32 s{S_T0}, s{S_T0}, 3", f"s_lshl_b32 s{S_OB[j]}, s{S_T0}, 18")
f2(f"s_mov_b64 s[{SRD_OUT}:{SRD_OUT+1}], s[14:15]", f"s_mov_b32 s{SRD_OUT+2}, 0x800000")
f2(f"s_mov_b32 s{SRD_OUT+3}, 0x20000", f"s_lshl_b32 s{S_T0}, s{S_W}, 2")
f2(f"s_add_u32 s{S_T0}, s{S_T0}, {LDS_RDY}", f"v_mov_b32 v{VRDY}, s{S_T0}")
if P["tlb"]:
    F.append(lambda: C.vm(f"buffer_load_dword v{VT0}, v{vZ}, {sq(SRD_WS)}, s{S_PM[0]} offen", "tlb"))
    F.append(lambda: C.vm(f"buffer_load_dword v{VT0}, v{vZ}, {sq(SRD_OUT)}, s{S_TILE} offen", "tlb"))
F_WAIT = 10
assert len(F) + F_WAIT - N_EARLY <= 124, len(F)

def rd_x(s, i):
    base = (s % 16) * 8192; a_ = aX0 if base < 65536 else aX1
    r = RF + 20 * (s & 1) + 2 * i
    C.lds(f"ds_read_b64_tr_b16 {q2(r)}, v{a_} offset:{base % 65536 + 2048 * i}", ("x", s))
def rd_w(s, j, i):
    base = (s % 16) * 8192; a_ = aW0 if base < 65536 else aW1
    r = RF + 20 * (s & 1) + 4 + 4 * j + 2 * i
    C.lds(f"ds_read_b64_tr_b16 {q2(r)}, v{a_} offset:{base % 65536 + 4096 + 256 * j + 2048 * i}", ("w", s, j))
def reads(s): return [lambda i=i: rd_x(s, i) for i in range(2)] + [lambda j=j, i=i: rd_w(s, j, i) for j in range(4) for i in range(2)]

C.stamp()
def prefill(c):
    if c in P["pf"]:
        n = list(P["pf"]).index(c); step = 8192 // len(P["pf"])
        C.c("make this wave's hand-off lines valid in the L2 (the values are not used)")
        if n * step >= 4096 and (n - 1) * step < 4096: C.e(f"v_add_u32 v{vPF}, 0x1000, v{vPF}")
        C.vm(f"buffer_load_dword v{VT1}, v{vPF}, {sq(SRD_WS)}, s{S_PS} offen offset:{n * step % 4096}{POL[P['pfpol']]}", "touch")
prefill(-1)
C.e("s_barrier")
prefill(0)
C.stamp()
for r in reads(0): r()
gap = 0; nf = 0
for s in range(32):
    if s % 2 == 1 and s < 31:
        C.e("s_barrier")
        prefill((s + 1) // 2)
        if (s + 1) // 2 == P["wo_touch"]:
            C.vm(f"buffer_load_dword v{VT1}, v{vTCH}, {sq(SRD_WO)}, 0 offen", "touch")
    if s % 8 == 0:
        C.e(f"s_cmp_eq_u32 s{S_Q}, {s // 8}")
        C.e(f"s_cselect_b64 s[{S_MSK}:{S_MSK+1}], -1, 0")
        if s: C.stamp()
    rl = reads(s + 1) if s < 31 else []
    split = (3, 3, 2, 2)
    for j in range(4):
        C.need(("x", s), ("w", s, j))
        fb = RF + 20 * (s & 1)
        cin = "0" if s == 0 else q16(RA + 16 * j)
        C.e(f"v_mfma_f32_32x32x16_bf16 {q16(RA + 16 * j)}, {q4(fb + 4 + 4 * j)}, {q4(fb)}, {cin}")
        for _ in range(split[j]):
            if rl: rl.pop(0)()
        f = None
        if F and (nf < N_EARLY or gap >= F_WAIT): f = F.pop(0); nf += 1
        if f is not None and not isinstance(f, str):
            if isinstance(f, tuple): C.lds(f[1], f[2])
            else: f()
            f = None
        if j < 3: C.need(("x", s), ("w", s, j + 1))
        elif s < 31 and not (s % 2 == 0): C.need(("x", s + 1), ("w", s + 1, 0))
        if f: C.e(f)
        xr = RX + 4 * (s % 8) + j
        C.e(f"v_cndmask_b32 v{xr}, v{xr}, v{fb + j}, s[{S_MSK}:{S_MSK+1}]")
        gap += 1
assert not F
C.need("bias")
assert not C.lq
C.stamp()
C.c("all four members have reset their progress words in this launch, and one L2 serves all of them")
C.vneed("chk", "tlb", "touch")
C.e(f"v_cmp_ne_u32 vcc, s{S_H0}, v{vCHK}")
C.e(f"v_cmp_ne_u32 s[{S_MSK}:{S_MSK+1}], s{S_H1}, v{vCHK+1}")
C.e(f"v_mov_b32 v{VT1}, v{VFL}")
C.e("s_nop 0")
C.e(f"s_or_b64 vcc, vcc, s[{S_MSK}:{S_MSK+1}]")
if P.get("forceslow"): C.e("s_cmp_eq_u32 0, 0")
C.e("s_cbranch_scc1 L_ann_wait")
C.lab("L_ann_ok")
C.tail += ["L_ann_wait:", f"    s_mov_b32 s{S_CNT}, 0",
           f"    s_sub_u32 s{S_H0}, s{S_H0}, s{S_XCC}", f"    s_sub_u32 s{S_H1}, s{S_H1}, s{S_XCC}", "L_ann_l:",
           f"    buffer_load_dwordx2 {q2(vCHK)}, v{vCHA}, {sq(SRD_WS)}, s{S_EP} offen offset:128 sc1",
           f"    s_add_u32 s{S_CNT}, s{S_CNT}, 1", "    s_waitcnt vmcnt(0)",
           f"    v_subrev_u32 v{vCHK}, s{S_H0}, v{vCHK}", f"    v_subrev_u32 v{vCHK+1}, s{S_H1}, v{vCHK+1}",
           f"    v_cmp_ne_u32 vcc, v{vCHK}, v{vCHK+1}", f"    v_cmp_le_u32 s[{S_MSK}:{S_MSK+1}], 16, v{vCHK}",
           f"    s_cmp_ge_u32 s{S_CNT}, 0x100000", "    s_cbranch_scc1 L_ann_ok",
           f"    s_or_b64 vcc, vcc, s[{S_MSK}:{S_MSK+1}]", "    s_cbranch_scc1 L_ann_l",
           f"    v_cmp_ne_u32 vcc, s{S_XCC}, v{vCHK}", "    s_nop 1", "    s_cmp_lg_u64 vcc, 0"]
if not P.get("forceslow"): C.tail += ["    s_cbranch_scc0 L_ann_ok"]
C.tail += ["    ; members on several XCDs: the L2-local stores fall out of range, L_slowpub publishes through memory instead",
           f"    s_mov_b32 s{S_MODE}, 1", f"    v_or_b32 v{VO0}, 2.0, v{VO0}", f"    v_or_b32 v{VO1}, 2.0, v{VO1}", f"    v_mov_b32 v{VT1}, 2.0", "    s_branch L_ann_ok"]
hpol = POL[P["hpol"]]
def flag(j):
    C.vneed(("st", j))
    C.e(f"v_mov_b32 v{VFV}, {j + 1}")
    C.vm(f"buffer_store_dword v{VFV}, v{VT1}, {sq(SRD_WS)}, 0 offen", ("fl", j))
def hst(fr, base, pol): return f"buffer_store_dwordx4 {q4(RH + 4*fr)}, v{VO0 if fr < 4 else VO1}, {sq(SRD_WS)}, s{base} offen offset:{(fr % 4) * 1024}{pol}"
def hstore(fr, tag): C.vm(hst(fr, S_PS, hpol), tag)
if P["b16"] < 0: C.e("s_barrier")
C.c("---- h = c_out * silu(c_in * acc + bias), two elements per packed op")
for blk in range(4):
    A_, B_ = RA + 16 * blk, RB + 16 * blk
    for g in range(0, 16, 4):
        for o in (0, 2): C.e(f"v_pk_fma_f32 {q2(B_+g+o)}, {q2(A_+g+o)}, s[{S_S1}:{S_S1+1}], {q2(B_+g+o)}")
        for o in range(4): C.e(f"v_exp_f32 v{A_+g+o}, v{B_+g+o}")
        if g:
            for o in (0, 2): C.e(f"v_cvt_pk_bf16_f32 v{RH + 8*blk + (g-4+o)//2}, v{A_+g-4+o}, v{A_+g-4+o+1}")
        for o in (0, 2): C.e(f"v_pk_fma_f32 {q2(A_+g+o)}, {q2(A_+g+o)}, s[{S_IK}:{S_IK+1}], s[{S_IK}:{S_IK+1}]")
        for o in range(4): C.e(f"v_rcp_f32 v{A_+g+o}, v{A_+g+o}")
        if g == 8: hstore(2 * blk, ("st", blk))
        for o in (0, 2): C.e(f"v_pk_mul_f32 {q2(A_+g+o)}, {q2(A_+g+o)}, {q2(B_+g+o)}")
    for o in (0, 2): C.e(f"v_cvt_pk_bf16_f32 v{RH + 8*blk + (12+o)//2}, v{A_+12+o}, v{A_+12+o+1}")
    hstore(2 * blk + 1, ("st", blk))
    if blk == P["b16"]: C.e("s_barrier")
    for j in range(4):
        if P["fl"][j] == blk: flag(j)
    if blk in (1, 3): C.stamp()

C.e(f"s_cmp_lg_u32 s{S_MODE}, 0")
C.e("s_cbranch_scc1 L_slowpub")
C.lab("L_pub_done")
C.tail += ["L_slowpub:", f"    v_xor_b32 v{VO0}, 2.0, v{VO0}", f"    v_xor_b32 v{VO1}, 2.0, v{VO1}"] + ["    " + hst(fr, S_PM[0], " sc1") for fr in range(8)]
C.tail += [f"    v_mov_b32 v{VT0}, 4", "    s_waitcnt vmcnt(0)",
           f"    buffer_store_dword v{VT0}, v{VFL}, {sq(SRD_WS)}, 0 offen sc1", "    s_waitcnt vmcnt(0)", "    s_branch L_pub_done"]

quads = [RB + 4 * i for i in range(16)] + [RX + 4 * i for i in range(8)]
def hq(j, m, t): return quads[6 * j + 2 * (m - 1) + t]
units = []
for t in range(2):
    for blk in range(4): units.append((blk, RX + 4 * (2 * blk + t), ("sel", t), t == 0, None))
for ks in range(8):
    for blk in range(4): units.append((blk, RH + 4 * ks, (ks, blk), False, None))
def ru(blk, j, m, t): units.append((blk, hq(j, m, t), (8 * m + 2 * j + t, blk), False, (j, m, t)))
MT = [(m, t) for m in (1, 2, 3) for t in range(2)]
if P["order"] == 0:
    for j in range(3):
        for m, t in MT:
            for blk in range(4): ru(blk, j, m, t)
    for blk in range(4):
        for m, t in MT: ru(blk, 3, m, t)
elif P["order"] == 1:
    for j in range(3):
        for m, t in MT:
            for blk in (0, 1): ru(blk, j, m, t)
    for blk in (0, 1):
        for m, t in MT: ru(blk, 3, m, t)
    for blk in (2, 3):
        for j in range(4):
            for m, t in MT: ru(blk, j, m, t)
elif P["order"] == 2:
    for j in range(2):
        for m, t in MT:
            for blk in range(4): ru(blk, j, m, t)
    for blk in range(4):
        for j in (2, 3):
            for m, t in MT: ru(blk, j, m, t)
elif P["order"] == 3:
    for m, t in MT:
        for blk in range(4): ru(blk, 0, m, t)
    for blk in range(4):
        for j in (1, 2, 3):
            for m, t in MT: ru(blk, j, m, t)
wl = [i for i, u in enumerate(units) if u[2][0] != "sel"]
slot = {i: RF + 4 * (n % 10) for n, i in enumerate(wl)}
def rd_o(i):
    p, blk = units[i][2]; base = p * 4096; a_ = aW0 if base < 65536 else aW1
    for k in range(2):
        C.lds(f"ds_read_b64_tr_b16 {q2(slot[i] + 2 * k)}, v{a_} offset:{base % 65536 + 256 * blk + 2048 * k}", ("o", i))
PF = 4
first_remote = min(i for i, u in enumerate(units) if u[4] is not None)
assert P["chk"][0] < first_remote - PF
for j in range(4):
    assert P["chk"][j] < min(i for i, u in enumerate(units) if u[4] is not None and u[4][0] == j)
    assert P["fl"][j] - 4 <= P["chk"][j]
last = {blk: max(i for i, u in enumerate(units) if u[0] == blk) for blk in range(4)}
opol = POL[P["outpol"]]; ldpol = POL[P["ldpol"]]
def epi(blk):
    tmp = RS; dat = RA + 16 * blk; so = (blk & 1) * 2560
    def cvt(g): return [("v", f"v_cvt_pk_bf16_f32 v{tmp + 2*g + o//2}, v{RA + 16*blk + 4*g + o}, v{RA + 16*blk + 4*g + o + 1}") for o in (0, 2)]
    def wr(g): return ("m", lambda: C.lds(f"ds_write_b64 v{VSW}, {q2(tmp + 2*g)} offset:{so + 16*g}", ("sw", blk)))
    def rd(k): return ("m", lambda: C.lds(f"ds_read_b128 {q4(dat + 4*k)}, v{VSR} offset:{so + 1280*k}", ("sr", blk, k)))
    def st(k):
        def f():
            if k: C.e(f"s_add_u32 s{S_OB[blk]}, s{S_OB[blk]}, 0x20000")
            C.need(("sr", blk, k))
            C.vm(f"buffer_store_dwordx4 {q4(dat + 4*k)}, v{VOUT}, {sq(SRD_OUT)}, s{S_OB[blk]} offen{opol}", ("out", blk))
        return ("m", f)
    return [cvt(0) + cvt(1)[:1], [wr(0)] + cvt(1)[1:] + cvt(2)[:1], [wr(1)] + cvt(2)[1:] + cvt(3)[:1], [wr(2)] + cvt(3)[1:], [wr(3), rd(0)], [rd(1)],
            [], [], [], [st(0)], [st(1)]]
sched = {}
def put(i, b):
    sched.setdefault(i, []).append(b)
busy_until = 0
for blk in sorted(range(4), key=lambda b: last[b]):
    t0 = max(last[blk] + 3, busy_until)
    for n, b in enumerate(epi(blk)): put(t0 + n, b)
    busy_until = t0 + 6
nrd = 0
NU = len(units)
def pre_wait(i):
    if i >= NU: return
    if units[i][4] is not None: C.vneed(("pl",) + units[i][4])
    if units[i][2][0] != "sel": C.need(("o", i))
for i, u in enumerate(units):
    blk, ar, wf, first, stg = u
    pre_wait(i)
    br = RS + 4 * wf[1] if wf[0] == "sel" else slot[i]
    C.e(f"v_mfma_f32_32x32x16_bf16 {q16(RA + 16*blk)}, {q4(ar)}, {q4(br)}, {'0' if first else q16(RA + 16*blk)}")
    if nrd < len(wl) and wl[nrd] <= i + PF:
        rd_o(wl[nrd]); nrd += 1
    items = [x for b in sched.pop(i, []) for x in b]
    for k, x in items:
        if k == "m": x()
    for j in range(4):
        if P["fl"][j] - 4 == i: flag(j)
        if P["chk"][j] - 3 == i: C.lds(f"ds_read_b32 v{VT0}, v{VRDY}", ("rdy", j))
        if P["chk"][j] - 1 == i:
            C.need(("rdy", j))
            items.append(("v", f"v_readfirstlane_b32 s{S_T1}, v{VT0}"))
        if P["chk"][j] == i:
            C.e(f"s_cmp_gt_u32 s{S_T1}, {j}")
            C.e(f"s_cbranch_scc0 L_spin{j}")
            C.lab(f"L_back{j}")
            C.stamp()
            C.tail += [f"L_spin{j}:", f"    s_mov_b32 s{S_CNT}, 0", f"L_spin{j}_l:",
                       f"    ds_read_b32 v{VT0}, v{VRDY}", f"    s_add_u32 s{S_CNT}, s{S_CNT}, 1", "    s_waitcnt lgkmcnt(0)",
                       f"    v_readfirstlane_b32 s{S_T1}, v{VT0}", f"    s_cmp_ge_u32 s{S_CNT}, 0x800000", f"    s_cbranch_scc1 L_back{j}",
                       f"    s_cmp_gt_u32 s{S_T1}, {j}", f"    s_cbranch_scc0 L_spin{j}_l", f"    s_branch L_back{j}"]
        if 0 <= i - P["chk"][j] < 3:
            m = i - P["chk"][j] + 1
            for t in range(2):
                fr = 2 * j + t
                C.vm(f"buffer_load_dwordx4 {q4(hq(j, m, t))}, v{VO0 if fr < 4 else VO1}, {sq(SRD_WS)}, s{S_PM[m]} offen offset:{(fr % 4) * 1024}{ldpol}", ("pl", j, m, t))
    if i == P["chk"][3] + 4:
        C.c("member 0 moves the group's epoch on (every member read it long ago: their progress words came after it)")
        C.e(f"s_lshl_b32 s{S_T1}, s{S_Q}, 28")
        items += [("v", f"v_lshl_or_b32 v{VT1}, v0, 24, s{S_T1}"), ("v", f"v_mov_b32 v{VT0}, s{S_EN}")]
    if i == P["chk"][3] + 5:
        C.vm(f"buffer_store_dword v{VT0}, v{VT1}, {sq(SRD_WS)}, s{S_EP} offen sc1", "epst")
    pre_wait(i + 1)
    for k, x in items:
        if k == "v": C.e(x)
C.stamp()
C.e("s_nop 11")
for i in sorted(sched):
    for b in sched[i]:
        for k, x in sorted(b, key=lambda y: y[0]):
            if k == "v": C.e(x)
            else: x()
C.stamp()
if P["stamps"] or "probe" in P:
    C.e("s_waitcnt vmcnt(0)"); C.stamp()
if "probe" in P or P.get("rt"):
    C.e("s_waitcnt lgkmcnt(0)")
    if "probe" in P:
        C.e("s_sub_u32 s96, s96, s100"); C.e("s_lshl_b32 s96, s96, 2"); C.e("s_add_u32 s96, s96, 2000")
        if "pwg" in P:
            C.e(f"s_cmp_eq_u32 s2, {P['pwg']}"); C.e("s_cselect_b32 s96, s96, 0")
    else: C.e(f"s_mov_b32 s96, {P['rt']}")
    C.lab("L_rt")
    C.e("s_memrealtime s[98:99]"); C.e("s_waitcnt lgkmcnt(0)"); C.e("s_sub_u32 s98, s98, s100")
    C.e("s_cmp_lt_u32 s98, s96"); C.e("s_cbranch_scc1 L_rt")
C.dump_stamps()
C.e("s_endpgm")

nm = P["name"]
hdr = open("standalone__edm_precond__diffusion.s.ref").read().split("; Override")[0]
out = [hdr.rstrip(),
       "; generated by gen/gen.py  " + " ".join(sys.argv[1:]),
       f"; @launch grid=(256,1,1) block=(512,1,1) lds={LDS_TOTAL}",
       '.amdgcn_target "amdgcn-amd-amdhsa--gfx950"', ".text", f".globl {nm}_kernel", ".p2align 8",
       f".type {nm}_kernel,@function", f"{nm}_kernel:"]
out += h.l + L.l + C.l + C.tail + ["L_end:"]
out += ['.section .rodata,"a"', ".p2align 6", f".amdhsa_kernel {nm}_kernel",
        "  .amdhsa_next_free_vgpr 256", "  .amdhsa_next_free_sgpr 102", "  .amdhsa_accum_offset 256",
        "  .amdhsa_group_segment_fixed_size 0", "  .amdhsa_kernarg_size 64", "  .amdhsa_user_sgpr_count 2",
        "  .amdhsa_user_sgpr_kernarg_segment_ptr 1", "  .amdhsa_system_sgpr_workgroup_id_x 1", ".end_amdhsa_kernel"]
print("\n".join(out))
```

```python
import sys, json

P = dict(align=12, tl=8, ntx=0, outpol="sc1", D=3, rot=1, pre16=19, thr=4, b16=0, stamps=0, codepf=1, tlb=0, order=1, wo_touch=5, ldpol="nt", hpol="plain", pf=(), pfpol="nt", wb=1, prime=1,
         fl=(1, 2, 3, 12),
         chk=(12, 18, 24, 30),
         name="standalone__edm_precond__diffusion")
for a in sys.argv[1:]:
    k, v = a.split("=", 1)
    try: P[k] = json.loads(v)
    except Exception: P[k] = v

POL = {"plain": "", "sc1": " sc1", "nt": " nt", "ntsc1": " sc1 nt"}
FLAG_OFF = 0x800000
ANN_OFF = 0x808000
WS_BYTES = 0x80c000
HC0, HK0, HC1, HK1 = 0x9E3779B1, 0x7F4A7C15, 0x85EBCA77, 0xC2B2AE3D
STAMP_OFF = 0x900000
LDS_MISC = 131072
LDS_BIAS = LDS_MISC
LDS_RDY = LDS_MISC + 2048
LDS_STG = LDS_MISC + 4096
LDS_TOTAL = LDS_STG + 4 * 2 * 2560

class Prog:
    def __init__(s):
        s.l = []; s.lq = []; s.vq = []; s.smem = False; s.nst = 0; s.tail = []; s.is_c = False
    def e(s, t): s.l.append("    " + t)
    def lab(s, t): s.l.append(t + ":")
    def c(s, t): s.l.append("    ; " + t)
    def lds(s, t, tag):
        s.e(t); s.lq.append(tag)
        assert len(s.lq) <= 15, "too many LDS ops outstanding"
    def vm(s, t, tag):
        s.e(t); s.vq.append(tag); assert len(s.vq) <= 63
    def need(s, *tags):
        idx = max([i for i, t in enumerate(s.lq) if t in tags], default=-1)
        if idx < 0: return False
        n = len(s.lq) - 1 - idx
        if s.smem: n = 0; s.smem = False
        s.e(f"s_waitcnt lgkmcnt({n})"); s.lq = s.lq[len(s.lq) - n:] if n else []
        return True
    def vneed(s, *tags):
        idx = max([i for i, t in enumerate(s.vq) if t in tags], default=-1)
        if idx < 0: return False
        n = len(s.vq) - 1 - idx
        s.e(f"s_waitcnt vmcnt({n})"); s.vq = s.vq[len(s.vq) - n:] if n else []
        return True
    def stamp(s):
        if "probe" in P:
            if s.nst == P["probe"] and s.is_c:
                s.e("s_memrealtime s[96:97]"); s.smem = True
            s.nst += 1
        if P["stamps"]:
            s.e(f"s_memtime s[{64 + 2 * s.nst}:{65 + 2 * s.nst}]"); s.nst += 1; s.smem = True
            assert s.nst <= 19
    def dump_stamps(s):
        if not P["stamps"]: return
        s.e("s_waitcnt lgkmcnt(0) vmcnt(0)")
        s.e("v_mov_b32 v14, 0")
        for i in range(1, s.nst):
            s.e(f"s_sub_u32 s{64+2*i}, s{64+2*i}, s64")
            s.e(f"v_writelane_b32 v14, s{64+2*i}, {i}")
        s.e("s_lshl_b32 s3, s2, 11")
        s.e(f"s_add_u32 s3, s3, {STAMP_OFF}")
        s.e("v_lshl_add_u32 v15, v0, 2, s3")
        s.e("global_store_dword v15, v14, s[18:19]")

def q4(r): return f"v[{r}:{r+3}]"
def q2(r): return f"v[{r}:{r+1}]"
def q16(r): return f"v[{r}:{r+15}]"
def sq(d): return f"s[{d}:{d+3}]"

S_EP, S_EN = 20, 21
S_W, S_Q, S_GL, S_G, S_R, S_TILE = 22, 23, 24, 25, 26, 27
SRD_A, SRD_B, SRD_C = 28, 32, 36
S_OB = (40, 41, 42, 43)
S_T0, S_T1, S_T2, S_T3 = 44, 45, 46, 47
S_S1, S_IK, S_MSK = 48, 50, 52
S_PM = (54, 55, 56, 57)
S_CNT, S_H0, S_H1, S_XCC, S_PS, S_MODE = 58, 59, 60, 61, 62, 63
S_N, S_LB, S_XO, S_WO = 40, 41, 42, 43

h = Prog()
h.stamp()
if P.get("rt") or "probe" in P: h.e("s_memrealtime s[100:101]")
h.e("s_load_dwordx16 s[4:19], s[0:1], 0")
h.e("s_cmp_ge_u32 s2, 0x100")
h.e("s_cbranch_scc1 L_exit")
h.e("v_lshrrev_b32 v2, 6, v0")
h.e("v_and_b32 v1, 63, v0")
h.e(f"v_readfirstlane_b32 s{S_W}, v2")
h.e(f"s_lshr_b32 s{S_T0}, s2, 3")
if P["codepf"]:
    h.c("pull this kernel's code into the L2 (one 64-byte piece per wave)")
    h.e("s_getpc_b64 s[20:21]")
    h.lab("L_pc")
    h.e(f"s_lshl_b32 s{S_T1}, s{S_T0}, 3")
    h.e(f"v_add_lshl_u32 v3, v2, s{S_T1}, 6")
    h.e("v_min_u32 v3, L_end-L_pc-4, v3")
    h.e("global_load_dword v15, v3, s[20:21]")
h.e(f"s_and_b32 s{S_Q}, s{S_T0}, 3")
h.e(f"s_lshr_b32 s{S_GL}, s{S_T0}, 2")
h.e(f"s_and_b32 s{S_T1}, s2, 7")
h.e(f"s_lshl_b32 s{S_G}, s{S_GL}, 3")
h.e(f"s_add_u32 s{S_G}, s{S_G}, s{S_T1}")
h.e(f"s_lshr_b32 s{S_T0}, s{S_G}, 5")
h.e(f"s_lshl_b32 s{S_TILE}, s{S_T0}, 22")
h.e(f"s_and_b32 s{S_T1}, s{S_G}, 31")
h.e(f"s_lshl_b32 s{S_T1}, s{S_T1}, 8")
h.e(f"s_add_u32 s{S_TILE}, s{S_TILE}, s{S_T1}")
if P["rot"]:
    h.e(f"s_add_u32 s{S_R}, s{S_Q}, s{S_GL}")
    h.e(f"s_and_b32 s{S_R}, s{S_R}, 3")
else: h.e(f"s_mov_b32 s{S_R}, 0")
h.e(f"s_cmp_lt_u32 s{S_W}, 4")
h.e("s_cbranch_scc1 L_compute")

L = Prog(); L.nst = h.nst
D = P["D"]
ntx = " nt" if P["ntx"] else ""
L.c("---------------- loader waves: wave 4+i brings rows 4i..4i+3 of every 16-row step")
L.e("v_lshrrev_b32 v4, 4, v1")
L.e("v_and_b32 v6, 3, v1")
L.e("v_lshlrev_b32 v6, 4, v6")
L.e("v_bfe_u32 v5, v0, 2, 2")
L.e("v_and_b32 v2, 3, v2")
L.e("v_lshl_add_u32 v5, v2, 2, v5")
L.e("v_lshl_add_u32 v7, v4, 6, v6")
L.e("v_lshl_add_u32 v2, v5, 13, v7")
L.e(f"v_add_u32 v2, s{S_TILE}, v2")
L.e(f"s_lshl_b32 s{S_T0}, s{S_Q}, 8")
L.e(f"v_lshl_add_u32 v5, v5, 10, s{S_T0}")
L.e("v_add_u32 v3, v5, v7")
L.e(f"s_and_b32 s{S_LB}, s{S_W}, 3")
L.e(f"s_lshl_b32 s{S_LB}, s{S_LB}, 10")
L.e(f"s_mov_b32 s{S_N}, 0")
L.e(f"s_mov_b32 s{SRD_A+2}, 0x800000"); L.e(f"s_mov_b32 s{SRD_A+3}, 0x20000")
L.e(f"s_mov_b32 s{SRD_B+2}, 0x80000"); L.e(f"s_mov_b32 s{SRD_B+3}, 0x20000")
L.e("s_waitcnt lgkmcnt(0)")
L.e(f"s_mov_b64 s[{SRD_A}:{SRD_A+1}], s[4:5]")
L.e(f"s_mov_b64 s[{SRD_B}:{SRD_B+1}], s[8:9]")
L.lab("L_ld1")
L.c("chunk n = two 16-row steps; within every four chunks the order is rotated per workgroup")
L.e(f"s_add_u32 s{S_T0}, s{S_N}, s{S_R}")
L.e(f"s_and_b32 s{S_T0}, s{S_T0}, 3")
L.e(f"s_and_b32 s{S_T1}, s{S_N}, 12")
L.e(f"s_or_b32 s{S_T0}, s{S_T0}, s{S_T1}")
L.e(f"s_mov_b32 m0, s{S_LB}")
L.e(f"s_lshl_b32 s{S_XO}, s{S_T0}, 18")
L.e(f"buffer_load_dwordx4 v2, {sq(SRD_A)}, s{S_XO} offen{ntx} lds")
L.e(f"s_add_u32 m0, s{S_LB}, 0x1000")
L.e(f"s_lshl_b32 s{S_WO}, s{S_T0}, 15")
L.e(f"buffer_load_dwordx4 v3, {sq(SRD_B)}, s{S_WO} offen lds")
L.e(f"s_add_u32 m0, s{S_LB}, 0x2000")
L.e(f"s_add_u32 s{S_XO}, s{S_XO}, 0x20000")
L.e(f"buffer_load_dwordx4 v2, {sq(SRD_A)}, s{S_XO} offen{ntx} lds")
L.e(f"s_add_u32 m0, s{S_LB}, 0x3000")
L.e(f"s_add_u32 s{S_WO}, s{S_WO}, 0x4000")
L.e(f"buffer_load_dwordx4 v3, {sq(SRD_B)}, s{S_WO} offen lds")
L.e(f"s_add_u32 s{S_LB}, s{S_LB}, 0x4000")
L.e(f"s_and_b32 s{S_LB}, s{S_LB}, 0x1ffff")
L.e(f"s_add_u32 s{S_N}, s{S_N}, 1")
L.e(f"s_cmp_lt_u32 s{S_N}, {D}")
L.e("s_cbranch_scc1 L_ld1")
L.e(f"s_waitcnt vmcnt({4 * (D - 1)})")
L.e("s_barrier")
L.e(f"s_cmp_lt_u32 s{S_N}, 16")
L.e("s_cbranch_scc1 L_ld1")
L.e("s_branch L_ld2")
L_HEAD = len(L.l)
L.lab("L_ld2")
L.stamp()
L.c("w_out: positions start at this member's own rows; column blocks rotated like the x chunks")
L.e(f"v_add_u32 v4, s{S_R}, v4")
L.e("v_and_b32 v4, 3, v4")
L.e("v_lshl_add_u32 v7, v4, 6, v6")
L.e("v_add_u32 v3, v5, v7")
L.e(f"s_mov_b64 s[{SRD_B}:{SRD_B+1}], s[12:13]")
L.e(f"s_lshl_b32 s{S_WO}, s{S_Q}, 17")
L.e("v_and_b32 v8, 7, v1")
L.e("v_lshlrev_b32 v8, 2, v8")
L.e(f"v_add_u32 v8, {LDS_RDY}, v8")
L.e("v_mov_b32 v9, 0")
L.e("ds_write_b32 v8, v9")
L.vq = [("c", n) for n in range(16 - D + 1, 16) for _ in range(4)]
def ld_wo(n):
    for p in range(4):
        L.e(f"s_add_u32 m0, s{S_LB}, {hex(((n - 16) * 4 + p) * 4096)}")
        if n > 16 or p: L.e(f"s_add_u32 s{S_WO}, s{S_WO}, 0x4000")
        else: L.e("s_waitcnt lgkmcnt(0)")
        if p == 0 and n % 2 == 0 and n > 16: L.e(f"s_and_b32 s{S_WO}, s{S_WO}, 0x7ffff")
        L.vm(f"buffer_load_dwordx4 v3, {sq(SRD_B)}, s{S_WO} offen lds", ("c", n))
def throttle():
    if len(L.vq) > P["thr"]:
        L.e(f"s_waitcnt vmcnt({P['thr']})"); L.vq = L.vq[len(L.vq) - P["thr"]:]
nxt = 16
for c in range(16 - D + 1, 16):
    ld_wo(nxt); nxt += 1
    L.vneed(("c", c))
    L.e("s_barrier")
L.stamp()
while nxt <= P["pre16"]:
    throttle(); ld_wo(nxt); nxt += 1
assert 18 <= nxt <= 22
L.vneed(("c", 17))
L.stamp()
L.e("v_and_b32 v11, 3, v1")
L.e(f"s_lshl_b32 s{S_T0}, s{S_G}, 9")
L.e(f"s_add_u32 s{S_T0}, s{S_T0}, {FLAG_OFF}")
L.e(f"v_lshl_add_u32 v12, v11, 7, s{S_T0}")
L.e("s_barrier")
if P["prime"]: L.vm("global_load_dword v16, v12, s[18:19] sc1", "prime")
while nxt < 24:
    throttle(); ld_wo(nxt); nxt += 1
L.e(f"s_lshl_b32 s{S_T0}, s{S_W}, 2")
L.e(f"s_add_u32 s{S_T0}, s{S_T0}, {LDS_RDY}")
L.e(f"v_mov_b32 v8, s{S_T0}")
L.e("v_mov_b32 v9, 4")
L.e("s_waitcnt vmcnt(0)")
L.e("ds_write_b32 v8, v9")
L.stamp()
L.e(f"s_cmp_lg_u32 s{S_W}, 4")
L.e("s_cbranch_scc1 L_fin")
L.c("wave 4: relay the members' progress words into LDS")
L.e("v_lshlrev_b32 v8, 2, v11")
L.e(f"v_add_u32 v8, {LDS_RDY}, v8")
L.e(f"v_mov_b32 v13, {LDS_RDY + 16}")
L.e(f"s_mov_b32 s{S_CNT}, 0")
L.lab("L_poll")
L.e("global_load_dwordx4 v[16:19], v12, s[18:19] sc1")
L.e(f"s_add_u32 s{S_CNT}, s{S_CNT}, 1")
L.e("ds_read_b128 v[20:23], v13")
L.e("s_waitcnt vmcnt(0) lgkmcnt(0)")
L.e("v_min3_u32 v16, v16, v17, v18")
L.e("v_min3_u32 v21, v21, v22, v23")
L.e("v_min3_u32 v16, v16, v19, v21")
L.e("ds_write_b32 v8, v16")
L.e("v_cmp_gt_u32 vcc, 4, v16")
L.e(f"s_cmp_ge_u32 s{S_CNT}, 0x100000")
L.e("s_cbranch_scc1 L_fin")
L.e("s_cmp_lg_u64 vcc, 0")
L.e("s_cbranch_scc1 L_poll")
if P["wb"]:
    L.c("one wave per XCD starts writing the hand-off lines back now, so that the launch does not end on them")
    L.e("s_cmp_ge_u32 s2, 8")
    L.e("s_cbranch_scc1 L_fin")
    if P["wb"] > 1: L.e(f"s_sleep {P['wb']}")
    L.e("buffer_wbl2 sc1")
    L.e("s_waitcnt vmcnt(0)")
L.lab("L_fin")
L.stamp()
L.dump_stamps()
L.lab("L_exit")
L.e("s_endpgm")

C = Prog(); C.nst = h.nst; C.is_c = True
if P["codepf"]: C.vq.append("code")
aW0, aW1, aX0, aX1, VO0, VO1, VFL, VFV, VSW, VSR, VOUT, VRDY, VT0, VT1 = 2, 3, 4, 5, 6, 7, 8, 9, 10, 11, 12, 13, 14, 15
RA, RB, RF, RX, RS, RH = 16, 80, 144, 184, 216, 224
SRD_WS, SRD_OUT, SRD_WO = SRD_A, SRD_B, SRD_C
C.lab("L_compute")
C.c("---------------- compute waves")
T = RH
vH, vC, vEMBA, vSIGA, vCLRA, vANNA, vSIG, vEMB, vZ, vEP, vANN, vJ, vL4, vTCH, vBW, vBR, vZZ, vSH = \
    T, T+1, T+2, T+3, T+4, T+5, T+6, T+7, T+8, T+9, T+10, T+12, T+13, T+14, T+15, T+16, T+17, T+18
vCHK, vCHA, vPF = T + 26, T + 28, T + 29
C.e(f"v_lshrrev_b32 v{vH}, 5, v1")
C.e(f"v_bfe_u32 v{vC}, v1, 2, 2")
C.e(f"v_lshlrev_b32 v{vC}, 6, v{vC}")
C.e(f"v_lshl_add_u32 v{aW0}, v{vH}, 10, v{vC}")
C.e(f"v_bfe_u32 v{vC}, v1, 4, 1")
C.e(f"v_lshl_add_u32 v{aW0}, v{vC}, 5, v{aW0}")
C.e(f"v_and_b32 v{vC}, 3, v1")
C.e(f"v_lshl_add_u32 v{aW0}, v{vC}, 3, v{aW0}")
C.e(f"s_lshl_b32 s{S_T0}, s{S_W}, 8")
C.e(f"v_add_u32 v{aX0}, s{S_T0}, v{aW0}")
C.e(f"s_lshl_b32 s{S_T0}, s{S_Q}, 8")
C.e(f"v_lshl_add_u32 v{vEMBA}, v1, 2, s{S_T0}")
C.e(f"s_lshr_b32 s{S_T0}, s{S_TILE}, 21")
C.e(f"v_mov_b32 v{vSIGA}, s{S_T0}")
C.c("wave 0 resets this workgroup's four progress words (lanes 0-3), then announces that under this launch's tag")
C.e(f"s_lshl_b32 s{S_T2}, s{S_G}, 9")
C.e(f"s_add_u32 s{S_T2}, s{S_T2}, {FLAG_OFF}")
C.e(f"s_lshl_b32 s{S_T3}, s{S_Q}, 2")
C.e(f"s_add_u32 s{S_T2}, s{S_T2}, s{S_T3}")
C.e(f"v_lshrrev_b32 v{vL4}, 2, v0")
C.e(f"v_lshl_add_u32 v{vCLRA}, v{vC}, 7, s{S_T2}")
C.e(f"v_lshl_add_u32 v{vCLRA}, v{vL4}, 24, v{vCLRA}")
C.e(f"v_mov_b32 v{vZ}, 0")
C.e(f"s_lshl_b32 s{S_EP}, s{S_G}, 8")
C.e(f"s_add_u32 s{S_EP}, s{S_EP}, {ANN_OFF}")
C.e(f"s_mov_b32 s{SRD_WS+2}, {hex(WS_BYTES)}"); C.e(f"s_mov_b32 s{SRD_WS+3}, 0x20000")
C.e(f"s_lshl_b32 s{S_T1}, s{S_G}, 4")
C.e(f"s_add_u32 s{S_T1}, s{S_T1}, s{S_W}")
C.e(f"s_lshl2_add_u32 s{S_T0}, s{S_Q}, s{S_T1}")
C.e(f"s_lshl_b32 s{S_PS}, s{S_T0}, 13")
C.e(f"v_lshlrev_b32 v{vPF}, {7 if len(P['pf']) <= 1 else 6 if len(P['pf']) == 2 else 5}, v1")
C.e(f"s_getreg_b32 s{S_XCC}, hwreg(HW_REG_XCC_ID, 0, 4)")
C.e("s_waitcnt lgkmcnt(0)")
C.e(f"s_mov_b64 s[{SRD_WS}:{SRD_WS+1}], s[18:19]")
C.vm(f"buffer_store_dword v{vZ}, v{vCLRA}, {sq(SRD_WS)}, 0 offen sc1", "clr")
C.vm(f"buffer_load_dword v{vEP}, v{vZ}, {sq(SRD_WS)}, s{S_EP} offen sc1", "ep")
C.vm(f"global_load_ushort v{vSIG}, v{vSIGA}, s[6:7]", "sig")
C.vm(f"global_load_dword v{vEMB}, v{vEMBA}, s[10:11]", "emb")
if P["tlb"] == 2:
    import math
    lg = int(math.log2(P["tl"]))
    C.c("first touch of the pages used later (address translation only; the values are not used)")
    C.e(f"s_lshl_b32 s{S_T0}, s{S_Q}, 20")
    C.e(f"s_add_u32 s{S_T0}, s{S_T0}, s{S_TILE}")
    C.e(f"s_lshl_b32 s{S_T1}, s{S_G}, 17")
    C.e(f"s_cmp_eq_u32 s{S_W}, 1")
    C.e(f"s_cselect_b64 s[{S_MSK}:{S_MSK+1}], s[14:15], s[4:5]")
    C.e(f"s_cselect_b32 s{S_T0}, s{S_T0}, s{S_TILE}")
    C.e(f"s_cselect_b32 s{S_CNT}, {20 - lg}, {22 - lg}")
    C.e(f"s_cmp_eq_u32 s{S_W}, 2")
    C.e(f"s_cselect_b64 s[{S_MSK}:{S_MSK+1}], s[12:13], s[{S_MSK}:{S_MSK+1}]")
    C.e(f"s_cselect_b32 s{S_T0}, 0, s{S_T0}")
    C.e(f"s_cselect_b32 s{S_CNT}, {19 - lg}, s{S_CNT}")
    C.e(f"s_cmp_eq_u32 s{S_W}, 3")
    C.e(f"s_cselect_b64 s[{S_MSK}:{S_MSK+1}], s[18:19], s[{S_MSK}:{S_MSK+1}]")
    C.e(f"s_cselect_b32 s{S_T0}, s{S_T1}, s{S_T0}")
    C.e(f"s_cselect_b32 s{S_CNT}, {17 - lg}, s{S_CNT}")
    C.e(f"v_and_b32 v{VT0}, {P['tl'] - 1}, v1")
    C.e(f"v_lshlrev_b32 v{VT0}, s{S_CNT}, v{VT0}")
    C.e(f"v_add_u32 v{VT0}, s{S_T0}, v{VT0}")
    C.vm(f"global_load_dword v{VT0}, v{VT0}, s[{S_MSK}:{S_MSK+1}] sc1", "tlb")

F = []
def f2(*x): F.append("\n    ".join(x))
f2(f"v_add_u32 v{aW1}, 0x10000, v{aW0}", f"v_add_u32 v{aX1}, 0x10000, v{aX0}")
f2(f"s_mov_b64 s[{SRD_WO}:{SRD_WO+1}], s[12:13]", f"s_mov_b32 s{SRD_WO+2}, 0x80000")
f2(f"s_mov_b32 s{SRD_WO+3}, 0x20000", f"v_bfe_u32 v{vL4}, v1, 2, 4")
f2(f"s_lshl_b32 s{S_T0}, s{S_GL}, 16", f"s_lshl_b32 s{S_T1}, s{S_W}, 14")
f2(f"s_add_u32 s{S_T0}, s{S_T0}, s{S_T1}", f"s_lshl_b32 s{S_T1}, s{S_Q}, 8")
f2(f"s_add_u32 s{S_T0}, s{S_T0}, s{S_T1}", f"v_lshl_add_u32 v{vTCH}, v{vL4}, 10, s{S_T0}")
f2(f"v_lshl_add_u32 v{vTCH}, v{vC}, 6, v{vTCH}", f"v_lshlrev_b32 v{vANNA}, 24, v0")
N_EARLY = len(F)
F.append(lambda: C.vneed("clr", "ep", "sig", "emb"))
f2(f"v_readfirstlane_b32 s{S_T3}, v{vEP}")
f2(f"s_mul_i32 s{S_H0}, s{S_T3}, {hex(HC0)}", f"s_add_u32 s{S_H0}, s{S_H0}, {hex(HK0)}")
f2(f"s_mul_i32 s{S_H1}, s{S_T3}, {hex(HC1)}", f"s_add_u32 s{S_H1}, s{S_H1}, {hex(HK1)}")
f2(f"s_add_u32 s{S_H0}, s{S_H0}, s{S_XCC}", f"s_add_u32 s{S_H1}, s{S_H1}, s{S_XCC}")
f2(f"v_mov_b32 v{vANN}, s{S_H0}", f"v_mov_b32 v{vANN+1}, s{S_H1}")
f2(f"s_lshl_b32 s{S_T0}, s{S_Q}, 3", f"s_add_u32 s{S_T0}, s{S_T0}, s{S_EP}")
F.append(lambda: C.vm(f"buffer_store_dwordx2 {q2(vANN)}, v{vANNA}, {sq(SRD_WS)}, s{S_T0} offen offset:128 sc1", "ann"))
f2(f"s_mov_b32 s{S_MODE}, 0")
f2(f"s_add_u32 s{S_EN}, s{S_T3}, 1", f"v_lshlrev_b32 v{vCHA}, 3, v{vC}")
sg, a, b2, cs, cn = vSIG, T + 20, T + 21, T + 22, T + 23
def rnd(r): return [f"v_cvt_pk_bf16_f32 v{r}, v{r}, v{r}\n    v_lshlrev_b32 v{r}, 16, v{r}"]
F += [f"v_lshlrev_b32 v{sg}, 16, v{sg}\n    v_mul_f32 v{a}, v{sg}, v{sg}"] + rnd(a)
F += [f"v_add_f32 v{a}, 0x3e800000, v{a}"] + rnd(a)
F += [f"v_rcp_f32 v{cs}, v{a}", f"v_sqrt_f32 v{a}, v{a}"] + rnd(cs) + rnd(a)
F += [f"v_mul_f32 v{cs}, 0x3e800000, v{cs}", f"v_rcp_f32 v{a}, v{a}", f"v_lshrrev_b32 v{cs}, 16, v{cs}\n    v_mul_f32 v{b2}, 0.5, v{sg}"]
F += [f"v_mul_f32 v{b2}, v{b2}, v{a}"] + rnd(b2) + rnd(a)
F += [f"v_log_f32 v{cn}, v{sg}", f"v_mul_f32 v{a}, 0xbfb8aa3b, v{a}", f"v_mul_f32 v{cn}, 0x3f317218, v{cn}"] + rnd(cn)
F += [f"v_max_f32 v{b2}, 0x03800000, v{b2}", f"v_mul_f32 v{b2}, 0xbf317218, v{b2}", f"v_rcp_f32 v{b2}, v{b2}"]
F += [f"v_mul_f32 v{cn}, 0x3e800000, v{cn}"]
f2(f"v_readfirstlane_b32 s{S_S1}, v{a}", f"v_readfirstlane_b32 s{S_S1+1}, v{a}")
f2(f"v_readfirstlane_b32 s{S_IK}, v{b2}", f"v_readfirstlane_b32 s{S_IK+1}, v{b2}")
e0, e1 = T + 24, T + 25
f2(f"v_lshlrev_b32 v{e0}, 16, v{vEMB}", f"v_and_b32 v{e1}, 0xffff0000, v{vEMB}")
f2(f"v_mul_f32 v{e0}, v{cn}, v{e0}", f"v_mul_f32 v{e1}, v{cn}, v{e1}")
f2(f"v_cvt_pk_bf16_f32 v{e1}, v{e0}, v{e1}", f"v_lshlrev_b32 v{e0}, 16, v{e1}")
f2(f"v_and_b32 v{e1}, 0xffff0000, v{e1}", f"v_mul_f32 v{e0}, 0xbfb8aa3b, v{e0}")
f2(f"s_lshl_b32 s{S_T0}, s{S_W}, 9", f"v_mul_f32 v{e1}, 0xbfb8aa3b, v{e1}")
f2(f"s_add_u32 s{S_T0}, s{S_T0}, {LDS_BIAS}", f"v_lshl_add_u32 v{vBW}, v1, 3, s{S_T0}")
f2(f"v_lshl_add_u32 v{vBR}, v{vH}, 4, s{S_T0}", f"v_and_b32 v{vJ}, 31, v1")
F.append(("lds", f"ds_write_b64 v{vBW}, {q2(e0)}", "biasw"))
for i in range(16):
    F.append(("lds", f"ds_read_b128 {q4(RB + 4 * i)}, v{vBR} offset:{i * 32}", "bias"))
f2(f"v_lshrrev_b32 v{vZZ}, 1, v{vJ}", f"v_lshlrev_b32 v{vSH}, 1, v{vH}")
f2(f"v_sub_u32 v{vZZ}, v{vZZ}, v{vSH}", f"v_and_b32 v{vSH}, 1, v1")
f2(f"v_lshlrev_b32 v{vSH}, 4, v{vSH}", f"v_lshlrev_b32 v{cs}, v{vSH}, v{cs}")
sel = [(t, d) for t in range(2) for d in range(4)]
f2(f"v_cmp_eq_u32 vcc, 0, v{vZZ}")
for n, (t, d) in enumerate(sel):
    x = [f"v_cndmask_b32 v{RS + 4 * t + d}, 0, v{cs}, vcc"]
    if n < 7: x.append(f"v_cmp_eq_u32 vcc, {8 * sel[n+1][0] + (0, 1, 4, 5)[sel[n+1][1]]}, v{vZZ}")
    f2(*x)
F.append(lambda: C.vm(f"buffer_load_dwordx2 {q2(vCHK)}, v{vCHA}, {sq(SRD_WS)}, s{S_EP} offen offset:128 sc1", "chk"))
f2(f"v_lshlrev_b32 v{VO0}, 4, v1", f"v_add_u32 v{VO1}, 0x1000, v{VO0}")
f2(f"s_lshl_b32 s{S_T0}, s{S_W}, 7", f"s_add_u32 s{S_T2}, s{S_T2}, s{S_T0}")
f2(f"v_lshl_add_u32 v{VFL}, v1, 24, s{S_T2}")
f2(f"s_lshl_b32 s{S_T1}, s{S_G}, 4", f"s_add_u32 s{S_T1}, s{S_T1}, s{S_W}")
for m in range(4):
    f2(f"s_add_u32 s{S_T0}, s{S_Q}, {m}", f"s_and_b32 s{S_T0}, s{S_T0}, 3")
    f2(f"s_lshl2_add_u32 s{S_T0}, s{S_T0}, s{S_T1}", f"s_lshl_b32 s{S_PM[m]}, s{S_T0}, 13")
f2(f"s_mul_i32 s{S_T0}, s{S_W}, 5120", f"s_add_u32 s{S_T0}, s{S_T0}, {LDS_STG}")
f2(f"v_mul_u32_u24 v{VSW}, 80, v{vJ}", f"v_lshl_add_u32 v{VSW}, v{vH}, 3, v{VSW}")
f2(f"v_add_u32 v{VSW}, s{S_T0}, v{VSW}", f"v_mul_u32_u24 v{VSR}, 80, v{vL4}")
f2(f"v_lshl_add_u32 v{VSR}, v{vC}, 4, v{VSR}", f"v_add_u32 v{VSR}, s{S_T0}, v{VSR}")
f2(f"s_lshl_b32 s{S_T0}, s{S_Q}, 20", f"s_add_u32 s{S_T0}, s{S_T0}, s{S_TILE}")
f2(f"s_lshl_b32 s{S_T1}, s{S_W}, 6", f"s_add_u32 s{S_T0}, s{S_T0}, s{S_T1}")
f2(f"v_lshl_add_u32 v{VOUT}, v{vL4}, 13, s{S_T0}", f"v_lshl_add_u32 v{VOUT}, v{vC}, 4, v{VOUT}")
for j in range(4):
    f2(f"s_add_u32 s{S_T0}, s{S_R}, {j}", f"s_and_b32 s{S_T0}, s{S_T0}, 3", f"s_lshl_b32 s{S_OB[j]}, s{S_T0}, 18")
f2(f"s_mov_b64 s[{SRD_OUT}:{SRD_OUT+1}], s[14:15]", f"s_mov_b32 s{SRD_OUT+2}, 0x800000")
f2(f"s_mov_b32 s{SRD_OUT+3}, 0x20000", f"s_lshl_b32 s{S_T0}, s{S_W}, 2")
f2(f"s_add_u32 s{S_T0}, s{S_T0}, {LDS_RDY}", f"v_mov_b32 v{VRDY}, s{S_T0}")
if P["tlb"] == 1:
    F.append(lambda: C.vm(f"buffer_load_dword v{VT0}, v{vZ}, {sq(SRD_WS)}, s{S_PM[0]} offen", "tlb"))
    F.append(lambda: C.vm(f"buffer_load_dword v{VT0}, v{vZ}, {sq(SRD_OUT)}, s{S_TILE} offen", "tlb"))
F_WAIT = 10
assert len(F) + F_WAIT - N_EARLY <= 124, len(F)

def rd_x(s, i):
    base = (s % 16) * 8192; a_ = aX0 if base < 65536 else aX1
    r = RF + 20 * (s & 1) + 2 * i
    C.lds(f"ds_read_b64_tr_b16 {q2(r)}, v{a_} offset:{base % 65536 + 2048 * i}", ("x", s))
def rd_w(s, j, i):
    base = (s % 16) * 8192; a_ = aW0 if base < 65536 else aW1
    r = RF + 20 * (s & 1) + 4 + 4 * j + 2 * i
    C.lds(f"ds_read_b64_tr_b16 {q2(r)}, v{a_} offset:{base % 65536 + 4096 + 256 * j + 2048 * i}", ("w", s, j))
def reads(s): return [lambda i=i: rd_x(s, i) for i in range(2)] + [lambda j=j, i=i: rd_w(s, j, i) for j in range(4) for i in range(2)]

C.stamp()
def prefill(c):
    if c in P["pf"]:
        n = list(P["pf"]).index(c); step = 8192 // len(P["pf"])
        C.c("make this wave's hand-off lines valid in the L2 (the values are not used)")
        if n * step >= 4096 and (n - 1) * step < 4096: C.e(f"v_add_u32 v{vPF}, 0x1000, v{vPF}")
        C.vm(f"buffer_load_dword v{VT1}, v{vPF}, {sq(SRD_WS)}, s{S_PS} offen offset:{n * step % 4096}{POL[P['pfpol']]}", "touch")
prefill(-1)
C.e("s_barrier")
prefill(0)
C.stamp()
for r in reads(0): r()
gap = 0; nf = 0
for s in range(32):
    if s % 2 == 1 and s < 31:
        C.e("s_barrier")
        prefill((s + 1) // 2)
        if (s + 1) // 2 == P["wo_touch"]:
            C.vm(f"buffer_load_dword v{VT1}, v{vTCH}, {sq(SRD_WO)}, 0 offen", "touch")
    if s % 8 == 0:
        C.e(f"s_cmp_eq_u32 s{S_Q}, {s // 8}")
        C.e(f"s_cselect_b64 s[{S_MSK}:{S_MSK+1}], -1, 0")
        if s: C.stamp()
    rl = reads(s + 1) if s < 31 else []
    split = (3, 3, 2, 2)
    for j in range(4):
        C.need(("x", s), ("w", s, j))
        fb = RF + 20 * (s & 1)
        cin = "0" if s == 0 else q16(RA + 16 * j)
        C.e(f"v_mfma_f32_32x32x16_bf16 {q16(RA + 16 * j)}, {q4(fb + 4 + 4 * j)}, {q4(fb)}, {cin}")
        for _ in range(split[j]):
            if rl: rl.pop(0)()
        f = None
        if F and (nf < N_EARLY or gap >= F_WAIT): f = F.pop(0); nf += 1
        if f is not None and not isinstance(f, str):
            if isinstance(f, tuple): C.lds(f[1], f[2])
            else: f()
            f = None
        if j < 3: C.need(("x", s), ("w", s, j + 1))
        elif s < 31 and not (s % 2 == 0): C.need(("x", s + 1), ("w", s + 1, 0))
        if f: C.e(f)
        xr = RX + 4 * (s % 8) + j
        C.e(f"v_cndmask_b32 v{xr}, v{xr}, v{fb + j}, s[{S_MSK}:{S_MSK+1}]")
        gap += 1
assert not F
C.need("bias")
assert not C.lq
C.stamp()
C.c("all four members have reset their progress words in this launch, and one L2 serves all of them")
C.vneed("chk", "tlb", "touch")
C.e(f"v_cmp_ne_u32 vcc, s{S_H0}, v{vCHK}")
C.e(f"v_cmp_ne_u32 s[{S_MSK}:{S_MSK+1}], s{S_H1}, v{vCHK+1}")
C.e(f"v_mov_b32 v{VT1}, v{VFL}")
C.e("s_nop 0")
C.e(f"s_or_b64 vcc, vcc, s[{S_MSK}:{S_MSK+1}]")
if P.get("forceslow"): C.e("s_cmp_eq_u32 0, 0")
C.e("s_cbranch_scc1 L_ann_wait")
C.lab("L_ann_ok")
C.tail += ["L_ann_wait:", f"    s_mov_b32 s{S_CNT}, 0",
           f"    s_sub_u32 s{S_H0}, s{S_H0}, s{S_XCC}", f"    s_sub_u32 s{S_H1}, s{S_H1}, s{S_XCC}", "L_ann_l:",
           f"    buffer_load_dwordx2 {q2(vCHK)}, v{vCHA}, {sq(SRD_WS)}, s{S_EP} offen offset:128 sc1",
           f"    s_add_u32 s{S_CNT}, s{S_CNT}, 1", "    s_waitcnt vmcnt(0)",
           f"    v_subrev_u32 v{vCHK}, s{S_H0}, v{vCHK}", f"    v_subrev_u32 v{vCHK+1}, s{S_H1}, v{vCHK+1}",
           f"    v_cmp_ne_u32 vcc, v{vCHK}, v{vCHK+1}", f"    v_cmp_le_u32 s[{S_MSK}:{S_MSK+1}], 16, v{vCHK}",
           f"    s_cmp_ge_u32 s{S_CNT}, 0x100000", "    s_cbranch_scc1 L_ann_ok",
           f"    s_or_b64 vcc, vcc, s[{S_MSK}:{S_MSK+1}]", "    s_cbranch_scc1 L_ann_l",
           f"    v_cmp_ne_u32 vcc, s{S_XCC}, v{vCHK}", "    s_nop 1", "    s_cmp_lg_u64 vcc, 0"]
if not P.get("forceslow"): C.tail += ["    s_cbranch_scc0 L_ann_ok"]
C.tail += ["    ; members on several XCDs: the L2-local stores fall out of range, L_slowpub publishes through memory instead",
           f"    s_mov_b32 s{S_MODE}, 1", f"    v_or_b32 v{VO0}, 2.0, v{VO0}", f"    v_or_b32 v{VO1}, 2.0, v{VO1}", f"    v_mov_b32 v{VT1}, 2.0", "    s_branch L_ann_ok"]
hpol = POL[P["hpol"]]
def flag(j):
    C.vneed(("st", j))
    C.e(f"v_mov_b32 v{VFV}, {j + 1}")
    C.vm(f"buffer_store_dword v{VFV}, v{VT1}, {sq(SRD_WS)}, 0 offen", ("fl", j))
def hst(fr, base, pol): return f"buffer_store_dwordx4 {q4(RH + 4*fr)}, v{VO0 if fr < 4 else VO1}, {sq(SRD_WS)}, s{base} offen offset:{(fr % 4) * 1024}{pol}"
def hstore(fr, tag): C.vm(hst(fr, S_PS, hpol), tag)
if P["b16"] < 0: C.e("s_barrier")
C.c("---- h = c_out * silu(c_in * acc + bias), two elements per packed op")
for blk in range(4):
    A_, B_ = RA + 16 * blk, RB + 16 * blk
    for g in range(0, 16, 4):
        for o in (0, 2): C.e(f"v_pk_fma_f32 {q2(B_+g+o)}, {q2(A_+g+o)}, s[{S_S1}:{S_S1+1}], {q2(B_+g+o)}")
        for o in range(4): C.e(f"v_exp_f32 v{A_+g+o}, v{B_+g+o}")
        if g:
            for o in (0, 2): C.e(f"v_cvt_pk_bf16_f32 v{RH + 8*blk + (g-4+o)//2}, v{A_+g-4+o}, v{A_+g-4+o+1}")
        for o in (0, 2): C.e(f"v_pk_fma_f32 {q2(A_+g+o)}, {q2(A_+g+o)}, s[{S_IK}:{S_IK+1}], s[{S_IK}:{S_IK+1}]")
        for o in range(4): C.e(f"v_rcp_f32 v{A_+g+o}, v{A_+g+o}")
        if g == 8: hstore(2 * blk, ("st", blk))
        for o in (0, 2): C.e(f"v_pk_mul_f32 {q2(A_+g+o)}, {q2(A_+g+o)}, {q2(B_+g+o)}")
    for o in (0, 2): C.e(f"v_cvt_pk_bf16_f32 v{RH + 8*blk + (12+o)//2}, v{A_+12+o}, v{A_+12+o+1}")
    hstore(2 * blk + 1, ("st", blk))
    if blk == P["b16"]: C.e("s_barrier")
    for j in range(4):
        if P["fl"][j] == blk: flag(j)
    if blk in (1, 3): C.stamp()

C.e(f"s_cmp_lg_u32 s{S_MODE}, 0")
C.e("s_cbranch_scc1 L_slowpub")
C.lab("L_pub_done")
C.tail += ["L_slowpub:", f"    v_xor_b32 v{VO0}, 2.0, v{VO0}", f"    v_xor_b32 v{VO1}, 2.0, v{VO1}"] + ["    " + hst(fr, S_PM[0], " sc1") for fr in range(8)]
C.tail += [f"    v_mov_b32 v{VT0}, 4", "    s_waitcnt vmcnt(0)",
           f"    buffer_store_dword v{VT0}, v{VFL}, {sq(SRD_WS)}, 0 offen sc1", "    s_waitcnt vmcnt(0)", "    s_branch L_pub_done"]

quads = [RB + 4 * i for i in range(16)] + [RX + 4 * i for i in range(8)]
def hq(j, m, t): return quads[6 * j + 2 * (m - 1) + t]
units = []
for t in range(2):
    for blk in range(4): units.append((blk, RX + 4 * (2 * blk + t), ("sel", t), t == 0, None))
for ks in range(8):
    for blk in range(4): units.append((blk, RH + 4 * ks, (ks, blk), False, None))
def ru(blk, j, m, t): units.append((blk, hq(j, m, t), (8 * m + 2 * j + t, blk), False, (j, m, t)))
MT = [(m, t) for m in (1, 2, 3) for t in range(2)]
if P["order"] == 0:
    for j in range(3):
        for m, t in MT:
            for blk in range(4): ru(blk, j, m, t)
    for blk in range(4):
        for m, t in MT: ru(blk, 3, m, t)
elif P["order"] == 1:
    for j in range(3):
        for m, t in MT:
            for blk in (0, 1): ru(blk, j, m, t)
    for blk in (0, 1):
        for m, t in MT: ru(blk, 3, m, t)
    for blk in (2, 3):
        for j in range(4):
            for m, t in MT: ru(blk, j, m, t)
elif P["order"] == 2:
    for j in range(2):
        for m, t in MT:
            for blk in range(4): ru(blk, j, m, t)
    for blk in range(4):
        for j in (2, 3):
            for m, t in MT: ru(blk, j, m, t)
elif P["order"] == 3:
    for m, t in MT:
        for blk in range(4): ru(blk, 0, m, t)
    for blk in range(4):
        for j in (1, 2, 3):
            for m, t in MT: ru(blk, j, m, t)
wl = [i for i, u in enumerate(units) if u[2][0] != "sel"]
slot = {i: RF + 4 * (n % 10) for n, i in enumerate(wl)}
def rd_o(i):
    p, blk = units[i][2]; base = p * 4096; a_ = aW0 if base < 65536 else aW1
    for k in range(2):
        C.lds(f"ds_read_b64_tr_b16 {q2(slot[i] + 2 * k)}, v{a_} offset:{base % 65536 + 256 * blk + 2048 * k}", ("o", i))
PF = 4
first_remote = min(i for i, u in enumerate(units) if u[4] is not None)
assert P["chk"][0] < first_remote - PF
for j in range(4):
    assert P["chk"][j] < min(i for i, u in enumerate(units) if u[4] is not None and u[4][0] == j)
    assert P["fl"][j] - 4 <= P["chk"][j]
last = {blk: max(i for i, u in enumerate(units) if u[0] == blk) for blk in range(4)}
opol = POL[P["outpol"]]; ldpol = POL[P["ldpol"]]
def epi(blk):
    tmp = RS; dat = RA + 16 * blk; so = (blk & 1) * 2560
    def cvt(g): return [("v", f"v_cvt_pk_bf16_f32 v{tmp + 2*g + o//2}, v{RA + 16*blk + 4*g + o}, v{RA + 16*blk + 4*g + o + 1}") for o in (0, 2)]
    def wr(g): return ("m", lambda: C.lds(f"ds_write_b64 v{VSW}, {q2(tmp + 2*g)} offset:{so + 16*g}", ("sw", blk)))
    def rd(k): return ("m", lambda: C.lds(f"ds_read_b128 {q4(dat + 4*k)}, v{VSR} offset:{so + 1280*k}", ("sr", blk, k)))
    def st(k):
        def f():
            if k: C.e(f"s_add_u32 s{S_OB[blk]}, s{S_OB[blk]}, 0x20000")
            C.need(("sr", blk, k))
            C.vm(f"buffer_store_dwordx4 {q4(dat + 4*k)}, v{VOUT}, {sq(SRD_OUT)}, s{S_OB[blk]} offen{opol}", ("out", blk))
        return ("m", f)
    return [cvt(0) + cvt(1)[:1], [wr(0)] + cvt(1)[1:] + cvt(2)[:1], [wr(1)] + cvt(2)[1:] + cvt(3)[:1], [wr(2)] + cvt(3)[1:], [wr(3), rd(0)], [rd(1)],
            [], [], [], [st(0)], [st(1)]]
sched = {}
def put(i, b):
    sched.setdefault(i, []).append(b)
busy_until = 0
for blk in sorted(range(4), key=lambda b: last[b]):
    t0 = max(last[blk] + 3, busy_until)
    for n, b in enumerate(epi(blk)): put(t0 + n, b)
    busy_until = t0 + 6
nrd = 0
NU = len(units)
def pre_wait(i):
    if i >= NU: return
    if units[i][4] is not None: C.vneed(("pl",) + units[i][4])
    if units[i][2][0] != "sel": C.need(("o", i))
for i, u in enumerate(units):
    blk, ar, wf, first, stg = u
    pre_wait(i)
    br = RS + 4 * wf[1] if wf[0] == "sel" else slot[i]
    C.e(f"v_mfma_f32_32x32x16_bf16 {q16(RA + 16*blk)}, {q4(ar)}, {q4(br)}, {'0' if first else q16(RA + 16*blk)}")
    if nrd < len(wl) and wl[nrd] <= i + PF:
        rd_o(wl[nrd]); nrd += 1
    items = [x for b in sched.pop(i, []) for x in b]
    for k, x in items:
        if k == "m": x()
    for j in range(4):
        if P["fl"][j] - 4 == i: flag(j)
        if P["chk"][j] - 3 == i: C.lds(f"ds_read_b32 v{VT0}, v{VRDY}", ("rdy", j))
        if P["chk"][j] - 1 == i:
            C.need(("rdy", j))
            items.append(("v", f"v_readfirstlane_b32 s{S_T1}, v{VT0}"))
        if P["chk"][j] == i:
            C.e(f"s_cmp_gt_u32 s{S_T1}, {j}")
            C.e(f"s_cbranch_scc0 L_spin{j}")
            C.lab(f"L_back{j}")
            C.stamp()
            C.tail += [f"L_spin{j}:", f"    s_mov_b32 s{S_CNT}, 0", f"L_spin{j}_l:",
                       f"    ds_read_b32 v{VT0}, v{VRDY}", f"    s_add_u32 s{S_CNT}, s{S_CNT}, 1", "    s_waitcnt lgkmcnt(0)",
                       f"    v_readfirstlane_b32 s{S_T1}, v{VT0}", f"    s_cmp_ge_u32 s{S_CNT}, 0x800000", f"    s_cbranch_scc1 L_back{j}",
                       f"    s_cmp_gt_u32 s{S_T1}, {j}", f"    s_cbranch_scc0 L_spin{j}_l", f"    s_branch L_back{j}"]
        if 0 <= i - P["chk"][j] < 3:
            m = i - P["chk"][j] + 1
            for t in range(2):
                fr = 2 * j + t
                C.vm(f"buffer_load_dwordx4 {q4(hq(j, m, t))}, v{VO0 if fr < 4 else VO1}, {sq(SRD_WS)}, s{S_PM[m]} offen offset:{(fr % 4) * 1024}{ldpol}", ("pl", j, m, t))
    if i == P["chk"][3] + 4:
        C.c("member 0 moves the group's epoch on (every member read it long ago: their progress words came after it)")
        C.e(f"s_lshl_b32 s{S_T1}, s{S_Q}, 28")
        items += [("v", f"v_lshl_or_b32 v{VT1}, v0, 24, s{S_T1}"), ("v", f"v_mov_b32 v{VT0}, s{S_EN}")]
    if i == P["chk"][3] + 5:
        C.vm(f"buffer_store_dword v{VT0}, v{VT1}, {sq(SRD_WS)}, s{S_EP} offen sc1", "epst")
    pre_wait(i + 1)
    for k, x in items:
        if k == "v": C.e(x)
C.stamp()
C.e("s_nop 11")
for i in sorted(sched):
    for b in sched[i]:
        for k, x in sorted(b, key=lambda y: y[0]):
            if k == "v": C.e(x)
            else: x()
C.stamp()
if P["stamps"] or "probe" in P:
    C.e("s_waitcnt vmcnt(0)"); C.stamp()
if "probe" in P or P.get("rt"):
    C.e("s_waitcnt lgkmcnt(0)")
    if "probe" in P:
        C.e("s_sub_u32 s96, s96, s100"); C.e("s_lshl_b32 s96, s96, 2"); C.e("s_add_u32 s96, s96, 2000")
        if "pwg" in P:
            C.e(f"s_cmp_eq_u32 s2, {P['pwg']}"); C.e("s_cselect_b32 s96, s96, 0")
    else: C.e(f"s_mov_b32 s96, {P['rt']}")
    C.lab("L_rt")
    C.e("s_memrealtime s[98:99]"); C.e("s_waitcnt lgkmcnt(0)"); C.e("s_sub_u32 s98, s98, s100")
    C.e("s_cmp_lt_u32 s98, s96"); C.e("s_cbranch_scc1 L_rt")
C.dump_stamps()
C.e("s_endpgm")

nm = P["name"]
hdr = open("standalone__edm_precond__diffusion.s.ref").read().split("; Override")[0]
out = [hdr.rstrip(),
       "; generated by gen/gen.py  " + " ".join(sys.argv[1:]),
       f"; @launch grid=(256,1,1) block=(512,1,1) lds={LDS_TOTAL}",
       '.amdgcn_target "amdgcn-amd-amdhsa--gfx950"', ".text", f".globl {nm}_kernel", f".p2align {P['align']}",
       f".type {nm}_kernel,@function", f"{nm}_kernel:"]
out += h.l + L.l[:L_HEAD] + C.l + C.tail + L.l[L_HEAD:] + ["L_end:"]
out += ['.section .rodata,"a"', ".p2align 6", f".amdhsa_kernel {nm}_kernel",
        "  .amdhsa_next_free_vgpr 256", "  .amdhsa_next_free_sgpr 102", "  .amdhsa_accum_offset 256",
        "  .amdhsa_group_segment_fixed_size 0", "  .amdhsa_kernarg_size 64", "  .amdhsa_user_sgpr_count 2",
        "  .amdhsa_user_sgpr_kernarg_segment_ptr 1", "  .amdhsa_system_sgpr_workgroup_id_x 1", ".end_amdhsa_kernel"]
print("\n".join(out))
```

```python
import sys, json

P = dict(align=12, tl=8, ntx=0, outpol="sc1", D=3, rot=1, pre16=19, thr=4, b16=0, stamps=0, codepf=1, tlb=0, order=1, wo_touch=5, ldpol="nt", hpol="plain", pf=(), pfpol="nt", wb=1, prime=1,
         fl=(1, 2, 3, 12),
         chk=(12, 18, 24, 30),
         name="standalone__edm_precond__diffusion")
for a in sys.argv[1:]:
    k, v = a.split("=", 1)
    try: P[k] = json.loads(v)
    except Exception: P[k] = v

POL = {"plain": "", "sc1": " sc1", "nt": " nt", "ntsc1": " sc1 nt"}
FLAG_OFF = 0x800000
ANN_OFF = 0x808000
WS_BYTES = 0x80c000
HC0, HK0, HC1, HK1 = 0x9E3779B1, 0x7F4A7C15, 0x85EBCA77, 0xC2B2AE3D
STAMP_OFF = 0x900000
LDS_MISC = 131072
LDS_BIAS = LDS_MISC
LDS_RDY = LDS_MISC + 2048
LDS_STG = LDS_MISC + 4096
LDS_TOTAL = LDS_STG + 4 * 2 * 2560

class Prog:
    def __init__(s):
        s.l = []; s.lq = []; s.vq = []; s.smem = False; s.nst = 0; s.tail = []; s.is_c = False
    def e(s, t): s.l.append("    " + t)
    def lab(s, t): s.l.append(t + ":")
    def c(s, t): s.l.append("    ; " + t)
    def lds(s, t, tag):
        s.e(t); s.lq.append(tag)
        assert len(s.lq) <= 15, "too many LDS ops outstanding"
    def vm(s, t, tag):
        s.e(t); s.vq.append(tag); assert len(s.vq) <= 63
    def need(s, *tags):
        idx = max([i for i, t in enumerate(s.lq) if t in tags], default=-1)
        if idx < 0: return False
        n = len(s.lq) - 1 - idx
        if s.smem: n = 0; s.smem = False
        s.e(f"s_waitcnt lgkmcnt({n})"); s.lq = s.lq[len(s.lq) - n:] if n else []
        return True
    def vneed(s, *tags):
        idx = max([i for i, t in enumerate(s.vq) if t in tags], default=-1)
        if idx < 0: return False
        n = len(s.vq) - 1 - idx
        s.e(f"s_waitcnt vmcnt({n})"); s.vq = s.vq[len(s.vq) - n:] if n else []
        return True
    def stamp(s):
        if "probe" in P:
            if s.nst == P["probe"] and s.is_c:
                s.e("s_memtime s[96:97]" if P.get("pcyc") else "s_memrealtime s[96:97]"); s.smem = True
            s.nst += 1
        if P["stamps"]:
            s.e(f"s_memtime s[{64 + 2 * s.nst}:{65 + 2 * s.nst}]"); s.nst += 1; s.smem = True
            assert s.nst <= 19
    def dump_stamps(s):
        if not P["stamps"]: return
        s.e("s_waitcnt lgkmcnt(0) vmcnt(0)")
        s.e("v_mov_b32 v14, 0")
        for i in range(1, s.nst):
            s.e(f"s_sub_u32 s{64+2*i}, s{64+2*i}, s64")
            s.e(f"v_writelane_b32 v14, s{64+2*i}, {i}")
        s.e("s_lshl_b32 s3, s2, 11")
        s.e(f"s_add_u32 s3, s3, {STAMP_OFF}")
        s.e("v_lshl_add_u32 v15, v0, 2, s3")
        s.e("global_store_dword v15, v14, s[18:19]")

def q4(r): return f"v[{r}:{r+3}]"
def q2(r): return f"v[{r}:{r+1}]"
def q16(r): return f"v[{r}:{r+15}]"
def sq(d): return f"s[{d}:{d+3}]"

S_EP, S_EN = 20, 21
S_W, S_Q, S_GL, S_G, S_R, S_TILE = 22, 23, 24, 25, 26, 27
SRD_A, SRD_B, SRD_C = 28, 32, 36
S_OB = (40, 41, 42, 43)
S_T0, S_T1, S_T2, S_T3 = 44, 45, 46, 47
S_S1, S_IK, S_MSK = 48, 50, 52
S_PM = (54, 55, 56, 57)
S_CNT, S_H0, S_H1, S_XCC, S_PS, S_MODE = 58, 59, 60, 61, 62, 63
S_N, S_LB, S_XO, S_WO = 40, 41, 42, 43

h = Prog()
h.stamp()
if P.get("rt") or "probe" in P: h.e("s_memrealtime s[100:101]")
if P.get("pcyc"): h.e("s_memtime s[94:95]")
h.e("s_load_dwordx16 s[4:19], s[0:1], 0")
h.e("s_cmp_ge_u32 s2, 0x100")
h.e("s_cbranch_scc1 L_exit")
h.e("v_lshrrev_b32 v2, 6, v0")
h.e("v_and_b32 v1, 63, v0")
h.e(f"v_readfirstlane_b32 s{S_W}, v2")
h.e(f"s_lshr_b32 s{S_T0}, s2, 3")
if P["codepf"]:
    h.c("pull this kernel's code into the L2 (one 64-byte piece per wave)")
    h.e("s_getpc_b64 s[20:21]")
    h.lab("L_pc")
    h.e(f"s_lshl_b32 s{S_T1}, s{S_T0}, 3")
    h.e(f"v_add_lshl_u32 v3, v2, s{S_T1}, 6")
    h.e("v_min_u32 v3, L_end-L_pc-4, v3")
    h.e("global_load_dword v15, v3, s[20:21]")
h.e(f"s_and_b32 s{S_Q}, s{S_T0}, 3")
h.e(f"s_lshr_b32 s{S_GL}, s{S_T0}, 2")
h.e(f"s_and_b32 s{S_T1}, s2, 7")
h.e(f"s_lshl_b32 s{S_G}, s{S_GL}, 3")
h.e(f"s_add_u32 s{S_G}, s{S_G}, s{S_T1}")
h.e(f"s_lshr_b32 s{S_T0}, s{S_G}, 5")
h.e(f"s_lshl_b32 s{S_TILE}, s{S_T0}, 22")
h.e(f"s_and_b32 s{S_T1}, s{S_G}, 31")
h.e(f"s_lshl_b32 s{S_T1}, s{S_T1}, 8")
h.e(f"s_add_u32 s{S_TILE}, s{S_TILE}, s{S_T1}")
if P["rot"]:
    h.e(f"s_add_u32 s{S_R}, s{S_Q}, s{S_GL}")
    h.e(f"s_and_b32 s{S_R}, s{S_R}, 3")
else: h.e(f"s_mov_b32 s{S_R}, 0")
h.e(f"s_cmp_lt_u32 s{S_W}, 4")
h.e("s_cbranch_scc1 L_compute")

L = Prog(); L.nst = h.nst
D = P["D"]
ntx = " nt" if P["ntx"] else ""
L.c("---------------- loader waves: wave 4+i brings rows 4i..4i+3 of every 16-row step")
L.e("v_lshrrev_b32 v4, 4, v1")
L.e("v_and_b32 v6, 3, v1")
L.e("v_lshlrev_b32 v6, 4, v6")
L.e("v_bfe_u32 v5, v0, 2, 2")
L.e("v_and_b32 v2, 3, v2")
L.e("v_lshl_add_u32 v5, v2, 2, v5")
L.e("v_lshl_add_u32 v7, v4, 6, v6")
L.e("v_lshl_add_u32 v2, v5, 13, v7")
L.e(f"v_add_u32 v2, s{S_TILE}, v2")
L.e(f"s_lshl_b32 s{S_T0}, s{S_Q}, 8")
L.e(f"v_lshl_add_u32 v5, v5, 10, s{S_T0}")
L.e("v_add_u32 v3, v5, v7")
L.e(f"s_and_b32 s{S_LB}, s{S_W}, 3")
L.e(f"s_lshl_b32 s{S_LB}, s{S_LB}, 10")
L.e(f"s_mov_b32 s{S_N}, 0")
L.e(f"s_mov_b32 s{SRD_A+2}, 0x800000"); L.e(f"s_mov_b32 s{SRD_A+3}, 0x20000")
L.e(f"s_mov_b32 s{SRD_B+2}, 0x80000"); L.e(f"s_mov_b32 s{SRD_B+3}, 0x20000")
L.e("s_waitcnt lgkmcnt(0)")
L.e(f"s_mov_b64 s[{SRD_A}:{SRD_A+1}], s[4:5]")
L.e(f"s_mov_b64 s[{SRD_B}:{SRD_B+1}], s[8:9]")
L.lab("L_ld1")
L.c("chunk n = two 16-row steps; within every four chunks the order is rotated per workgroup")
L.e(f"s_add_u32 s{S_T0}, s{S_N}, s{S_R}")
L.e(f"s_and_b32 s{S_T0}, s{S_T0}, 3")
L.e(f"s_and_b32 s{S_T1}, s{S_N}, 12")
L.e(f"s_or_b32 s{S_T0}, s{S_T0}, s{S_T1}")
L.e(f"s_mov_b32 m0, s{S_LB}")
L.e(f"s_lshl_b32 s{S_XO}, s{S_T0}, 18")
L.e(f"buffer_load_dwordx4 v2, {sq(SRD_A)}, s{S_XO} offen{ntx} lds")
L.e(f"s_add_u32 m0, s{S_LB}, 0x1000")
L.e(f"s_lshl_b32 s{S_WO}, s{S_T0}, 15")
L.e(f"buffer_load_dwordx4 v3, {sq(SRD_B)}, s{S_WO} offen lds")
L.e(f"s_add_u32 m0, s{S_LB}, 0x2000")
L.e(f"s_add_u32 s{S_XO}, s{S_XO}, 0x20000")
L.e(f"buffer_load_dwordx4 v2, {sq(SRD_A)}, s{S_XO} offen{ntx} lds")
L.e(f"s_add_u32 m0, s{S_LB}, 0x3000")
L.e(f"s_add_u32 s{S_WO}, s{S_WO}, 0x4000")
L.e(f"buffer_load_dwordx4 v3, {sq(SRD_B)}, s{S_WO} offen lds")
L.e(f"s_add_u32 s{S_LB}, s{S_LB}, 0x4000")
L.e(f"s_and_b32 s{S_LB}, s{S_LB}, 0x1ffff")
L.e(f"s_add_u32 s{S_N}, s{S_N}, 1")
L.e(f"s_cmp_lt_u32 s{S_N}, {D}")
L.e("s_cbranch_scc1 L_ld1")
L.e(f"s_waitcnt vmcnt({4 * (D - 1)})")
L.e("s_barrier")
L.e(f"s_cmp_lt_u32 s{S_N}, 16")
L.e("s_cbranch_scc1 L_ld1")
L.e("s_branch L_ld2")
L_HEAD = len(L.l)
L.lab("L_ld2")
L.stamp()
L.c("w_out: positions start at this member's own rows; column blocks rotated like the x chunks")
L.e(f"v_add_u32 v4, s{S_R}, v4")
L.e("v_and_b32 v4, 3, v4")
L.e("v_lshl_add_u32 v7, v4, 6, v6")
L.e("v_add_u32 v3, v5, v7")
L.e(f"s_mov_b64 s[{SRD_B}:{SRD_B+1}], s[12:13]")
L.e(f"s_lshl_b32 s{S_WO}, s{S_Q}, 17")
L.e("v_and_b32 v8, 7, v1")
L.e("v_lshlrev_b32 v8, 2, v8")
L.e(f"v_add_u32 v8, {LDS_RDY}, v8")
L.e("v_mov_b32 v9, 0")
L.e("ds_write_b32 v8, v9")
L.vq = [("c", n) for n in range(16 - D + 1, 16) for _ in range(4)]
def ld_wo(n):
    for p in range(4):
        L.e(f"s_add_u32 m0, s{S_LB}, {hex(((n - 16) * 4 + p) * 4096)}")
        if n > 16 or p: L.e(f"s_add_u32 s{S_WO}, s{S_WO}, 0x4000")
        else: L.e("s_waitcnt lgkmcnt(0)")
        if p == 0 and n % 2 == 0 and n > 16: L.e(f"s_and_b32 s{S_WO}, s{S_WO}, 0x7ffff")
        L.vm(f"buffer_load_dwordx4 v3, {sq(SRD_B)}, s{S_WO} offen lds", ("c", n))
def throttle():
    if len(L.vq) > P["thr"]:
        L.e(f"s_waitcnt vmcnt({P['thr']})"); L.vq = L.vq[len(L.vq) - P["thr"]:]
nxt = 16
for c in range(16 - D + 1, 16):
    ld_wo(nxt); nxt += 1
    L.vneed(("c", c))
    L.e("s_barrier")
L.stamp()
while nxt <= P["pre16"]:
    throttle(); ld_wo(nxt); nxt += 1
assert 18 <= nxt <= 22
L.vneed(("c", 17))
L.stamp()
L.e("v_and_b32 v11, 3, v1")
L.e(f"s_lshl_b32 s{S_T0}, s{S_G}, 9")
L.e(f"s_add_u32 s{S_T0}, s{S_T0}, {FLAG_OFF}")
L.e(f"v_lshl_add_u32 v12, v11, 7, s{S_T0}")
L.e("s_barrier")
if P["prime"]: L.vm("global_load_dword v16, v12, s[18:19] sc1", "prime")
while nxt < 24:
    throttle(); ld_wo(nxt); nxt += 1
L.e(f"s_lshl_b32 s{S_T0}, s{S_W}, 2")
L.e(f"s_add_u32 s{S_T0}, s{S_T0}, {LDS_RDY}")
L.e(f"v_mov_b32 v8, s{S_T0}")
L.e("v_mov_b32 v9, 4")
L.e("s_waitcnt vmcnt(0)")
L.e("ds_write_b32 v8, v9")
L.stamp()
L.e(f"s_cmp_lg_u32 s{S_W}, 4")
L.e("s_cbranch_scc1 L_fin")
L.c("wave 4: relay the members' progress words into LDS")
L.e("v_lshlrev_b32 v8, 2, v11")
L.e(f"v_add_u32 v8, {LDS_RDY}, v8")
L.e(f"v_mov_b32 v13, {LDS_RDY + 16}")
L.e(f"s_mov_b32 s{S_CNT}, 0")
L.lab("L_poll")
L.e("global_load_dwordx4 v[16:19], v12, s[18:19] sc1")
L.e(f"s_add_u32 s{S_CNT}, s{S_CNT}, 1")
L.e("ds_read_b128 v[20:23], v13")
L.e("s_waitcnt vmcnt(0) lgkmcnt(0)")
L.e("v_min3_u32 v16, v16, v17, v18")
L.e("v_min3_u32 v21, v21, v22, v23")
L.e("v_min3_u32 v16, v16, v19, v21")
L.e("ds_write_b32 v8, v16")
L.e("v_cmp_gt_u32 vcc, 4, v16")
L.e(f"s_cmp_ge_u32 s{S_CNT}, 0x100000")
L.e("s_cbranch_scc1 L_fin")
L.e("s_cmp_lg_u64 vcc, 0")
L.e("s_cbranch_scc1 L_poll")
if P["wb"]:
    L.c("one wave per XCD starts writing the hand-off lines back now, so that the launch does not end on them")
    L.e("s_cmp_ge_u32 s2, 8")
    L.e("s_cbranch_scc1 L_fin")
    if P["wb"] > 1: L.e(f"s_sleep {P['wb']}")
    L.e("buffer_wbl2 sc1")
    L.e("s_waitcnt vmcnt(0)")
L.lab("L_fin")
L.stamp()
L.dump_stamps()
L.lab("L_exit")
L.e("s_endpgm")

C = Prog(); C.nst = h.nst; C.is_c = True
if P["codepf"]: C.vq.append("code")
aW0, aW1, aX0, aX1, VO0, VO1, VFL, VFV, VSW, VSR, VOUT, VRDY, VT0, VT1 = 2, 3, 4, 5, 6, 7, 8, 9, 10, 11, 12, 13, 14, 15
RA, RB, RF, RX, RS, RH = 16, 80, 144, 184, 216, 224
SRD_WS, SRD_OUT, SRD_WO = SRD_A, SRD_B, SRD_C
C.lab("L_compute")
C.c("---------------- compute waves")
T = RH
vH, vC, vEMBA, vSIGA, vCLRA, vANNA, vSIG, vEMB, vZ, vEP, vANN, vJ, vL4, vTCH, vBW, vBR, vZZ, vSH = \
    T, T+1, T+2, T+3, T+4, T+5, T+6, T+7, T+8, T+9, T+10, T+12, T+13, T+14, T+15, T+16, T+17, T+18
vCHK, vCHA, vPF = T + 26, T + 28, T + 29
C.e(f"v_lshrrev_b32 v{vH}, 5, v1")
C.e(f"v_bfe_u32 v{vC}, v1, 2, 2")
C.e(f"v_lshlrev_b32 v{vC}, 6, v{vC}")
C.e(f"v_lshl_add_u32 v{aW0}, v{vH}, 10, v{vC}")
C.e(f"v_bfe_u32 v{vC}, v1, 4, 1")
C.e(f"v_lshl_add_u32 v{aW0}, v{vC}, 5, v{aW0}")
C.e(f"v_and_b32 v{vC}, 3, v1")
C.e(f"v_lshl_add_u32 v{aW0}, v{vC}, 3, v{aW0}")
C.e(f"s_lshl_b32 s{S_T0}, s{S_W}, 8")
C.e(f"v_add_u32 v{aX0}, s{S_T0}, v{aW0}")
C.e(f"s_lshl_b32 s{S_T0}, s{S_Q}, 8")
C.e(f"v_lshl_add_u32 v{vEMBA}, v1, 2, s{S_T0}")
C.e(f"s_lshr_b32 s{S_T0}, s{S_TILE}, 21")
C.e(f"v_mov_b32 v{vSIGA}, s{S_T0}")
C.c("wave 0 resets this workgroup's four progress words (lanes 0-3), then announces that under this launch's tag")
C.e(f"s_lshl_b32 s{S_T2}, s{S_G}, 9")
C.e(f"s_add_u32 s{S_T2}, s{S_T2}, {FLAG_OFF}")
C.e(f"s_lshl_b32 s{S_T3}, s{S_Q}, 2")
C.e(f"s_add_u32 s{S_T2}, s{S_T2}, s{S_T3}")
C.e(f"v_lshrrev_b32 v{vL4}, 2, v0")
C.e(f"v_lshl_add_u32 v{vCLRA}, v{vC}, 7, s{S_T2}")
C.e(f"v_lshl_add_u32 v{vCLRA}, v{vL4}, 24, v{vCLRA}")
C.e(f"v_mov_b32 v{vZ}, 0")
C.e(f"s_lshl_b32 s{S_EP}, s{S_G}, 8")
C.e(f"s_add_u32 s{S_EP}, s{S_EP}, {ANN_OFF}")
C.e(f"s_mov_b32 s{SRD_WS+2}, {hex(WS_BYTES)}"); C.e(f"s_mov_b32 s{SRD_WS+3}, 0x20000")
C.e(f"s_lshl_b32 s{S_T1}, s{S_G}, 4")
C.e(f"s_add_u32 s{S_T1}, s{S_T1}, s{S_W}")
C.e(f"s_lshl2_add_u32 s{S_T0}, s{S_Q}, s{S_T1}")
C.e(f"s_lshl_b32 s{S_PS}, s{S_T0}, 13")
C.e(f"v_lshlrev_b32 v{vPF}, {7 if len(P['pf']) <= 1 else 6 if len(P['pf']) == 2 else 5}, v1")
C.e(f"s_getreg_b32 s{S_XCC}, hwreg(HW_REG_XCC_ID, 0, 4)")
C.e("s_waitcnt lgkmcnt(0)")
C.e(f"s_mov_b64 s[{SRD_WS}:{SRD_WS+1}], s[18:19]")
C.vm(f"buffer_store_dword v{vZ}, v{vCLRA}, {sq(SRD_WS)}, 0 offen sc1", "clr")
C.vm(f"buffer_load_dword v{vEP}, v{vZ}, {sq(SRD_WS)}, s{S_EP} offen sc1", "ep")
C.vm(f"global_load_ushort v{vSIG}, v{vSIGA}, s[6:7]", "sig")
C.vm(f"global_load_dword v{vEMB}, v{vEMBA}, s[10:11]", "emb")
if P["tlb"] == 2:
    import math
    lg = int(math.log2(P["tl"]))
    C.c("first touch of the pages used later (address translation only; the values are not used)")
    C.e(f"s_lshl_b32 s{S_T0}, s{S_Q}, 20")
    C.e(f"s_add_u32 s{S_T0}, s{S_T0}, s{S_TILE}")
    C.e(f"s_lshl_b32 s{S_T1}, s{S_G}, 17")
    C.e(f"s_cmp_eq_u32 s{S_W}, 1")
    C.e(f"s_cselect_b64 s[{S_MSK}:{S_MSK+1}], s[14:15], s[4:5]")
    C.e(f"s_cselect_b32 s{S_T0}, s{S_T0}, s{S_TILE}")
    C.e(f"s_cselect_b32 s{S_CNT}, {20 - lg}, {22 - lg}")
    C.e(f"s_cmp_eq_u32 s{S_W}, 2")
    C.e(f"s_cselect_b64 s[{S_MSK}:{S_MSK+1}], s[12:13], s[{S_MSK}:{S_MSK+1}]")
    C.e(f"s_cselect_b32 s{S_T0}, 0, s{S_T0}")
    C.e(f"s_cselect_b32 s{S_CNT}, {19 - lg}, s{S_CNT}")
    C.e(f"s_cmp_eq_u32 s{S_W}, 3")
    C.e(f"s_cselect_b64 s[{S_MSK}:{S_MSK+1}], s[18:19], s[{S_MSK}:{S_MSK+1}]")
    C.e(f"s_cselect_b32 s{S_T0}, s{S_T1}, s{S_T0}")
    C.e(f"s_cselect_b32 s{S_CNT}, {17 - lg}, s{S_CNT}")
    C.e(f"v_and_b32 v{VT0}, {P['tl'] - 1}, v1")
    C.e(f"v_lshlrev_b32 v{VT0}, s{S_CNT}, v{VT0}")
    C.e(f"v_add_u32 v{VT0}, s{S_T0}, v{VT0}")
    C.vm(f"global_load_dword v{VT0}, v{VT0}, s[{S_MSK}:{S_MSK+1}] sc1", "tlb")

F = []
def f2(*x): F.append("\n    ".join(x))
f2(f"v_add_u32 v{aW1}, 0x10000, v{aW0}", f"v_add_u32 v{aX1}, 0x10000, v{aX0}")
f2(f"s_mov_b64 s[{SRD_WO}:{SRD_WO+1}], s[12:13]", f"s_mov_b32 s{SRD_WO+2}, 0x80000")
f2(f"s_mov_b32 s{SRD_WO+3}, 0x20000", f"v_bfe_u32 v{vL4}, v1, 2, 4")
f2(f"s_lshl_b32 s{S_T0}, s{S_GL}, 16", f"s_lshl_b32 s{S_T1}, s{S_W}, 14")
f2(f"s_add_u32 s{S_T0}, s{S_T0}, s{S_T1}", f"s_lshl_b32 s{S_T1}, s{S_Q}, 8")
f2(f"s_add_u32 s{S_T0}, s{S_T0}, s{S_T1}", f"v_lshl_add_u32 v{vTCH}, v{vL4}, 10, s{S_T0}")
f2(f"v_lshl_add_u32 v{vTCH}, v{vC}, 6, v{vTCH}", f"v_lshlrev_b32 v{vANNA}, 24, v0")
N_EARLY = len(F)
F.append(lambda: C.vneed("clr", "ep", "sig", "emb"))
f2(f"v_readfirstlane_b32 s{S_T3}, v{vEP}")
f2(f"s_mul_i32 s{S_H0}, s{S_T3}, {hex(HC0)}", f"s_add_u32 s{S_H0}, s{S_H0}, {hex(HK0)}")
f2(f"s_mul_i32 s{S_H1}, s{S_T3}, {hex(HC1)}", f"s_add_u32 s{S_H1}, s{S_H1}, {hex(HK1)}")
f2(f"s_add_u32 s{S_H0}, s{S_H0}, s{S_XCC}", f"s_add_u32 s{S_H1}, s{S_H1}, s{S_XCC}")
f2(f"v_mov_b32 v{vANN}, s{S_H0}", f"v_mov_b32 v{vANN+1}, s{S_H1}")
f2(f"s_lshl_b32 s{S_T0}, s{S_Q}, 3", f"s_add_u32 s{S_T0}, s{S_T0}, s{S_EP}")
F.append(lambda: C.vm(f"buffer_store_dwordx2 {q2(vANN)}, v{vANNA}, {sq(SRD_WS)}, s{S_T0} offen offset:128 sc1", "ann"))
f2(f"s_mov_b32 s{S_MODE}, 0")
f2(f"s_add_u32 s{S_EN}, s{S_T3}, 1", f"v_lshlrev_b32 v{vCHA}, 3, v{vC}")
sg, a, b2, cs, cn = vSIG, T + 20, T + 21, T + 22, T + 23
def rnd(r): return [f"v_cvt_pk_bf16_f32 v{r}, v{r}, v{r}\n    v_lshlrev_b32 v{r}, 16, v{r}"]
F += [f"v_lshlrev_b32 v{sg}, 16, v{sg}\n    v_mul_f32 v{a}, v{sg}, v{sg}"] + rnd(a)
F += [f"v_add_f32 v{a}, 0x3e800000, v{a}"] + rnd(a)
F += [f"v_rcp_f32 v{cs}, v{a}", f"v_sqrt_f32 v{a}, v{a}"] + rnd(cs) + rnd(a)
F += [f"v_mul_f32 v{cs}, 0x3e800000, v{cs}", f"v_rcp_f32 v{a}, v{a}", f"v_lshrrev_b32 v{cs}, 16, v{cs}\n    v_mul_f32 v{b2}, 0.5, v{sg}"]
F += [f"v_mul_f32 v{b2}, v{b2}, v{a}"] + rnd(b2) + rnd(a)
F += [f"v_log_f32 v{cn}, v{sg}", f"v_mul_f32 v{a}, 0xbfb8aa3b, v{a}", f"v_mul_f32 v{cn}, 0x3f317218, v{cn}"] + rnd(cn)
F += [f"v_max_f32 v{b2}, 0x03800000, v{b2}", f"v_mul_f32 v{b2}, 0xbf317218, v{b2}", f"v_rcp_f32 v{b2}, v{b2}"]
F += [f"v_mul_f32 v{cn}, 0x3e800000, v{cn}"]
f2(f"v_readfirstlane_b32 s{S_S1}, v{a}", f"v_readfirstlane_b32 s{S_S1+1}, v{a}")
f2(f"v_readfirstlane_b32 s{S_IK}, v{b2}", f"v_readfirstlane_b32 s{S_IK+1}, v{b2}")
e0, e1 = T + 24, T + 25
f2(f"v_lshlrev_b32 v{e0}, 16, v{vEMB}", f"v_and_b32 v{e1}, 0xffff0000, v{vEMB}")
f2(f"v_mul_f32 v{e0}, v{cn}, v{e0}", f"v_mul_f32 v{e1}, v{cn}, v{e1}")
f2(f"v_cvt_pk_bf16_f32 v{e1}, v{e0}, v{e1}", f"v_lshlrev_b32 v{e0}, 16, v{e1}")
f2(f"v_and_b32 v{e1}, 0xffff0000, v{e1}", f"v_mul_f32 v{e0}, 0xbfb8aa3b, v{e0}")
f2(f"s_lshl_b32 s{S_T0}, s{S_W}, 9", f"v_mul_f32 v{e1}, 0xbfb8aa3b, v{e1}")
f2(f"s_add_u32 s{S_T0}, s{S_T0}, {LDS_BIAS}", f"v_lshl_add_u32 v{vBW}, v1, 3, s{S_T0}")
f2(f"v_lshl_add_u32 v{vBR}, v{vH}, 4, s{S_T0}", f"v_and_b32 v{vJ}, 31, v1")
F.append(("lds", f"ds_write_b64 v{vBW}, {q2(e0)}", "biasw"))
for i in range(16):
    F.append(("lds", f"ds_read_b128 {q4(RB + 4 * i)}, v{vBR} offset:{i * 32}", "bias"))
f2(f"v_lshrrev_b32 v{vZZ}, 1, v{vJ}", f"v_lshlrev_b32 v{vSH}, 1, v{vH}")
f2(f"v_sub_u32 v{vZZ}, v{vZZ}, v{vSH}", f"v_and_b32 v{vSH}, 1, v1")
f2(f"v_lshlrev_b32 v{vSH}, 4, v{vSH}", f"v_lshlrev_b32 v{cs}, v{vSH}, v{cs}")
sel = [(t, d) for t in range(2) for d in range(4)]
f2(f"v_cmp_eq_u32 vcc, 0, v{vZZ}")
for n, (t, d) in enumerate(sel):
    x = [f"v_cndmask_b32 v{RS + 4 * t + d}, 0, v{cs}, vcc"]
    if n < 7: x.append(f"v_cmp_eq_u32 vcc, {8 * sel[n+1][0] + (0, 1, 4, 5)[sel[n+1][1]]}, v{vZZ}")
    f2(*x)
F.append(lambda: C.vm(f"buffer_load_dwordx2 {q2(vCHK)}, v{vCHA}, {sq(SRD_WS)}, s{S_EP} offen offset:128 sc1", "chk"))
f2(f"v_lshlrev_b32 v{VO0}, 4, v1", f"v_add_u32 v{VO1}, 0x1000, v{VO0}")
f2(f"s_lshl_b32 s{S_T0}, s{S_W}, 7", f"s_add_u32 s{S_T2}, s{S_T2}, s{S_T0}")
f2(f"v_lshl_add_u32 v{VFL}, v1, 24, s{S_T2}")
f2(f"s_lshl_b32 s{S_T1}, s{S_G}, 4", f"s_add_u32 s{S_T1}, s{S_T1}, s{S_W}")
for m in range(4):
    f2(f"s_add_u32 s{S_T0}, s{S_Q}, {m}", f"s_and_b32 s{S_T0}, s{S_T0}, 3")
    f2(f"s_lshl2_add_u32 s{S_T0}, s{S_T0}, s{S_T1}", f"s_lshl_b32 s{S_PM[m]}, s{S_T0}, 13")
f2(f"s_mul_i32 s{S_T0}, s{S_W}, 5120", f"s_add_u32 s{S_T0}, s{S_T0}, {LDS_STG}")
f2(f"v_mul_u32_u24 v{VSW}, 80, v{vJ}", f"v_lshl_add_u32 v{VSW}, v{vH}, 3, v{VSW}")
f2(f"v_add_u32 v{VSW}, s{S_T0}, v{VSW}", f"v_mul_u32_u24 v{VSR}, 80, v{vL4}")
f2(f"v_lshl_add_u32 v{VSR}, v{vC}, 4, v{VSR}", f"v_add_u32 v{VSR}, s{S_T0}, v{VSR}")
f2(f"s_lshl_b32 s{S_T0}, s{S_Q}, 20", f"s_add_u32 s{S_T0}, s{S_T0}, s{S_TILE}")
f2(f"s_lshl_b32 s{S_T1}, s{S_W}, 6", f"s_add_u32 s{S_T0}, s{S_T0}, s{S_T1}")
f2(f"v_lshl_add_u32 v{VOUT}, v{vL4}, 13, s{S_T0}", f"v_lshl_add_u32 v{VOUT}, v{vC}, 4, v{VOUT}")
for j in range(4):
    f2(f"s_add_u32 s{S_T0}, s{S_R}, {j}", f"s_and_b32 s{S_T0}, s{S_T0}, 3", f"s_lshl_b32 s{S_OB[j]}, s{S_T0}, 18")
f2(f"s_mov_b64 s[{SRD_OUT}:{SRD_OUT+1}], s[14:15]", f"s_mov_b32 s{SRD_OUT+2}, 0x800000")
f2(f"s_mov_b32 s{SRD_OUT+3}, 0x20000", f"s_lshl_b32 s{S_T0}, s{S_W}, 2")
f2(f"s_add_u32 s{S_T0}, s{S_T0}, {LDS_RDY}", f"v_mov_b32 v{VRDY}, s{S_T0}")
if P["tlb"] == 1:
    F.append(lambda: C.vm(f"buffer_load_dword v{VT0}, v{vZ}, {sq(SRD_WS)}, s{S_PM[0]} offen", "tlb"))
    F.append(lambda: C.vm(f"buffer_load_dword v{VT0}, v{vZ}, {sq(SRD_OUT)}, s{S_TILE} offen", "tlb"))
F_WAIT = 10
assert len(F) + F_WAIT - N_EARLY <= 124, len(F)

def rd_x(s, i):
    base = (s % 16) * 8192; a_ = aX0 if base < 65536 else aX1
    r = RF + 20 * (s & 1) + 2 * i
    C.lds(f"ds_read_b64_tr_b16 {q2(r)}, v{a_} offset:{base % 65536 + 2048 * i}", ("x", s))
def rd_w(s, j, i):
    base = (s % 16) * 8192; a_ = aW0 if base < 65536 else aW1
    r = RF + 20 * (s & 1) + 4 + 4 * j + 2 * i
    C.lds(f"ds_read_b64_tr_b16 {q2(r)}, v{a_} offset:{base % 65536 + 4096 + 256 * j + 2048 * i}", ("w", s, j))
def reads(s): return [lambda i=i: rd_x(s, i) for i in range(2)] + [lambda j=j, i=i: rd_w(s, j, i) for j in range(4) for i in range(2)]

C.stamp()
def prefill(c):
    if c in P["pf"]:
        n = list(P["pf"]).index(c); step = 8192 // len(P["pf"])
        C.c("make this wave's hand-off lines valid in the L2 (the values are not used)")
        if n * step >= 4096 and (n - 1) * step < 4096: C.e(f"v_add_u32 v{vPF}, 0x1000, v{vPF}")
        C.vm(f"buffer_load_dword v{VT1}, v{vPF}, {sq(SRD_WS)}, s{S_PS} offen offset:{n * step % 4096}{POL[P['pfpol']]}", "touch")
prefill(-1)
C.e("s_barrier")
prefill(0)
C.stamp()
for r in reads(0): r()
gap = 0; nf = 0
for s in range(32):
    if s % 2 == 1 and s < 31:
        C.e("s_barrier")
        prefill((s + 1) // 2)
        if (s + 1) // 2 == P["wo_touch"]:
            C.vm(f"buffer_load_dword v{VT1}, v{vTCH}, {sq(SRD_WO)}, 0 offen", "touch")
    if s % 8 == 0:
        C.e(f"s_cmp_eq_u32 s{S_Q}, {s // 8}")
        C.e(f"s_cselect_b64 s[{S_MSK}:{S_MSK+1}], -1, 0")
        if s: C.stamp()
    rl = reads(s + 1) if s < 31 else []
    split = (3, 3, 2, 2)
    for j in range(4):
        C.need(("x", s), ("w", s, j))
        fb = RF + 20 * (s & 1)
        cin = "0" if s == 0 else q16(RA + 16 * j)
        C.e(f"v_mfma_f32_32x32x16_bf16 {q16(RA + 16 * j)}, {q4(fb + 4 + 4 * j)}, {q4(fb)}, {cin}")
        for _ in range(split[j]):
            if rl: rl.pop(0)()
        f = None
        if F and (nf < N_EARLY or gap >= F_WAIT): f = F.pop(0); nf += 1
        if f is not None and not isinstance(f, str):
            if isinstance(f, tuple): C.lds(f[1], f[2])
            else: f()
            f = None
        if j < 3: C.need(("x", s), ("w", s, j + 1))
        elif s < 31 and not (s % 2 == 0): C.need(("x", s + 1), ("w", s + 1, 0))
        if f: C.e(f)
        xr = RX + 4 * (s % 8) + j
        C.e(f"v_cndmask_b32 v{xr}, v{xr}, v{fb + j}, s[{S_MSK}:{S_MSK+1}]")
        gap += 1
assert not F
C.need("bias")
assert not C.lq
C.stamp()
C.c("all four members have reset their progress words in this launch, and one L2 serves all of them")
C.vneed("chk", "tlb", "touch")
C.e(f"v_cmp_ne_u32 vcc, s{S_H0}, v{vCHK}")
C.e(f"v_cmp_ne_u32 s[{S_MSK}:{S_MSK+1}], s{S_H1}, v{vCHK+1}")
C.e(f"v_mov_b32 v{VT1}, v{VFL}")
C.e("s_nop 0")
C.e(f"s_or_b64 vcc, vcc, s[{S_MSK}:{S_MSK+1}]")
if P.get("forceslow"): C.e("s_cmp_eq_u32 0, 0")
C.e("s_cbranch_scc1 L_ann_wait")
C.lab("L_ann_ok")
C.tail += ["L_ann_wait:", f"    s_mov_b32 s{S_CNT}, 0",
           f"    s_sub_u32 s{S_H0}, s{S_H0}, s{S_XCC}", f"    s_sub_u32 s{S_H1}, s{S_H1}, s{S_XCC}", "L_ann_l:",
           f"    buffer_load_dwordx2 {q2(vCHK)}, v{vCHA}, {sq(SRD_WS)}, s{S_EP} offen offset:128 sc1",
           f"    s_add_u32 s{S_CNT}, s{S_CNT}, 1", "    s_waitcnt vmcnt(0)",
           f"    v_subrev_u32 v{vCHK}, s{S_H0}, v{vCHK}", f"    v_subrev_u32 v{vCHK+1}, s{S_H1}, v{vCHK+1}",
           f"    v_cmp_ne_u32 vcc, v{vCHK}, v{vCHK+1}", f"    v_cmp_le_u32 s[{S_MSK}:{S_MSK+1}], 16, v{vCHK}",
           f"    s_cmp_ge_u32 s{S_CNT}, 0x100000", "    s_cbranch_scc1 L_ann_ok",
           f"    s_or_b64 vcc, vcc, s[{S_MSK}:{S_MSK+1}]", "    s_cbranch_scc1 L_ann_l",
           f"    v_cmp_ne_u32 vcc, s{S_XCC}, v{vCHK}", "    s_nop 1", "    s_cmp_lg_u64 vcc, 0"]
if not P.get("forceslow"): C.tail += ["    s_cbranch_scc0 L_ann_ok"]
C.tail += ["    ; members on several XCDs: the L2-local stores fall out of range, L_slowpub publishes through memory instead",
           f"    s_mov_b32 s{S_MODE}, 1", f"    v_or_b32 v{VO0}, 2.0, v{VO0}", f"    v_or_b32 v{VO1}, 2.0, v{VO1}", f"    v_mov_b32 v{VT1}, 2.0", "    s_branch L_ann_ok"]
hpol = POL[P["hpol"]]
def flag(j):
    C.vneed(("st", j))
    C.e(f"v_mov_b32 v{VFV}, {j + 1}")
    C.vm(f"buffer_store_dword v{VFV}, v{VT1}, {sq(SRD_WS)}, 0 offen", ("fl", j))
def hst(fr, base, pol): return f"buffer_store_dwordx4 {q4(RH + 4*fr)}, v{VO0 if fr < 4 else VO1}, {sq(SRD_WS)}, s{base} offen offset:{(fr % 4) * 1024}{pol}"
def hstore(fr, tag): C.vm(hst(fr, S_PS, hpol), tag)
if P["b16"] < 0: C.e("s_barrier")
C.c("---- h = c_out * silu(c_in * acc + bias), two elements per packed op")
for blk in range(4):
    A_, B_ = RA + 16 * blk, RB + 16 * blk
    for g in range(0, 16, 4):
        for o in (0, 2): C.e(f"v_pk_fma_f32 {q2(B_+g+o)}, {q2(A_+g+o)}, s[{S_S1}:{S_S1+1}], {q2(B_+g+o)}")
        for o in range(4): C.e(f"v_exp_f32 v{A_+g+o}, v{B_+g+o}")
        if g:
            for o in (0, 2): C.e(f"v_cvt_pk_bf16_f32 v{RH + 8*blk + (g-4+o)//2}, v{A_+g-4+o}, v{A_+g-4+o+1}")
        for o in (0, 2): C.e(f"v_pk_fma_f32 {q2(A_+g+o)}, {q2(A_+g+o)}, s[{S_IK}:{S_IK+1}], s[{S_IK}:{S_IK+1}]")
        for o in range(4): C.e(f"v_rcp_f32 v{A_+g+o}, v{A_+g+o}")
        if g == 8: hstore(2 * blk, ("st", blk))
        for o in (0, 2): C.e(f"v_pk_mul_f32 {q2(A_+g+o)}, {q2(A_+g+o)}, {q2(B_+g+o)}")
    for o in (0, 2): C.e(f"v_cvt_pk_bf16_f32 v{RH + 8*blk + (12+o)//2}, v{A_+12+o}, v{A_+12+o+1}")
    hstore(2 * blk + 1, ("st", blk))
    if blk == P["b16"]: C.e("s_barrier")
    for j in range(4):
        if P["fl"][j] == blk: flag(j)
    if blk in (1, 3): C.stamp()

C.e(f"s_cmp_lg_u32 s{S_MODE}, 0")
C.e("s_cbranch_scc1 L_slowpub")
C.lab("L_pub_done")
C.tail += ["L_slowpub:", f"    v_xor_b32 v{VO0}, 2.0, v{VO0}", f"    v_xor_b32 v{VO1}, 2.0, v{VO1}"] + ["    " + hst(fr, S_PM[0], " sc1") for fr in range(8)]
C.tail += [f"    v_mov_b32 v{VT0}, 4", "    s_waitcnt vmcnt(0)",
           f"    buffer_store_dword v{VT0}, v{VFL}, {sq(SRD_WS)}, 0 offen sc1", "    s_waitcnt vmcnt(0)", "    s_branch L_pub_done"]

quads = [RB + 4 * i for i in range(16)] + [RX + 4 * i for i in range(8)]
def hq(j, m, t): return quads[6 * j + 2 * (m - 1) + t]
units = []
for t in range(2):
    for blk in range(4): units.append((blk, RX + 4 * (2 * blk + t), ("sel", t), t == 0, None))
for ks in range(8):
    for blk in range(4): units.append((blk, RH + 4 * ks, (ks, blk), False, None))
def ru(blk, j, m, t): units.append((blk, hq(j, m, t), (8 * m + 2 * j + t, blk), False, (j, m, t)))
MT = [(m, t) for m in (1, 2, 3) for t in range(2)]
if P["order"] == 0:
    for j in range(3):
        for m, t in MT:
            for blk in range(4): ru(blk, j, m, t)
    for blk in range(4):
        for m, t in MT: ru(blk, 3, m, t)
elif P["order"] == 1:
    for j in range(3):
        for m, t in MT:
            for blk in (0, 1): ru(blk, j, m, t)
    for blk in (0, 1):
        for m, t in MT: ru(blk, 3, m, t)
    for blk in (2, 3):
        for j in range(4):
            for m, t in MT: ru(blk, j, m, t)
elif P["order"] == 2:
    for j in range(2):
        for m, t in MT:
            for blk in range(4): ru(blk, j, m, t)
    for blk in range(4):
        for j in (2, 3):
            for m, t in MT: ru(blk, j, m, t)
elif P["order"] == 3:
    for m, t in MT:
        for blk in range(4): ru(blk, 0, m, t)
    for blk in range(4):
        for j in (1, 2, 3):
            for m, t in MT: ru(blk, j, m, t)
wl = [i for i, u in enumerate(units) if u[2][0] != "sel"]
slot = {i: RF + 4 * (n % 10) for n, i in enumerate(wl)}
def rd_o(i):
    p, blk = units[i][2]; base = p * 4096; a_ = aW0 if base < 65536 else aW1
    for k in range(2):
        C.lds(f"ds_read_b64_tr_b16 {q2(slot[i] + 2 * k)}, v{a_} offset:{base % 65536 + 256 * blk + 2048 * k}", ("o", i))
PF = 4
first_remote = min(i for i, u in enumerate(units) if u[4] is not None)
assert P["chk"][0] < first_remote - PF
for j in range(4):
    assert P["chk"][j] < min(i for i, u in enumerate(units) if u[4] is not None and u[4][0] == j)
    assert P["fl"][j] - 4 <= P["chk"][j]
last = {blk: max(i for i, u in enumerate(units) if u[0] == blk) for blk in range(4)}
opol = POL[P["outpol"]]; ldpol = POL[P["ldpol"]]
def epi(blk):
    tmp = RS; dat = RA + 16 * blk; so = (blk & 1) * 2560
    def cvt(g): return [("v", f"v_cvt_pk_bf16_f32 v{tmp + 2*g + o//2}, v{RA + 16*blk + 4*g + o}, v{RA + 16*blk + 4*g + o + 1}") for o in (0, 2)]
    def wr(g): return ("m", lambda: C.lds(f"ds_write_b64 v{VSW}, {q2(tmp + 2*g)} offset:{so + 16*g}", ("sw", blk)))
    def rd(k): return ("m", lambda: C.lds(f"ds_read_b128 {q4(dat + 4*k)}, v{VSR} offset:{so + 1280*k}", ("sr", blk, k)))
    def st(k):
        def f():
            if k: C.e(f"s_add_u32 s{S_OB[blk]}, s{S_OB[blk]}, 0x20000")
            C.need(("sr", blk, k))
            C.vm(f"buffer_store_dwordx4 {q4(dat + 4*k)}, v{VOUT}, {sq(SRD_OUT)}, s{S_OB[blk]} offen{opol}", ("out", blk))
        return ("m", f)
    return [cvt(0) + cvt(1)[:1], [wr(0)] + cvt(1)[1:] + cvt(2)[:1], [wr(1)] + cvt(2)[1:] + cvt(3)[:1], [wr(2)] + cvt(3)[1:], [wr(3), rd(0)], [rd(1)],
            [], [], [], [st(0)], [st(1)]]
sched = {}
def put(i, b):
    sched.setdefault(i, []).append(b)
busy_until = 0
for blk in sorted(range(4), key=lambda b: last[b]):
    t0 = max(last[blk] + 3, busy_until)
    for n, b in enumerate(epi(blk)): put(t0 + n, b)
    busy_until = t0 + 6
nrd = 0
NU = len(units)
def pre_wait(i):
    if i >= NU: return
    if units[i][4] is not None: C.vneed(("pl",) + units[i][4])
    if units[i][2][0] != "sel": C.need(("o", i))
for i, u in enumerate(units):
    blk, ar, wf, first, stg = u
    pre_wait(i)
    br = RS + 4 * wf[1] if wf[0] == "sel" else slot[i]
    C.e(f"v_mfma_f32_32x32x16_bf16 {q16(RA + 16*blk)}, {q4(ar)}, {q4(br)}, {'0' if first else q16(RA + 16*blk)}")
    if nrd < len(wl) and wl[nrd] <= i + PF:
        rd_o(wl[nrd]); nrd += 1
    items = [x for b in sched.pop(i, []) for x in b]
    for k, x in items:
        if k == "m": x()
    for j in range(4):
        if P["fl"][j] - 4 == i: flag(j)
        if P["chk"][j] - 3 == i: C.lds(f"ds_read_b32 v{VT0}, v{VRDY}", ("rdy", j))
        if P["chk"][j] - 1 == i:
            C.need(("rdy", j))
            items.append(("v", f"v_readfirstlane_b32 s{S_T1}, v{VT0}"))
        if P["chk"][j] == i:
            C.e(f"s_cmp_gt_u32 s{S_T1}, {j}")
            C.e(f"s_cbranch_scc0 L_spin{j}")
            C.lab(f"L_back{j}")
            C.stamp()
            C.tail += [f"L_spin{j}:", f"    s_mov_b32 s{S_CNT}, 0", f"L_spin{j}_l:",
                       f"    ds_read_b32 v{VT0}, v{VRDY}", f"    s_add_u32 s{S_CNT}, s{S_CNT}, 1", "    s_waitcnt lgkmcnt(0)",
                       f"    v_readfirstlane_b32 s{S_T1}, v{VT0}", f"    s_cmp_ge_u32 s{S_CNT}, 0x800000", f"    s_cbranch_scc1 L_back{j}",
                       f"    s_cmp_gt_u32 s{S_T1}, {j}", f"    s_cbranch_scc0 L_spin{j}_l", f"    s_branch L_back{j}"]
        if 0 <= i - P["chk"][j] < 3:
            m = i - P["chk"][j] + 1
            for t in range(2):
                fr = 2 * j + t
                C.vm(f"buffer_load_dwordx4 {q4(hq(j, m, t))}, v{VO0 if fr < 4 else VO1}, {sq(SRD_WS)}, s{S_PM[m]} offen offset:{(fr % 4) * 1024}{ldpol}", ("pl", j, m, t))
    if i == P["chk"][3] + 4:
        C.c("member 0 moves the group's epoch on (every member read it long ago: their progress words came after it)")
        C.e(f"s_lshl_b32 s{S_T1}, s{S_Q}, 28")
        items += [("v", f"v_lshl_or_b32 v{VT1}, v0, 24, s{S_T1}"), ("v", f"v_mov_b32 v{VT0}, s{S_EN}")]
    if i == P["chk"][3] + 5:
        C.vm(f"buffer_store_dword v{VT0}, v{VT1}, {sq(SRD_WS)}, s{S_EP} offen sc1", "epst")
    pre_wait(i + 1)
    for k, x in items:
        if k == "v": C.e(x)
C.stamp()
C.e("s_nop 11")
for i in sorted(sched):
    for b in sched[i]:
        for k, x in sorted(b, key=lambda y: y[0]):
            if k == "v": C.e(x)
            else: x()
C.stamp()
if P["stamps"] or "probe" in P:
    C.e("s_waitcnt vmcnt(0)"); C.stamp()
if "probe" in P or P.get("rt"):
    C.e("s_waitcnt lgkmcnt(0)")
    if "probe" in P:
        if P.get("pcyc"): C.e("s_sub_u32 s96, s96, s94"); C.e("s_lshr_b32 s96, s96, 2")
        else: C.e("s_sub_u32 s96, s96, s100"); C.e("s_lshl_b32 s96, s96, 2")
        C.e("s_add_u32 s96, s96, 2000")
        if "pwg" in P:
            C.e(f"s_cmp_eq_u32 s2, {P['pwg']}"); C.e("s_cselect_b32 s96, s96, 0")
    else: C.e(f"s_mov_b32 s96, {P['rt']}")
    C.lab("L_rt")
    C.e("s_memrealtime s[98:99]"); C.e("s_waitcnt lgkmcnt(0)"); C.e("s_sub_u32 s98, s98, s100")
    C.e("s_cmp_lt_u32 s98, s96"); C.e("s_cbranch_scc1 L_rt")
C.dump_stamps()
C.e("s_endpgm")

nm = P["name"]
hdr = open("standalone__edm_precond__diffusion.s.ref").read().split("; Override")[0]
out = [hdr.rstrip(),
       "; generated by gen/gen.py  " + " ".join(sys.argv[1:]),
       f"; @launch grid=(256,1,1) block=(512,1,1) lds={LDS_TOTAL}",
       '.amdgcn_target "amdgcn-amd-amdhsa--gfx950"', ".text", f".globl {nm}_kernel", f".p2align {P['align']}",
       f".type {nm}_kernel,@function", f"{nm}_kernel:"]
out += h.l + L.l[:L_HEAD] + C.l + C.tail + L.l[L_HEAD:] + ["L_end:"]
out += ['.section .rodata,"a"', ".p2align 6", f".amdhsa_kernel {nm}_kernel",
        "  .amdhsa_next_free_vgpr 256", "  .amdhsa_next_free_sgpr 102", "  .amdhsa_accum_offset 256",
        "  .amdhsa_group_segment_fixed_size 0", "  .amdhsa_kernarg_size 64", "  .amdhsa_user_sgpr_count 2",
        "  .amdhsa_user_sgpr_kernarg_segment_ptr 1", "  .amdhsa_system_sgpr_workgroup_id_x 1", ".end_amdhsa_kernel"]
print("\n".join(out))
```

```python
import sys, json

P = dict(align=12, ntx=1, outpol="nt", ldpol="ntsc1", D=4, pre16=21, thr=4, stamps=0, codepf=1, wo_touch=8, prime=1, fill=0, fillpos=16,
         lead=12, pf2=8,
         flA=-2, flB=20,
         chkA=1, chkB=90, ldgap=2, ackA=150, ackB=196,
         name="standalone__edm_precond__diffusion")
for a in sys.argv[1:]:
    k, v = a.split("=", 1)
    try: P[k] = json.loads(v)
    except Exception: P[k] = v

POL = {"plain": "", "sc1": " sc1", "nt": " nt", "ntsc1": " sc1 nt"}
WS_BYTES = 0x8000
HC0, HK0, HC1, HK1 = 0x9E3779B1, 0x7F4A7C15, 0x85EBCA77, 0xC2B2AE3D
STAMP_OFF = 0x900000
LDS_MISC = 131072
LDS_BIAS = LDS_MISC
LDS_RDY = LDS_MISC + 2048
LDS_STG = LDS_MISC + 4096
LDS_TOTAL = LDS_STG + 4 * 5120

class Prog:
    def __init__(s):
        s.l = []; s.lq = []; s.vq = []; s.smem = False; s.nst = 0; s.tail = []; s.is_c = False
    def e(s, t): s.l.append("    " + t)
    def lab(s, t): s.l.append(t + ":")
    def c(s, t): s.l.append("    ; " + t)
    def lds(s, t, tag):
        s.e(t); s.lq.append(tag)
    def vm(s, t, tag):
        s.e(t); s.vq.append(tag); assert len(s.vq) <= 63
    def need(s, *tags):
        idx = max([i for i, t in enumerate(s.lq) if t in tags], default=-1)
        if idx < 0: return False
        n = len(s.lq) - 1 - idx
        n = min(n, 15)
        if s.smem: n = 0; s.smem = False
        s.e(f"s_waitcnt lgkmcnt({n})"); s.lq = s.lq[len(s.lq) - n:] if n else []
        return True
    def vneed(s, *tags):
        idx = max([i for i, t in enumerate(s.vq) if t in tags], default=-1)
        if idx < 0: return False
        n = len(s.vq) - 1 - idx
        s.e(f"s_waitcnt vmcnt({n})"); s.vq = s.vq[len(s.vq) - n:] if n else []
        return True
    def stamp(s):
        if "probe" in P:
            if s.nst == P["probe"] and s.is_c:
                s.e("s_memrealtime s[96:97]"); s.smem = True
            s.nst += 1
        if P["stamps"]:
            s.e(f"{'s_memtime' if P['stamps'] == 1 else 's_memrealtime'} s[{68 + 2 * s.nst}:{69 + 2 * s.nst}]"); s.nst += 1; s.smem = True
            assert s.nst <= 17
    def dump_stamps(s):
        if not P["stamps"]: return
        s.e("s_waitcnt lgkmcnt(0) vmcnt(0)")
        s.e("v_mov_b32 v14, 0")
        for i in range(1, s.nst):
            s.e(f"s_sub_u32 s{68+2*i}, s{68+2*i}, s68")
            s.e(f"v_writelane_b32 v14, s{68+2*i}, {i}")
        s.e("s_lshl_b32 s3, s2, 11")
        s.e(f"s_add_u32 s3, s3, {STAMP_OFF}")
        s.e("v_lshl_add_u32 v15, v0, 2, s3")
        s.e("global_store_dword v15, v14, s[18:19]")

def q4(r): return f"v[{r}:{r+3}]"
def q2(r): return f"v[{r}:{r+1}]"
def sq(d): return f"s[{d}:{d+3}]"
def sp(d): return f"s[{d}:{d+1}]"

S_EP, S_EN = 20, 21
S_W, S_Q, S_GL, S_G, S_R, S_TILE = 22, 23, 24, 25, 26, 27
SRD_A, SRD_B, SRD_C = 28, 32, 36
S_OB = (40, 41, 42, 43)
S_T0, S_T1, S_T2, S_T3 = 44, 45, 46, 47
S_S1, S_IK, S_MSK = 48, 50, 52
S_MB = {(m, s): 54 + 2 * m + s for m in range(4) for s in range(2)}
S_CNT, S_H0, S_H1, S_XCC, S_MODE = 62, 63, 64, 65, 66
S_N, S_LB, S_XO, S_WO = 40, 41, 42, 43

h = Prog()
h.stamp()
if P.get("rt") or "probe" in P: h.e("s_memrealtime s[100:101]")
h.e("s_load_dwordx16 s[4:19], s[0:1], 0")
h.e("s_cmp_ge_u32 s2, 0x100")
h.e("s_cbranch_scc1 L_exit")
h.e("v_lshrrev_b32 v2, 6, v0")
h.e("v_and_b32 v1, 63, v0")
h.e(f"v_readfirstlane_b32 s{S_W}, v2")
h.e(f"s_lshr_b32 s{S_T0}, s2, 3")
if P["codepf"]:
    h.c("pull this kernel's code into the L2 (one 128-byte line per wave)")
    h.e("s_getpc_b64 s[20:21]")
    h.lab("L_pc")
    h.e(f"s_lshl_b32 s{S_T1}, s{S_T0}, 3")
    h.e(f"v_add_lshl_u32 v3, v2, s{S_T1}, 7")
    h.e("v_min_u32 v3, L_end-L_pc-4, v3")
    h.e("global_load_dword v15, v3, s[20:21]")
h.e(f"s_and_b32 s{S_Q}, s{S_T0}, 3")
h.e(f"s_lshr_b32 s{S_GL}, s{S_T0}, 2")
h.e(f"s_and_b32 s{S_T1}, s2, 7")
h.e(f"s_lshl3_add_u32 s{S_G}, s{S_GL}, s{S_T1}")
h.e(f"s_lshr_b32 s{S_T0}, s{S_G}, 5")
h.e(f"s_lshl_b32 s{S_TILE}, s{S_T0}, 22")
h.e(f"s_and_b32 s{S_T1}, s{S_G}, 31")
h.e(f"s_lshl_b32 s{S_T1}, s{S_T1}, 8")
h.e(f"s_add_u32 s{S_TILE}, s{S_TILE}, s{S_T1}")
h.e(f"s_and_b32 s{S_R}, s{S_GL}, 3")
h.e(f"s_cmp_lt_u32 s{S_W}, 4")
h.e("s_cbranch_scc1 L_compute")

L = Prog(); L.nst = h.nst
D = P["D"]
ntx = " nt" if P["ntx"] else ""
L.c("---------------- loader waves: wave 4+i brings rows 4i..4i+3 of every 16-row step")
L.e("v_lshrrev_b32 v4, 4, v1")
L.e("v_lshlrev_b32 v6, 1, v2")
L.e("v_xor_b32 v6, v6, v1")
L.e("v_and_b32 v6, 3, v6")
L.e("v_lshlrev_b32 v6, 4, v6")
L.e("v_bfe_u32 v5, v0, 2, 2")
L.e("v_and_b32 v2, 3, v2")
L.e("v_lshl_add_u32 v5, v2, 2, v5")
L.e("v_lshl_add_u32 v7, v4, 6, v6")
L.e("v_lshl_add_u32 v2, v5, 13, v7")
L.e(f"v_add_u32 v2, s{S_TILE}, v2")
L.e(f"s_lshl_b32 s{S_T0}, s{S_Q}, 8")
L.e(f"v_lshl_add_u32 v5, v5, 10, s{S_T0}")
L.e("v_add_u32 v3, v5, v7")
L.e(f"s_and_b32 s{S_LB}, s{S_W}, 3")
L.e(f"s_lshl_b32 s{S_LB}, s{S_LB}, 10")
L.e(f"s_mov_b32 s{S_N}, 0")
L.e(f"s_mov_b32 s{SRD_A+2}, 0x800000"); L.e(f"s_mov_b32 s{SRD_A+3}, 0x20000")
L.e(f"s_mov_b32 s{SRD_B+2}, 0x80000"); L.e(f"s_mov_b32 s{SRD_B+3}, 0x20000")
L.e("s_waitcnt lgkmcnt(0)")
L.e(f"s_mov_b64 {sp(SRD_A)}, s[4:5]")
L.e(f"s_mov_b64 {sp(SRD_B)}, s[8:9]")
L.lab("L_ld1")
L.c("slot n holds 32 rows: quarter (n+member)&3, 32-row block (n/4+group)&3 of it")
L.e(f"s_add_u32 s{S_T0}, s{S_N}, s{S_Q}")
if P.get("rotmode") == 1: L.e(f"s_add_u32 s{S_T0}, s{S_T0}, s{S_R}")
L.e(f"s_and_b32 s{S_T0}, s{S_T0}, 3")
L.e(f"s_lshr_b32 s{S_T1}, s{S_N}, 2")
if not P.get("rotmode"):
    L.e(f"s_add_u32 s{S_T1}, s{S_T1}, s{S_R}")
    L.e(f"s_and_b32 s{S_T1}, s{S_T1}, 3")
L.e(f"s_lshl2_add_u32 s{S_T0}, s{S_T0}, s{S_T1}")
L.e(f"s_mov_b32 m0, s{S_LB}")
L.e(f"s_lshl_b32 s{S_XO}, s{S_T0}, 18")
L.e(f"buffer_load_dwordx4 v2, {sq(SRD_A)}, s{S_XO} offen{ntx} lds")
L.e(f"s_add_u32 m0, s{S_LB}, 0x1000")
L.e(f"s_lshl_b32 s{S_WO}, s{S_T0}, 15")
L.e(f"buffer_load_dwordx4 v3, {sq(SRD_B)}, s{S_WO} offen lds")
L.e(f"s_add_u32 m0, s{S_LB}, 0x2000")
L.e(f"s_add_u32 s{S_XO}, s{S_XO}, 0x20000")
L.e(f"buffer_load_dwordx4 v2, {sq(SRD_A)}, s{S_XO} offen{ntx} lds")
L.e(f"s_add_u32 m0, s{S_LB}, 0x3000")
L.e(f"s_add_u32 s{S_WO}, s{S_WO}, 0x4000")
L.e(f"buffer_load_dwordx4 v3, {sq(SRD_B)}, s{S_WO} offen lds")
L.e(f"s_add_u32 s{S_LB}, s{S_LB}, 0x4000")
L.e(f"s_and_b32 s{S_LB}, s{S_LB}, 0x1ffff")
L.e(f"s_add_u32 s{S_N}, s{S_N}, 1")
L.e(f"s_cmp_lt_u32 s{S_N}, {D}")
L.e("s_cbranch_scc1 L_ld1")
L.e(f"s_waitcnt vmcnt({4 * (D - 1)})")
L.e("s_barrier")
L.e(f"s_cmp_lt_u32 s{S_N}, 16")
L.e("s_cbranch_scc1 L_ld1")
L.e("s_branch L_ld2")
L_HEAD = len(L.l)
L.lab("L_ld2")
L.stamp()
L.c("w_out: rows start at this member's own quarter; column blocks in the order in which x's own rows were kept")
L.e(f"v_add_u32 v4, s{S_R}, v4")
L.e("v_and_b32 v4, 3, v4")
L.e("v_lshl_add_u32 v7, v4, 6, v6")
L.e("v_add_u32 v3, v5, v7")
L.e(f"s_mov_b64 {sp(SRD_B)}, s[12:13]")
L.e(f"s_lshl_b32 s{S_WO}, s{S_Q}, 17")
L.e("v_and_b32 v8, 7, v1")
L.e("v_lshlrev_b32 v8, 2, v8")
L.e(f"v_add_u32 v8, {LDS_RDY}, v8")
L.e("v_mov_b32 v9, 0")
L.e("ds_write_b32 v8, v9")
L.vq = [("c", n) for n in range(16 - D + 1, 16) for _ in range(4)]
def fill(pos):
    if pos != P['fillpos']: return
    if P["fill"]:
        L.c("make the hand-off lines of this workgroup valid in the L2 ahead of their readers; the values are not used")
        n_ = P["fill"]
        L.e(f"s_and_b32 s{S_T0}, s{S_W}, 3")
        L.e(f"s_lshl_b32 s{S_T0}, s{S_T0}, {3 + n_}")
        L.e(f"s_lshl_b32 s{S_T1}, s{S_R}, 5")
        L.e(f"s_add_u32 s{S_T0}, s{S_T0}, s{S_T1}")
        L.e(f"s_and_b32 s{S_T0}, s{S_T0}, 127")
        L.e(f"s_lshl_b32 s{S_T1}, s{S_Q}, 7")
        L.e(f"s_add_u32 s{S_T0}, s{S_T0}, s{S_T1}")
        L.e(f"v_lshrrev_b32 v24, {3 - n_}, v1")
        L.e(f"v_add_lshl_u32 v24, v24, s{S_T0}, 13")
        L.e(f"v_and_b32 v25, {3 if n_ == 1 else 1}, v1")
        L.e(f"v_lshl_add_u32 v24, v25, {5 + n_}, v24")
        L.e(f"v_add_u32 v24, s{S_TILE}, v24")
        L.vm("global_load_dword v25, v24, s[14:15] nt", "fill")
    if P["wo_touch"] == -1:
        L.e(f"s_lshl_b32 s{S_T0}, s{S_GL}, 2"); L.e(f"s_and_b32 s{S_T1}, s{S_W}, 3"); L.e(f"s_add_u32 s{S_T0}, s{S_T0}, s{S_T1}")
        L.e(f"s_lshl_b32 s{S_T0}, s{S_T0}, 14"); L.e(f"s_lshl_b32 s{S_T1}, s{S_Q}, 8"); L.e(f"s_add_u32 s{S_T0}, s{S_T0}, s{S_T1}")
        L.e("v_lshrrev_b32 v26, 2, v1"); L.e(f"v_lshl_add_u32 v26, v26, 10, s{S_T0}"); L.e("v_and_b32 v27, 3, v1"); L.e("v_lshl_add_u32 v26, v27, 6, v26")
        L.vm("global_load_dword v27, v26, s[12:13]", "fill")
def ld_wo(n):
    if n < 22: fill(n)
    for p in range(4):
        L.e(f"s_add_u32 m0, s{S_LB}, {hex(((n - 16) * 4 + p) * 4096)}")
        if n > 16 or p: L.e(f"s_add_u32 s{S_WO}, s{S_WO}, 0x4000")
        else: L.e("s_waitcnt lgkmcnt(0)")
        if p == 0 and n % 2 == 0 and n > 16: L.e(f"s_and_b32 s{S_WO}, s{S_WO}, 0x7ffff")
        L.vm(f"buffer_load_dwordx4 v3, {sq(SRD_B)}, s{S_WO} offen lds", ("c", n))
def throttle():
    if len(L.vq) > P["thr"]:
        L.e(f"s_waitcnt vmcnt({P['thr']})"); L.vq = L.vq[len(L.vq) - P["thr"]:]
nxt = 16
for c in range(16 - D + 1, 16):
    ld_wo(nxt); nxt += 1
    L.vneed(("c", c))
    L.e("s_barrier")
L.stamp()
L.e("v_and_b32 v11, 3, v1")
L.e(f"s_lshl_b32 s{S_T0}, s{S_G}, 9")
L.e(f"v_lshl_add_u32 v12, v11, 4, s{S_T0}")
if P["prime"]:
    L.c("bring the progress line into the L2 early; this value is not used")
    L.vm("global_load_dword v16, v12, s[18:19] offset:256 sc1", "prime")
while nxt <= P["pre16"]:
    throttle(); ld_wo(nxt); nxt += 1
assert nxt == 22
fill(22)
L.vneed(("c", 17))
L.stamp()
L.e(f"s_lshl_b32 s{S_T0}, s{S_W}, 2")
L.e(f"s_add_u32 s{S_T0}, s{S_T0}, {LDS_RDY}")
L.e(f"v_mov_b32 v8, s{S_T0}")
L.e("v_mov_b32 v9, 1")
L.e(f"v_mov_b32 v13, {LDS_RDY}")
L.e(f"s_mov_b32 s{S_CNT}, 0")
L.e(f"s_mov_b32 s{S_N}, 1")
L.e("s_barrier")
L.e(f"s_cmp_eq_u32 s{S_W}, 4")
L.e("s_cbranch_scc1 L_poll")
L.e("s_waitcnt vmcnt(0)")
L.e("ds_write_b32 v8, v9")
L.c("the last rows of w_out follow the first hand-off loads")
L.lab("L_wait1")
L.e("ds_read_b32 v16, v13")
L.e(f"s_add_u32 s{S_CNT}, s{S_CNT}, 1")
L.e("s_waitcnt lgkmcnt(0)")
L.e(f"v_readfirstlane_b32 s{S_T0}, v16")
L.e(f"s_cmp_ge_u32 s{S_CNT}, 0x800000")
L.e("s_cbranch_scc1 L_last")
L.e(f"s_cmp_eq_u32 s{S_T0}, 0")
L.e("s_cbranch_scc1 L_wait1")
L.lab("L_last")
L.stamp()
while nxt < 24:
    ld_wo(nxt); nxt += 1
L.e("v_mov_b32 v9, 2")
L.e(f"s_mov_b32 s{S_N}, 4")
L.e(f"s_cmp_eq_u32 s{S_W}, 4")
L.e("s_cbranch_scc1 L_poll")
L.e("s_waitcnt vmcnt(0)")
L.e("ds_write_b32 v8, v9")
L.e("s_branch L_fin")
L.c("wave 4: relay the smallest progress word of the group into LDS")
L.lab("L_poll")
L.e("global_load_dwordx4 v[16:19], v12, s[18:19] offset:256 sc1")
L.e(f"s_add_u32 s{S_CNT}, s{S_CNT}, 1")
L.e("s_waitcnt vmcnt(0)")
L.e("v_min3_u32 v16, v16, v17, v18")
L.e("v_min_u32 v16, v16, v19")
L.e("ds_write_b32 v8, v9")
L.e("s_nop 0")
L.e("v_min_u32_dpp v16, v16, v16 quad_perm:[1,0,3,2] row_mask:0xf bank_mask:0xf")
L.e("s_nop 1")
L.e("v_min_u32_dpp v16, v16, v16 quad_perm:[2,3,0,1] row_mask:0xf bank_mask:0xf")
L.e("ds_write_b32 v13, v16")
L.e(f"v_readfirstlane_b32 s{S_T0}, v16")
L.e(f"s_cmp_ge_u32 s{S_CNT}, 0x100000")
L.e(f"s_cselect_b32 s{S_T0}, 4, s{S_T0}")
L.e(f"s_cmp_lt_u32 s{S_T0}, s{S_N}")
L.e("s_cbranch_scc1 L_poll")
L.e(f"s_cmp_eq_u32 s{S_N}, 1")
L.e("s_cbranch_scc1 L_last")
L.lab("L_fin")
L.stamp()
L.dump_stamps()
L.lab("L_exit")
L.e("s_endpgm")

C = Prog(); C.nst = h.nst; C.is_c = True
if P["codepf"]: C.vq.append("code")
AD = list(range(2, 10))
VM0, VM1, VFL, VFS, VT0, VT1, VSW, VSR, VOUT, VRDY = 10, 11, 12, 13, 14, 15, 16, 17, 18, 19
RA, RH, RX, RBI, RS, RF = 20, 84, 116, 148, 164, 170
RF = 172; NPOOL = (256 - RF) // 4
SRD_WS, SRD_OUT, SRD_WO = SRD_A, SRD_B, SRD_C
C.lab("L_compute")
C.c("---------------- compute waves")
T = RH
vG, vC, vEMBA, vSIGA, vT0A, vSIG, vEMB, vEP, vZ, vANN, vJ, vL4, vTCH, vBW, vBR, vCHK, vCHA = \
    T, T+1, T+2, T+3, T+4, T+5, T+6, T+7, T+8, T+12, T+14, T+15, T+16, T+17, T+18, T+26, T+28
C.e(f"v_lshrrev_b32 v{vG}, 4, v1")
C.e(f"v_bfe_u32 v{vC}, v1, 2, 2")
C.e(f"v_lshlrev_b32 v{vC}, 6, v{vC}")
C.e(f"v_lshl_add_u32 v{AD[0]}, v{vG}, 10, v{vC}")
C.e(f"v_and_b32 v{vC}, 1, v{vG}")
C.e(f"v_lshl_add_u32 v{AD[0]}, v{vC}, 5, v{AD[0]}")
C.e(f"v_and_b32 v{vC}, 3, v1")
C.e(f"v_lshl_add_u32 v{AD[6]}, v{vC}, 3, v{AD[0]}")
C.e(f"s_lshl_b32 s{S_T0}, s{S_W}, 8")
C.e(f"v_add_u32 v{AD[2]}, s{S_T0}, v{AD[6]}")
C.e(f"s_and_b32 s{S_T1}, s{S_W}, 1")
C.e(f"s_lshl_b32 s{S_T1}, s{S_T1}, 9")
C.e(f"v_add_u32 v{AD[0]}, s{S_T1}, v{AD[6]}")
C.e(f"v_xor_b32 v{AD[1]}, 32, v{AD[0]}")
C.e(f"v_xor_b32 v{AD[3]}, 32, v{AD[2]}")
C.e(f"v_xor_b32 v{AD[4]}, 0x100, v{AD[2]}")
C.e(f"v_xor_b32 v{AD[5]}, 0x100, v{AD[3]}")
C.e(f"s_lshl_b32 s{S_T0}, s{S_Q}, 8")
C.e(f"v_lshl_add_u32 v{vEMBA}, v1, 2, s{S_T0}")
C.e(f"s_lshr_b32 s{S_T0}, s{S_TILE}, 21")
C.e(f"v_mov_b32 v{vSIGA}, s{S_T0}")
C.c("thread 0 resets this workgroup's four progress words, then announces that (and its XCD) under this launch's tag")
C.e(f"v_lshlrev_b32 v{vT0A}, 24, v0")
for i in range(4): C.e(f"v_mov_b32 v{vZ+i}, 0")
C.e(f"s_lshl_b32 s{S_EP}, s{S_G}, 9")
C.e(f"s_lshl4_add_u32 s{S_T2}, s{S_Q}, s{S_EP}")
C.e(f"s_mov_b32 s{SRD_WS+2}, {hex(WS_BYTES)}"); C.e(f"s_mov_b32 s{SRD_WS+3}, 0x20000")
C.e(f"s_getreg_b32 s{S_XCC}, hwreg(HW_REG_XCC_ID, 0, 4)")
C.e("s_waitcnt lgkmcnt(0)")
C.e(f"s_mov_b64 {sp(SRD_WS)}, s[18:19]")
C.vm(f"buffer_store_dwordx4 {q4(vZ)}, v{vT0A}, {sq(SRD_WS)}, s{S_T2} offen offset:256 sc1", "clr")
C.vm(f"buffer_load_dword v{vEP}, v{vZ}, {sq(SRD_WS)}, s{S_EP} offen sc1", "ep")
C.vm(f"global_load_ushort v{vSIG}, v{vSIGA}, s[6:7]", "sig")
C.vm(f"global_load_dword v{vEMB}, v{vEMBA}, s[10:11]", "emb")
for t in [
    f"s_mov_b64 {sp(SRD_WO)}, s[12:13]", f"s_mov_b32 s{SRD_WO+2}, 0x80000", f"s_mov_b32 s{SRD_WO+3}, 0x20000",
    f"s_mov_b64 {sp(SRD_OUT)}, s[14:15]", f"s_mov_b32 s{SRD_OUT+2}, 0x800000", f"s_mov_b32 s{SRD_OUT+3}, 0x20000",
    f"v_lshrrev_b32 v{vL4}, 2, v1", f"v_and_b32 v{vJ}, 15, v1",
    f"s_lshl_b32 s{S_T0}, s{S_GL}, 16", f"s_lshl_b32 s{S_T1}, s{S_W}, 14", f"s_add_u32 s{S_T0}, s{S_T0}, s{S_T1}",
    f"s_lshl_b32 s{S_T1}, s{S_Q}, 8", f"s_add_u32 s{S_T0}, s{S_T0}, s{S_T1}",
    f"v_lshl_add_u32 v{vTCH}, v{vL4}, 10, s{S_T0}", f"v_lshl_add_u32 v{vTCH}, v{vC}, 6, v{vTCH}",
    f"s_lshl2_add_u32 s{S_T2}, s{S_W}, s{S_T2}", f"v_lshl_add_u32 v{VFL}, v1, 24, s{S_T2}", f"v_mov_b32 v{VFS}, 2.0",
    f"v_lshlrev_b32 v{vCHA}, 3, v{vC}", f"s_mov_b32 s{S_MODE}, 0",
    f"s_lshl_b32 s{S_T0}, s{S_W}, 9", f"s_add_u32 s{S_T0}, s{S_T0}, {LDS_BIAS}", f"v_lshl_add_u32 v{vBW}, v1, 3, s{S_T0}",
    f"s_and_b32 s{S_T3}, s{S_W}, 1", f"s_lshl_b32 s{S_T1}, s{S_T3}, 8", f"s_add_u32 s{S_T0}, s{S_T0}, s{S_T1}",
    f"v_lshl_add_u32 v{vBR}, v{vG}, 4, s{S_T0}",
    f"s_mul_i32 s{S_T0}, s{S_W}, 5120", f"s_add_u32 s{S_T0}, s{S_T0}, {LDS_STG}",
    f"v_mul_u32_u24 v{VSW}, 80, v{vJ}", f"v_lshl_add_u32 v{VSW}, v{vG}, 3, v{VSW}", f"v_add_u32 v{VSW}, s{S_T0}, v{VSW}",
    f"v_mul_u32_u24 v{VSR}, 80, v{vL4}", f"v_lshl_add_u32 v{VSR}, v{vC}, 4, v{VSR}", f"v_add_u32 v{VSR}, s{S_T0}, v{VSR}",
    f"s_lshl_b32 s{S_T0}, s{S_Q}, 20", f"s_add_u32 s{S_T0}, s{S_T0}, s{S_TILE}", f"s_lshl_b32 s{S_T1}, s{S_W}, 6",
    f"s_add_u32 s{S_T0}, s{S_T0}, s{S_T1}", f"v_lshl_add_u32 v{VOUT}, v{vL4}, 13, s{S_T0}", f"v_lshl_add_u32 v{VOUT}, v{vC}, 4, v{VOUT}",
    f"v_lshrrev_b32 v{VM0}, 3, v1", f"v_lshlrev_b32 v{VM0}, 13, v{VM0}", f"v_and_b32 v{VM1}, 7, v1",
    f"v_lshl_add_u32 v{VM0}, v{VM1}, 4, v{VM0}", f"v_add_u32 v{VM0}, s{S_TILE}, v{VM0}", f"v_add_u32 v{VM1}, 0x10000, v{VM0}",
    f"v_mov_b32 v{VRDY}, {LDS_RDY}",
    ]: C.e(t)
for j in range(4):
    C.e(f"s_add_u32 s{S_T0}, s{S_R}, {j}"); C.e(f"s_and_b32 s{S_T0}, s{S_T0}, 3"); C.e(f"s_lshl_b32 s{S_OB[j]}, s{S_T0}, 18")
C.c("hand-off rows: stage s of producer wave p lies in output block 2s + p/2, rows 16*(p&1)..+15")
C.e(f"s_cmp_lt_u32 s{S_W}, 2")
C.e(f"s_cselect_b32 s{S_T0}, s{S_OB[0]}, s{S_OB[1]}")
C.e(f"s_cselect_b32 s{S_T1}, s{S_OB[2]}, s{S_OB[3]}")
C.e(f"s_lshl_b32 s{S_T3}, s{S_T3}, 17")
C.e(f"s_add_u32 s{S_T0}, s{S_T0}, s{S_T3}")
C.e(f"s_add_u32 s{S_T1}, s{S_T1}, s{S_T3}")
for m in range(4):
    C.e(f"s_add_u32 s{S_T3}, s{S_Q}, {m}"); C.e(f"s_and_b32 s{S_T3}, s{S_T3}, 3"); C.e(f"s_lshl_b32 s{S_T3}, s{S_T3}, 20")
    C.e(f"s_add_u32 s{S_MB[m, 0]}, s{S_T3}, s{S_T0}"); C.e(f"s_add_u32 s{S_MB[m, 1]}, s{S_T3}, s{S_T1}")
    if m == 0: C.e(f"s_xor_b32 s{S_T0}, s{S_T0}, 0x20000")

F = []
F.append(lambda: C.vneed("clr", "ep", "sig", "emb"))
F += [f"v_readfirstlane_b32 s{S_T3}, v{vEP}",
      f"s_mul_i32 s{S_H0}, s{S_T3}, {hex(HC0)}", f"s_add_u32 s{S_H0}, s{S_H0}, {hex(HK0)}",
      f"s_mul_i32 s{S_H1}, s{S_T3}, {hex(HC1)}", f"s_add_u32 s{S_H1}, s{S_H1}, {hex(HK1)}",
      f"s_add_u32 s{S_H0}, s{S_H0}, s{S_XCC}", f"s_add_u32 s{S_H1}, s{S_H1}, s{S_XCC}",
      f"v_mov_b32 v{vANN}, s{S_H0}", f"v_mov_b32 v{vANN+1}, s{S_H1}", f"s_lshl3_add_u32 s{S_T0}, s{S_Q}, s{S_EP}"]
F.append(lambda: C.vm(f"buffer_store_dwordx2 {q2(vANN)}, v{vT0A}, {sq(SRD_WS)}, s{S_T0} offen offset:128 sc1", "ann"))
F += [f"s_add_u32 s{S_EN}, s{S_T3}, 1"]
sg, a, b2, cs, cn = vSIG, T + 20, T + 21, T + 22, T + 23
def rnd(r): return [f"v_cvt_pk_bf16_f32 v{r}, v{r}, v{r}", f"v_lshlrev_b32 v{r}, 16, v{r}"]
F += [f"v_lshlrev_b32 v{sg}, 16, v{sg}", f"v_mul_f32 v{a}, v{sg}, v{sg}"] + rnd(a)
F += [f"v_add_f32 v{a}, 0x3e800000, v{a}"] + rnd(a)
F += [f"v_rcp_f32 v{cs}, v{a}", f"v_sqrt_f32 v{a}, v{a}"] + rnd(cs) + rnd(a)
F += [f"v_mul_f32 v{cs}, 0x3e800000, v{cs}", f"v_rcp_f32 v{a}, v{a}", f"v_lshrrev_b32 v{cs}, 16, v{cs}", f"v_mul_f32 v{b2}, 0.5, v{sg}"]
F += [f"v_mul_f32 v{b2}, v{b2}, v{a}"] + rnd(b2) + rnd(a)
F += [f"v_log_f32 v{cn}, v{sg}", f"v_mul_f32 v{a}, 0xbfb8aa3b, v{a}", f"v_mul_f32 v{cn}, 0x3f317218, v{cn}"] + rnd(cn)
F += [f"v_max_f32 v{b2}, 0x03800000, v{b2}", f"v_mul_f32 v{b2}, 0xbf317218, v{b2}", f"v_rcp_f32 v{b2}, v{b2}"]
F += [f"v_mul_f32 v{cn}, 0x3e800000, v{cn}"]
F += [f"v_readfirstlane_b32 s{S_S1}, v{a}", f"v_readfirstlane_b32 s{S_IK}, v{b2}", f"s_mov_b32 s{S_S1+1}, s{S_S1}", f"s_mov_b32 s{S_IK+1}, s{S_IK}"]
e0, e1 = T + 24, T + 25
F += [f"v_lshlrev_b32 v{e0}, 16, v{vEMB}", f"v_and_b32 v{e1}, 0xffff0000, v{vEMB}",
      f"v_mul_f32 v{e0}, v{cn}, v{e0}", f"v_mul_f32 v{e1}, v{cn}, v{e1}",
      f"v_cvt_pk_bf16_f32 v{e1}, v{e0}, v{e1}", f"v_lshlrev_b32 v{e0}, 16, v{e1}", f"v_and_b32 v{e1}, 0xffff0000, v{e1}",
      f"v_mul_f32 v{e0}, 0xbfb8aa3b, v{e0}", f"v_mul_f32 v{e1}, 0xbfb8aa3b, v{e1}"]
F.append(("lds", f"ds_write_b64 v{vBW}, {q2(e0)}", "biasw"))
for i in range(4):
    F.append(("lds", f"ds_read_b128 {q4(RBI + 4 * i)}, v{vBR} offset:{i * 64}", "bias"))
F += [f"v_and_b32 v{e0}, 1, v1", f"v_lshlrev_b32 v{e0}, 4, v{e0}", f"v_lshlrev_b32 v{cs}, v{e0}, v{cs}",
      f"v_lshrrev_b32 v{e0}, 1, v{vJ}", f"v_lshlrev_b32 v{e1}, 1, v{vG}", f"v_sub_u32 v{e0}, v{e0}, v{e1}",
      f"v_cmp_eq_u32 vcc, 0, v{e0}", f"v_mov_b32 v{RS}, 0", f"v_cndmask_b32 v{RS+2}, 0, v{cs}, vcc",
      f"v_cmp_eq_u32 vcc, 1, v{e0}", f"v_mov_b32 v{RS+1}, 0", f"v_cndmask_b32 v{RS+3}, 0, v{cs}, vcc",
      f"v_mov_b32 v{RS+4}, 0", f"v_mov_b32 v{RS+5}, 0"]
F_START, F_STEP = P.get('fstart', 20), 1
if P.get('nofill'): F = F[:12]; lastF = 0

class Pool:
    def __init__(s, regs): s.free = list(regs); s.rel = []
    def get(s, now):
        s.free += [r for t, r in s.rel if t <= now]; s.rel = [(t, r) for t, r in s.rel if t > now]
        assert s.free, "fragment pool empty"
        return s.free.pop(0)
    def put(s, t, r): s.rel.append((t, r))

def stream(units, reads_of, lead, pool, hook, first_burst):
    firstuse, lastuse = {}, {}
    for i, u in enumerate(units):
        for k in u:
            firstuse.setdefault(k, i); lastuse[k] = i
    order = sorted(firstuse, key=lambda k: firstuse[k])
    rq = [(k, i) for k in order for i in range(2)]
    reg = {}
    def issue(now):
        k, i = rq.pop(0)
        if i == 0:
            fixed = reads_of(k, None, None)
            reg[k] = fixed if fixed is not None else pool.get(now)
            if fixed is None: pool.put(lastuse[k] + 2, reg[k])
        reads_of(k, i, reg[k])
    return rq, reg, issue, firstuse

SEQ = [(0,0),(0,1),(1,1),(1,0),(1,2),(0,2),(2,2),(2,1),(2,0),(2,3),(1,3),(0,3),(3,3),(3,2),(3,1),(3,0)]
u1 = [(("w", n, a), ("x", n, p)) for n in range(16) for a, p in SEQ]
cur64 = [0]
def rd1(k, i, r):
    kind, n, t = k
    if i is None:
        return RX + 8 * (n // 4) + 4 * t if (kind == "x" and n % 4 == 0 and t < 2) else None
    base = (n % 4) * 16384 + 8192 * i
    if kind == "w": a_, off = AD[t & 1], 4096 + 256 * (t >> 1)
    else: a_, off = AD[2 + 2 * (t >> 1) + (t & 1)], 0
    C.lds(f"ds_read_b64_tr_b16 {q2(r + 2 * i)}, v{a_} offset:{base + off}", k)
pool = Pool([RF + 4 * i for i in range(NPOOL)])
rq, reg, issue, fu = stream(u1, rd1, P["lead"], pool, None, 0)
C.stamp()
C.e("s_barrier")
C.stamp()
barred = 0
def issue1(now):
    global barred
    n = rq[0][0][1]
    if n > barred:
        barred = n
        if n % 4 == 0:
            for r in AD[:6]: C.e(f"v_xor_b32 v{r}, 0x10000, v{r}")
        C.e("s_barrier")
        if n == P["wo_touch"]:
            C.c("this workgroup's share of w_out into the L2; the values are not used")
            C.vm(f"buffer_load_dword v{VT1}, v{vTCH}, {sq(SRD_WO)}, 0 offen", "touch")
        if n == 11: C.vm(f"buffer_load_dwordx2 {q2(vCHK)}, v{vCHA}, {sq(SRD_WS)}, s{S_EP} offen offset:128 sc1", "chk")
    issue(now)
for _ in range(P["lead"]): issue1(0)
for i, (ka, kb) in enumerate(u1):
    if i and i % 64 == 0: C.stamp()
    C.need(ka, kb)
    a_, p_ = ka[2], kb[2]
    acc = RA + 4 * (4 * p_ + a_)
    C.e(f"v_mfma_f32_16x16x32_bf16 {q4(acc)}, {q4(reg[ka])}, {q4(reg[kb])}, {'0' if i < 16 else q4(acc)}")
    if rq: issue1(i)
    waited = i + 1 < len(u1) and C.need(*u1[i + 1])
    if F and i >= F_START and not waited:
        f = F.pop(0)
        if isinstance(f, str): C.e(f)
        elif isinstance(f, tuple): C.lds(f[1], f[2])
        else: f()
        lastF = i
assert not F
assert not C.lq
C.stamp()
C.c("all four members have reset their progress words in this launch, and one L2 serves all of them")
C.vneed("chk", "touch")
C.e(f"v_cmp_ne_u32 vcc, s{S_H0}, v{vCHK}")
C.e(f"v_cmp_ne_u32 {sp(S_MSK)}, s{S_H1}, v{vCHK+1}")
C.c("w_out addresses: [near/far 32-row pair][half][64 KiB]")
C.e(f"s_and_b32 s{S_T0}, s{S_W}, 1")
C.e(f"s_lshl_b32 s{S_T0}, s{S_T0}, 14")
C.e(f"s_or_b64 vcc, vcc, {sp(S_MSK)}")
if P.get("forceslow"): C.e("s_cmp_eq_u32 0, 0")
C.e("s_cbranch_scc1 L_ann_wait")
C.lab("L_ann_ok")
C.tail += ["L_ann_wait:", f"    s_mov_b32 s{S_CNT}, 0",
           f"    s_sub_u32 s{S_H0}, s{S_H0}, s{S_XCC}", f"    s_sub_u32 s{S_H1}, s{S_H1}, s{S_XCC}", "L_ann_l:",
           f"    buffer_load_dwordx2 {q2(vCHK)}, v{vCHA}, {sq(SRD_WS)}, s{S_EP} offen offset:128 sc1",
           f"    s_add_u32 s{S_CNT}, s{S_CNT}, 1", "    s_waitcnt vmcnt(0)",
           f"    v_subrev_u32 v{vCHK}, s{S_H0}, v{vCHK}", f"    v_subrev_u32 v{vCHK+1}, s{S_H1}, v{vCHK+1}",
           f"    v_cmp_ne_u32 vcc, v{vCHK}, v{vCHK+1}", f"    v_cmp_le_u32 {sp(S_MSK)}, 16, v{vCHK}",
           f"    s_cmp_ge_u32 s{S_CNT}, 0x100000", "    s_cbranch_scc1 L_ann_ok",
           f"    s_or_b64 vcc, vcc, {sp(S_MSK)}", "    s_cbranch_scc1 L_ann_l",
           f"    v_cmp_ne_u32 vcc, s{S_XCC}, v{vCHK}", "    s_nop 1", "    s_cmp_lg_u64 vcc, 0"]
if not P.get("forceslow"): C.tail += ["    s_cbranch_scc0 L_ann_ok"]
C.tail += ["    ; members on several XCDs: the L2-local stores fall out of range; L_slow0/1 publish through memory instead",
           f"    s_mov_b32 s{S_MODE}, 1", f"    v_or_b32 v{VM0}, 2.0, v{VM0}", f"    v_or_b32 v{VM1}, 2.0, v{VM1}",
           f"    v_mov_b32 v{VFS}, v{VFL}", f"    v_mov_b32 v{VFL}, 2.0", "    s_branch L_ann_ok"]
C.e(f"v_add_u32 v{AD[0]}, s{S_T0}, v{AD[6]}")
C.e(f"v_xor_b32 v{AD[2]}, 32, v{AD[0]}")
C.e(f"v_xor_b32 v{AD[4]}, 0x4000, v{AD[0]}")
C.e(f"v_xor_b32 v{AD[6]}, 0x4000, v{AD[2]}")
for r in (0, 2, 4, 6): C.e(f"v_add_u32 v{AD[r+1]}, 0x10000, v{AD[r]}")
vXW, vXR = RF + 80, RF + 81
C.e(f"s_mul_i32 s{S_T0}, s{S_W}, 5120")
C.e(f"s_xor_b32 s{S_T1}, s{S_W}, 1")
C.e(f"s_mul_i32 s{S_T1}, s{S_T1}, 5120")
C.e(f"v_lshlrev_b32 v{vXR}, 4, v1")
C.e(f"v_add_u32 v{vXR}, {LDS_STG}, v{vXR}")
C.e(f"v_add_u32 v{vXW}, s{S_T0}, v{vXR}")
C.e(f"v_add_u32 v{vXR}, s{S_T1}, v{vXR}")

DQ = RF + 4
def hreg(p, kk): return RH + 4 * (2 * p + kk)
def hst(p, kk, pol): return f"buffer_store_dwordx4 {q4(hreg(p, kk))}, v{VM1 if kk else VM0}, {sq(SRD_OUT)}, s{S_MB[0, 1 - p // 2]} offen offset:{(p & 1) * 128}{pol}"
def flag(v, both=False):
    C.e(f"v_mov_b32 v{VT1}, {v}")
    C.vm(f"buffer_store_dword v{VT1}, v{VFL}, {sq(SRD_WS)}, 0 offen offset:256", ("fl", v))
    if both: C.vm(f"buffer_store_dword v{VT1}, v{VFS}, {sq(SRD_WS)}, 0 offen offset:256 sc1", ("fl", v))
def slow(s):
    C.e(f"s_cmp_lg_u32 s{S_MODE}, 0")
    C.e(f"s_cbranch_scc1 L_slow{s}")
    C.lab(f"L_slow{s}_done")
    ps = (2, 3) if s == 0 else (0, 1)
    C.tail += [f"L_slow{s}:", f"    v_xor_b32 v{VM0}, 2.0, v{VM0}", f"    v_xor_b32 v{VM1}, 2.0, v{VM1}"]
    C.tail += ["    " + hst(p, kk, " sc1") for p in ps for kk in range(2)]
    C.tail += [f"    v_mov_b32 v{VT1}, {s + 1}", "    s_waitcnt vmcnt(0) lgkmcnt(0)",
               f"    buffer_store_dword v{VT1}, v{VFS}, {sq(SRD_WS)}, 0 offen offset:256 sc1"]
    if s == 0: C.tail += [f"    v_xor_b32 v{VM0}, 2.0, v{VM0}", f"    v_xor_b32 v{VM1}, 2.0, v{VM1}"]
    C.tail += ["    s_waitcnt vmcnt(0)", f"    s_branch L_slow{s}_done"]
def check(name, v, done=False):
    rdi = f"ds_read_b128 {q4(DQ)}, v{VRDY} offset:16" if done else f"ds_read_b32 v{VT0}, v{VRDY}"
    red = [f"    v_min3_u32 v{VT0}, v{DQ}, v{DQ+1}, v{DQ+2}", f"    v_min_u32 v{VT0}, v{VT0}, v{DQ+3}", "    s_nop 0"] if done else []
    C.e(f"s_cmp_ge_u32 s{S_T1}, {v}")
    C.e(f"s_cbranch_scc0 L_spin{name}")
    C.lab(f"L_back{name}")
    if name != "W2": C.stamp()
    C.tail += [f"L_spin{name}:", f"    s_mov_b32 s{S_CNT}, 0", f"L_spin{name}_l:",
               "    " + rdi, f"    s_add_u32 s{S_CNT}, s{S_CNT}, 1", "    s_waitcnt lgkmcnt(0)", *red,
               f"    v_readfirstlane_b32 s{S_T1}, v{VT0}", f"    s_cmp_ge_u32 s{S_CNT}, 0x800000", f"    s_cbranch_scc1 L_back{name}",
               f"    s_cmp_ge_u32 s{S_T1}, {v}", f"    s_cbranch_scc0 L_spin{name}_l", f"    s_branch L_back{name}"]

C.c("---- h = c_out * silu(c_in * acc + bias), two elements per packed op; the sibling's pixels first")
tiles = [(p, a) for p in (2, 3, 0, 1) for a in range(4)]
U = RF
def cvt(p, a):
    A_ = RA + 4 * (4 * p + a)
    for o in (0, 2): C.e(f"v_cvt_pk_bf16_f32 v{hreg(p, a >> 1) + 2 * (a & 1) + o // 2}, v{A_+o}, v{A_+o+1}")
def publish(p, a):
    kk = a >> 1
    C.vm(hst(p, kk, ""), ("st", 1 - p // 2))
    if p >= 2: C.lds(f"ds_write_b128 v{vXW}, {q4(hreg(p, kk))} offset:{((p & 1) * 2 + kk) * 1024}", "xw")
def acc1(n): return RA + 4 * (4 * tiles[n][0] + tiles[n][1])
def ok(n): return 0 <= n < 16
for n in range(-2, 17):
    if ok(n + 1):
        for o in range(4): C.e(f"v_exp_f32 v{acc1(n+1)+o}, v{U + 4*((n+1)&3) + o}")
    if ok(n - 2) and n % 2 == 1: publish(*tiles[n - 2])
    if ok(n - 1):
        for o in (0, 2): C.e(f"v_pk_mul_f32 {q2(acc1(n-1)+o)}, {q2(acc1(n-1)+o)}, {q2(U + 4*((n-1)&3) + o)}")
    if ok(n + 2):
        for o in (0, 2): C.e(f"v_pk_fma_f32 {q2(U + 4*((n+2)&3) + o)}, {q2(acc1(n+2)+o)}, {sp(S_S1)}, {q2(RBI + 4*tiles[n+2][1] + o)}")
    if ok(n):
        for o in range(4): C.e(f"v_rcp_f32 v{acc1(n)+o}, v{acc1(n)+o}")
    if ok(n + 1):
        for o in (0, 2): C.e(f"v_pk_fma_f32 {q2(acc1(n+1)+o)}, {q2(acc1(n+1)+o)}, {sp(S_IK)}, {sp(S_IK)}")
    if ok(n - 1): cvt(*tiles[n - 1])
    if n == 9: slow(0)
    if n == 10:
        C.need("xw")
        C.e("s_barrier")
        C.stamp()
        for p2 in range(2):
            for kk in range(2): C.lds(f"ds_read_b128 {q4(hreg(2 + p2, kk))}, v{vXR} offset:{(p2 * 2 + kk) * 1024}", "xr")
    if P["flA"] < 0 and n == 10 - P["flA"]:
        C.vneed(("st", 0)); flag(1)
    if n == 15 and P["chkA"] < 8: C.lds(f"ds_read_b32 v{VT0}, v{VRDY}", ("rdy", "A"))
publish(*tiles[-1])
slow(1)
C.stamp()

poolq = [RF + 4 * i for i in range(NPOOL)]
rem = poolq[9:21] + [RBI + 4 * i for i in range(4)] + [RX + 4 * i for i in range(8)]
def rq_(s, m, kk, p): return rem[12 * s + 4 * (m - 1) + 2 * kk + p]
units = []
for t in range(2):
    for rho in range(4):
        for p in range(2): units.append((2 * rho + t, p, RX + 8 * rho + 4 * p, ("sel", t), True, None))
def snake(jts, areg, m, far, kk, tag):
    for n, jt in enumerate(jts):
        for p in ((0, 1) if n % 2 == 0 else (1, 0)):
            units.append((jt, p, areg(p), ("o", m, far, kk, jt), False, tag(p)))
for far in (1, 0):
    for kk in range(2): snake(range(8), lambda p: hreg(2 * far + p, kk), 0, far, kk, lambda p: "xr" if far else None)
for m in (1, 2, 3):
    for kk in range(2): snake(range(8), lambda p: rq_(0, m, kk, p), m, 1, kk, lambda p: ("pl", 0, m, kk, p))
for blk in range(4):
    for m in (1, 2, 3):
        for kk in range(2): snake((2 * blk, 2 * blk + 1), lambda p: rq_(1, m, kk, p), m, 0, kk, lambda p: ("pl", 1, m, kk, p))
NU = len(units)
def rd2(k, i, r):
    if i is None: return None
    _, m, far, kk, jt = k
    base = (4 * m + kk) * 8192
    a_ = AD[4 * far + 2 * (jt & 1) + (base >= 65536)]
    C.lds(f"ds_read_b64_tr_b16 {q2(r + 2 * i)}, v{a_} offset:{base % 65536 + 4096 * i + 256 * (jt >> 1)}", k)
pool2 = Pool(poolq[2:9])
rq, reg, issue, fu = stream([(u[3],) if u[3][0] == "o" else () for u in units], rd2, P["pf2"], pool2, None, 0)
first_remote = min(i for i, u in enumerate(units) if isinstance(u[5], tuple))
first_m3 = min(i for i, u in enumerate(units) if u[3][0] == "o" and u[3][1] == 3)
last = {blk: max(i for i, u in enumerate(units) if u[0] // 2 == blk) for blk in range(4)}
opol = POL[P["outpol"]]; ldpol = POL[P["ldpol"]]
sched = {}
def at(i, kind, x): sched.setdefault(i, []).append((kind, x))
def done_check(i, name, v):
    at(i - 10, "m", lambda: C.lds(f"ds_read_b128 {q4(DQ)}, v{VRDY} offset:16", ("rdy", name)))
    at(i - 3, "m", lambda: C.need(("rdy", name)))
    at(i - 3, "v", f"v_min3_u32 v{VT0}, v{DQ}, v{DQ+1}, v{DQ+2}")
    at(i - 2, "v", f"v_min_u32 v{VT0}, v{VT0}, v{DQ+3}")
    at(i - 1, "v", f"v_readfirstlane_b32 s{S_T1}, v{VT0}")
    at(i, "m", lambda: check(name, v, True))
def rdy_check(i, name, v):
    if i >= 8: at(i - 8, "m", lambda: C.lds(f"ds_read_b32 v{VT0}, v{VRDY}", ("rdy", name)))
    at(i - 1, "m", lambda: C.need(("rdy", name)))
    at(i - 1, "v", f"v_readfirstlane_b32 s{S_T1}, v{VT0}")
    at(i, "m", lambda: check(name, v))
done_check(first_remote - P["pf2"] - 3, "W1", 1)
done_check(first_m3 - P["pf2"] - 3, "W2", 2)
for x in (first_remote - P["pf2"] - 3, first_m3 - P["pf2"] - 3):
    for y in (P["chkA"], P["chkB"]): assert y < x - 3 or y - 8 > x, (x, y)
for s, nm_ in ((0, "A"), (1, "B")):
    i0 = P["chk" + nm_]
    rdy_check(i0, nm_, s + 1)
    n = 0
    for m in (1, 2, 3):
        for kk in range(2):
            for p in range(2):
                at(i0 + (n * P["ldgap"]) // 2, "m", lambda s=s, m=m, kk=kk, p=p: C.vm(
                    f"buffer_load_dwordx4 {q4(rq_(s, m, kk, p))}, v{VM1 if kk else VM0}, {sq(SRD_OUT)}, s{S_MB[m, s]} offen offset:{p * 128}{ldpol}", ("pl", s, m, kk, p)))
                n += 1
    at(P["ack" + nm_], "m", lambda s=s: (C.vneed(("pl", s, 3, 1, 1)), flag(3 + s, True)))
assert P["chkB"] >= 16 + 2
if P["flA"] >= 0: at(P["flA"], "m", lambda: (C.vneed(("st", 0)), flag(1)))
at(P["flB"], "m", lambda: (C.vneed(("st", 1)), flag(2)))
assert P["flB"] >= 16
assert P["flA"] <= P["chkA"] and P["flB"] <= P["chkB"] and P["flB"] < P["ackA"] < P["ackB"]
TMP = RF
for blk in range(4):
    t0 = last[blk] + 5
    dat = RA + 16 * blk; so = (blk & 1) * 2560
    for g in range(4):
        for o in range(2): at(t0 + 2 * g + o, "v", f"v_cvt_pk_bf16_f32 v{TMP + 2*g + o}, v{dat + 4*g + 2*o}, v{dat + 4*g + 2*o + 1}")
        at(t0 + 2 * g + 2, "m", lambda g=g, so=so, blk=blk: C.lds(f"ds_write_b64 v{VSW}, {q2(TMP + 2*g)} offset:{so + 1280 * (g >> 1) + 32 * (g & 1)}", ("sw", blk)))
    for k in range(2):
        at(t0 + 9 + k, "m", lambda k=k, so=so, blk=blk, dat=dat: C.lds(f"ds_read_b128 {q4(dat + 4*k)}, v{VSR} offset:{so + 1280*k}", ("sr", blk, k)))
    if blk % 2 == 0: rdy_check(t0 + 16, f"O{blk}", 3 + blk // 2)
    def st(k, blk=blk, dat=dat):
        if k: C.e(f"s_add_u32 s{S_OB[blk]}, s{S_OB[blk]}, 0x20000")
        C.need(("sr", blk, k))
        C.vm(f"buffer_store_dwordx4 {q4(dat + 4*k)}, v{VOUT}, {sq(SRD_OUT)}, s{S_OB[blk]} offen{opol}", ("out", blk))
    for k in range(2): at(t0 + 17 + k, "m", lambda k=k, st=st: st(k))
assert P["ackA"] < last[0] + 21 and P["ackB"] < last[2] + 21
ie = P["chkB"] + 20
at(ie, "m", lambda: (C.c("member 0 moves the group's epoch on (every member read it long ago: their progress words came after it)"),
                     C.e(f"s_lshl_b32 s{S_T0}, s{S_Q}, 28")))
at(ie, "v", f"v_lshl_or_b32 v{TMP}, v0, 24, s{S_T0}")
at(ie + 1, "v", f"v_mov_b32 v{TMP+1}, s{S_EN}")
at(ie + 2, "m", lambda: C.vm(f"buffer_store_dword v{TMP+1}, v{TMP}, {sq(SRD_WS)}, s{S_EP} offen sc1", "epst"))
def pre_wait(i):
    if i >= NU: return
    u = units[i]
    if isinstance(u[5], tuple): C.vneed(u[5])
    C.need(u[3], *([u[5]] if u[5] == "xr" else []))
for it in sched.pop(-1, []) + [x for i in sorted(k for k in sched if k < 0) for x in sched.pop(i)]: raise SystemExit("negative slot")
for i, u in enumerate(units):
    jt, p, ar, bk, first, tag = u
    pre_wait(i)
    br = RS + 2 - 2 * bk[1] if bk[0] == "sel" else reg[bk]
    acc = RA + 4 * (2 * jt + p)
    C.e(f"v_mfma_f32_16x16x32_bf16 {q4(acc)}, {q4(ar)}, {q4(br)}, {'0' if first else q4(acc)}")
    if rq and fu[rq[0][0]] <= i + P["pf2"] + 1: issue(i)
    items = sched.pop(i, [])
    for k, x in items:
        if k == "m": x()
    pre_wait(i + 1)
    for k, x in items:
        if k == "v": C.e(x)
C.stamp()
C.e("s_nop 7")
for i in sorted(sched):
    for k, x in sorted(sched[i], key=lambda y: y[0]):
        if k == "v": C.e(x)
        else: x()
C.stamp()
if P["stamps"] or "probe" in P:
    C.e("s_waitcnt vmcnt(0)"); C.stamp()
if "probe" in P or P.get("rt"):
    C.e("s_waitcnt lgkmcnt(0)")
    if "probe" in P:
        C.e("s_sub_u32 s96, s96, s100"); C.e("s_lshl_b32 s96, s96, 2"); C.e("s_add_u32 s96, s96, 2000")
        if "pwg" in P:
            C.e(f"s_cmp_eq_u32 s2, {P['pwg']}"); C.e("s_cselect_b32 s96, s96, 0")
    else: C.e(f"s_mov_b32 s96, {P['rt']}")
    C.lab("L_rt")
    C.e("s_memrealtime s[98:99]"); C.e("s_waitcnt lgkmcnt(0)"); C.e("s_sub_u32 s98, s98, s100")
    C.e("s_cmp_lt_u32 s98, s96"); C.e("s_cbranch_scc1 L_rt")
C.dump_stamps()
C.e("s_endpgm")

nm = P["name"]
hdr = open("standalone__edm_precond__diffusion.s.ref").read().split("; Override")[0]
out = [hdr.rstrip(),
       "; generated by gen/gen.py  " + " ".join(sys.argv[1:]),
       f"; @launch grid=(256,1,1) block=(512,1,1) lds={LDS_TOTAL}",
       '.amdgcn_target "amdgcn-amd-amdhsa--gfx950"', ".text", f".globl {nm}_kernel", f".p2align {P['align']}",
       f".type {nm}_kernel,@function", f"{nm}_kernel:"]
out += h.l + L.l[:L_HEAD] + C.l + C.tail + L.l[L_HEAD:] + ["L_end:"]
out += ['.section .rodata,"a"', ".p2align 6", f".amdhsa_kernel {nm}_kernel",
        "  .amdhsa_next_free_vgpr 256", "  .amdhsa_next_free_sgpr 102", "  .amdhsa_accum_offset 256",
        "  .amdhsa_group_segment_fixed_size 0", "  .amdhsa_kernarg_size 64", "  .amdhsa_user_sgpr_count 2",
        "  .amdhsa_user_sgpr_kernarg_segment_ptr 1", "  .amdhsa_system_sgpr_workgroup_id_x 1", ".end_amdhsa_kernel"]
print("\n".join(out))
```

```python
import sys, json

P = dict(hop0=1, tlb=0, small=-1, fstart=20, rotmode=1, warm=0, xs=(), align=12, ntx=1, outpol="nt", ldpol="ntsc1", D=4, pre16=21, thr=4, thr2=8, stamps=0, codepf=1, wo_touch=8, prime=1, fill=1, fillpos=18,
         lead=12, pf2=8,
         flA=-1, flB=30,
         chkA=44, chkB=104, ldgapA=10, ldgapB=8, bm=2, ackA=150, ackB=215, spf=0, spf0=0,
         name="standalone__edm_precond__diffusion")
for a in sys.argv[1:]:
    k, v = a.split("=", 1)
    try: P[k] = json.loads(v)
    except Exception: P[k] = v

POL = {"plain": "", "sc1": " sc1", "nt": " nt", "ntsc1": " sc1 nt"}
WS_BYTES = 0x8000
HC0, HK0, HC1, HK1 = 0x9E3779B1, 0x7F4A7C15, 0x85EBCA77, 0xC2B2AE3D
STAMP_OFF = 0x900000
LDS_MISC = 131072
LDS_BIAS = LDS_MISC
LDS_RDY = LDS_MISC + 2048
LDS_STG = LDS_MISC + 4096
LDS_TOTAL = LDS_STG + 4 * 5120

class Prog:
    def __init__(s):
        s.l = []; s.lq = []; s.vq = []; s.smem = False; s.nst = 0; s.tail = []; s.is_c = False
    def e(s, t): s.l.append("    " + t)
    def lab(s, t): s.l.append(t + ":")
    def c(s, t): s.l.append("    ; " + t)
    def lds(s, t, tag):
        s.e(t); s.lq.append(tag)
    def vm(s, t, tag):
        s.e(t); s.vq.append(tag); assert len(s.vq) <= 63
    def need(s, *tags):
        idx = max([i for i, t in enumerate(s.lq) if t in tags], default=-1)
        if idx < 0: return False
        n = len(s.lq) - 1 - idx
        n = min(n, 15)
        if s.smem: n = 0; s.smem = False
        s.e(f"s_waitcnt lgkmcnt({n})"); s.lq = s.lq[len(s.lq) - n:] if n else []
        return True
    def vneed(s, *tags):
        idx = max([i for i, t in enumerate(s.vq) if t in tags], default=-1)
        if idx < 0: return False
        n = len(s.vq) - 1 - idx
        s.e(f"s_waitcnt vmcnt({n})"); s.vq = s.vq[len(s.vq) - n:] if n else []
        return True
    def stamp(s):
        if "probe" in P:
            if s.nst == P["probe"] and s.is_c:
                s.e("s_memrealtime s[96:97]"); s.smem = True
            s.nst += 1
        if P["stamps"]:
            s.e(f"{'s_memtime' if P['stamps'] == 1 else 's_memrealtime'} s[{68 + 2 * s.nst}:{69 + 2 * s.nst}]"); s.nst += 1; s.smem = True
            assert s.nst <= 17
    def dump_stamps(s):
        if not P["stamps"]: return
        s.e("s_waitcnt lgkmcnt(0) vmcnt(0)")
        s.e("v_mov_b32 v14, 0")
        for i in range(1, s.nst):
            s.e(f"s_sub_u32 s{68+2*i}, s{68+2*i}, s68")
            s.e(f"v_writelane_b32 v14, s{68+2*i}, {i}")
        s.e("s_lshl_b32 s3, s2, 11")
        s.e(f"s_add_u32 s3, s3, {STAMP_OFF}")
        s.e("v_lshl_add_u32 v15, v0, 2, s3")
        s.e("global_store_dword v15, v14, s[18:19]")

def q4(r): return f"v[{r}:{r+3}]"
def q2(r): return f"v[{r}:{r+1}]"
def sq(d): return f"s[{d}:{d+3}]"
def sp(d): return f"s[{d}:{d+1}]"

S_EP, S_EN = 20, 21
S_W, S_Q, S_GL, S_G, S_R, S_TILE = 22, 23, 24, 25, 26, 27
SRD_A, SRD_B, SRD_C = 28, 32, 36
S_OB = (40, 41, 42, 43)
S_T0, S_T1, S_T2, S_T3 = 44, 45, 46, 47
S_S1, S_IK, S_MSK = 48, 50, 52
S_MB = {(m, s): 54 + 2 * m + s for m in range(4) for s in range(2)}
S_CNT, S_H0, S_H1, S_XCC, S_MODE, S_OWN = 62, 63, 64, 65, 66, 67
S_N, S_LB, S_XO, S_WO = 40, 41, 42, 43

h = Prog()
h.stamp()
if P.get("rt") or "probe" in P: h.e("s_memrealtime s[100:101]")
h.e("s_load_dwordx16 s[4:19], s[0:1], 0")
h.e("s_cmp_ge_u32 s2, 0x100")
h.e("s_cbranch_scc1 L_exit")
h.e("v_lshrrev_b32 v2, 6, v0")
h.e("v_and_b32 v1, 63, v0")
h.e(f"v_readfirstlane_b32 s{S_W}, v2")
h.e(f"s_lshr_b32 s{S_T0}, s2, 3")
if P["codepf"]:
    h.c("pull this kernel's code into the L2 (one 128-byte line per wave)")
    h.e("s_getpc_b64 s[20:21]")
    h.lab("L_pc")
    h.e(f"s_lshl_b32 s{S_T1}, s{S_T0}, 3")
    h.e(f"v_add_lshl_u32 v3, v2, s{S_T1}, 7")
    h.e("v_min_u32 v3, L_end-L_pc-4, v3")
    h.e("global_load_dword v15, v3, s[20:21]")
h.e(f"s_and_b32 s{S_Q}, s{S_T0}, 3")
h.e(f"s_lshr_b32 s{S_GL}, s{S_T0}, 2")
h.e(f"s_and_b32 s{S_T1}, s2, 7")
h.e(f"s_lshl3_add_u32 s{S_G}, s{S_GL}, s{S_T1}")
h.e(f"s_lshr_b32 s{S_T0}, s{S_G}, 5")
h.e(f"s_lshl_b32 s{S_TILE}, s{S_T0}, 22")
h.e(f"s_and_b32 s{S_T1}, s{S_G}, 31")
h.e(f"s_lshl_b32 s{S_T1}, s{S_T1}, 8")
h.e(f"s_add_u32 s{S_TILE}, s{S_TILE}, s{S_T1}")
if P["rotmode"]: h.e(f"s_mov_b32 s{S_R}, 0")
else: h.e(f"s_and_b32 s{S_R}, s{S_GL}, 3")
h.e(f"s_cmp_lt_u32 s{S_W}, 4")
h.e("s_cbranch_scc1 L_compute")

L = Prog(); L.nst = h.nst
D = P["D"]
ntx = " nt" if P["ntx"] else ""
L.c("---------------- loader waves: wave 4+i brings rows 4i..4i+3 of every 16-row step")
L.e("v_lshrrev_b32 v4, 4, v1")
L.e("v_lshlrev_b32 v6, 1, v2")
L.e("v_xor_b32 v6, v6, v1")
L.e("v_and_b32 v6, 3, v6")
L.e("v_lshlrev_b32 v6, 4, v6")
L.e("v_bfe_u32 v5, v0, 2, 2")
L.e("v_and_b32 v2, 3, v2")
L.e("v_lshl_add_u32 v5, v2, 2, v5")
L.e("v_lshl_add_u32 v7, v4, 6, v6")
L.e("v_lshl_add_u32 v2, v5, 13, v7")
L.e(f"v_add_u32 v2, s{S_TILE}, v2")
L.e(f"s_lshl_b32 s{S_T0}, s{S_Q}, 8")
L.e(f"v_lshl_add_u32 v5, v5, 10, s{S_T0}")
L.e("v_add_u32 v3, v5, v7")
L.e(f"s_and_b32 s{S_LB}, s{S_W}, 3")
L.e(f"s_lshl_b32 s{S_LB}, s{S_LB}, 10")
L.e(f"s_mov_b32 s{S_N}, 0")
L.e(f"s_mov_b32 s{SRD_A+2}, 0x800000"); L.e(f"s_mov_b32 s{SRD_A+3}, 0x20000")
L.e(f"s_mov_b32 s{SRD_B+2}, 0x80000"); L.e(f"s_mov_b32 s{SRD_B+3}, 0x20000")
L.e("s_waitcnt lgkmcnt(0)")
L.e(f"s_mov_b64 {sp(SRD_A)}, s[4:5]")
L.e(f"s_mov_b64 {sp(SRD_B)}, s[8:9]")
if P["spf"]:
    L.e(f"s_lshl_b32 s56, s{S_GL}, 16"); L.e(f"s_lshl_b32 s57, s{S_LB}, 4"); L.e("s_add_u32 s56, s56, s57"); L.e(f"s_add_u32 s56, s56, s{S_T0}")
    L.e("s_add_u32 s56, s56, s12"); L.e("s_addc_u32 s57, s13, 0"); L.e("s_mov_b32 s58, 0")
L.lab("L_ld1")
L.c("slot n holds 32 rows: block n/4 of quarter (n+member+group)&3, so that every row is first fetched by few workgroups")
L.e(f"s_add_u32 s{S_T0}, s{S_N}, s{S_Q}")
if P["rotmode"]: L.e(f"s_add_u32 s{S_T0}, s{S_T0}, s{S_GL}")
L.e(f"s_and_b32 s{S_T0}, s{S_T0}, 3")
L.e(f"s_lshr_b32 s{S_T1}, s{S_N}, 2")
if not P.get("rotmode"):
    L.e(f"s_add_u32 s{S_T1}, s{S_T1}, s{S_R}")
    L.e(f"s_and_b32 s{S_T1}, s{S_T1}, 3")
L.e(f"s_lshl2_add_u32 s{S_T0}, s{S_T0}, s{S_T1}")
L.e(f"s_mov_b32 m0, s{S_LB}")
L.e(f"s_lshl_b32 s{S_XO}, s{S_T0}, 18")
L.e(f"buffer_load_dwordx4 v2, {sq(SRD_A)}, s{S_XO} offen{ntx} lds")
L.e(f"s_add_u32 m0, s{S_LB}, 0x1000")
L.e(f"s_lshl_b32 s{S_WO}, s{S_T0}, 15")
L.e(f"buffer_load_dwordx4 v3, {sq(SRD_B)}, s{S_WO} offen lds")
L.e(f"s_add_u32 m0, s{S_LB}, 0x2000")
L.e(f"s_add_u32 s{S_XO}, s{S_XO}, 0x20000")
L.e(f"buffer_load_dwordx4 v2, {sq(SRD_A)}, s{S_XO} offen{ntx} lds")
L.e(f"s_add_u32 m0, s{S_LB}, 0x3000")
L.e(f"s_add_u32 s{S_WO}, s{S_WO}, 0x4000")
L.e(f"buffer_load_dwordx4 v3, {sq(SRD_B)}, s{S_WO} offen lds")
L.e(f"s_add_u32 s{S_LB}, s{S_LB}, 0x4000")
L.e(f"s_and_b32 s{S_LB}, s{S_LB}, 0x1ffff")
L.e(f"s_add_u32 s{S_N}, s{S_N}, 1")
L.e(f"s_cmp_lt_u32 s{S_N}, {D}")
L.e("s_cbranch_scc1 L_ld1")
if P["warm"]:
    L.e(f"s_cmp_lt_u32 s{S_N}, {D + P['hop0'] + 3}")
    L.e("s_cbranch_scc1 L_warm")
    L.lab("L_warm_done")
if P["spf"]:
    L.c("this workgroup's share of w_out into the L2 by scalar loads (the values are not used)")
    rows, gran = P["spf"]
    for r in range(rows):
        for o in range(0, 256, gran): L.e(f"s_load_dword s54, s[56:57], {hex(r * 1024 + o)}")
    L.e(f"s_add_u32 s58, s58, {rows}")
    L.e(f"s_cmp_lt_u32 s58, 16")
    L.e(f"s_cselect_b32 s{S_T0}, {hex(rows * 1024)}, 0")
    L.e(f"s_add_u32 s56, s56, s{S_T0}")
    L.e("s_addc_u32 s57, s57, 0")
L.e(f"s_waitcnt vmcnt({4 * (D - 1)})")
L.e("s_barrier")
L.e(f"s_cmp_lt_u32 s{S_N}, 16")
L.e("s_cbranch_scc1 L_ld1")
L.e("s_branch L_ld2")
if P["warm"]:
    L.c("while the first rows are under way: run through branch-only hops so that later code pages are already in the instruction cache")
    L.lab("L_warm")
    L.e(f"s_cmp_lg_u32 s{S_N}, {D}")
    L.e("s_cbranch_scc1 L_warm2")
    if P["tlb"] == 2:
        L.c("scalar first touches (translation and L2 only; the values are not used)")
        L.e(f"s_lshl_b32 s{S_T0}, s{S_W}, 20")
        L.e(f"s_and_b32 s{S_T0}, s{S_T0}, 0x300000")
        L.e(f"s_add_u32 s{S_T0}, s{S_T0}, s{S_TILE}")
        L.e(f"s_load_dword s54, s[14:15], s{S_T0}")
        L.e(f"s_lshl_b32 s{S_T0}, s{S_G}, 9")
        L.e(f"s_lshl_b32 s{S_T1}, s{S_Q}, 8")
        L.e(f"s_cmp_eq_u32 s{S_W}, 4")
        L.e("s_cbranch_scc0 L_warm2")
        L.e(f"s_load_dword s55, s[18:19], s{S_T0}")
        L.e("s_load_dword s56, s[6:7], 0")
        L.e(f"s_load_dword s57, s[10:11], s{S_T1}")
        L.e("s_load_dword s58, s[12:13], 0")
    L.lab("L_warm2")
    L.e(f"s_lshl2_add_u32 s{S_T0}, s{S_N}, s{S_W}")
    L.e("s_mov_b64 exec, 0")
    L.l.append("@HOPS")
    L.lab("L_warm_ret")
    L.e("s_mov_b64 exec, -1")
    L.e("s_branch L_warm_done")
L_HEAD = len(L.l)
L.lab("L_ld2")
L.stamp()
L.c("w_out: rows start at this member's own quarter; column blocks in the order in which x's own rows were kept")
L.e(f"v_add_u32 v4, s{S_R}, v4")
L.e("v_and_b32 v4, 3, v4")
L.e("v_lshl_add_u32 v7, v4, 6, v6")
L.e("v_add_u32 v3, v5, v7")
L.e(f"s_mov_b64 {sp(SRD_B)}, s[12:13]")
L.e(f"s_lshl_b32 s{S_WO}, s{S_Q}, 17")
L.e("v_and_b32 v8, 7, v1")
L.e("v_lshlrev_b32 v8, 2, v8")
L.e(f"v_add_u32 v8, {LDS_RDY}, v8")
L.e("v_mov_b32 v9, 0")
L.e("ds_write_b32 v8, v9")
L.vq = [("c", n) for n in range(16 - D + 1, 16) for _ in range(4)]
def fill(pos):
    if pos != P['fillpos']: return
    if P["fill"]:
        L.c("make the hand-off lines of this workgroup valid in the L2 ahead of their readers; the values are not used")
        n_ = P["fill"]
        L.e(f"s_and_b32 s{S_T0}, s{S_W}, 3")
        L.e(f"s_lshl_b32 s{S_T0}, s{S_T0}, {3 + n_}")
        L.e(f"s_lshl_b32 s{S_T1}, s{S_R}, 5")
        L.e(f"s_add_u32 s{S_T0}, s{S_T0}, s{S_T1}")
        L.e(f"s_and_b32 s{S_T0}, s{S_T0}, 127")
        L.e(f"s_lshl_b32 s{S_T1}, s{S_Q}, 7")
        L.e(f"s_add_u32 s{S_T0}, s{S_T0}, s{S_T1}")
        L.e(f"v_lshrrev_b32 v24, {3 - n_}, v1")
        L.e(f"v_add_lshl_u32 v24, v24, s{S_T0}, 13")
        L.e(f"v_and_b32 v25, {3 if n_ == 1 else 1}, v1")
        L.e(f"v_lshl_add_u32 v24, v25, {5 + n_}, v24")
        L.e(f"v_add_u32 v24, s{S_TILE}, v24")
        L.vm("global_load_dword v25, v24, s[14:15] nt", "fill")
    if P["wo_touch"] == -1:
        L.e(f"s_lshl_b32 s{S_T0}, s{S_GL}, 2"); L.e(f"s_and_b32 s{S_T1}, s{S_W}, 3"); L.e(f"s_add_u32 s{S_T0}, s{S_T0}, s{S_T1}")
        L.e(f"s_lshl_b32 s{S_T0}, s{S_T0}, 14"); L.e(f"s_lshl_b32 s{S_T1}, s{S_Q}, 8"); L.e(f"s_add_u32 s{S_T0}, s{S_T0}, s{S_T1}")
        L.e("v_lshrrev_b32 v26, 2, v1"); L.e(f"v_lshl_add_u32 v26, v26, 10, s{S_T0}"); L.e("v_and_b32 v27, 3, v1"); L.e("v_lshl_add_u32 v26, v27, 6, v26")
        L.vm("global_load_dword v27, v26, s[12:13]", "fill")
def ld_wo(n, fine=False):
    if n < 22: fill(n)
    for p in range(4):
        if fine: throttle()
        L.e(f"s_add_u32 m0, s{S_LB}, {hex(((n - 16) * 4 + p) * 4096)}")
        if n > 16 or p: L.e(f"s_add_u32 s{S_WO}, s{S_WO}, 0x4000")
        else: L.e("s_waitcnt lgkmcnt(0)")
        if p == 0 and n % 2 == 0 and n > 16: L.e(f"s_and_b32 s{S_WO}, s{S_WO}, 0x7ffff")
        L.vm(f"buffer_load_dwordx4 v3, {sq(SRD_B)}, s{S_WO} offen lds", ("c", n))
def throttle():
    if len(L.vq) > P["thr"]:
        L.e(f"s_waitcnt vmcnt({P['thr']})"); L.vq = L.vq[len(L.vq) - P["thr"]:]
nxt = 16
for c in range(16 - D + 1, 16):
    ld_wo(nxt); nxt += 1
    L.vneed(("c", c))
    L.e("s_barrier")
L.stamp()
L.e("v_and_b32 v11, 3, v1")
L.e(f"s_lshl_b32 s{S_T0}, s{S_G}, 9")
L.e(f"v_lshl_add_u32 v12, v11, 4, s{S_T0}")
if P["prime"]:
    L.c("bring the progress line into the L2 early; this value is not used")
    L.vm("global_load_dword v16, v12, s[18:19] offset:256 sc1", "prime")
while nxt <= P["pre16"]:
    throttle(); ld_wo(nxt); nxt += 1
assert nxt in (20, 22)
M_LATE = (nxt - 16) // 2
fill(22)
L.vneed(("c", 17))
L.stamp()
L.e(f"s_lshl_b32 s{S_T0}, s{S_W}, 2")
L.e(f"s_add_u32 s{S_T0}, s{S_T0}, {LDS_RDY}")
L.e(f"v_mov_b32 v8, s{S_T0}")
L.e("v_mov_b32 v9, 1")
L.e(f"v_mov_b32 v13, {LDS_RDY}")
L.e(f"s_mov_b32 s{S_CNT}, 0")
L.e(f"s_mov_b32 s{S_N}, 1")
L.e("s_barrier")
L.e(f"s_cmp_eq_u32 s{S_W}, 4")
L.e("s_cbranch_scc1 L_poll")
L.e("s_waitcnt vmcnt(0)")
L.e("ds_write_b32 v8, v9")
L.c("the last rows of w_out follow the first hand-off loads")
L.lab("L_wait1")
L.e("ds_read_b32 v16, v13")
L.e(f"s_add_u32 s{S_CNT}, s{S_CNT}, 1")
L.e("s_waitcnt lgkmcnt(0)")
L.e(f"v_readfirstlane_b32 s{S_T0}, v16")
L.e(f"s_cmp_ge_u32 s{S_CNT}, 0x800000")
L.e("s_cbranch_scc1 L_last")
L.e(f"s_cmp_eq_u32 s{S_T0}, 0")
L.e("s_cbranch_scc1 L_wait1")
L.lab("L_last")
L.stamp()
L.vq = []
P["thr"] = P["thr2"]
while nxt < 24:
    ld_wo(nxt, True); nxt += 1
L.e("v_mov_b32 v9, 2")
L.e(f"s_mov_b32 s{S_N}, 4")
L.e(f"s_cmp_eq_u32 s{S_W}, 4")
L.e("s_cbranch_scc1 L_poll")
L.e("s_waitcnt vmcnt(0)")
L.e("ds_write_b32 v8, v9")
L.e("s_branch L_fin")
L.c("wave 4: relay the smallest progress word of the group into LDS")
L.lab("L_poll")
L.e("global_load_dwordx4 v[16:19], v12, s[18:19] offset:256 sc1")
L.e(f"s_add_u32 s{S_CNT}, s{S_CNT}, 1")
L.e("s_waitcnt vmcnt(0)")
L.e("v_min3_u32 v16, v16, v17, v18")
L.e("v_min_u32 v16, v16, v19")
L.e("ds_write_b32 v8, v9")
L.e("s_nop 0")
L.e("v_min_u32_dpp v16, v16, v16 quad_perm:[1,0,3,2] row_mask:0xf bank_mask:0xf")
L.e("s_nop 1")
L.e("v_min_u32_dpp v16, v16, v16 quad_perm:[2,3,0,1] row_mask:0xf bank_mask:0xf")
L.e("ds_write_b32 v13, v16")
L.e(f"v_readfirstlane_b32 s{S_T0}, v16")
L.e(f"s_cmp_ge_u32 s{S_CNT}, 0x100000")
L.e(f"s_cselect_b32 s{S_T0}, 4, s{S_T0}")
L.e(f"s_cmp_lt_u32 s{S_T0}, s{S_N}")
L.e("s_cbranch_scc1 L_poll")
L.e(f"s_cmp_eq_u32 s{S_N}, 1")
L.e("s_cbranch_scc1 L_last")
L.lab("L_fin")
L.stamp()
L.dump_stamps()
L.lab("L_exit")
L.e("s_endpgm")

C = Prog(); C.nst = h.nst; C.is_c = True
if P["codepf"]: C.vq.append("code")
AD = list(range(2, 10))
VM0, VM1, VFL, VFS, VT0, VT1, VSW, VSR, VOUT, VRDY = 10, 11, 12, 13, 14, 15, 16, 17, 18, 19
RA, RH, RX, RBI, RS, RF = 20, 84, 116, 148, 164, 170
RF = 172; NPOOL = (256 - RF) // 4
SRD_WS, SRD_OUT, SRD_WO = SRD_A, SRD_B, SRD_C
C.lab("L_compute")
C.c("---------------- compute waves")
T = RH
vG, vC, vEMBA, vSIGA, vT0A, vSIG, vEMB, vEP, vZ, vANN, vJ, vL4, vTCH, vBW, vBR, vCHK, vCHA = \
    T, T+1, T+2, T+3, T+4, T+5, T+6, T+7, T+8, T+12, T+14, T+15, T+16, T+17, T+18, T+26, T+28
C.e(f"v_lshrrev_b32 v{vG}, 4, v1")
C.e(f"v_bfe_u32 v{vC}, v1, 2, 2")
C.e(f"v_lshlrev_b32 v{vC}, 6, v{vC}")
C.e(f"v_lshl_add_u32 v{AD[0]}, v{vG}, 10, v{vC}")
C.e(f"v_and_b32 v{vC}, 1, v{vG}")
C.e(f"v_lshl_add_u32 v{AD[0]}, v{vC}, 5, v{AD[0]}")
C.e(f"v_and_b32 v{vC}, 3, v1")
C.e(f"v_lshl_add_u32 v{AD[6]}, v{vC}, 3, v{AD[0]}")
C.e(f"s_lshl_b32 s{S_T0}, s{S_W}, 8")
C.e(f"v_add_u32 v{AD[2]}, s{S_T0}, v{AD[6]}")
C.e(f"s_and_b32 s{S_T1}, s{S_W}, 1")
C.e(f"s_lshl_b32 s{S_T1}, s{S_T1}, 9")
C.e(f"v_add_u32 v{AD[0]}, s{S_T1}, v{AD[6]}")
C.e(f"v_xor_b32 v{AD[1]}, 32, v{AD[0]}")
C.e(f"v_xor_b32 v{AD[3]}, 32, v{AD[2]}")
C.e(f"v_xor_b32 v{AD[4]}, 0x100, v{AD[2]}")
C.e(f"v_xor_b32 v{AD[5]}, 0x100, v{AD[3]}")
C.e(f"s_lshl_b32 s{S_T0}, s{S_Q}, 8")
C.e(f"v_lshl_add_u32 v{vEMBA}, v1, 2, s{S_T0}")
C.e(f"s_lshr_b32 s{S_T0}, s{S_TILE}, 21")
C.e(f"v_mov_b32 v{vSIGA}, s{S_T0}")
C.c("thread 0 resets this workgroup's four progress words, then announces that (and its XCD) under this launch's tag")
C.e(f"v_lshlrev_b32 v{vT0A}, 24, v0")
for i in range(4): C.e(f"v_mov_b32 v{vZ+i}, 0")
C.e(f"s_lshl_b32 s{S_EP}, s{S_G}, 9")
C.e(f"s_lshl4_add_u32 s{S_T2}, s{S_Q}, s{S_EP}")
C.e(f"s_mov_b32 s{SRD_WS+2}, {hex(WS_BYTES)}"); C.e(f"s_mov_b32 s{SRD_WS+3}, 0x20000")
C.e(f"s_getreg_b32 s{S_XCC}, hwreg(HW_REG_XCC_ID, 0, 4)")
C.e("s_waitcnt lgkmcnt(0)")
C.e(f"s_mov_b64 {sp(SRD_WS)}, s[18:19]")
def small():
    C.vm(f"buffer_store_dwordx4 {q4(vZ)}, v{vT0A}, {sq(SRD_WS)}, s{S_EN} offen offset:256 sc1", "clr")
    C.vm(f"buffer_load_dword v{vEP}, v{vZ}, {sq(SRD_WS)}, s{S_EP} offen sc1", "ep")
    C.vm(f"global_load_ushort v{vSIG}, v{vSIGA}, s[6:7]", "sig")
    C.vm(f"global_load_dword v{vEMB}, v{vEMBA}, s[10:11]", "emb")
    pass
C.e(f"s_mov_b32 s{S_EN}, s{S_T2}")
if P['small'] < 0: small()
if P["tlb"] == 1:
    C.c("first touch of the pages used later (address translation only; the values are not used)")
    C.e(f"v_lshl_add_u32 v{VT0}, v{vC}, 20, s{S_TILE}")
    C.e(f"s_cmp_eq_u32 s{S_W}, 1")
    C.e("s_cbranch_scc0 L_notlb")
    C.e(f"global_load_dword v{VT0}, v{VT0}, s[14:15] nt")
    C.e(f"global_load_dword v{VT1}, v{vZ}, s[12:13]")
    C.lab("L_notlb")
for t in [
    f"s_mov_b64 {sp(SRD_WO)}, s[12:13]", f"s_mov_b32 s{SRD_WO+2}, 0x80000", f"s_mov_b32 s{SRD_WO+3}, 0x20000",
    f"s_mov_b64 {sp(SRD_OUT)}, s[14:15]", f"s_mov_b32 s{SRD_OUT+2}, 0x800000", f"s_mov_b32 s{SRD_OUT+3}, 0x20000",
    f"v_lshrrev_b32 v{vL4}, 2, v1", f"v_and_b32 v{vJ}, 15, v1",
    f"s_lshl_b32 s{S_T0}, s{S_GL}, 16", f"s_lshl_b32 s{S_T1}, s{S_W}, 14", f"s_add_u32 s{S_T0}, s{S_T0}, s{S_T1}",
    f"s_lshl_b32 s{S_T1}, s{S_Q}, 8", f"s_add_u32 s{S_T0}, s{S_T0}, s{S_T1}",
    f"v_lshl_add_u32 v{vTCH}, v{vL4}, 10, s{S_T0}", f"v_lshl_add_u32 v{vTCH}, v{vC}, 6, v{vTCH}",
    f"s_lshl2_add_u32 s{S_T2}, s{S_W}, s{S_T2}", f"v_lshl_add_u32 v{VFL}, v1, 24, s{S_T2}", f"v_mov_b32 v{VFS}, 2.0",
    f"v_lshlrev_b32 v{vCHA}, 3, v{vC}", f"s_mov_b32 s{S_MODE}, 0",
    f"s_lshl_b32 s{S_T0}, s{S_W}, 9", f"s_add_u32 s{S_T0}, s{S_T0}, {LDS_BIAS}", f"v_lshl_add_u32 v{vBW}, v1, 3, s{S_T0}",
    f"s_and_b32 s{S_T3}, s{S_W}, 1", f"s_lshl_b32 s{S_T1}, s{S_T3}, 8", f"s_add_u32 s{S_T0}, s{S_T0}, s{S_T1}",
    f"v_lshl_add_u32 v{vBR}, v{vG}, 4, s{S_T0}",
    f"s_mul_i32 s{S_T0}, s{S_W}, 5120", f"s_add_u32 s{S_T0}, s{S_T0}, {LDS_STG}",
    f"v_mul_u32_u24 v{VSW}, 80, v{vJ}", f"v_lshl_add_u32 v{VSW}, v{vG}, 3, v{VSW}", f"v_add_u32 v{VSW}, s{S_T0}, v{VSW}",
    f"v_mul_u32_u24 v{VSR}, 80, v{vL4}", f"v_lshl_add_u32 v{VSR}, v{vC}, 4, v{VSR}", f"v_add_u32 v{VSR}, s{S_T0}, v{VSR}",
    f"s_lshl_b32 s{S_T0}, s{S_Q}, 20", f"s_add_u32 s{S_T0}, s{S_T0}, s{S_TILE}", f"s_lshl_b32 s{S_T1}, s{S_W}, 6",
    f"s_add_u32 s{S_T0}, s{S_T0}, s{S_T1}", f"v_lshl_add_u32 v{VOUT}, v{vL4}, 13, s{S_T0}", f"v_lshl_add_u32 v{VOUT}, v{vC}, 4, v{VOUT}",
    f"v_lshrrev_b32 v{VM0}, 3, v1", f"v_lshlrev_b32 v{VM0}, 13, v{VM0}", f"v_and_b32 v{VM1}, 7, v1",
    f"v_lshl_add_u32 v{VM0}, v{VM1}, 4, v{VM0}", f"v_add_u32 v{VM0}, s{S_TILE}, v{VM0}", f"v_add_u32 v{VM1}, 0x10000, v{VM0}",
    f"v_mov_b32 v{VRDY}, {LDS_RDY}", f"s_sub_u32 s{S_OWN}, 0, s{S_GL}", f"s_and_b32 s{S_OWN}, s{S_OWN}, 3",
    ]: C.e(t)
for j in range(4):
    C.e(f"s_add_u32 s{S_T0}, s{S_R}, {j}"); C.e(f"s_and_b32 s{S_T0}, s{S_T0}, 3"); C.e(f"s_lshl_b32 s{S_OB[j]}, s{S_T0}, 18")
C.c("hand-off rows: stage s of producer wave p lies in output block 2s + p/2, rows 16*(p&1)..+15")
C.e(f"s_cmp_lt_u32 s{S_W}, 2")
C.e(f"s_cselect_b32 s{S_T0}, s{S_OB[0]}, s{S_OB[1]}")
C.e(f"s_cselect_b32 s{S_T1}, s{S_OB[2]}, s{S_OB[3]}")
C.e(f"s_lshl_b32 s{S_T3}, s{S_T3}, 17")
C.e(f"s_add_u32 s{S_T0}, s{S_T0}, s{S_T3}")
C.e(f"s_add_u32 s{S_T1}, s{S_T1}, s{S_T3}")
for m in range(4):
    C.e(f"s_add_u32 s{S_T3}, s{S_Q}, {m}"); C.e(f"s_and_b32 s{S_T3}, s{S_T3}, 3"); C.e(f"s_lshl_b32 s{S_T3}, s{S_T3}, 20")
    C.e(f"s_add_u32 s{S_MB[m, 0]}, s{S_T3}, s{S_T0}"); C.e(f"s_add_u32 s{S_MB[m, 1]}, s{S_T3}, s{S_T1}")
    if m == 0: C.e(f"s_xor_b32 s{S_T0}, s{S_T0}, 0x20000")

F = []
F.append(lambda: C.vneed("clr", "ep", "sig", "emb"))
F += [f"v_readfirstlane_b32 s{S_T3}, v{vEP}",
      f"s_mul_i32 s{S_H0}, s{S_T3}, {hex(HC0)}", f"s_add_u32 s{S_H0}, s{S_H0}, {hex(HK0)}",
      f"s_mul_i32 s{S_H1}, s{S_T3}, {hex(HC1)}", f"s_add_u32 s{S_H1}, s{S_H1}, {hex(HK1)}",
      f"s_add_u32 s{S_H0}, s{S_H0}, s{S_XCC}", f"s_add_u32 s{S_H1}, s{S_H1}, s{S_XCC}",
      f"v_mov_b32 v{vANN}, s{S_H0}", f"v_mov_b32 v{vANN+1}, s{S_H1}", f"s_lshl3_add_u32 s{S_T0}, s{S_Q}, s{S_EP}"]
F.append(lambda: C.vm(f"buffer_store_dwordx2 {q2(vANN)}, v{vT0A}, {sq(SRD_WS)}, s{S_T0} offen offset:128 sc1", "ann"))
F += [f"s_add_u32 s{S_EN}, s{S_T3}, 1"]
sg, a, b2, cs, cn = vSIG, T + 20, T + 21, T + 22, T + 23
def rnd(r): return [f"v_cvt_pk_bf16_f32 v{r}, v{r}, v{r}", f"v_lshlrev_b32 v{r}, 16, v{r}"]
F += [f"v_lshlrev_b32 v{sg}, 16, v{sg}", f"v_mul_f32 v{a}, v{sg}, v{sg}"] + rnd(a)
F += [f"v_add_f32 v{a}, 0x3e800000, v{a}"] + rnd(a)
F += [f"v_rcp_f32 v{cs}, v{a}", f"v_sqrt_f32 v{a}, v{a}"] + rnd(cs) + rnd(a)
F += [f"v_mul_f32 v{cs}, 0x3e800000, v{cs}", f"v_rcp_f32 v{a}, v{a}", f"v_lshrrev_b32 v{cs}, 16, v{cs}", f"v_mul_f32 v{b2}, 0.5, v{sg}"]
F += [f"v_mul_f32 v{b2}, v{b2}, v{a}"] + rnd(b2) + rnd(a)
F += [f"v_log_f32 v{cn}, v{sg}", f"v_mul_f32 v{a}, 0xbfb8aa3b, v{a}", f"v_mul_f32 v{cn}, 0x3f317218, v{cn}"] + rnd(cn)
F += [f"v_max_f32 v{b2}, 0x03800000, v{b2}", f"v_mul_f32 v{b2}, 0xbf317218, v{b2}", f"v_rcp_f32 v{b2}, v{b2}"]
F += [f"v_mul_f32 v{cn}, 0x3e800000, v{cn}"]
F += [f"v_readfirstlane_b32 s{S_S1}, v{a}", f"v_readfirstlane_b32 s{S_IK}, v{b2}", f"s_mov_b32 s{S_S1+1}, s{S_S1}", f"s_mov_b32 s{S_IK+1}, s{S_IK}"]
e0, e1 = T + 24, T + 25
F += [f"v_lshlrev_b32 v{e0}, 16, v{vEMB}", f"v_and_b32 v{e1}, 0xffff0000, v{vEMB}",
      f"v_mul_f32 v{e0}, v{cn}, v{e0}", f"v_mul_f32 v{e1}, v{cn}, v{e1}",
      f"v_cvt_pk_bf16_f32 v{e1}, v{e0}, v{e1}", f"v_lshlrev_b32 v{e0}, 16, v{e1}", f"v_and_b32 v{e1}, 0xffff0000, v{e1}",
      f"v_mul_f32 v{e0}, 0xbfb8aa3b, v{e0}", f"v_mul_f32 v{e1}, 0xbfb8aa3b, v{e1}"]
F.append(("lds", f"ds_write_b64 v{vBW}, {q2(e0)}", "biasw"))
for i in range(4):
    F.append(("lds", f"ds_read_b128 {q4(RBI + 4 * i)}, v{vBR} offset:{i * 64}", "bias"))
F += [f"v_and_b32 v{e0}, 1, v1", f"v_lshlrev_b32 v{e0}, 4, v{e0}", f"v_lshlrev_b32 v{cs}, v{e0}, v{cs}",
      f"v_lshrrev_b32 v{e0}, 1, v{vJ}", f"v_lshlrev_b32 v{e1}, 1, v{vG}", f"v_sub_u32 v{e0}, v{e0}, v{e1}",
      f"v_cmp_eq_u32 vcc, 0, v{e0}", f"v_mov_b32 v{RS}, 0", f"v_cndmask_b32 v{RS+2}, 0, v{cs}, vcc",
      f"v_cmp_eq_u32 vcc, 1, v{e0}", f"v_mov_b32 v{RS+1}, 0", f"v_cndmask_b32 v{RS+3}, 0, v{cs}, vcc",
      f"v_mov_b32 v{RS+4}, 0", f"v_mov_b32 v{RS+5}, 0"]
F_START, F_STEP = P.get('fstart', 20), 1
if P.get('nofill'): F = F[:12]; lastF = 0

class Pool:
    def __init__(s, regs): s.free = list(regs); s.rel = []
    def get(s, now):
        s.free += [r for t, r in s.rel if t <= now]; s.rel = [(t, r) for t, r in s.rel if t > now]
        assert s.free, "fragment pool empty"
        return s.free.pop(0)
    def put(s, t, r): s.rel.append((t, r))

def stream(units, reads_of, lead, pool, hook, first_burst):
    firstuse, lastuse = {}, {}
    for i, u in enumerate(units):
        for k in u:
            firstuse.setdefault(k, i); lastuse[k] = i
    order = sorted(firstuse, key=lambda k: firstuse[k])
    rq = [(k, i) for k in order for i in range(2)]
    reg = {}
    def issue(now):
        k, i = rq.pop(0)
        if i == 0:
            fixed = reads_of(k, None, None)
            reg[k] = fixed if fixed is not None else pool.get(now)
            if fixed is None: pool.put(lastuse[k] + 2, reg[k])
        reads_of(k, i, reg[k])
    return rq, reg, issue, firstuse

SEQ = [(0,0),(0,1),(1,1),(1,0),(1,2),(0,2),(2,2),(2,1),(2,0),(2,3),(1,3),(0,3),(3,3),(3,2),(3,1),(3,0)]
u1 = [(("w", n, a), ("x", n, p)) for n in range(16) for a, p in SEQ]
cur64 = [0]
def rd1(k, i, r):
    kind, n, t = k
    if i is None:
        return RX + 8 * (n // 4) + 4 * t if (kind == "x" and n % 4 == 0 and t < 2 and not P["rotmode"]) else None
    base = (n % 4) * 16384 + 8192 * i
    if kind == "w": a_, off = AD[t & 1], 4096 + 256 * (t >> 1)
    else: a_, off = AD[2 + 2 * (t >> 1) + (t & 1)], 0
    C.lds(f"ds_read_b64_tr_b16 {q2(r + 2 * i)}, v{a_} offset:{base + off}", k)
pool = Pool([RF + 4 * i for i in range(NPOOL)])
rq, reg, issue, fu = stream(u1, rd1, P["lead"], pool, None, 0)
C.stamp()
C.e("s_barrier")
if P["small"] == 0: small()
C.stamp()
barred = 0
def issue1(now):
    global barred
    n = rq[0][0][1]
    if n > barred:
        barred = n
        if n % 4 == 0:
            for r in AD[:6]: C.e(f"v_xor_b32 v{r}, 0x10000, v{r}")
        C.e("s_barrier")
        if n == P["small"]: small()
        if n == P["wo_touch"]:
            C.c("this workgroup's share of w_out into the L2; the values are not used")
            C.vm(f"buffer_load_dword v{VT1}, v{vTCH}, {sq(SRD_WO)}, 0 offen", "touch")
        if n == 11: C.vm(f"buffer_load_dwordx2 {q2(vCHK)}, v{vCHA}, {sq(SRD_WS)}, s{S_EP} offen offset:128 sc1", "chk")
    issue(now)
for _ in range(P["lead"]): issue1(0)
for i, (ka, kb) in enumerate(u1):
    if i and i % 64 == 0 and not P['xs']: C.stamp()
    C.need(ka, kb)
    a_, p_ = ka[2], kb[2]
    acc = RA + 4 * (4 * p_ + a_)
    C.e(f"v_mfma_f32_16x16x32_bf16 {q4(acc)}, {q4(reg[ka])}, {q4(reg[kb])}, {'0' if i < 16 else q4(acc)}")
    if rq: issue1(i)
    if P["rotmode"] and i % 16 == 9:
        n = i // 16
        C.e(f"s_cmp_eq_u32 s{S_OWN}, {n & 3}")
        C.e(f"s_cbranch_scc0 L_keep{n}")
        for t in range(2):
            for o in range(4): C.e(f"v_mov_b32 v{RX + 8 * (n // 4) + 4 * t + o}, v{reg['x', n, t] + o}")
        C.lab(f"L_keep{n}")
        continue
    C.l.append("@GAP")
    waited = i + 1 < len(u1) and C.need(*u1[i + 1])
    if F and i >= F_START and not waited:
        f = F.pop(0)
        if isinstance(f, str): C.e(f)
        elif isinstance(f, tuple): C.lds(f[1], f[2])
        else: f()
        lastF = i
assert not F
assert not C.lq
C.stamp()
C.c("all four members have reset their progress words in this launch, and one L2 serves all of them")
C.vneed("chk", "touch")
C.e(f"v_cmp_ne_u32 vcc, s{S_H0}, v{vCHK}")
C.e(f"v_cmp_ne_u32 {sp(S_MSK)}, s{S_H1}, v{vCHK+1}")
C.c("w_out addresses: [near/far 32-row pair][half][64 KiB]")
C.e(f"s_and_b32 s{S_T0}, s{S_W}, 1")
C.e(f"s_lshl_b32 s{S_T0}, s{S_T0}, 14")
C.e(f"s_or_b64 vcc, vcc, {sp(S_MSK)}")
if P.get("forceslow"): C.e("s_cmp_eq_u32 0, 0")
C.e("s_cbranch_scc1 L_ann_wait")
C.lab("L_ann_ok")
C.tail += ["L_ann_wait:", f"    s_mov_b32 s{S_CNT}, 0",
           f"    s_sub_u32 s{S_H0}, s{S_H0}, s{S_XCC}", f"    s_sub_u32 s{S_H1}, s{S_H1}, s{S_XCC}", "L_ann_l:",
           f"    buffer_load_dwordx2 {q2(vCHK)}, v{vCHA}, {sq(SRD_WS)}, s{S_EP} offen offset:128 sc1",
           f"    s_add_u32 s{S_CNT}, s{S_CNT}, 1", "    s_waitcnt vmcnt(0)",
           f"    v_subrev_u32 v{vCHK}, s{S_H0}, v{vCHK}", f"    v_subrev_u32 v{vCHK+1}, s{S_H1}, v{vCHK+1}",
           f"    v_cmp_ne_u32 vcc, v{vCHK}, v{vCHK+1}", f"    v_cmp_le_u32 {sp(S_MSK)}, 16, v{vCHK}",
           f"    s_cmp_ge_u32 s{S_CNT}, 0x100000", "    s_cbranch_scc1 L_ann_ok",
           f"    s_or_b64 vcc, vcc, {sp(S_MSK)}", "    s_cbranch_scc1 L_ann_l",
           f"    v_cmp_ne_u32 vcc, s{S_XCC}, v{vCHK}", "    s_nop 1", "    s_cmp_lg_u64 vcc, 0"]
if not P.get("forceslow"): C.tail += ["    s_cbranch_scc0 L_ann_ok"]
C.tail += ["    ; members on several XCDs: the L2-local stores fall out of range; L_slow0/1 publish through memory instead",
           f"    s_mov_b32 s{S_MODE}, 1", f"    v_or_b32 v{VM0}, 2.0, v{VM0}", f"    v_or_b32 v{VM1}, 2.0, v{VM1}",
           f"    v_mov_b32 v{VFS}, v{VFL}", f"    v_mov_b32 v{VFL}, 2.0", "    s_branch L_ann_ok"]
C.e(f"v_add_u32 v{AD[0]}, s{S_T0}, v{AD[6]}")
C.e(f"v_xor_b32 v{AD[2]}, 32, v{AD[0]}")
C.e(f"v_xor_b32 v{AD[4]}, 0x4000, v{AD[0]}")
C.e(f"v_xor_b32 v{AD[6]}, 0x4000, v{AD[2]}")
for r in (0, 2, 4, 6): C.e(f"v_add_u32 v{AD[r+1]}, 0x10000, v{AD[r]}")
vXW, vXR = RF + 80, RF + 81
C.e(f"s_mul_i32 s{S_T0}, s{S_W}, 5120")
C.e(f"s_xor_b32 s{S_T1}, s{S_W}, 1")
C.e(f"s_mul_i32 s{S_T1}, s{S_T1}, 5120")
C.e(f"v_lshlrev_b32 v{vXR}, 4, v1")
C.e(f"v_add_u32 v{vXR}, {LDS_STG}, v{vXR}")
C.e(f"v_add_u32 v{vXW}, s{S_T0}, v{vXR}")
C.e(f"v_add_u32 v{vXR}, s{S_T1}, v{vXR}")

DQ = RF + 4
def hreg(p, kk): return RH + 4 * (2 * p + kk)
def hst(p, kk, pol): return f"buffer_store_dwordx4 {q4(hreg(p, kk))}, v{VM1 if kk else VM0}, {sq(SRD_OUT)}, s{S_MB[0, 1 - p // 2]} offen offset:{(p & 1) * 128}{pol}"
def flag(v, both=False):
    C.e(f"v_mov_b32 v{VT1}, {v}")
    C.vm(f"buffer_store_dword v{VT1}, v{VFL}, {sq(SRD_WS)}, 0 offen offset:256", ("fl", v))
    if both: C.vm(f"buffer_store_dword v{VT1}, v{VFS}, {sq(SRD_WS)}, 0 offen offset:256 sc1", ("fl", v))
def slow(s):
    C.e(f"s_cmp_lg_u32 s{S_MODE}, 0")
    C.e(f"s_cbranch_scc1 L_slow{s}")
    C.lab(f"L_slow{s}_done")
    ps = (2, 3) if s == 0 else (0, 1)
    C.tail += [f"L_slow{s}:", f"    v_xor_b32 v{VM0}, 2.0, v{VM0}", f"    v_xor_b32 v{VM1}, 2.0, v{VM1}"]
    C.tail += ["    " + hst(p, kk, " sc1") for p in ps for kk in range(2)]
    C.tail += [f"    v_mov_b32 v{VT1}, {s + 1}", "    s_waitcnt vmcnt(0) lgkmcnt(0)",
               f"    buffer_store_dword v{VT1}, v{VFS}, {sq(SRD_WS)}, 0 offen offset:256 sc1"]
    if s == 0: C.tail += [f"    v_xor_b32 v{VM0}, 2.0, v{VM0}", f"    v_xor_b32 v{VM1}, 2.0, v{VM1}"]
    C.tail += ["    s_waitcnt vmcnt(0)", f"    s_branch L_slow{s}_done"]
def check(name, v, done=False):
    rdi = f"ds_read_b128 {q4(DQ)}, v{VRDY} offset:16" if done else f"ds_read_b32 v{VT0}, v{VRDY}"
    red = [f"    v_min3_u32 v{VT0}, v{DQ}, v{DQ+1}, v{DQ+2}", f"    v_min_u32 v{VT0}, v{VT0}, v{DQ+3}", "    s_nop 0"] if done else []
    C.e(f"s_cmp_ge_u32 s{S_T1}, {v}")
    C.e(f"s_cbranch_scc0 L_spin{name}")
    C.lab(f"L_back{name}")
    if name != "W2" and not P["xs"]: C.stamp()
    C.tail += [f"L_spin{name}:", f"    s_mov_b32 s{S_CNT}, 0", f"L_spin{name}_l:",
               "    " + rdi, f"    s_add_u32 s{S_CNT}, s{S_CNT}, 1", "    s_waitcnt lgkmcnt(0)", *red,
               f"    v_readfirstlane_b32 s{S_T1}, v{VT0}", f"    s_cmp_ge_u32 s{S_CNT}, 0x800000", f"    s_cbranch_scc1 L_back{name}",
               f"    s_cmp_ge_u32 s{S_T1}, {v}", f"    s_cbranch_scc0 L_spin{name}_l", f"    s_branch L_back{name}"]

C.c("---- h = c_out * silu(c_in * acc + bias), two elements per packed op; the sibling's pixels first")
tiles = [(p, a) for p in (2, 3, 0, 1) for a in range(4)]
U = RF
def cvt(p, a):
    A_ = RA + 4 * (4 * p + a)
    for o in (0, 2): C.e(f"v_cvt_pk_bf16_f32 v{hreg(p, a >> 1) + 2 * (a & 1) + o // 2}, v{A_+o}, v{A_+o+1}")
def publish(p, a):
    kk = a >> 1
    C.vm(hst(p, kk, ""), ("st", 1 - p // 2))
    if p >= 2: C.lds(f"ds_write_b128 v{vXW}, {q4(hreg(p, kk))} offset:{((p & 1) * 2 + kk) * 1024}", "xw")
def acc1(n): return RA + 4 * (4 * tiles[n][0] + tiles[n][1])
def ok(n): return 0 <= n < 16
for n in range(-2, 17):
    if ok(n + 1):
        for o in range(4): C.e(f"v_exp_f32 v{acc1(n+1)+o}, v{U + 4*((n+1)&3) + o}")
    C.l.append("@GAP")
    if ok(n - 2) and n % 2 == 1: publish(*tiles[n - 2])
    if ok(n - 1):
        for o in (0, 2): C.e(f"v_pk_mul_f32 {q2(acc1(n-1)+o)}, {q2(acc1(n-1)+o)}, {q2(U + 4*((n-1)&3) + o)}")
    if ok(n + 2):
        for o in (0, 2): C.e(f"v_pk_fma_f32 {q2(U + 4*((n+2)&3) + o)}, {q2(acc1(n+2)+o)}, {sp(S_S1)}, {q2(RBI + 4*tiles[n+2][1] + o)}")
    if ok(n):
        for o in range(4): C.e(f"v_rcp_f32 v{acc1(n)+o}, v{acc1(n)+o}")
    if ok(n + 1):
        for o in (0, 2): C.e(f"v_pk_fma_f32 {q2(acc1(n+1)+o)}, {q2(acc1(n+1)+o)}, {sp(S_IK)}, {sp(S_IK)}")
    if ok(n - 1): cvt(*tiles[n - 1])
    C.l.append("@GAP")
    if n == 9: slow(0)
    if n == 10:
        C.need("xw")
        C.e("s_barrier")
        C.stamp()
        for p2 in range(2):
            for kk in range(2): C.lds(f"ds_read_b128 {q4(hreg(2 + p2, kk))}, v{vXR} offset:{(p2 * 2 + kk) * 1024}", "xr")
    if P["flA"] < 0 and n == 10 - P["flA"]:
        C.vneed(("st", 0)); flag(1)
    if n == 15 and P["chkA"] < 8: C.lds(f"ds_read_b32 v{VT0}, v{VRDY}", ("rdy", "A"))
publish(*tiles[-1])
slow(1)
C.stamp()

poolq = [RF + 4 * i for i in range(NPOOL)]
rem = poolq[9:21] + [RBI + 4 * i for i in range(4)] + [RX + 4 * i for i in range(8)]
def rq_(s, m, kk, p): return rem[12 * s + 4 * (m - 1) + 2 * kk + p]
units = []
for t in range(2):
    for rho in range(4):
        for p in range(2): units.append((2 * rho + t, p, RX + 8 * rho + 4 * p, ("sel", t), True, None))
def snake(jts, areg, m, far, kk, tag):
    for n, jt in enumerate(jts):
        for p in ((0, 1) if n % 2 == 0 else (1, 0)):
            units.append((jt, p, areg(p), ("o", m, far, kk, jt), False, tag(p)))
for far in (1, 0):
    for kk in range(2): snake(range(8), lambda p: hreg(2 * far + p, kk), 0, far, kk, lambda p: "xr" if far else None)
for m in (1, 2, 3):
    for kk in range(2): snake(range(8), lambda p: rq_(0, m, kk, p), m, 1, kk, lambda p: ("pl", 0, m, kk, p))
for m in range(1, 4 - P["bm"]):
    for kk in range(2): snake(range(8), lambda p: rq_(1, m, kk, p), m, 0, kk, lambda p: ("pl", 1, m, kk, p))
for blk in range(4):
    for m in range(4 - P["bm"], 4):
        for kk in range(2): snake((2 * blk, 2 * blk + 1), lambda p: rq_(1, m, kk, p), m, 0, kk, lambda p: ("pl", 1, m, kk, p))
NU = len(units)
def rd2(k, i, r):
    if i is None: return None
    _, m, far, kk, jt = k
    base = (4 * m + kk) * 8192
    a_ = AD[4 * far + 2 * (jt & 1) + (base >= 65536)]
    C.lds(f"ds_read_b64_tr_b16 {q2(r + 2 * i)}, v{a_} offset:{base % 65536 + 4096 * i + 256 * (jt >> 1)}", k)
pool2 = Pool(poolq[2:9])
rq, reg, issue, fu = stream([(u[3],) if u[3][0] == "o" else () for u in units], rd2, P["pf2"], pool2, None, 0)
first_remote = min(i for i, u in enumerate(units) if isinstance(u[5], tuple))
first_m3 = min(i for i, u in enumerate(units) if u[3][0] == "o" and u[3][1] == M_LATE)
last = {blk: max(i for i, u in enumerate(units) if u[0] // 2 == blk) for blk in range(4)}
opol = POL[P["outpol"]]; ldpol = POL[P["ldpol"]]
sched = {}
def at(i, kind, x): sched.setdefault(i, []).append((kind, x))
def done_check(i, name, v):
    at(i - 10, "m", lambda: C.lds(f"ds_read_b128 {q4(DQ)}, v{VRDY} offset:16", ("rdy", name)))
    at(i - 3, "m", lambda: C.need(("rdy", name)))
    at(i - 3, "v", f"v_min3_u32 v{VT0}, v{DQ}, v{DQ+1}, v{DQ+2}")
    at(i - 2, "v", f"v_min_u32 v{VT0}, v{VT0}, v{DQ+3}")
    at(i - 1, "v", f"v_readfirstlane_b32 s{S_T1}, v{VT0}")
    at(i, "m", lambda: check(name, v, True))
def rdy_check(i, name, v):
    if i >= 8: at(i - 8, "m", lambda: C.lds(f"ds_read_b32 v{VT0}, v{VRDY}", ("rdy", name)))
    at(i - 1, "m", lambda: C.need(("rdy", name)))
    at(i - 1, "v", f"v_readfirstlane_b32 s{S_T1}, v{VT0}")
    at(i, "m", lambda: check(name, v))
done_check(first_remote - P["pf2"] - 3, "W1", 1)
done_check(first_m3 - P["pf2"] - 3, "W2", 2)
for x in (first_remote - P["pf2"] - 3, first_m3 - P["pf2"] - 3):
    for y in (P["chkA"], P["chkB"]): assert y < x - 3 or y - 8 > x, (x, y)
for s, nm_ in ((0, "A"), (1, "B")):
    i0 = P["chk" + nm_]
    rdy_check(i0, nm_, s + 1)
    n = 0
    for m in (1, 2, 3):
        for kk in range(2):
            for p in range(2):
                at(i0 + (n * P["ldgap" + nm_]) // 2, "m", lambda s=s, m=m, kk=kk, p=p: C.vm(
                    f"buffer_load_dwordx4 {q4(rq_(s, m, kk, p))}, v{VM1 if kk else VM0}, {sq(SRD_OUT)}, s{S_MB[m, s]} offen offset:{p * 128}{ldpol}", ("pl", s, m, kk, p)))
                n += 1
    at(P["ack" + nm_], "m", lambda s=s: (C.vneed(("pl", s, 3, 1, 1)), flag(3 + s, True)))
assert P["chkB"] >= 16 + 2
if P["flA"] >= 0: at(P["flA"], "m", lambda: (C.vneed(("st", 0)), flag(1)))
at(P["flB"], "m", lambda: (C.vneed(("st", 1)), flag(2)))
assert P["flB"] >= 16
assert P["flA"] <= P["chkA"] and P["flB"] <= P["chkB"] and P["flB"] < P["ackA"] < P["ackB"]
TMP = RF
for blk in range(4):
    t0 = last[blk] + 5
    dat = RA + 16 * blk; so = (blk & 1) * 2560
    for g in range(4):
        for o in range(2): at(t0 + 2 * g + o, "v", f"v_cvt_pk_bf16_f32 v{TMP + 2*g + o}, v{dat + 4*g + 2*o}, v{dat + 4*g + 2*o + 1}")
        at(t0 + 2 * g + 2, "m", lambda g=g, so=so, blk=blk: C.lds(f"ds_write_b64 v{VSW}, {q2(TMP + 2*g)} offset:{so + 1280 * (g >> 1) + 32 * (g & 1)}", ("sw", blk)))
    for k in range(2):
        at(t0 + 9 + k, "m", lambda k=k, so=so, blk=blk, dat=dat: C.lds(f"ds_read_b128 {q4(dat + 4*k)}, v{VSR} offset:{so + 1280*k}", ("sr", blk, k)))
    if blk % 2 == 0: rdy_check(t0 + 16, f"O{blk}", 3 + blk // 2)
    def st(k, blk=blk, dat=dat):
        if k: C.e(f"s_add_u32 s{S_OB[blk]}, s{S_OB[blk]}, 0x20000")
        C.need(("sr", blk, k))
        C.vm(f"buffer_store_dwordx4 {q4(dat + 4*k)}, v{VOUT}, {sq(SRD_OUT)}, s{S_OB[blk]} offen{opol}", ("out", blk))
    for k in range(2): at(t0 + 17 + k, "m", lambda k=k, st=st: st(k))
assert P["ackA"] < last[0] + 21 and P["ackB"] < last[2] + 21
ie = P["chkB"] + 20
at(ie, "m", lambda: (C.c("member 0 moves the group's epoch on (every member read it long ago: their progress words came after it)"),
                     C.e(f"s_lshl_b32 s{S_T0}, s{S_Q}, 28")))
at(ie, "v", f"v_lshl_or_b32 v{TMP}, v0, 24, s{S_T0}")
at(ie + 1, "v", f"v_mov_b32 v{TMP+1}, s{S_EN}")
at(ie + 2, "m", lambda: C.vm(f"buffer_store_dword v{TMP+1}, v{TMP}, {sq(SRD_WS)}, s{S_EP} offen sc1", "epst"))
def pre_wait(i):
    if i >= NU: return
    u = units[i]
    if isinstance(u[5], tuple): C.vneed(u[5])
    C.need(u[3], *([u[5]] if u[5] == "xr" else []))
for it in sched.pop(-1, []) + [x for i in sorted(k for k in sched if k < 0) for x in sched.pop(i)]: raise SystemExit("negative slot")
for i, u in enumerate(units):
    jt, p, ar, bk, first, tag = u
    if i in P["xs"]:
        C.stamp(); C.smem = False
    pre_wait(i)
    br = RS + 2 - 2 * bk[1] if bk[0] == "sel" else reg[bk]
    acc = RA + 4 * (2 * jt + p)
    C.e(f"v_mfma_f32_16x16x32_bf16 {q4(acc)}, {q4(ar)}, {q4(br)}, {'0' if first else q4(acc)}")
    if rq and fu[rq[0][0]] <= i + P["pf2"] + 1: issue(i)
    C.l.append("@GAP")
    items = sched.pop(i, [])
    for k, x in items:
        if k == "m": x()
    pre_wait(i + 1)
    for k, x in items:
        if k == "v": C.e(x)
C.stamp()
C.e("s_nop 7")
for i in sorted(sched):
    for k, x in sorted(sched[i], key=lambda y: y[0]):
        if k == "v": C.e(x)
        else: x()
C.stamp()
if P["stamps"] or "probe" in P:
    C.e("s_waitcnt vmcnt(0)"); C.stamp()
if "probe" in P or P.get("rt"):
    C.e("s_waitcnt lgkmcnt(0)")
    if "probe" in P:
        C.e("s_sub_u32 s96, s96, s100"); C.e("s_lshl_b32 s96, s96, 2"); C.e("s_add_u32 s96, s96, 2000")
        if "pwg" in P:
            C.e(f"s_cmp_eq_u32 s2, {P['pwg']}"); C.e("s_cselect_b32 s96, s96, 0")
    else: C.e(f"s_mov_b32 s96, {P['rt']}")
    C.lab("L_rt")
    C.e("s_memrealtime s[98:99]"); C.e("s_waitcnt lgkmcnt(0)"); C.e("s_sub_u32 s98, s98, s100")
    C.e("s_cmp_lt_u32 s98, s96"); C.e("s_cbranch_scc1 L_rt")
C.dump_stamps()
C.e("s_endpgm")

nm = P["name"]
hdr = open("standalone__edm_precond__diffusion.s.ref").read().split("; Override")[0]
out = [hdr.rstrip(),
       "; generated by gen/gen.py  " + " ".join(sys.argv[1:]),
       f"; @launch grid=(256,1,1) block=(512,1,1) lds={LDS_TOTAL}",
       '.amdgcn_target "amdgcn-amd-amdhsa--gfx950"', ".text", f".globl {nm}_kernel", f".p2align {P['align']}",
       f".type {nm}_kernel,@function", f"{nm}_kernel:"]
body = h.l + L.l[:L_HEAD] + C.l + C.tail + L.l[L_HEAD:] + ["L_end:"]
if P["warm"]:
    import subprocess, re, tempfile, os
    n0 = len(h.l) + L_HEAD + len(C.l)
    body = body[:n0] + ["@COLD"] + [y for x in body[n0:] for y in ([x, "@COLD"] if re.match(r"\s+s_(branch|barrier)\b", x) else [x])]
    def addrs(lines):
        t = [f"L_g{i}:" if x in ("@GAP", "@COLD") else x for i, x in enumerate(lines)]
        t = [y for x in t for y in (["s_nop 0"] * 24 if x == "@HOPS" else [x])]
        d = tempfile.mkdtemp()
        open(d + "/a.s", "w").write("\n".join(out + t) + "\n")
        subprocess.run(["clang", "-x", "assembler", "-target", "amdgcn-amd-amdhsa", "-mcpu=gfx950", "-c", d + "/a.s", "-o", d + "/a.o"], check=True)
        o = subprocess.run(["llvm-objdump", "-t", d + "/a.o"], capture_output=True, text=True).stdout
        return {int(m.group(2)): int(m.group(1), 16) for m in re.finditer(r"^([0-9a-f]+) .* L_g(\d+)$", o, re.M)}
    ad = addrs(body)
    START = 0x300
    step = P.get("hopstep", 4096)
    picks = []; nb = step; lastc = -999
    for i in sorted(ad):
        a_ = ad[i] + START + 4 * len(picks)
        if body[i] == "@GAP" and a_ >= nb:
            picks.append(i); nb = (a_ // step + 1) * step
        elif body[i] == "@COLD" and a_ - lastc >= P.get("coldstep", 256):
            picks.append(i); lastc = a_
    assert len(picks) <= 12, len(picks)
    rep = {i: [f"L_hop{k}:", "    s_cbranch_execz L_warm_ret"] for k, i in enumerate(picks)}
    tab = [y for k in range(12) for y in ([f"    s_cmp_eq_u32 s{S_T0}, {4 * (D + P['hop0']) + 4 + k}", f"    s_cbranch_scc1 L_hop{k}"] if k < len(picks) else ["    s_nop 0"] * 2)]
    rep[body.index("@HOPS")] = tab
    body = [y for i, x in enumerate(body) for y in (rep.get(i, []) if x in ("@GAP", "@COLD", "@HOPS") else [x])]
else:
    body = [x for x in body if x != "@GAP"]
out += body
out += ['.section .rodata,"a"', ".p2align 6", f".amdhsa_kernel {nm}_kernel",
        "  .amdhsa_next_free_vgpr 256", "  .amdhsa_next_free_sgpr 102", "  .amdhsa_accum_offset 256",
        "  .amdhsa_group_segment_fixed_size 0", "  .amdhsa_kernarg_size 64", "  .amdhsa_user_sgpr_count 2",
        "  .amdhsa_user_sgpr_kernarg_segment_ptr 1", "  .amdhsa_system_sgpr_workgroup_id_x 1", ".end_amdhsa_kernel"]
print("\n".join(out))
```

```python
import sys, json

P = dict(hop0=1, tlb=0, small=-1, fstart=20, rotmode=1, warm=0, xs=(), align=12, ntx=0, wb=0, outpol="nt", ldpol="ntsc1", D=4, pre16=21, thr=4, thr2=8, stamps=0, codepf=1, wo_touch=8, prime=1, fill=1, fillpos=18,
         lead=12, pf2=8,
         flA=-1, flB=30,
         chkA=44, chkB=104, ldgapA=10, ldgapB=8, bm=2, ackA=150, ackB=215, spf=0, spf0=0,
         name="standalone__edm_precond__diffusion")
for a in sys.argv[1:]:
    k, v = a.split("=", 1)
    try: P[k] = json.loads(v)
    except Exception: P[k] = v

POL = {"plain": "", "sc1": " sc1", "nt": " nt", "ntsc1": " sc1 nt"}
WS_BYTES = 0x8000
HC0, HK0, HC1, HK1 = 0x9E3779B1, 0x7F4A7C15, 0x85EBCA77, 0xC2B2AE3D
STAMP_OFF = 0x900000
LDS_MISC = 131072
LDS_BIAS = LDS_MISC
LDS_RDY = LDS_MISC + 2048
LDS_STG = LDS_MISC + 4096
LDS_TOTAL = LDS_STG + 4 * 5120

class Prog:
    def __init__(s):
        s.l = []; s.lq = []; s.vq = []; s.smem = False; s.nst = 0; s.tail = []; s.is_c = False
    def e(s, t): s.l.append("    " + t)
    def lab(s, t): s.l.append(t + ":")
    def c(s, t): s.l.append("    ; " + t)
    def lds(s, t, tag):
        s.e(t); s.lq.append(tag)
    def vm(s, t, tag):
        s.e(t); s.vq.append(tag); assert len(s.vq) <= 63
    def need(s, *tags):
        idx = max([i for i, t in enumerate(s.lq) if t in tags], default=-1)
        if idx < 0: return False
        n = len(s.lq) - 1 - idx
        n = min(n, 15)
        if s.smem: n = 0; s.smem = False
        s.e(f"s_waitcnt lgkmcnt({n})"); s.lq = s.lq[len(s.lq) - n:] if n else []
        return True
    def vneed(s, *tags):
        idx = max([i for i, t in enumerate(s.vq) if t in tags], default=-1)
        if idx < 0: return False
        n = len(s.vq) - 1 - idx
        s.e(f"s_waitcnt vmcnt({n})"); s.vq = s.vq[len(s.vq) - n:] if n else []
        return True
    def stamp(s):
        if "probe" in P:
            if s.nst == P["probe"] and s.is_c:
                s.e("s_memrealtime s[96:97]"); s.smem = True
            s.nst += 1
        if P["stamps"]:
            s.e(f"{'s_memtime' if P['stamps'] == 1 else 's_memrealtime'} s[{68 + 2 * s.nst}:{69 + 2 * s.nst}]"); s.nst += 1; s.smem = True
            assert s.nst <= 17
    def dump_stamps(s):
        if not P["stamps"]: return
        s.e("s_waitcnt lgkmcnt(0) vmcnt(0)")
        s.e("v_mov_b32 v14, 0")
        for i in range(1, s.nst):
            s.e(f"s_sub_u32 s{68+2*i}, s{68+2*i}, s68")
            s.e(f"v_writelane_b32 v14, s{68+2*i}, {i}")
        s.e("s_lshl_b32 s3, s2, 11")
        s.e(f"s_add_u32 s3, s3, {STAMP_OFF}")
        s.e("v_lshl_add_u32 v15, v0, 2, s3")
        s.e("global_store_dword v15, v14, s[18:19]")

def q4(r): return f"v[{r}:{r+3}]"
def q2(r): return f"v[{r}:{r+1}]"
def sq(d): return f"s[{d}:{d+3}]"
def sp(d): return f"s[{d}:{d+1}]"

S_EP, S_EN = 20, 21
S_W, S_Q, S_GL, S_G, S_R, S_TILE = 22, 23, 24, 25, 26, 27
SRD_A, SRD_B, SRD_C = 28, 32, 36
S_OB = (40, 41, 42, 43)
S_T0, S_T1, S_T2, S_T3 = 44, 45, 46, 47
S_S1, S_IK, S_MSK = 48, 50, 52
S_MB = {(m, s): 54 + 2 * m + s for m in range(4) for s in range(2)}
S_CNT, S_H0, S_H1, S_XCC, S_MODE, S_OWN = 62, 63, 64, 65, 66, 67
S_N, S_LB, S_XO, S_WO = 40, 41, 42, 43

h = Prog()
h.stamp()
if P.get("rt") or "probe" in P: h.e("s_memrealtime s[100:101]")
h.e("s_load_dwordx16 s[4:19], s[0:1], 0")
h.e("s_cmp_ge_u32 s2, 0x100")
h.e("s_cbranch_scc1 L_exit")
h.e("v_lshrrev_b32 v2, 6, v0")
h.e("v_and_b32 v1, 63, v0")
h.e(f"v_readfirstlane_b32 s{S_W}, v2")
h.e(f"s_lshr_b32 s{S_T0}, s2, 3")
if P["codepf"]:
    h.c("pull this kernel's code into the L2 (one 128-byte line per wave)")
    h.e("s_getpc_b64 s[20:21]")
    h.lab("L_pc")
    h.e(f"s_lshl_b32 s{S_T1}, s{S_T0}, 3")
    h.e(f"v_add_lshl_u32 v3, v2, s{S_T1}, 7")
    h.e("v_min_u32 v3, L_end-L_pc-4, v3")
    h.e("global_load_dword v15, v3, s[20:21]")
h.e(f"s_and_b32 s{S_Q}, s{S_T0}, 3")
h.e(f"s_lshr_b32 s{S_GL}, s{S_T0}, 2")
h.e(f"s_and_b32 s{S_T1}, s2, 7")
h.e(f"s_lshl3_add_u32 s{S_G}, s{S_GL}, s{S_T1}")
h.e(f"s_lshr_b32 s{S_T0}, s{S_G}, 5")
h.e(f"s_lshl_b32 s{S_TILE}, s{S_T0}, 22")
h.e(f"s_and_b32 s{S_T1}, s{S_G}, 31")
h.e(f"s_lshl_b32 s{S_T1}, s{S_T1}, 8")
h.e(f"s_add_u32 s{S_TILE}, s{S_TILE}, s{S_T1}")
if P["rotmode"]: h.e(f"s_mov_b32 s{S_R}, 0")
else: h.e(f"s_and_b32 s{S_R}, s{S_GL}, 3")
h.e(f"s_cmp_lt_u32 s{S_W}, 4")
h.e("s_cbranch_scc1 L_compute")

L = Prog(); L.nst = h.nst
D = P["D"]
ntx = " nt" if P["ntx"] else ""
L.c("---------------- loader waves: wave 4+i brings rows 4i..4i+3 of every 16-row step")
L.e("v_lshrrev_b32 v4, 4, v1")
L.e("v_lshlrev_b32 v6, 1, v2")
L.e("v_xor_b32 v6, v6, v1")
L.e("v_and_b32 v6, 3, v6")
L.e("v_lshlrev_b32 v6, 4, v6")
L.e("v_bfe_u32 v5, v0, 2, 2")
L.e("v_and_b32 v2, 3, v2")
L.e("v_lshl_add_u32 v5, v2, 2, v5")
L.e("v_lshl_add_u32 v7, v4, 6, v6")
L.e("v_lshl_add_u32 v2, v5, 13, v7")
L.e(f"v_add_u32 v2, s{S_TILE}, v2")
L.e(f"s_lshl_b32 s{S_T0}, s{S_Q}, 8")
L.e(f"v_lshl_add_u32 v5, v5, 10, s{S_T0}")
L.e("v_add_u32 v3, v5, v7")
L.e(f"s_and_b32 s{S_LB}, s{S_W}, 3")
L.e(f"s_lshl_b32 s{S_LB}, s{S_LB}, 10")
L.e(f"s_mov_b32 s{S_N}, 0")
L.e(f"s_mov_b32 s{SRD_A+2}, 0x800000"); L.e(f"s_mov_b32 s{SRD_A+3}, 0x20000")
L.e(f"s_mov_b32 s{SRD_B+2}, 0x80000"); L.e(f"s_mov_b32 s{SRD_B+3}, 0x20000")
L.e("s_waitcnt lgkmcnt(0)")
L.e(f"s_mov_b64 {sp(SRD_A)}, s[4:5]")
L.e(f"s_mov_b64 {sp(SRD_B)}, s[8:9]")
if P["spf"]:
    L.e(f"s_lshl_b32 s56, s{S_GL}, 16"); L.e(f"s_lshl_b32 s57, s{S_LB}, 4"); L.e("s_add_u32 s56, s56, s57"); L.e(f"s_add_u32 s56, s56, s{S_T0}")
    L.e("s_add_u32 s56, s56, s12"); L.e("s_addc_u32 s57, s13, 0"); L.e("s_mov_b32 s58, 0")
L.lab("L_ld1")
L.c("slot n holds 32 rows: block n/4 of quarter (n+member+group)&3, so that every row is first fetched by few workgroups")
L.e(f"s_add_u32 s{S_T0}, s{S_N}, s{S_Q}")
if P["rotmode"]: L.e(f"s_add_u32 s{S_T0}, s{S_T0}, s{S_GL}")
L.e(f"s_and_b32 s{S_T0}, s{S_T0}, 3")
L.e(f"s_lshr_b32 s{S_T1}, s{S_N}, 2")
if not P.get("rotmode"):
    L.e(f"s_add_u32 s{S_T1}, s{S_T1}, s{S_R}")
    L.e(f"s_and_b32 s{S_T1}, s{S_T1}, 3")
L.e(f"s_lshl2_add_u32 s{S_T0}, s{S_T0}, s{S_T1}")
L.e(f"s_mov_b32 m0, s{S_LB}")
L.e(f"s_lshl_b32 s{S_XO}, s{S_T0}, 18")
L.e(f"buffer_load_dwordx4 v2, {sq(SRD_A)}, s{S_XO} offen{ntx} lds")
L.e(f"s_add_u32 m0, s{S_LB}, 0x1000")
L.e(f"s_lshl_b32 s{S_WO}, s{S_T0}, 15")
L.e(f"buffer_load_dwordx4 v3, {sq(SRD_B)}, s{S_WO} offen lds")
L.e(f"s_add_u32 m0, s{S_LB}, 0x2000")
L.e(f"s_add_u32 s{S_XO}, s{S_XO}, 0x20000")
L.e(f"buffer_load_dwordx4 v2, {sq(SRD_A)}, s{S_XO} offen{ntx} lds")
L.e(f"s_add_u32 m0, s{S_LB}, 0x3000")
L.e(f"s_add_u32 s{S_WO}, s{S_WO}, 0x4000")
L.e(f"buffer_load_dwordx4 v3, {sq(SRD_B)}, s{S_WO} offen lds")
L.e(f"s_add_u32 s{S_LB}, s{S_LB}, 0x4000")
L.e(f"s_and_b32 s{S_LB}, s{S_LB}, 0x1ffff")
L.e(f"s_add_u32 s{S_N}, s{S_N}, 1")
L.e(f"s_cmp_lt_u32 s{S_N}, {D}")
L.e("s_cbranch_scc1 L_ld1")
if P["warm"]:
    L.e(f"s_cmp_lt_u32 s{S_N}, {D + P['hop0'] + 3}")
    L.e("s_cbranch_scc1 L_warm")
    L.lab("L_warm_done")
if P["spf"]:
    L.c("this workgroup's share of w_out into the L2 by scalar loads (the values are not used)")
    rows, gran = P["spf"]
    for r in range(rows):
        for o in range(0, 256, gran): L.e(f"s_load_dword s54, s[56:57], {hex(r * 1024 + o)}")
    L.e(f"s_add_u32 s58, s58, {rows}")
    L.e(f"s_cmp_lt_u32 s58, 16")
    L.e(f"s_cselect_b32 s{S_T0}, {hex(rows * 1024)}, 0")
    L.e(f"s_add_u32 s56, s56, s{S_T0}")
    L.e("s_addc_u32 s57, s57, 0")
L.e(f"s_waitcnt vmcnt({4 * (D - 1)})")
L.e("s_barrier")
L.e(f"s_cmp_lt_u32 s{S_N}, 16")
L.e("s_cbranch_scc1 L_ld1")
L.e("s_branch L_ld2")
if P["warm"]:
    L.c("while the first rows are under way: run through branch-only hops so that later code pages are already in the instruction cache")
    L.lab("L_warm")
    L.e(f"s_cmp_lg_u32 s{S_N}, {D}")
    L.e("s_cbranch_scc1 L_warm2")
    if P["tlb"] == 2:
        L.c("scalar first touches (translation and L2 only; the values are not used)")
        L.e(f"s_lshl_b32 s{S_T0}, s{S_W}, 20")
        L.e(f"s_and_b32 s{S_T0}, s{S_T0}, 0x300000")
        L.e(f"s_add_u32 s{S_T0}, s{S_T0}, s{S_TILE}")
        L.e(f"s_load_dword s54, s[14:15], s{S_T0}")
        L.e(f"s_lshl_b32 s{S_T0}, s{S_G}, 9")
        L.e(f"s_lshl_b32 s{S_T1}, s{S_Q}, 8")
        L.e(f"s_cmp_eq_u32 s{S_W}, 4")
        L.e("s_cbranch_scc0 L_warm2")
        L.e(f"s_load_dword s55, s[18:19], s{S_T0}")
        L.e("s_load_dword s56, s[6:7], 0")
        L.e(f"s_load_dword s57, s[10:11], s{S_T1}")
        L.e("s_load_dword s58, s[12:13], 0")
    L.lab("L_warm2")
    L.e(f"s_lshl2_add_u32 s{S_T0}, s{S_N}, s{S_W}")
    L.e("s_mov_b64 exec, 0")
    L.l.append("@HOPS")
    L.lab("L_warm_ret")
    L.e("s_mov_b64 exec, -1")
    L.e("s_branch L_warm_done")
L_HEAD = len(L.l)
L.lab("L_ld2")
L.stamp()
L.c("w_out: rows start at this member's own quarter; column blocks in the order in which x's own rows were kept")
L.e(f"v_add_u32 v4, s{S_R}, v4")
L.e("v_and_b32 v4, 3, v4")
L.e("v_lshl_add_u32 v7, v4, 6, v6")
L.e("v_add_u32 v3, v5, v7")
L.e(f"s_mov_b64 {sp(SRD_B)}, s[12:13]")
L.e(f"s_lshl_b32 s{S_WO}, s{S_Q}, 17")
L.e("v_and_b32 v8, 7, v1")
L.e("v_lshlrev_b32 v8, 2, v8")
L.e(f"v_add_u32 v8, {LDS_RDY}, v8")
L.e("v_mov_b32 v9, 0")
L.e("ds_write_b32 v8, v9")
L.vq = [("c", n) for n in range(16 - D + 1, 16) for _ in range(4)]
def fill(pos):
    if pos != P['fillpos']: return
    if P["fill"]:
        L.c("make the hand-off lines of this workgroup valid in the L2 ahead of their readers; the values are not used")
        n_ = P["fill"]
        L.e(f"s_and_b32 s{S_T0}, s{S_W}, 3")
        L.e(f"s_lshl_b32 s{S_T0}, s{S_T0}, {3 + n_}")
        L.e(f"s_lshl_b32 s{S_T1}, s{S_R}, 5")
        L.e(f"s_add_u32 s{S_T0}, s{S_T0}, s{S_T1}")
        L.e(f"s_and_b32 s{S_T0}, s{S_T0}, 127")
        L.e(f"s_lshl_b32 s{S_T1}, s{S_Q}, 7")
        L.e(f"s_add_u32 s{S_T0}, s{S_T0}, s{S_T1}")
        L.e(f"v_lshrrev_b32 v24, {3 - n_}, v1")
        L.e(f"v_add_lshl_u32 v24, v24, s{S_T0}, 13")
        L.e(f"v_and_b32 v25, {3 if n_ == 1 else 1}, v1")
        L.e(f"v_lshl_add_u32 v24, v25, {5 + n_}, v24")
        L.e(f"v_add_u32 v24, s{S_TILE}, v24")
        L.vm("global_load_dword v25, v24, s[14:15] nt", "fill")
    if P["wo_touch"] == -1:
        L.e(f"s_lshl_b32 s{S_T0}, s{S_GL}, 2"); L.e(f"s_and_b32 s{S_T1}, s{S_W}, 3"); L.e(f"s_add_u32 s{S_T0}, s{S_T0}, s{S_T1}")
        L.e(f"s_lshl_b32 s{S_T0}, s{S_T0}, 14"); L.e(f"s_lshl_b32 s{S_T1}, s{S_Q}, 8"); L.e(f"s_add_u32 s{S_T0}, s{S_T0}, s{S_T1}")
        L.e("v_lshrrev_b32 v26, 2, v1"); L.e(f"v_lshl_add_u32 v26, v26, 10, s{S_T0}"); L.e("v_and_b32 v27, 3, v1"); L.e("v_lshl_add_u32 v26, v27, 6, v26")
        L.vm("global_load_dword v27, v26, s[12:13]", "fill")
def ld_wo(n, fine=False):
    if n < 22: fill(n)
    for p in range(4):
        if fine: throttle()
        L.e(f"s_add_u32 m0, s{S_LB}, {hex(((n - 16) * 4 + p) * 4096)}")
        if n > 16 or p: L.e(f"s_add_u32 s{S_WO}, s{S_WO}, 0x4000")
        else: L.e("s_waitcnt lgkmcnt(0)")
        if p == 0 and n % 2 == 0 and n > 16: L.e(f"s_and_b32 s{S_WO}, s{S_WO}, 0x7ffff")
        L.vm(f"buffer_load_dwordx4 v3, {sq(SRD_B)}, s{S_WO} offen lds", ("c", n))
def throttle():
    if len(L.vq) > P["thr"]:
        L.e(f"s_waitcnt vmcnt({P['thr']})"); L.vq = L.vq[len(L.vq) - P["thr"]:]
nxt = 16
for c in range(16 - D + 1, 16):
    ld_wo(nxt); nxt += 1
    L.vneed(("c", c))
    L.e("s_barrier")
L.stamp()
L.e("v_and_b32 v11, 3, v1")
L.e(f"s_lshl_b32 s{S_T0}, s{S_G}, 9")
L.e(f"v_lshl_add_u32 v12, v11, 4, s{S_T0}")
if P["prime"]:
    L.c("bring the progress line into the L2 early; this value is not used")
    L.vm("global_load_dword v16, v12, s[18:19] offset:256 sc1", "prime")
while nxt <= P["pre16"]:
    throttle(); ld_wo(nxt); nxt += 1
assert nxt in (20, 22)
M_LATE = (nxt - 16) // 2
fill(22)
L.vneed(("c", 17))
L.stamp()
L.e(f"s_lshl_b32 s{S_T0}, s{S_W}, 2")
L.e(f"s_add_u32 s{S_T0}, s{S_T0}, {LDS_RDY}")
L.e(f"v_mov_b32 v8, s{S_T0}")
L.e("v_mov_b32 v9, 1")
L.e(f"v_mov_b32 v13, {LDS_RDY}")
L.e(f"s_mov_b32 s{S_CNT}, 0")
L.e(f"s_mov_b32 s{S_N}, 1")
L.e("s_barrier")
L.e(f"s_cmp_eq_u32 s{S_W}, 4")
L.e("s_cbranch_scc1 L_poll")
L.e("s_waitcnt vmcnt(0)")
L.e("ds_write_b32 v8, v9")
L.c("the last rows of w_out follow the first hand-off loads")
L.lab("L_wait1")
L.e("ds_read_b32 v16, v13")
L.e(f"s_add_u32 s{S_CNT}, s{S_CNT}, 1")
L.e("s_waitcnt lgkmcnt(0)")
L.e(f"v_readfirstlane_b32 s{S_T0}, v16")
L.e(f"s_cmp_ge_u32 s{S_CNT}, 0x800000")
L.e("s_cbranch_scc1 L_last")
L.e(f"s_cmp_eq_u32 s{S_T0}, 0")
L.e("s_cbranch_scc1 L_wait1")
L.lab("L_last")
L.stamp()
L.vq = []
P["thr"] = P["thr2"]
while nxt < 24:
    ld_wo(nxt, True); nxt += 1
L.e("v_mov_b32 v9, 2")
L.e(f"s_mov_b32 s{S_N}, 4")
L.e(f"s_cmp_eq_u32 s{S_W}, 4")
L.e("s_cbranch_scc1 L_poll")
L.e("s_waitcnt vmcnt(0)")
L.e("ds_write_b32 v8, v9")
if P["wb"]:
    L.c("one wave per XCD writes the hand-off lines back now, so that the output stores find clean lines")
    L.e(f"s_lshr_b32 s{S_T0}, s2, 3")
    L.e(f"s_lshl3_add_u32 s{S_T0}, s{S_T0}, s{S_W}")
    L.e(f"s_cmp_lg_u32 s{S_T0}, 5")
    L.e("s_cbranch_scc1 L_fin")
    L.lab("L_wait2")
    L.e("ds_read_b32 v16, v13")
    L.e(f"s_add_u32 s{S_CNT}, s{S_CNT}, 1")
    L.e("s_waitcnt lgkmcnt(0)")
    L.e(f"v_readfirstlane_b32 s{S_T0}, v16")
    L.e(f"s_cmp_ge_u32 s{S_CNT}, 0x800000")
    L.e("s_cbranch_scc1 L_fin")
    L.e(f"s_cmp_lt_u32 s{S_T0}, {P['wb']}")
    L.e("s_cbranch_scc1 L_wait2")
    L.e("buffer_wbl2 sc1")
L.e("s_branch L_fin")
L.c("wave 4: relay the smallest progress word of the group into LDS")
L.lab("L_poll")
L.e("global_load_dwordx4 v[16:19], v12, s[18:19] offset:256 sc1")
L.e(f"s_add_u32 s{S_CNT}, s{S_CNT}, 1")
L.e("s_waitcnt vmcnt(0)")
L.e("v_min3_u32 v16, v16, v17, v18")
L.e("v_min_u32 v16, v16, v19")
L.e("ds_write_b32 v8, v9")
L.e("s_nop 0")
L.e("v_min_u32_dpp v16, v16, v16 quad_perm:[1,0,3,2] row_mask:0xf bank_mask:0xf")
L.e("s_nop 1")
L.e("v_min_u32_dpp v16, v16, v16 quad_perm:[2,3,0,1] row_mask:0xf bank_mask:0xf")
L.e("ds_write_b32 v13, v16")
L.e(f"v_readfirstlane_b32 s{S_T0}, v16")
L.e(f"s_cmp_ge_u32 s{S_CNT}, 0x100000")
L.e(f"s_cselect_b32 s{S_T0}, 4, s{S_T0}")
L.e(f"s_cmp_lt_u32 s{S_T0}, s{S_N}")
L.e("s_cbranch_scc1 L_poll")
L.e(f"s_cmp_eq_u32 s{S_N}, 1")
L.e("s_cbranch_scc1 L_last")
L.lab("L_fin")
L.stamp()
L.dump_stamps()
L.lab("L_exit")
L.e("s_endpgm")

C = Prog(); C.nst = h.nst; C.is_c = True
if P["codepf"]: C.vq.append("code")
AD = list(range(2, 10))
VM0, VM1, VFL, VFS, VT0, VT1, VSW, VSR, VOUT, VRDY = 10, 11, 12, 13, 14, 15, 16, 17, 18, 19
RA, RH, RX, RBI, RS, RF = 20, 84, 116, 148, 164, 170
RF = 172; NPOOL = (256 - RF) // 4
SRD_WS, SRD_OUT, SRD_WO = SRD_A, SRD_B, SRD_C
C.lab("L_compute")
C.c("---------------- compute waves")
T = RH
vG, vC, vEMBA, vSIGA, vT0A, vSIG, vEMB, vEP, vZ, vANN, vJ, vL4, vTCH, vBW, vBR, vCHK, vCHA = \
    T, T+1, T+2, T+3, T+4, T+5, T+6, T+7, T+8, T+12, T+14, T+15, T+16, T+17, T+18, T+26, T+28
C.e(f"v_lshrrev_b32 v{vG}, 4, v1")
C.e(f"v_bfe_u32 v{vC}, v1, 2, 2")
C.e(f"v_lshlrev_b32 v{vC}, 6, v{vC}")
C.e(f"v_lshl_add_u32 v{AD[0]}, v{vG}, 10, v{vC}")
C.e(f"v_and_b32 v{vC}, 1, v{vG}")
C.e(f"v_lshl_add_u32 v{AD[0]}, v{vC}, 5, v{AD[0]}")
C.e(f"v_and_b32 v{vC}, 3, v1")
C.e(f"v_lshl_add_u32 v{AD[6]}, v{vC}, 3, v{AD[0]}")
C.e(f"s_lshl_b32 s{S_T0}, s{S_W}, 8")
C.e(f"v_add_u32 v{AD[2]}, s{S_T0}, v{AD[6]}")
C.e(f"s_and_b32 s{S_T1}, s{S_W}, 1")
C.e(f"s_lshl_b32 s{S_T1}, s{S_T1}, 9")
C.e(f"v_add_u32 v{AD[0]}, s{S_T1}, v{AD[6]}")
C.e(f"v_xor_b32 v{AD[1]}, 32, v{AD[0]}")
C.e(f"v_xor_b32 v{AD[3]}, 32, v{AD[2]}")
C.e(f"v_xor_b32 v{AD[4]}, 0x100, v{AD[2]}")
C.e(f"v_xor_b32 v{AD[5]}, 0x100, v{AD[3]}")
C.e(f"s_lshl_b32 s{S_T0}, s{S_Q}, 8")
C.e(f"v_lshl_add_u32 v{vEMBA}, v1, 2, s{S_T0}")
C.e(f"s_lshr_b32 s{S_T0}, s{S_TILE}, 21")
C.e(f"v_mov_b32 v{vSIGA}, s{S_T0}")
C.c("thread 0 resets this workgroup's four progress words, then announces that (and its XCD) under this launch's tag")
C.e(f"v_lshlrev_b32 v{vT0A}, 24, v0")
for i in range(4): C.e(f"v_mov_b32 v{vZ+i}, 0")
C.e(f"s_lshl_b32 s{S_EP}, s{S_G}, 9")
C.e(f"s_lshl4_add_u32 s{S_T2}, s{S_Q}, s{S_EP}")
C.e(f"s_mov_b32 s{SRD_WS+2}, {hex(WS_BYTES)}"); C.e(f"s_mov_b32 s{SRD_WS+3}, 0x20000")
C.e(f"s_getreg_b32 s{S_XCC}, hwreg(HW_REG_XCC_ID, 0, 4)")
C.e("s_waitcnt lgkmcnt(0)")
C.e(f"s_mov_b64 {sp(SRD_WS)}, s[18:19]")
def small():
    C.vm(f"buffer_store_dwordx4 {q4(vZ)}, v{vT0A}, {sq(SRD_WS)}, s{S_EN} offen offset:256 sc1", "clr")
    C.vm(f"buffer_load_dword v{vEP}, v{vZ}, {sq(SRD_WS)}, s{S_EP} offen sc1", "ep")
    C.vm(f"global_load_ushort v{vSIG}, v{vSIGA}, s[6:7]", "sig")
    C.vm(f"global_load_dword v{vEMB}, v{vEMBA}, s[10:11]", "emb")
    pass
C.e(f"s_mov_b32 s{S_EN}, s{S_T2}")
if P['small'] < 0: small()
if P["tlb"] == 1:
    C.c("first touch of the pages used later (address translation only; the values are not used)")
    C.e(f"v_lshl_add_u32 v{VT0}, v{vC}, 20, s{S_TILE}")
    C.e(f"s_cmp_eq_u32 s{S_W}, 1")
    C.e("s_cbranch_scc0 L_notlb")
    C.e(f"global_load_dword v{VT0}, v{VT0}, s[14:15] nt")
    C.e(f"global_load_dword v{VT1}, v{vZ}, s[12:13]")
    C.lab("L_notlb")
for t in [
    f"s_mov_b64 {sp(SRD_WO)}, s[12:13]", f"s_mov_b32 s{SRD_WO+2}, 0x80000", f"s_mov_b32 s{SRD_WO+3}, 0x20000",
    f"s_mov_b64 {sp(SRD_OUT)}, s[14:15]", f"s_mov_b32 s{SRD_OUT+2}, 0x800000", f"s_mov_b32 s{SRD_OUT+3}, 0x20000",
    f"v_lshrrev_b32 v{vL4}, 2, v1", f"v_and_b32 v{vJ}, 15, v1",
    f"s_lshl_b32 s{S_T0}, s{S_GL}, 16", f"s_lshl_b32 s{S_T1}, s{S_W}, 14", f"s_add_u32 s{S_T0}, s{S_T0}, s{S_T1}",
    f"s_lshl_b32 s{S_T1}, s{S_Q}, 8", f"s_add_u32 s{S_T0}, s{S_T0}, s{S_T1}",
    f"v_lshl_add_u32 v{vTCH}, v{vL4}, 10, s{S_T0}", f"v_lshl_add_u32 v{vTCH}, v{vC}, 6, v{vTCH}",
    f"s_lshl2_add_u32 s{S_T2}, s{S_W}, s{S_T2}", f"v_lshl_add_u32 v{VFL}, v1, 24, s{S_T2}", f"v_mov_b32 v{VFS}, 2.0",
    f"v_lshlrev_b32 v{vCHA}, 3, v{vC}", f"s_mov_b32 s{S_MODE}, 0",
    f"s_lshl_b32 s{S_T0}, s{S_W}, 9", f"s_add_u32 s{S_T0}, s{S_T0}, {LDS_BIAS}", f"v_lshl_add_u32 v{vBW}, v1, 3, s{S_T0}",
    f"s_and_b32 s{S_T3}, s{S_W}, 1", f"s_lshl_b32 s{S_T1}, s{S_T3}, 8", f"s_add_u32 s{S_T0}, s{S_T0}, s{S_T1}",
    f"v_lshl_add_u32 v{vBR}, v{vG}, 4, s{S_T0}",
    f"s_mul_i32 s{S_T0}, s{S_W}, 5120", f"s_add_u32 s{S_T0}, s{S_T0}, {LDS_STG}",
    f"v_mul_u32_u24 v{VSW}, 80, v{vJ}", f"v_lshl_add_u32 v{VSW}, v{vG}, 3, v{VSW}", f"v_add_u32 v{VSW}, s{S_T0}, v{VSW}",
    f"v_mul_u32_u24 v{VSR}, 80, v{vL4}", f"v_lshl_add_u32 v{VSR}, v{vC}, 4, v{VSR}", f"v_add_u32 v{VSR}, s{S_T0}, v{VSR}",
    f"s_lshl_b32 s{S_T0}, s{S_Q}, 20", f"s_add_u32 s{S_T0}, s{S_T0}, s{S_TILE}", f"s_lshl_b32 s{S_T1}, s{S_W}, 6",
    f"s_add_u32 s{S_T0}, s{S_T0}, s{S_T1}", f"v_lshl_add_u32 v{VOUT}, v{vL4}, 13, s{S_T0}", f"v_lshl_add_u32 v{VOUT}, v{vC}, 4, v{VOUT}",
    f"v_lshrrev_b32 v{VM0}, 3, v1", f"v_lshlrev_b32 v{VM0}, 13, v{VM0}", f"v_and_b32 v{VM1}, 7, v1",
    f"v_lshl_add_u32 v{VM0}, v{VM1}, 4, v{VM0}", f"v_add_u32 v{VM0}, s{S_TILE}, v{VM0}", f"v_add_u32 v{VM1}, 0x10000, v{VM0}",
    f"v_mov_b32 v{VRDY}, {LDS_RDY}", f"s_sub_u32 s{S_OWN}, 0, s{S_GL}", f"s_and_b32 s{S_OWN}, s{S_OWN}, 3",
    ]: C.e(t)
for j in range(4):
    C.e(f"s_add_u32 s{S_T0}, s{S_R}, {j}"); C.e(f"s_and_b32 s{S_T0}, s{S_T0}, 3"); C.e(f"s_lshl_b32 s{S_OB[j]}, s{S_T0}, 18")
C.c("hand-off rows: stage s of producer wave p lies in output block 2s + p/2, rows 16*(p&1)..+15")
C.e(f"s_cmp_lt_u32 s{S_W}, 2")
C.e(f"s_cselect_b32 s{S_T0}, s{S_OB[0]}, s{S_OB[1]}")
C.e(f"s_cselect_b32 s{S_T1}, s{S_OB[2]}, s{S_OB[3]}")
C.e(f"s_lshl_b32 s{S_T3}, s{S_T3}, 17")
C.e(f"s_add_u32 s{S_T0}, s{S_T0}, s{S_T3}")
C.e(f"s_add_u32 s{S_T1}, s{S_T1}, s{S_T3}")
for m in range(4):
    C.e(f"s_add_u32 s{S_T3}, s{S_Q}, {m}"); C.e(f"s_and_b32 s{S_T3}, s{S_T3}, 3"); C.e(f"s_lshl_b32 s{S_T3}, s{S_T3}, 20")
    C.e(f"s_add_u32 s{S_MB[m, 0]}, s{S_T3}, s{S_T0}"); C.e(f"s_add_u32 s{S_MB[m, 1]}, s{S_T3}, s{S_T1}")
    if m == 0: C.e(f"s_xor_b32 s{S_T0}, s{S_T0}, 0x20000")

F = []
F.append(lambda: C.vneed("clr", "ep", "sig", "emb"))
F += [f"v_readfirstlane_b32 s{S_T3}, v{vEP}",
      f"s_mul_i32 s{S_H0}, s{S_T3}, {hex(HC0)}", f"s_add_u32 s{S_H0}, s{S_H0}, {hex(HK0)}",
      f"s_mul_i32 s{S_H1}, s{S_T3}, {hex(HC1)}", f"s_add_u32 s{S_H1}, s{S_H1}, {hex(HK1)}",
      f"s_add_u32 s{S_H0}, s{S_H0}, s{S_XCC}", f"s_add_u32 s{S_H1}, s{S_H1}, s{S_XCC}",
      f"v_mov_b32 v{vANN}, s{S_H0}", f"v_mov_b32 v{vANN+1}, s{S_H1}", f"s_lshl3_add_u32 s{S_T0}, s{S_Q}, s{S_EP}"]
F.append(lambda: C.vm(f"buffer_store_dwordx2 {q2(vANN)}, v{vT0A}, {sq(SRD_WS)}, s{S_T0} offen offset:128 sc1", "ann"))
F += [f"s_add_u32 s{S_EN}, s{S_T3}, 1"]
sg, a, b2, cs, cn = vSIG, T + 20, T + 21, T + 22, T + 23
def rnd(r): return [f"v_cvt_pk_bf16_f32 v{r}, v{r}, v{r}", f"v_lshlrev_b32 v{r}, 16, v{r}"]
F += [f"v_lshlrev_b32 v{sg}, 16, v{sg}", f"v_mul_f32 v{a}, v{sg}, v{sg}"] + rnd(a)
F += [f"v_add_f32 v{a}, 0x3e800000, v{a}"] + rnd(a)
F += [f"v_rcp_f32 v{cs}, v{a}", f"v_sqrt_f32 v{a}, v{a}"] + rnd(cs) + rnd(a)
F += [f"v_mul_f32 v{cs}, 0x3e800000, v{cs}", f"v_rcp_f32 v{a}, v{a}", f"v_lshrrev_b32 v{cs}, 16, v{cs}", f"v_mul_f32 v{b2}, 0.5, v{sg}"]
F += [f"v_mul_f32 v{b2}, v{b2}, v{a}"] + rnd(b2) + rnd(a)
F += [f"v_log_f32 v{cn}, v{sg}", f"v_mul_f32 v{a}, 0xbfb8aa3b, v{a}", f"v_mul_f32 v{cn}, 0x3f317218, v{cn}"] + rnd(cn)
F += [f"v_max_f32 v{b2}, 0x03800000, v{b2}", f"v_mul_f32 v{b2}, 0xbf317218, v{b2}", f"v_rcp_f32 v{b2}, v{b2}"]
F += [f"v_mul_f32 v{cn}, 0x3e800000, v{cn}"]
F += [f"v_readfirstlane_b32 s{S_S1}, v{a}", f"v_readfirstlane_b32 s{S_IK}, v{b2}", f"s_mov_b32 s{S_S1+1}, s{S_S1}", f"s_mov_b32 s{S_IK+1}, s{S_IK}"]
e0, e1 = T + 24, T + 25
F += [f"v_lshlrev_b32 v{e0}, 16, v{vEMB}", f"v_and_b32 v{e1}, 0xffff0000, v{vEMB}",
      f"v_mul_f32 v{e0}, v{cn}, v{e0}", f"v_mul_f32 v{e1}, v{cn}, v{e1}",
      f"v_cvt_pk_bf16_f32 v{e1}, v{e0}, v{e1}", f"v_lshlrev_b32 v{e0}, 16, v{e1}", f"v_and_b32 v{e1}, 0xffff0000, v{e1}",
      f"v_mul_f32 v{e0}, 0xbfb8aa3b, v{e0}", f"v_mul_f32 v{e1}, 0xbfb8aa3b, v{e1}"]
F.append(("lds", f"ds_write_b64 v{vBW}, {q2(e0)}", "biasw"))
for i in range(4):
    F.append(("lds", f"ds_read_b128 {q4(RBI + 4 * i)}, v{vBR} offset:{i * 64}", "bias"))
F += [f"v_and_b32 v{e0}, 1, v1", f"v_lshlrev_b32 v{e0}, 4, v{e0}", f"v_lshlrev_b32 v{cs}, v{e0}, v{cs}",
      f"v_lshrrev_b32 v{e0}, 1, v{vJ}", f"v_lshlrev_b32 v{e1}, 1, v{vG}", f"v_sub_u32 v{e0}, v{e0}, v{e1}",
      f"v_cmp_eq_u32 vcc, 0, v{e0}", f"v_mov_b32 v{RS}, 0", f"v_cndmask_b32 v{RS+2}, 0, v{cs}, vcc",
      f"v_cmp_eq_u32 vcc, 1, v{e0}", f"v_mov_b32 v{RS+1}, 0", f"v_cndmask_b32 v{RS+3}, 0, v{cs}, vcc",
      f"v_mov_b32 v{RS+4}, 0", f"v_mov_b32 v{RS+5}, 0"]
F_START, F_STEP = P.get('fstart', 20), 1
if P.get('nofill'): F = F[:12]; lastF = 0

class Pool:
    def __init__(s, regs): s.free = list(regs); s.rel = []
    def get(s, now):
        s.free += [r for t, r in s.rel if t <= now]; s.rel = [(t, r) for t, r in s.rel if t > now]
        assert s.free, "fragment pool empty"
        return s.free.pop(0)
    def put(s, t, r): s.rel.append((t, r))

def stream(units, reads_of, lead, pool, hook, first_burst):
    firstuse, lastuse = {}, {}
    for i, u in enumerate(units):
        for k in u:
            firstuse.setdefault(k, i); lastuse[k] = i
    order = sorted(firstuse, key=lambda k: firstuse[k])
    rq = [(k, i) for k in order for i in range(2)]
    reg = {}
    def issue(now):
        k, i = rq.pop(0)
        if i == 0:
            fixed = reads_of(k, None, None)
            reg[k] = fixed if fixed is not None else pool.get(now)
            if fixed is None: pool.put(lastuse[k] + 2, reg[k])
        reads_of(k, i, reg[k])
    return rq, reg, issue, firstuse

SEQ = [(0,0),(0,1),(1,1),(1,0),(1,2),(0,2),(2,2),(2,1),(2,0),(2,3),(1,3),(0,3),(3,3),(3,2),(3,1),(3,0)]
u1 = [(("w", n, a), ("x", n, p)) for n in range(16) for a, p in SEQ]
cur64 = [0]
def rd1(k, i, r):
    kind, n, t = k
    if i is None:
        return RX + 8 * (n // 4) + 4 * t if (kind == "x" and n % 4 == 0 and t < 2 and not P["rotmode"]) else None
    base = (n % 4) * 16384 + 8192 * i
    if kind == "w": a_, off = AD[t & 1], 4096 + 256 * (t >> 1)
    else: a_, off = AD[2 + 2 * (t >> 1) + (t & 1)], 0
    C.lds(f"ds_read_b64_tr_b16 {q2(r + 2 * i)}, v{a_} offset:{base + off}", k)
pool = Pool([RF + 4 * i for i in range(NPOOL)])
rq, reg, issue, fu = stream(u1, rd1, P["lead"], pool, None, 0)
C.stamp()
C.e("s_barrier")
if P["small"] == 0: small()
C.stamp()
barred = 0
def issue1(now):
    global barred
    n = rq[0][0][1]
    if n > barred:
        barred = n
        if n % 4 == 0:
            for r in AD[:6]: C.e(f"v_xor_b32 v{r}, 0x10000, v{r}")
        C.e("s_barrier")
        if n == P["small"]: small()
        if n == P["wo_touch"]:
            C.c("this workgroup's share of w_out into the L2; the values are not used")
            C.vm(f"buffer_load_dword v{VT1}, v{vTCH}, {sq(SRD_WO)}, 0 offen", "touch")
        if n == 11: C.vm(f"buffer_load_dwordx2 {q2(vCHK)}, v{vCHA}, {sq(SRD_WS)}, s{S_EP} offen offset:128 sc1", "chk")
    issue(now)
for _ in range(P["lead"]): issue1(0)
for i, (ka, kb) in enumerate(u1):
    if i and i % 64 == 0 and not P['xs']: C.stamp()
    C.need(ka, kb)
    a_, p_ = ka[2], kb[2]
    acc = RA + 4 * (4 * p_ + a_)
    C.e(f"v_mfma_f32_16x16x32_bf16 {q4(acc)}, {q4(reg[ka])}, {q4(reg[kb])}, {'0' if i < 16 else q4(acc)}")
    if rq: issue1(i)
    if P["rotmode"] and i % 16 == 9:
        n = i // 16
        C.e(f"s_cmp_eq_u32 s{S_OWN}, {n & 3}")
        C.e(f"s_cbranch_scc0 L_keep{n}")
        for t in range(2):
            for o in range(4): C.e(f"v_mov_b32 v{RX + 8 * (n // 4) + 4 * t + o}, v{reg['x', n, t] + o}")
        C.lab(f"L_keep{n}")
        continue
    C.l.append("@GAP")
    waited = i + 1 < len(u1) and C.need(*u1[i + 1])
    if F and i >= F_START and not waited:
        f = F.pop(0)
        if isinstance(f, str): C.e(f)
        elif isinstance(f, tuple): C.lds(f[1], f[2])
        else: f()
        lastF = i
assert not F
assert not C.lq
C.stamp()
C.c("all four members have reset their progress words in this launch, and one L2 serves all of them")
C.vneed("chk", "touch")
C.e(f"v_cmp_ne_u32 vcc, s{S_H0}, v{vCHK}")
C.e(f"v_cmp_ne_u32 {sp(S_MSK)}, s{S_H1}, v{vCHK+1}")
C.c("w_out addresses: [near/far 32-row pair][half][64 KiB]")
C.e(f"s_and_b32 s{S_T0}, s{S_W}, 1")
C.e(f"s_lshl_b32 s{S_T0}, s{S_T0}, 14")
C.e(f"s_or_b64 vcc, vcc, {sp(S_MSK)}")
if P.get("forceslow"): C.e("s_cmp_eq_u32 0, 0")
C.e("s_cbranch_scc1 L_ann_wait")
C.lab("L_ann_ok")
C.tail += ["L_ann_wait:", f"    s_mov_b32 s{S_CNT}, 0",
           f"    s_sub_u32 s{S_H0}, s{S_H0}, s{S_XCC}", f"    s_sub_u32 s{S_H1}, s{S_H1}, s{S_XCC}", "L_ann_l:",
           f"    buffer_load_dwordx2 {q2(vCHK)}, v{vCHA}, {sq(SRD_WS)}, s{S_EP} offen offset:128 sc1",
           f"    s_add_u32 s{S_CNT}, s{S_CNT}, 1", "    s_waitcnt vmcnt(0)",
           f"    v_subrev_u32 v{vCHK}, s{S_H0}, v{vCHK}", f"    v_subrev_u32 v{vCHK+1}, s{S_H1}, v{vCHK+1}",
           f"    v_cmp_ne_u32 vcc, v{vCHK}, v{vCHK+1}", f"    v_cmp_le_u32 {sp(S_MSK)}, 16, v{vCHK}",
           f"    s_cmp_ge_u32 s{S_CNT}, 0x100000", "    s_cbranch_scc1 L_ann_ok",
           f"    s_or_b64 vcc, vcc, {sp(S_MSK)}", "    s_cbranch_scc1 L_ann_l",
           f"    v_cmp_ne_u32 vcc, s{S_XCC}, v{vCHK}", "    s_nop 1", "    s_cmp_lg_u64 vcc, 0"]
if not P.get("forceslow"): C.tail += ["    s_cbranch_scc0 L_ann_ok"]
C.tail += ["    ; members on several XCDs: the L2-local stores fall out of range; L_slow0/1 publish through memory instead",
           f"    s_mov_b32 s{S_MODE}, 1", f"    v_or_b32 v{VM0}, 2.0, v{VM0}", f"    v_or_b32 v{VM1}, 2.0, v{VM1}",
           f"    v_mov_b32 v{VFS}, v{VFL}", f"    v_mov_b32 v{VFL}, 2.0", "    s_branch L_ann_ok"]
C.e(f"v_add_u32 v{AD[0]}, s{S_T0}, v{AD[6]}")
C.e(f"v_xor_b32 v{AD[2]}, 32, v{AD[0]}")
C.e(f"v_xor_b32 v{AD[4]}, 0x4000, v{AD[0]}")
C.e(f"v_xor_b32 v{AD[6]}, 0x4000, v{AD[2]}")
for r in (0, 2, 4, 6): C.e(f"v_add_u32 v{AD[r+1]}, 0x10000, v{AD[r]}")
vXW, vXR = RF + 80, RF + 81
C.e(f"s_mul_i32 s{S_T0}, s{S_W}, 5120")
C.e(f"s_xor_b32 s{S_T1}, s{S_W}, 1")
C.e(f"s_mul_i32 s{S_T1}, s{S_T1}, 5120")
C.e(f"v_lshlrev_b32 v{vXR}, 4, v1")
C.e(f"v_add_u32 v{vXR}, {LDS_STG}, v{vXR}")
C.e(f"v_add_u32 v{vXW}, s{S_T0}, v{vXR}")
C.e(f"v_add_u32 v{vXR}, s{S_T1}, v{vXR}")

DQ = RF + 4
def hreg(p, kk): return RH + 4 * (2 * p + kk)
def hst(p, kk, pol): return f"buffer_store_dwordx4 {q4(hreg(p, kk))}, v{VM1 if kk else VM0}, {sq(SRD_OUT)}, s{S_MB[0, 1 - p // 2]} offen offset:{(p & 1) * 128}{pol}"
def flag(v, both=False):
    C.e(f"v_mov_b32 v{VT1}, {v}")
    C.vm(f"buffer_store_dword v{VT1}, v{VFL}, {sq(SRD_WS)}, 0 offen offset:256", ("fl", v))
    if both: C.vm(f"buffer_store_dword v{VT1}, v{VFS}, {sq(SRD_WS)}, 0 offen offset:256 sc1", ("fl", v))
def slow(s):
    C.e(f"s_cmp_lg_u32 s{S_MODE}, 0")
    C.e(f"s_cbranch_scc1 L_slow{s}")
    C.lab(f"L_slow{s}_done")
    ps = (2, 3) if s == 0 else (0, 1)
    C.tail += [f"L_slow{s}:", f"    v_xor_b32 v{VM0}, 2.0, v{VM0}", f"    v_xor_b32 v{VM1}, 2.0, v{VM1}"]
    C.tail += ["    " + hst(p, kk, " sc1") for p in ps for kk in range(2)]
    C.tail += [f"    v_mov_b32 v{VT1}, {s + 1}", "    s_waitcnt vmcnt(0) lgkmcnt(0)",
               f"    buffer_store_dword v{VT1}, v{VFS}, {sq(SRD_WS)}, 0 offen offset:256 sc1"]
    if s == 0: C.tail += [f"    v_xor_b32 v{VM0}, 2.0, v{VM0}", f"    v_xor_b32 v{VM1}, 2.0, v{VM1}"]
    C.tail += ["    s_waitcnt vmcnt(0)", f"    s_branch L_slow{s}_done"]
def check(name, v, done=False):
    rdi = f"ds_read_b128 {q4(DQ)}, v{VRDY} offset:16" if done else f"ds_read_b32 v{VT0}, v{VRDY}"
    red = [f"    v_min3_u32 v{VT0}, v{DQ}, v{DQ+1}, v{DQ+2}", f"    v_min_u32 v{VT0}, v{VT0}, v{DQ+3}", "    s_nop 0"] if done else []
    C.e(f"s_cmp_ge_u32 s{S_T1}, {v}")
    C.e(f"s_cbranch_scc0 L_spin{name}")
    C.lab(f"L_back{name}")
    if name != "W2" and not P["xs"]: C.stamp()
    C.tail += [f"L_spin{name}:", f"    s_mov_b32 s{S_CNT}, 0", f"L_spin{name}_l:",
               "    " + rdi, f"    s_add_u32 s{S_CNT}, s{S_CNT}, 1", "    s_waitcnt lgkmcnt(0)", *red,
               f"    v_readfirstlane_b32 s{S_T1}, v{VT0}", f"    s_cmp_ge_u32 s{S_CNT}, 0x800000", f"    s_cbranch_scc1 L_back{name}",
               f"    s_cmp_ge_u32 s{S_T1}, {v}", f"    s_cbranch_scc0 L_spin{name}_l", f"    s_branch L_back{name}"]

C.c("---- h = c_out * silu(c_in * acc + bias), two elements per packed op; the sibling's pixels first")
tiles = [(p, a) for p in (2, 3, 0, 1) for a in range(4)]
U = RF
def cvt(p, a):
    A_ = RA + 4 * (4 * p + a)
    for o in (0, 2): C.e(f"v_cvt_pk_bf16_f32 v{hreg(p, a >> 1) + 2 * (a & 1) + o // 2}, v{A_+o}, v{A_+o+1}")
def publish(p, a):
    kk = a >> 1
    C.vm(hst(p, kk, ""), ("st", 1 - p // 2))
    if p >= 2: C.lds(f"ds_write_b128 v{vXW}, {q4(hreg(p, kk))} offset:{((p & 1) * 2 + kk) * 1024}", "xw")
def acc1(n): return RA + 4 * (4 * tiles[n][0] + tiles[n][1])
def ok(n): return 0 <= n < 16
for n in range(-2, 17):
    if ok(n + 1):
        for o in range(4): C.e(f"v_exp_f32 v{acc1(n+1)+o}, v{U + 4*((n+1)&3) + o}")
    C.l.append("@GAP")
    if ok(n - 2) and n % 2 == 1: publish(*tiles[n - 2])
    if ok(n - 1):
        for o in (0, 2): C.e(f"v_pk_mul_f32 {q2(acc1(n-1)+o)}, {q2(acc1(n-1)+o)}, {q2(U + 4*((n-1)&3) + o)}")
    if ok(n + 2):
        for o in (0, 2): C.e(f"v_pk_fma_f32 {q2(U + 4*((n+2)&3) + o)}, {q2(acc1(n+2)+o)}, {sp(S_S1)}, {q2(RBI + 4*tiles[n+2][1] + o)}")
    if ok(n):
        for o in range(4): C.e(f"v_rcp_f32 v{acc1(n)+o}, v{acc1(n)+o}")
    if ok(n + 1):
        for o in (0, 2): C.e(f"v_pk_fma_f32 {q2(acc1(n+1)+o)}, {q2(acc1(n+1)+o)}, {sp(S_IK)}, {sp(S_IK)}")
    if ok(n - 1): cvt(*tiles[n - 1])
    C.l.append("@GAP")
    if n == 9: slow(0)
    if n == 10:
        C.need("xw")
        C.e("s_barrier")
        C.stamp()
        for p2 in range(2):
            for kk in range(2): C.lds(f"ds_read_b128 {q4(hreg(2 + p2, kk))}, v{vXR} offset:{(p2 * 2 + kk) * 1024}", "xr")
    if P["flA"] < 0 and n == 10 - P["flA"]:
        C.vneed(("st", 0)); flag(1)
    if n == 15 and P["chkA"] < 8: C.lds(f"ds_read_b32 v{VT0}, v{VRDY}", ("rdy", "A"))
publish(*tiles[-1])
slow(1)
C.stamp()

poolq = [RF + 4 * i for i in range(NPOOL)]
rem = poolq[9:21] + [RBI + 4 * i for i in range(4)] + [RX + 4 * i for i in range(8)]
def rq_(s, m, kk, p): return rem[12 * s + 4 * (m - 1) + 2 * kk + p]
units = []
for t in range(2):
    for rho in range(4):
        for p in range(2): units.append((2 * rho + t, p, RX + 8 * rho + 4 * p, ("sel", t), True, None))
def snake(jts, areg, m, far, kk, tag):
    for n, jt in enumerate(jts):
        for p in ((0, 1) if n % 2 == 0 else (1, 0)):
            units.append((jt, p, areg(p), ("o", m, far, kk, jt), False, tag(p)))
for far in (1, 0):
    for kk in range(2): snake(range(8), lambda p: hreg(2 * far + p, kk), 0, far, kk, lambda p: "xr" if far else None)
for m in (1, 2, 3):
    for kk in range(2): snake(range(8), lambda p: rq_(0, m, kk, p), m, 1, kk, lambda p: ("pl", 0, m, kk, p))
for m in range(1, 4 - P["bm"]):
    for kk in range(2): snake(range(8), lambda p: rq_(1, m, kk, p), m, 0, kk, lambda p: ("pl", 1, m, kk, p))
for blk in range(4):
    for m in range(4 - P["bm"], 4):
        for kk in range(2): snake((2 * blk, 2 * blk + 1), lambda p: rq_(1, m, kk, p), m, 0, kk, lambda p: ("pl", 1, m, kk, p))
NU = len(units)
def rd2(k, i, r):
    if i is None: return None
    _, m, far, kk, jt = k
    base = (4 * m + kk) * 8192
    a_ = AD[4 * far + 2 * (jt & 1) + (base >= 65536)]
    C.lds(f"ds_read_b64_tr_b16 {q2(r + 2 * i)}, v{a_} offset:{base % 65536 + 4096 * i + 256 * (jt >> 1)}", k)
pool2 = Pool(poolq[2:9])
rq, reg, issue, fu = stream([(u[3],) if u[3][0] == "o" else () for u in units], rd2, P["pf2"], pool2, None, 0)
first_remote = min(i for i, u in enumerate(units) if isinstance(u[5], tuple))
first_m3 = min(i for i, u in enumerate(units) if u[3][0] == "o" and u[3][1] == M_LATE)
last = {blk: max(i for i, u in enumerate(units) if u[0] // 2 == blk) for blk in range(4)}
opol = POL[P["outpol"]]; ldpol = POL[P["ldpol"]]
sched = {}
def at(i, kind, x): sched.setdefault(i, []).append((kind, x))
def done_check(i, name, v):
    at(i - 10, "m", lambda: C.lds(f"ds_read_b128 {q4(DQ)}, v{VRDY} offset:16", ("rdy", name)))
    at(i - 3, "m", lambda: C.need(("rdy", name)))
    at(i - 3, "v", f"v_min3_u32 v{VT0}, v{DQ}, v{DQ+1}, v{DQ+2}")
    at(i - 2, "v", f"v_min_u32 v{VT0}, v{VT0}, v{DQ+3}")
    at(i - 1, "v", f"v_readfirstlane_b32 s{S_T1}, v{VT0}")
    at(i, "m", lambda: check(name, v, True))
def rdy_check(i, name, v):
    if i >= 8: at(i - 8, "m", lambda: C.lds(f"ds_read_b32 v{VT0}, v{VRDY}", ("rdy", name)))
    at(i - 1, "m", lambda: C.need(("rdy", name)))
    at(i - 1, "v", f"v_readfirstlane_b32 s{S_T1}, v{VT0}")
    at(i, "m", lambda: check(name, v))
done_check(first_remote - P["pf2"] - 3, "W1", 1)
done_check(first_m3 - P["pf2"] - 3, "W2", 2)
for x in (first_remote - P["pf2"] - 3, first_m3 - P["pf2"] - 3):
    for y in (P["chkA"], P["chkB"]): assert y < x - 3 or y - 8 > x, (x, y)
for s, nm_ in ((0, "A"), (1, "B")):
    i0 = P["chk" + nm_]
    rdy_check(i0, nm_, s + 1)
    n = 0
    for m in (1, 2, 3):
        for kk in range(2):
            for p in range(2):
                at(i0 + (n * P["ldgap" + nm_]) // 2, "m", lambda s=s, m=m, kk=kk, p=p: C.vm(
                    f"buffer_load_dwordx4 {q4(rq_(s, m, kk, p))}, v{VM1 if kk else VM0}, {sq(SRD_OUT)}, s{S_MB[m, s]} offen offset:{p * 128}{ldpol}", ("pl", s, m, kk, p)))
                n += 1
    at(P["ack" + nm_], "m", lambda s=s: (C.vneed(("pl", s, 3, 1, 1)), flag(3 + s, True)))
assert P["chkB"] >= 16 + 2
if P["flA"] >= 0: at(P["flA"], "m", lambda: (C.vneed(("st", 0)), flag(1)))
at(P["flB"], "m", lambda: (C.vneed(("st", 1)), flag(2)))
assert P["flB"] >= 16
assert P["flA"] <= P["chkA"] and P["flB"] <= P["chkB"] and P["flB"] < P["ackA"] < P["ackB"]
TMP = RF
for blk in range(4):
    t0 = last[blk] + 5
    dat = RA + 16 * blk; so = (blk & 1) * 2560
    for g in range(4):
        for o in range(2): at(t0 + 2 * g + o, "v", f"v_cvt_pk_bf16_f32 v{TMP + 2*g + o}, v{dat + 4*g + 2*o}, v{dat + 4*g + 2*o + 1}")
        at(t0 + 2 * g + 2, "m", lambda g=g, so=so, blk=blk: C.lds(f"ds_write_b64 v{VSW}, {q2(TMP + 2*g)} offset:{so + 1280 * (g >> 1) + 32 * (g & 1)}", ("sw", blk)))
    for k in range(2):
        at(t0 + 9 + k, "m", lambda k=k, so=so, blk=blk, dat=dat: C.lds(f"ds_read_b128 {q4(dat + 4*k)}, v{VSR} offset:{so + 1280*k}", ("sr", blk, k)))
    if blk % 2 == 0: rdy_check(t0 + 16, f"O{blk}", 3 + blk // 2)
    def st(k, blk=blk, dat=dat):
        if k: C.e(f"s_add_u32 s{S_OB[blk]}, s{S_OB[blk]}, 0x20000")
        C.need(("sr", blk, k))
        C.vm(f"buffer_store_dwordx4 {q4(dat + 4*k)}, v{VOUT}, {sq(SRD_OUT)}, s{S_OB[blk]} offen{opol}", ("out", blk))
    for k in range(2): at(t0 + 17 + k, "m", lambda k=k, st=st: st(k))
assert P["ackA"] < last[0] + 21 and P["ackB"] < last[2] + 21
ie = P["chkB"] + 20
at(ie, "m", lambda: (C.c("member 0 moves the group's epoch on (every member read it long ago: their progress words came after it)"),
                     C.e(f"s_lshl_b32 s{S_T0}, s{S_Q}, 28")))
at(ie, "v", f"v_lshl_or_b32 v{TMP}, v0, 24, s{S_T0}")
at(ie + 1, "v", f"v_mov_b32 v{TMP+1}, s{S_EN}")
at(ie + 2, "m", lambda: C.vm(f"buffer_store_dword v{TMP+1}, v{TMP}, {sq(SRD_WS)}, s{S_EP} offen sc1", "epst"))
def pre_wait(i):
    if i >= NU: return
    u = units[i]
    if isinstance(u[5], tuple): C.vneed(u[5])
    C.need(u[3], *([u[5]] if u[5] == "xr" else []))
for it in sched.pop(-1, []) + [x for i in sorted(k for k in sched if k < 0) for x in sched.pop(i)]: raise SystemExit("negative slot")
for i, u in enumerate(units):
    jt, p, ar, bk, first, tag = u
    if i in P["xs"]:
        C.stamp(); C.smem = False
    pre_wait(i)
    br = RS + 2 - 2 * bk[1] if bk[0] == "sel" else reg[bk]
    acc = RA + 4 * (2 * jt + p)
    C.e(f"v_mfma_f32_16x16x32_bf16 {q4(acc)}, {q4(ar)}, {q4(br)}, {'0' if first else q4(acc)}")
    if rq and fu[rq[0][0]] <= i + P["pf2"] + 1: issue(i)
    C.l.append("@GAP")
    items = sched.pop(i, [])
    for k, x in items:
        if k == "m": x()
    pre_wait(i + 1)
    for k, x in items:
        if k == "v": C.e(x)
C.stamp()
C.e("s_nop 7")
for i in sorted(sched):
    for k, x in sorted(sched[i], key=lambda y: y[0]):
        if k == "v": C.e(x)
        else: x()
C.stamp()
if P["stamps"] or "probe" in P:
    C.e("s_waitcnt vmcnt(0)"); C.stamp()
if "probe" in P or P.get("rt"):
    C.e("s_waitcnt lgkmcnt(0)")
    if "probe" in P:
        C.e("s_sub_u32 s96, s96, s100"); C.e("s_lshl_b32 s96, s96, 2"); C.e("s_add_u32 s96, s96, 2000")
        if "pwg" in P:
            C.e(f"s_cmp_eq_u32 s2, {P['pwg']}"); C.e("s_cselect_b32 s96, s96, 0")
    else: C.e(f"s_mov_b32 s96, {P['rt']}")
    C.lab("L_rt")
    C.e("s_memrealtime s[98:99]"); C.e("s_waitcnt lgkmcnt(0)"); C.e("s_sub_u32 s98, s98, s100")
    C.e("s_cmp_lt_u32 s98, s96"); C.e("s_cbranch_scc1 L_rt")
C.dump_stamps()
C.e("s_endpgm")

nm = P["name"]
hdr = open("standalone__edm_precond__diffusion.s.ref").read().split("; Override")[0]
out = [hdr.rstrip(),
       "; generated by gen/gen.py  " + " ".join(sys.argv[1:]),
       f"; @launch grid=(256,1,1) block=(512,1,1) lds={LDS_TOTAL}",
       '.amdgcn_target "amdgcn-amd-amdhsa--gfx950"', ".text", f".globl {nm}_kernel", f".p2align {P['align']}",
       f".type {nm}_kernel,@function", f"{nm}_kernel:"]
body = h.l + L.l[:L_HEAD] + C.l + C.tail + L.l[L_HEAD:] + ["L_end:"]
if P["warm"]:
    import subprocess, re, tempfile, os
    n0 = len(h.l) + L_HEAD + len(C.l)
    body = body[:n0] + ["@COLD"] + [y for x in body[n0:] for y in ([x, "@COLD"] if re.match(r"\s+s_(branch|barrier)\b", x) else [x])]
    def addrs(lines):
        t = [f"L_g{i}:" if x in ("@GAP", "@COLD") else x for i, x in enumerate(lines)]
        t = [y for x in t for y in (["s_nop 0"] * 24 if x == "@HOPS" else [x])]
        d = tempfile.mkdtemp()
        open(d + "/a.s", "w").write("\n".join(out + t) + "\n")
        subprocess.run(["clang", "-x", "assembler", "-target", "amdgcn-amd-amdhsa", "-mcpu=gfx950", "-c", d + "/a.s", "-o", d + "/a.o"], check=True)
        o = subprocess.run(["llvm-objdump", "-t", d + "/a.o"], capture_output=True, text=True).stdout
        return {int(m.group(2)): int(m.group(1), 16) for m in re.finditer(r"^([0-9a-f]+) .* L_g(\d+)$", o, re.M)}
    ad = addrs(body)
    START = 0x300
    step = P.get("hopstep", 4096)
    picks = []; nb = step; lastc = -999
    for i in sorted(ad):
        a_ = ad[i] + START + 4 * len(picks)
        if body[i] == "@GAP" and a_ >= nb:
            picks.append(i); nb = (a_ // step + 1) * step
        elif body[i] == "@COLD" and a_ - lastc >= P.get("coldstep", 256):
            picks.append(i); lastc = a_
    assert len(picks) <= 12, len(picks)
    rep = {i: [f"L_hop{k}:", "    s_cbranch_execz L_warm_ret"] for k, i in enumerate(picks)}
    tab = [y for k in range(12) for y in ([f"    s_cmp_eq_u32 s{S_T0}, {4 * (D + P['hop0']) + 4 + k}", f"    s_cbranch_scc1 L_hop{k}"] if k < len(picks) else ["    s_nop 0"] * 2)]
    rep[body.index("@HOPS")] = tab
    body = [y for i, x in enumerate(body) for y in (rep.get(i, []) if x in ("@GAP", "@COLD", "@HOPS") else [x])]
else:
    body = [x for x in body if x != "@GAP"]
out += body
out += ['.section .rodata,"a"', ".p2align 6", f".amdhsa_kernel {nm}_kernel",
        "  .amdhsa_next_free_vgpr 256", "  .amdhsa_next_free_sgpr 102", "  .amdhsa_accum_offset 256",
        "  .amdhsa_group_segment_fixed_size 0", "  .amdhsa_kernarg_size 64", "  .amdhsa_user_sgpr_count 2",
        "  .amdhsa_user_sgpr_kernarg_segment_ptr 1", "  .amdhsa_system_sgpr_workgroup_id_x 1", ".end_amdhsa_kernel"]
print("\n".join(out))
```

```python
import sys, json

P = dict(hop0=1, tlb=0, small=-1, fstart=20, rotmode=1, warm=0, xs=(), align=12, ntx=0, wb=0, split=1, outpol0='sc1', outpol="nt", ldpol="ntsc1", D=4, pre16=21, thr=4, thr2=8, stamps=0, codepf=1, wo_touch=8, prime=1, fill=1, fillpos=18,
         lead=12, pf2=8,
         flA=-1, flB=30,
         chkA=44, chkB=104, ldgapA=10, ldgapB=8, bm=2, ackA=150, ackB=215, spf=0, spf0=0,
         name="standalone__edm_precond__diffusion")
for a in sys.argv[1:]:
    k, v = a.split("=", 1)
    try: P[k] = json.loads(v)
    except Exception: P[k] = v

POL = {"plain": "", "sc1": " sc1", "nt": " nt", "ntsc1": " sc1 nt"}
WSB = 0x8000
WS_BYTES = 0x408000
HC0, HK0, HC1, HK1 = 0x9E3779B1, 0x7F4A7C15, 0x85EBCA77, 0xC2B2AE3D
STAMP_OFF = 0x900000
LDS_MISC = 131072
LDS_BIAS = LDS_MISC
LDS_RDY = LDS_MISC + 2048
LDS_STG = LDS_MISC + 4096
LDS_TOTAL = LDS_STG + 4 * 5120

class Prog:
    def __init__(s):
        s.l = []; s.lq = []; s.vq = []; s.smem = False; s.nst = 0; s.tail = []; s.is_c = False
    def e(s, t): s.l.append("    " + t)
    def lab(s, t): s.l.append(t + ":")
    def c(s, t): s.l.append("    ; " + t)
    def lds(s, t, tag):
        s.e(t); s.lq.append(tag)
    def vm(s, t, tag):
        s.e(t); s.vq.append(tag); assert len(s.vq) <= 63
    def need(s, *tags):
        idx = max([i for i, t in enumerate(s.lq) if t in tags], default=-1)
        if idx < 0: return False
        n = len(s.lq) - 1 - idx
        n = min(n, 15)
        if s.smem: n = 0; s.smem = False
        s.e(f"s_waitcnt lgkmcnt({n})"); s.lq = s.lq[len(s.lq) - n:] if n else []
        return True
    def vneed(s, *tags):
        idx = max([i for i, t in enumerate(s.vq) if t in tags], default=-1)
        if idx < 0: return False
        n = len(s.vq) - 1 - idx
        s.e(f"s_waitcnt vmcnt({n})"); s.vq = s.vq[len(s.vq) - n:] if n else []
        return True
    def stamp(s):
        if "probe" in P:
            if s.nst == P["probe"] and s.is_c:
                s.e("s_memrealtime s[96:97]"); s.smem = True
            s.nst += 1
        if P["stamps"]:
            s.e(f"{'s_memtime' if P['stamps'] == 1 else 's_memrealtime'} s[{68 + 2 * s.nst}:{69 + 2 * s.nst}]"); s.nst += 1; s.smem = True
            assert s.nst <= 17
    def dump_stamps(s):
        if not P["stamps"]: return
        s.e("s_waitcnt lgkmcnt(0) vmcnt(0)")
        s.e("v_mov_b32 v14, 0")
        for i in range(1, s.nst):
            s.e(f"s_sub_u32 s{68+2*i}, s{68+2*i}, s68")
            s.e(f"v_writelane_b32 v14, s{68+2*i}, {i}")
        s.e("s_lshl_b32 s3, s2, 11")
        s.e(f"s_add_u32 s3, s3, {STAMP_OFF}")
        s.e("v_lshl_add_u32 v15, v0, 2, s3")
        s.e("global_store_dword v15, v14, s[18:19]")

def q4(r): return f"v[{r}:{r+3}]"
def q2(r): return f"v[{r}:{r+1}]"
def sq(d): return f"s[{d}:{d+3}]"
def sp(d): return f"s[{d}:{d+1}]"

S_EP, S_EN = 20, 21
S_W, S_Q, S_GL, S_G, S_R, S_TILE = 22, 23, 24, 25, 26, 27
SRD_A, SRD_B, SRD_C = 28, 32, 36
S_OB = (40, 41, 42, 43)
S_T0, S_T1, S_T2, S_T3 = 44, 45, 46, 47
S_S1, S_IK, S_MSK = 48, 50, 52
S_MB = {(m, s): 54 + 2 * m + s for m in range(4) for s in range(2)}
S_CNT, S_H0, S_H1, S_XCC, S_MODE, S_OWN = 62, 63, 64, 65, 66, 67
S_N, S_LB, S_XO, S_WO = 40, 41, 42, 43

h = Prog()
h.stamp()
if P.get("rt") or "probe" in P: h.e("s_memrealtime s[100:101]")
h.e("s_load_dwordx16 s[4:19], s[0:1], 0")
h.e("s_cmp_ge_u32 s2, 0x100")
h.e("s_cbranch_scc1 L_exit")
h.e("v_lshrrev_b32 v2, 6, v0")
h.e("v_and_b32 v1, 63, v0")
h.e(f"v_readfirstlane_b32 s{S_W}, v2")
h.e(f"s_lshr_b32 s{S_T0}, s2, 3")
if P["codepf"]:
    h.c("pull this kernel's code into the L2 (one 128-byte line per wave)")
    h.e("s_getpc_b64 s[20:21]")
    h.lab("L_pc")
    h.e(f"s_lshl_b32 s{S_T1}, s{S_T0}, 3")
    h.e(f"v_add_lshl_u32 v3, v2, s{S_T1}, 7")
    h.e("v_min_u32 v3, L_end-L_pc-4, v3")
    h.e("global_load_dword v15, v3, s[20:21]")
h.e(f"s_and_b32 s{S_Q}, s{S_T0}, 3")
h.e(f"s_lshr_b32 s{S_GL}, s{S_T0}, 2")
h.e(f"s_and_b32 s{S_T1}, s2, 7")
h.e(f"s_lshl3_add_u32 s{S_G}, s{S_GL}, s{S_T1}")
h.e(f"s_lshr_b32 s{S_T0}, s{S_G}, 5")
h.e(f"s_lshl_b32 s{S_TILE}, s{S_T0}, 22")
h.e(f"s_and_b32 s{S_T1}, s{S_G}, 31")
h.e(f"s_lshl_b32 s{S_T1}, s{S_T1}, 8")
h.e(f"s_add_u32 s{S_TILE}, s{S_TILE}, s{S_T1}")
if P["rotmode"]: h.e(f"s_mov_b32 s{S_R}, 0")
else: h.e(f"s_and_b32 s{S_R}, s{S_GL}, 3")
h.e(f"s_cmp_lt_u32 s{S_W}, 4")
h.e("s_cbranch_scc1 L_compute")

L = Prog(); L.nst = h.nst
D = P["D"]
ntx = " nt" if P["ntx"] else ""
L.c("---------------- loader waves: wave 4+i brings rows 4i..4i+3 of every 16-row step")
L.e("v_lshrrev_b32 v4, 4, v1")
L.e("v_lshlrev_b32 v6, 1, v2")
L.e("v_xor_b32 v6, v6, v1")
L.e("v_and_b32 v6, 3, v6")
L.e("v_lshlrev_b32 v6, 4, v6")
L.e("v_bfe_u32 v5, v0, 2, 2")
L.e("v_and_b32 v2, 3, v2")
L.e("v_lshl_add_u32 v5, v2, 2, v5")
L.e("v_lshl_add_u32 v7, v4, 6, v6")
L.e("v_lshl_add_u32 v2, v5, 13, v7")
L.e(f"v_add_u32 v2, s{S_TILE}, v2")
L.e(f"s_lshl_b32 s{S_T0}, s{S_Q}, 8")
L.e(f"v_lshl_add_u32 v5, v5, 10, s{S_T0}")
L.e("v_add_u32 v3, v5, v7")
L.e(f"s_and_b32 s{S_LB}, s{S_W}, 3")
L.e(f"s_lshl_b32 s{S_LB}, s{S_LB}, 10")
L.e(f"s_mov_b32 s{S_N}, 0")
L.e(f"s_mov_b32 s{SRD_A+2}, 0x800000"); L.e(f"s_mov_b32 s{SRD_A+3}, 0x20000")
L.e(f"s_mov_b32 s{SRD_B+2}, 0x80000"); L.e(f"s_mov_b32 s{SRD_B+3}, 0x20000")
L.e("s_waitcnt lgkmcnt(0)")
L.e(f"s_mov_b64 {sp(SRD_A)}, s[4:5]")
L.e(f"s_mov_b64 {sp(SRD_B)}, s[8:9]")
if P["spf"]:
    L.e(f"s_lshl_b32 s56, s{S_GL}, 16"); L.e(f"s_lshl_b32 s57, s{S_LB}, 4"); L.e("s_add_u32 s56, s56, s57"); L.e(f"s_add_u32 s56, s56, s{S_T0}")
    L.e("s_add_u32 s56, s56, s12"); L.e("s_addc_u32 s57, s13, 0"); L.e("s_mov_b32 s58, 0")
L.lab("L_ld1")
L.c("slot n holds 32 rows: block n/4 of quarter (n+member+group)&3, so that every row is first fetched by few workgroups")
L.e(f"s_add_u32 s{S_T0}, s{S_N}, s{S_Q}")
if P["rotmode"]: L.e(f"s_add_u32 s{S_T0}, s{S_T0}, s{S_GL}")
L.e(f"s_and_b32 s{S_T0}, s{S_T0}, 3")
L.e(f"s_lshr_b32 s{S_T1}, s{S_N}, 2")
if not P.get("rotmode"):
    L.e(f"s_add_u32 s{S_T1}, s{S_T1}, s{S_R}")
    L.e(f"s_and_b32 s{S_T1}, s{S_T1}, 3")
L.e(f"s_lshl2_add_u32 s{S_T0}, s{S_T0}, s{S_T1}")
L.e(f"s_mov_b32 m0, s{S_LB}")
L.e(f"s_lshl_b32 s{S_XO}, s{S_T0}, 18")
L.e(f"buffer_load_dwordx4 v2, {sq(SRD_A)}, s{S_XO} offen{ntx} lds")
L.e(f"s_add_u32 m0, s{S_LB}, 0x1000")
L.e(f"s_lshl_b32 s{S_WO}, s{S_T0}, 15")
L.e(f"buffer_load_dwordx4 v3, {sq(SRD_B)}, s{S_WO} offen lds")
L.e(f"s_add_u32 m0, s{S_LB}, 0x2000")
L.e(f"s_add_u32 s{S_XO}, s{S_XO}, 0x20000")
L.e(f"buffer_load_dwordx4 v2, {sq(SRD_A)}, s{S_XO} offen{ntx} lds")
L.e(f"s_add_u32 m0, s{S_LB}, 0x3000")
L.e(f"s_add_u32 s{S_WO}, s{S_WO}, 0x4000")
L.e(f"buffer_load_dwordx4 v3, {sq(SRD_B)}, s{S_WO} offen lds")
L.e(f"s_add_u32 s{S_LB}, s{S_LB}, 0x4000")
L.e(f"s_and_b32 s{S_LB}, s{S_LB}, 0x1ffff")
L.e(f"s_add_u32 s{S_N}, s{S_N}, 1")
L.e(f"s_cmp_lt_u32 s{S_N}, {D}")
L.e("s_cbranch_scc1 L_ld1")
if P["warm"]:
    L.e(f"s_cmp_lt_u32 s{S_N}, {D + P['hop0'] + 3}")
    L.e("s_cbranch_scc1 L_warm")
    L.lab("L_warm_done")
if P["spf"]:
    L.c("this workgroup's share of w_out into the L2 by scalar loads (the values are not used)")
    rows, gran = P["spf"]
    for r in range(rows):
        for o in range(0, 256, gran): L.e(f"s_load_dword s54, s[56:57], {hex(r * 1024 + o)}")
    L.e(f"s_add_u32 s58, s58, {rows}")
    L.e(f"s_cmp_lt_u32 s58, 16")
    L.e(f"s_cselect_b32 s{S_T0}, {hex(rows * 1024)}, 0")
    L.e(f"s_add_u32 s56, s56, s{S_T0}")
    L.e("s_addc_u32 s57, s57, 0")
L.e(f"s_waitcnt vmcnt({4 * (D - 1)})")
L.e("s_barrier")
L.e(f"s_cmp_lt_u32 s{S_N}, 16")
L.e("s_cbranch_scc1 L_ld1")
L.e("s_branch L_ld2")
if P["warm"]:
    L.c("while the first rows are under way: run through branch-only hops so that later code pages are already in the instruction cache")
    L.lab("L_warm")
    L.e(f"s_cmp_lg_u32 s{S_N}, {D}")
    L.e("s_cbranch_scc1 L_warm2")
    if P["tlb"] == 2:
        L.c("scalar first touches (translation and L2 only; the values are not used)")
        L.e(f"s_lshl_b32 s{S_T0}, s{S_W}, 20")
        L.e(f"s_and_b32 s{S_T0}, s{S_T0}, 0x300000")
        L.e(f"s_add_u32 s{S_T0}, s{S_T0}, s{S_TILE}")
        L.e(f"s_load_dword s54, s[14:15], s{S_T0}")
        L.e(f"s_lshl_b32 s{S_T0}, s{S_G}, 9")
        L.e(f"s_lshl_b32 s{S_T1}, s{S_Q}, 8")
        L.e(f"s_cmp_eq_u32 s{S_W}, 4")
        L.e("s_cbranch_scc0 L_warm2")
        L.e(f"s_load_dword s55, s[18:19], s{S_T0}")
        L.e("s_load_dword s56, s[6:7], 0")
        L.e(f"s_load_dword s57, s[10:11], s{S_T1}")
        L.e("s_load_dword s58, s[12:13], 0")
    L.lab("L_warm2")
    L.e(f"s_lshl2_add_u32 s{S_T0}, s{S_N}, s{S_W}")
    L.e("s_mov_b64 exec, 0")
    L.l.append("@HOPS")
    L.lab("L_warm_ret")
    L.e("s_mov_b64 exec, -1")
    L.e("s_branch L_warm_done")
L_HEAD = len(L.l)
L.lab("L_ld2")
L.stamp()
L.c("w_out: rows start at this member's own quarter; column blocks in the order in which x's own rows were kept")
L.e(f"v_add_u32 v4, s{S_R}, v4")
L.e("v_and_b32 v4, 3, v4")
L.e("v_lshl_add_u32 v7, v4, 6, v6")
L.e("v_add_u32 v3, v5, v7")
L.e(f"s_mov_b64 {sp(SRD_B)}, s[12:13]")
L.e(f"s_lshl_b32 s{S_WO}, s{S_Q}, 17")
L.e("v_and_b32 v8, 7, v1")
L.e("v_lshlrev_b32 v8, 2, v8")
L.e(f"v_add_u32 v8, {LDS_RDY}, v8")
L.e("v_mov_b32 v9, 0")
L.e("ds_write_b32 v8, v9")
L.vq = [("c", n) for n in range(16 - D + 1, 16) for _ in range(4)]
def fill(pos):
    if pos != P['fillpos']: return
    if P["fill"]:
        L.c("make the hand-off lines of this workgroup valid in the L2 ahead of their readers; the values are not used")
        n_ = P["fill"]
        L.e(f"s_and_b32 s{S_T0}, s{S_W}, 3")
        L.e(f"s_lshl_b32 s{S_T0}, s{S_T0}, {3 + n_}")
        if P["split"]: L.e(f"s_add_u32 s{S_T0}, s{S_T0}, 64")
        L.e(f"s_lshl_b32 s{S_T1}, s{S_R}, 5")
        L.e(f"s_add_u32 s{S_T0}, s{S_T0}, s{S_T1}")
        L.e(f"s_and_b32 s{S_T0}, s{S_T0}, 127")
        L.e(f"s_lshl_b32 s{S_T1}, s{S_Q}, 7")
        L.e(f"s_add_u32 s{S_T0}, s{S_T0}, s{S_T1}")
        L.e(f"v_lshrrev_b32 v24, {3 - n_}, v1")
        L.e(f"v_add_lshl_u32 v24, v24, s{S_T0}, 13")
        L.e(f"v_and_b32 v25, {3 if n_ == 1 else 1}, v1")
        L.e(f"v_lshl_add_u32 v24, v25, {5 + n_}, v24")
        L.e(f"v_add_u32 v24, s{S_TILE}, v24")
        L.vm("global_load_dword v25, v24, s[14:15] nt", "fill")
    if P["wo_touch"] == -1:
        L.e(f"s_lshl_b32 s{S_T0}, s{S_GL}, 2"); L.e(f"s_and_b32 s{S_T1}, s{S_W}, 3"); L.e(f"s_add_u32 s{S_T0}, s{S_T0}, s{S_T1}")
        L.e(f"s_lshl_b32 s{S_T0}, s{S_T0}, 14"); L.e(f"s_lshl_b32 s{S_T1}, s{S_Q}, 8"); L.e(f"s_add_u32 s{S_T0}, s{S_T0}, s{S_T1}")
        L.e("v_lshrrev_b32 v26, 2, v1"); L.e(f"v_lshl_add_u32 v26, v26, 10, s{S_T0}"); L.e("v_and_b32 v27, 3, v1"); L.e("v_lshl_add_u32 v26, v27, 6, v26")
        L.vm("global_load_dword v27, v26, s[12:13]", "fill")
def ld_wo(n, fine=False):
    if n < 22: fill(n)
    for p in range(4):
        if fine: throttle()
        L.e(f"s_add_u32 m0, s{S_LB}, {hex(((n - 16) * 4 + p) * 4096)}")
        if n > 16 or p: L.e(f"s_add_u32 s{S_WO}, s{S_WO}, 0x4000")
        else: L.e("s_waitcnt lgkmcnt(0)")
        if p == 0 and n % 2 == 0 and n > 16: L.e(f"s_and_b32 s{S_WO}, s{S_WO}, 0x7ffff")
        L.vm(f"buffer_load_dwordx4 v3, {sq(SRD_B)}, s{S_WO} offen lds", ("c", n))
def throttle():
    if len(L.vq) > P["thr"]:
        L.e(f"s_waitcnt vmcnt({P['thr']})"); L.vq = L.vq[len(L.vq) - P["thr"]:]
nxt = 16
for c in range(16 - D + 1, 16):
    ld_wo(nxt); nxt += 1
    L.vneed(("c", c))
    L.e("s_barrier")
L.stamp()
L.e("v_and_b32 v11, 3, v1")
L.e(f"s_lshl_b32 s{S_T0}, s{S_G}, 9")
L.e(f"v_lshl_add_u32 v12, v11, 4, s{S_T0}")
if P["prime"]:
    L.c("bring the progress line into the L2 early; this value is not used")
    L.vm("global_load_dword v16, v12, s[18:19] offset:256 sc1", "prime")
while nxt <= P["pre16"]:
    throttle(); ld_wo(nxt); nxt += 1
assert nxt in (20, 22)
M_LATE = (nxt - 16) // 2
fill(22)
L.vneed(("c", 17))
L.stamp()
L.e(f"s_lshl_b32 s{S_T0}, s{S_W}, 2")
L.e(f"s_add_u32 s{S_T0}, s{S_T0}, {LDS_RDY}")
L.e(f"v_mov_b32 v8, s{S_T0}")
L.e("v_mov_b32 v9, 1")
L.e(f"v_mov_b32 v13, {LDS_RDY}")
L.e(f"s_mov_b32 s{S_CNT}, 0")
L.e(f"s_mov_b32 s{S_N}, 1")
L.e("s_barrier")
L.e(f"s_cmp_eq_u32 s{S_W}, 4")
L.e("s_cbranch_scc1 L_poll")
L.e("s_waitcnt vmcnt(0)")
L.e("ds_write_b32 v8, v9")
L.c("the last rows of w_out follow the first hand-off loads")
L.lab("L_wait1")
L.e("ds_read_b32 v16, v13")
L.e(f"s_add_u32 s{S_CNT}, s{S_CNT}, 1")
L.e("s_waitcnt lgkmcnt(0)")
L.e(f"v_readfirstlane_b32 s{S_T0}, v16")
L.e(f"s_cmp_ge_u32 s{S_CNT}, 0x800000")
L.e("s_cbranch_scc1 L_last")
L.e(f"s_cmp_eq_u32 s{S_T0}, 0")
L.e("s_cbranch_scc1 L_wait1")
L.lab("L_last")
L.stamp()
L.vq = []
P["thr"] = P["thr2"]
while nxt < 24:
    ld_wo(nxt, True); nxt += 1
L.e("v_mov_b32 v9, 2")
L.e(f"s_mov_b32 s{S_N}, {3 if P['split'] else 4}")
L.e(f"s_cmp_eq_u32 s{S_W}, 4")
L.e("s_cbranch_scc1 L_poll")
L.e("s_waitcnt vmcnt(0)")
L.e("ds_write_b32 v8, v9")
if P["wb"]:
    L.c("one wave per XCD writes the hand-off lines back now, so that the output stores find clean lines")
    L.e(f"s_lshr_b32 s{S_T0}, s2, 3")
    L.e(f"s_lshl3_add_u32 s{S_T0}, s{S_T0}, s{S_W}")
    L.e(f"s_cmp_lg_u32 s{S_T0}, 5")
    L.e("s_cbranch_scc1 L_fin")
    L.lab("L_wait2")
    L.e("ds_read_b32 v16, v13")
    L.e(f"s_add_u32 s{S_CNT}, s{S_CNT}, 1")
    L.e("s_waitcnt lgkmcnt(0)")
    L.e(f"v_readfirstlane_b32 s{S_T0}, v16")
    L.e(f"s_cmp_ge_u32 s{S_CNT}, 0x800000")
    L.e("s_cbranch_scc1 L_fin")
    L.e(f"s_cmp_lt_u32 s{S_T0}, {P['wb']}")
    L.e("s_cbranch_scc1 L_wait2")
    L.e("buffer_wbl2 sc1")
L.e("s_branch L_fin")
L.c("wave 4: relay the smallest progress word of the group into LDS")
L.lab("L_poll")
L.e("global_load_dwordx4 v[16:19], v12, s[18:19] offset:256 sc1")
L.e(f"s_add_u32 s{S_CNT}, s{S_CNT}, 1")
L.e("s_waitcnt vmcnt(0)")
L.e("v_min3_u32 v16, v16, v17, v18")
L.e("v_min_u32 v16, v16, v19")
L.e("ds_write_b32 v8, v9")
L.e("s_nop 0")
L.e("v_min_u32_dpp v16, v16, v16 quad_perm:[1,0,3,2] row_mask:0xf bank_mask:0xf")
L.e("s_nop 1")
L.e("v_min_u32_dpp v16, v16, v16 quad_perm:[2,3,0,1] row_mask:0xf bank_mask:0xf")
L.e("ds_write_b32 v13, v16")
L.e(f"v_readfirstlane_b32 s{S_T0}, v16")
L.e(f"s_cmp_ge_u32 s{S_CNT}, 0x100000")
L.e(f"s_cselect_b32 s{S_T0}, 4, s{S_T0}")
L.e(f"s_cmp_lt_u32 s{S_T0}, s{S_N}")
L.e("s_cbranch_scc1 L_poll")
L.e(f"s_cmp_eq_u32 s{S_N}, 1")
L.e("s_cbranch_scc1 L_last")
L.lab("L_fin")
L.stamp()
L.dump_stamps()
L.lab("L_exit")
L.e("s_endpgm")

C = Prog(); C.nst = h.nst; C.is_c = True
if P["codepf"]: C.vq.append("code")
AD = list(range(2, 10))
VM0, VM1, VFL, VFS, VT0, VT1, VSW, VSR, VOUT, VRDY = 10, 11, 12, 13, 14, 15, 16, 17, 18, 19
RA, RH, RX, RBI, RS, RF = 20, 84, 116, 148, 164, 170
RF = 172; NPOOL = (256 - RF) // 4
SRD_WS, SRD_OUT, SRD_WO = SRD_A, SRD_B, SRD_C
C.lab("L_compute")
C.c("---------------- compute waves")
T = RH
vG, vC, vEMBA, vSIGA, vT0A, vSIG, vEMB, vEP, vZ, vANN, vJ, vL4, vTCH, vBW, vBR, vCHK, vCHA = \
    T, T+1, T+2, T+3, T+4, T+5, T+6, T+7, T+8, T+12, T+14, T+15, T+16, T+17, T+18, T+26, T+28
C.e(f"v_lshrrev_b32 v{vG}, 4, v1")
C.e(f"v_bfe_u32 v{vC}, v1, 2, 2")
C.e(f"v_lshlrev_b32 v{vC}, 6, v{vC}")
C.e(f"v_lshl_add_u32 v{AD[0]}, v{vG}, 10, v{vC}")
C.e(f"v_and_b32 v{vC}, 1, v{vG}")
C.e(f"v_lshl_add_u32 v{AD[0]}, v{vC}, 5, v{AD[0]}")
C.e(f"v_and_b32 v{vC}, 3, v1")
C.e(f"v_lshl_add_u32 v{AD[6]}, v{vC}, 3, v{AD[0]}")
C.e(f"s_lshl_b32 s{S_T0}, s{S_W}, 8")
C.e(f"v_add_u32 v{AD[2]}, s{S_T0}, v{AD[6]}")
C.e(f"s_and_b32 s{S_T1}, s{S_W}, 1")
C.e(f"s_lshl_b32 s{S_T1}, s{S_T1}, 9")
C.e(f"v_add_u32 v{AD[0]}, s{S_T1}, v{AD[6]}")
C.e(f"v_xor_b32 v{AD[1]}, 32, v{AD[0]}")
C.e(f"v_xor_b32 v{AD[3]}, 32, v{AD[2]}")
C.e(f"v_xor_b32 v{AD[4]}, 0x100, v{AD[2]}")
C.e(f"v_xor_b32 v{AD[5]}, 0x100, v{AD[3]}")
C.e(f"s_lshl_b32 s{S_T0}, s{S_Q}, 8")
C.e(f"v_lshl_add_u32 v{vEMBA}, v1, 2, s{S_T0}")
C.e(f"s_lshr_b32 s{S_T0}, s{S_TILE}, 21")
C.e(f"v_mov_b32 v{vSIGA}, s{S_T0}")
C.c("thread 0 resets this workgroup's four progress words, then announces that (and its XCD) under this launch's tag")
C.e(f"v_lshlrev_b32 v{vT0A}, 24, v0")
for i in range(4): C.e(f"v_mov_b32 v{vZ+i}, 0")
C.e(f"s_lshl_b32 s{S_EP}, s{S_G}, 9")
C.e(f"s_lshl4_add_u32 s{S_T2}, s{S_Q}, s{S_EP}")
C.e(f"s_mov_b32 s{SRD_WS+2}, {hex(WS_BYTES)}"); C.e(f"s_mov_b32 s{SRD_WS+3}, 0x20000")
C.e(f"s_getreg_b32 s{S_XCC}, hwreg(HW_REG_XCC_ID, 0, 4)")
C.e("s_waitcnt lgkmcnt(0)")
C.e(f"s_mov_b64 {sp(SRD_WS)}, s[18:19]")
def small():
    C.vm(f"buffer_store_dwordx4 {q4(vZ)}, v{vT0A}, {sq(SRD_WS)}, s{S_EN} offen offset:256 sc1", "clr")
    C.vm(f"buffer_load_dword v{vEP}, v{vZ}, {sq(SRD_WS)}, s{S_EP} offen sc1", "ep")
    C.vm(f"global_load_ushort v{vSIG}, v{vSIGA}, s[6:7]", "sig")
    C.vm(f"global_load_dword v{vEMB}, v{vEMBA}, s[10:11]", "emb")
    pass
C.e(f"s_mov_b32 s{S_EN}, s{S_T2}")
if P['small'] < 0: small()
if P["tlb"] == 1:
    C.c("first touch of the pages used later (address translation only; the values are not used)")
    C.e(f"v_lshl_add_u32 v{VT0}, v{vC}, 20, s{S_TILE}")
    C.e(f"s_cmp_eq_u32 s{S_W}, 1")
    C.e("s_cbranch_scc0 L_notlb")
    C.e(f"global_load_dword v{VT0}, v{VT0}, s[14:15] nt")
    C.e(f"global_load_dword v{VT1}, v{vZ}, s[12:13]")
    C.lab("L_notlb")
for t in [
    f"s_mov_b64 {sp(SRD_WO)}, s[12:13]", f"s_mov_b32 s{SRD_WO+2}, 0x80000", f"s_mov_b32 s{SRD_WO+3}, 0x20000",
    f"s_mov_b64 {sp(SRD_OUT)}, s[14:15]", f"s_mov_b32 s{SRD_OUT+2}, 0x800000", f"s_mov_b32 s{SRD_OUT+3}, 0x20000",
    f"v_lshrrev_b32 v{vL4}, 2, v1", f"v_and_b32 v{vJ}, 15, v1",
    f"s_lshl_b32 s{S_T0}, s{S_GL}, 16", f"s_lshl_b32 s{S_T1}, s{S_W}, 14", f"s_add_u32 s{S_T0}, s{S_T0}, s{S_T1}",
    f"s_lshl_b32 s{S_T1}, s{S_Q}, 8", f"s_add_u32 s{S_T0}, s{S_T0}, s{S_T1}",
    f"v_lshl_add_u32 v{vTCH}, v{vL4}, 10, s{S_T0}", f"v_lshl_add_u32 v{vTCH}, v{vC}, 6, v{vTCH}",
    f"s_lshl2_add_u32 s{S_T2}, s{S_W}, s{S_T2}", f"v_lshl_add_u32 v{VFL}, v1, 24, s{S_T2}", f"v_mov_b32 v{VFS}, 2.0",
    f"v_lshlrev_b32 v{vCHA}, 3, v{vC}", f"s_mov_b32 s{S_MODE}, 0",
    f"s_lshl_b32 s{S_T0}, s{S_W}, 9", f"s_add_u32 s{S_T0}, s{S_T0}, {LDS_BIAS}", f"v_lshl_add_u32 v{vBW}, v1, 3, s{S_T0}",
    f"s_and_b32 s{S_T3}, s{S_W}, 1", f"s_lshl_b32 s{S_T1}, s{S_T3}, 8", f"s_add_u32 s{S_T0}, s{S_T0}, s{S_T1}",
    f"v_lshl_add_u32 v{vBR}, v{vG}, 4, s{S_T0}",
    f"s_mul_i32 s{S_T0}, s{S_W}, 5120", f"s_add_u32 s{S_T0}, s{S_T0}, {LDS_STG}",
    f"v_mul_u32_u24 v{VSW}, 80, v{vJ}", f"v_lshl_add_u32 v{VSW}, v{vG}, 3, v{VSW}", f"v_add_u32 v{VSW}, s{S_T0}, v{VSW}",
    f"v_mul_u32_u24 v{VSR}, 80, v{vL4}", f"v_lshl_add_u32 v{VSR}, v{vC}, 4, v{VSR}", f"v_add_u32 v{VSR}, s{S_T0}, v{VSR}",
    f"s_lshl_b32 s{S_T0}, s{S_Q}, 20", f"s_add_u32 s{S_T0}, s{S_T0}, s{S_TILE}", f"s_lshl_b32 s{S_T1}, s{S_W}, 6",
    f"s_add_u32 s{S_T0}, s{S_T0}, s{S_T1}", f"v_lshl_add_u32 v{VOUT}, v{vL4}, 13, s{S_T0}", f"v_lshl_add_u32 v{VOUT}, v{vC}, 4, v{VOUT}",
    f"v_lshrrev_b32 v{VM0}, 3, v1", f"v_lshlrev_b32 v{VM0}, 13, v{VM0}", f"v_and_b32 v{VM1}, 7, v1",
    f"v_lshl_add_u32 v{VM0}, v{VM1}, 4, v{VM0}", f"v_add_u32 v{VM0}, s{S_TILE}, v{VM0}", f"v_add_u32 v{VM1}, 0x10000, v{VM0}",
    f"v_mov_b32 v{VRDY}, {LDS_RDY}", f"s_sub_u32 s{S_OWN}, 0, s{S_GL}", f"s_and_b32 s{S_OWN}, s{S_OWN}, 3",
    ]: C.e(t)
for j in range(4):
    C.e(f"s_add_u32 s{S_T0}, s{S_R}, {j}"); C.e(f"s_and_b32 s{S_T0}, s{S_T0}, 3"); C.e(f"s_lshl_b32 s{S_OB[j]}, s{S_T0}, 18")
C.c("hand-off rows: stage s of producer wave p lies in output block 2s + p/2, rows 16*(p&1)..+15")
C.e(f"s_cmp_lt_u32 s{S_W}, 2")
C.e(f"s_cselect_b32 s{S_T0}, s{S_OB[2 * P['split']]}, s{S_OB[2 * P['split'] + 1]}")
C.e(f"s_cselect_b32 s{S_T1}, s{S_OB[2]}, s{S_OB[3]}")
C.e(f"s_lshl_b32 s{S_T3}, s{S_T3}, 17")
C.e(f"s_add_u32 s{S_T0}, s{S_T0}, s{S_T3}")
C.e(f"s_add_u32 s{S_T1}, s{S_T1}, s{S_T3}")
for m in range(4):
    C.e(f"s_add_u32 s{S_T3}, s{S_Q}, {m}"); C.e(f"s_and_b32 s{S_T3}, s{S_T3}, 3"); C.e(f"s_lshl_b32 s{S_T3}, s{S_T3}, 20")
    C.e(f"s_add_u32 s{S_MB[m, 0]}, s{S_T3}, s{S_T0}")
    if P["split"]:
        if m == 0:
            C.e(f"s_lshl4_add_u32 s{S_T1}, s{S_G}, s{S_W}"); C.e(f"s_lshl_b32 s{S_T1}, s{S_T1}, 12"); C.e(f"s_add_u32 s{S_T1}, s{S_T1}, {hex(WSB)}")
        C.e(f"s_lshr_b32 s{S_T3}, s{S_T3}, 6")
    C.e(f"s_add_u32 s{S_MB[m, 1]}, s{S_T3}, s{S_T1}")
    if m == 0: C.e(f"s_xor_b32 s{S_T0}, s{S_T0}, 0x20000")

F = []
F.append(lambda: C.vneed("clr", "ep", "sig", "emb"))
F += [f"v_readfirstlane_b32 s{S_T3}, v{vEP}",
      f"s_mul_i32 s{S_H0}, s{S_T3}, {hex(HC0)}", f"s_add_u32 s{S_H0}, s{S_H0}, {hex(HK0)}",
      f"s_mul_i32 s{S_H1}, s{S_T3}, {hex(HC1)}", f"s_add_u32 s{S_H1}, s{S_H1}, {hex(HK1)}",
      f"s_add_u32 s{S_H0}, s{S_H0}, s{S_XCC}", f"s_add_u32 s{S_H1}, s{S_H1}, s{S_XCC}",
      f"v_mov_b32 v{vANN}, s{S_H0}", f"v_mov_b32 v{vANN+1}, s{S_H1}", f"s_lshl3_add_u32 s{S_T0}, s{S_Q}, s{S_EP}"]
F.append(lambda: C.vm(f"buffer_store_dwordx2 {q2(vANN)}, v{vT0A}, {sq(SRD_WS)}, s{S_T0} offen offset:128 sc1", "ann"))
F += [f"s_add_u32 s{S_EN}, s{S_T3}, 1"]
sg, a, b2, cs, cn = vSIG, T + 20, T + 21, T + 22, T + 23
def rnd(r): return [f"v_cvt_pk_bf16_f32 v{r}, v{r}, v{r}", f"v_lshlrev_b32 v{r}, 16, v{r}"]
F += [f"v_lshlrev_b32 v{sg}, 16, v{sg}", f"v_mul_f32 v{a}, v{sg}, v{sg}"] + rnd(a)
F += [f"v_add_f32 v{a}, 0x3e800000, v{a}"] + rnd(a)
F += [f"v_rcp_f32 v{cs}, v{a}", f"v_sqrt_f32 v{a}, v{a}"] + rnd(cs) + rnd(a)
F += [f"v_mul_f32 v{cs}, 0x3e800000, v{cs}", f"v_rcp_f32 v{a}, v{a}", f"v_lshrrev_b32 v{cs}, 16, v{cs}", f"v_mul_f32 v{b2}, 0.5, v{sg}"]
F += [f"v_mul_f32 v{b2}, v{b2}, v{a}"] + rnd(b2) + rnd(a)
F += [f"v_log_f32 v{cn}, v{sg}", f"v_mul_f32 v{a}, 0xbfb8aa3b, v{a}", f"v_mul_f32 v{cn}, 0x3f317218, v{cn}"] + rnd(cn)
F += [f"v_max_f32 v{b2}, 0x03800000, v{b2}", f"v_mul_f32 v{b2}, 0xbf317218, v{b2}", f"v_rcp_f32 v{b2}, v{b2}"]
F += [f"v_mul_f32 v{cn}, 0x3e800000, v{cn}"]
F += [f"v_readfirstlane_b32 s{S_S1}, v{a}", f"v_readfirstlane_b32 s{S_IK}, v{b2}", f"s_mov_b32 s{S_S1+1}, s{S_S1}", f"s_mov_b32 s{S_IK+1}, s{S_IK}"]
e0, e1 = T + 24, T + 25
F += [f"v_lshlrev_b32 v{e0}, 16, v{vEMB}", f"v_and_b32 v{e1}, 0xffff0000, v{vEMB}",
      f"v_mul_f32 v{e0}, v{cn}, v{e0}", f"v_mul_f32 v{e1}, v{cn}, v{e1}",
      f"v_cvt_pk_bf16_f32 v{e1}, v{e0}, v{e1}", f"v_lshlrev_b32 v{e0}, 16, v{e1}", f"v_and_b32 v{e1}, 0xffff0000, v{e1}",
      f"v_mul_f32 v{e0}, 0xbfb8aa3b, v{e0}", f"v_mul_f32 v{e1}, 0xbfb8aa3b, v{e1}"]
F.append(("lds", f"ds_write_b64 v{vBW}, {q2(e0)}", "biasw"))
for i in range(4):
    F.append(("lds", f"ds_read_b128 {q4(RBI + 4 * i)}, v{vBR} offset:{i * 64}", "bias"))
F += [f"v_and_b32 v{e0}, 1, v1", f"v_lshlrev_b32 v{e0}, 4, v{e0}", f"v_lshlrev_b32 v{cs}, v{e0}, v{cs}",
      f"v_lshrrev_b32 v{e0}, 1, v{vJ}", f"v_lshlrev_b32 v{e1}, 1, v{vG}", f"v_sub_u32 v{e0}, v{e0}, v{e1}",
      f"v_cmp_eq_u32 vcc, 0, v{e0}", f"v_mov_b32 v{RS}, 0", f"v_cndmask_b32 v{RS+2}, 0, v{cs}, vcc",
      f"v_cmp_eq_u32 vcc, 1, v{e0}", f"v_mov_b32 v{RS+1}, 0", f"v_cndmask_b32 v{RS+3}, 0, v{cs}, vcc",
      f"v_mov_b32 v{RS+4}, 0", f"v_mov_b32 v{RS+5}, 0"]
F_START, F_STEP = P.get('fstart', 20), 1
if P.get('nofill'): F = F[:12]; lastF = 0

class Pool:
    def __init__(s, regs): s.free = list(regs); s.rel = []
    def get(s, now):
        s.free += [r for t, r in s.rel if t <= now]; s.rel = [(t, r) for t, r in s.rel if t > now]
        assert s.free, "fragment pool empty"
        return s.free.pop(0)
    def put(s, t, r): s.rel.append((t, r))

def stream(units, reads_of, lead, pool, hook, first_burst):
    firstuse, lastuse = {}, {}
    for i, u in enumerate(units):
        for k in u:
            firstuse.setdefault(k, i); lastuse[k] = i
    order = sorted(firstuse, key=lambda k: firstuse[k])
    rq = [(k, i) for k in order for i in range(2)]
    reg = {}
    def issue(now):
        k, i = rq.pop(0)
        if i == 0:
            fixed = reads_of(k, None, None)
            reg[k] = fixed if fixed is not None else pool.get(now)
            if fixed is None: pool.put(lastuse[k] + 2, reg[k])
        reads_of(k, i, reg[k])
    return rq, reg, issue, firstuse

SEQ = [(0,0),(0,1),(1,1),(1,0),(1,2),(0,2),(2,2),(2,1),(2,0),(2,3),(1,3),(0,3),(3,3),(3,2),(3,1),(3,0)]
u1 = [(("w", n, a), ("x", n, p)) for n in range(16) for a, p in SEQ]
cur64 = [0]
def rd1(k, i, r):
    kind, n, t = k
    if i is None:
        return RX + 8 * (n // 4) + 4 * t if (kind == "x" and n % 4 == 0 and t < 2 and not P["rotmode"]) else None
    base = (n % 4) * 16384 + 8192 * i
    if kind == "w": a_, off = AD[t & 1], 4096 + 256 * (t >> 1)
    else: a_, off = AD[2 + 2 * (t >> 1) + (t & 1)], 0
    C.lds(f"ds_read_b64_tr_b16 {q2(r + 2 * i)}, v{a_} offset:{base + off}", k)
pool = Pool([RF + 4 * i for i in range(NPOOL)])
rq, reg, issue, fu = stream(u1, rd1, P["lead"], pool, None, 0)
C.stamp()
C.e("s_barrier")
if P["small"] == 0: small()
C.stamp()
barred = 0
def issue1(now):
    global barred
    n = rq[0][0][1]
    if n > barred:
        barred = n
        if n % 4 == 0:
            for r in AD[:6]: C.e(f"v_xor_b32 v{r}, 0x10000, v{r}")
        C.e("s_barrier")
        if n == P["small"]: small()
        if n == P["wo_touch"]:
            C.c("this workgroup's share of w_out into the L2; the values are not used")
            C.vm(f"buffer_load_dword v{VT1}, v{vTCH}, {sq(SRD_WO)}, 0 offen", "touch")
        if n == 11: C.vm(f"buffer_load_dwordx2 {q2(vCHK)}, v{vCHA}, {sq(SRD_WS)}, s{S_EP} offen offset:128 sc1", "chk")
    issue(now)
for _ in range(P["lead"]): issue1(0)
for i, (ka, kb) in enumerate(u1):
    if i and i % 64 == 0 and not P['xs']: C.stamp()
    C.need(ka, kb)
    a_, p_ = ka[2], kb[2]
    acc = RA + 4 * (4 * p_ + a_)
    C.e(f"v_mfma_f32_16x16x32_bf16 {q4(acc)}, {q4(reg[ka])}, {q4(reg[kb])}, {'0' if i < 16 else q4(acc)}")
    if rq: issue1(i)
    if P["rotmode"] and i % 16 == 9:
        n = i // 16
        C.e(f"s_cmp_eq_u32 s{S_OWN}, {n & 3}")
        C.e(f"s_cbranch_scc0 L_keep{n}")
        for t in range(2):
            for o in range(4): C.e(f"v_mov_b32 v{RX + 8 * (n // 4) + 4 * t + o}, v{reg['x', n, t] + o}")
        C.lab(f"L_keep{n}")
        continue
    C.l.append("@GAP")
    waited = i + 1 < len(u1) and C.need(*u1[i + 1])
    if F and i >= F_START and not waited:
        f = F.pop(0)
        if isinstance(f, str): C.e(f)
        elif isinstance(f, tuple): C.lds(f[1], f[2])
        else: f()
        lastF = i
assert not F
assert not C.lq
C.stamp()
C.c("all four members have reset their progress words in this launch, and one L2 serves all of them")
C.vneed("chk", "touch")
C.e(f"v_cmp_ne_u32 vcc, s{S_H0}, v{vCHK}")
C.e(f"v_cmp_ne_u32 {sp(S_MSK)}, s{S_H1}, v{vCHK+1}")
C.c("w_out addresses: [near/far 32-row pair][half][64 KiB]")
C.e(f"s_and_b32 s{S_T0}, s{S_W}, 1")
C.e(f"s_lshl_b32 s{S_T0}, s{S_T0}, 14")
C.e(f"s_or_b64 vcc, vcc, {sp(S_MSK)}")
if P.get("forceslow"): C.e("s_cmp_eq_u32 0, 0")
C.e("s_cbranch_scc1 L_ann_wait")
C.lab("L_ann_ok")
C.tail += ["L_ann_wait:", f"    s_mov_b32 s{S_CNT}, 0",
           f"    s_sub_u32 s{S_H0}, s{S_H0}, s{S_XCC}", f"    s_sub_u32 s{S_H1}, s{S_H1}, s{S_XCC}", "L_ann_l:",
           f"    buffer_load_dwordx2 {q2(vCHK)}, v{vCHA}, {sq(SRD_WS)}, s{S_EP} offen offset:128 sc1",
           f"    s_add_u32 s{S_CNT}, s{S_CNT}, 1", "    s_waitcnt vmcnt(0)",
           f"    v_subrev_u32 v{vCHK}, s{S_H0}, v{vCHK}", f"    v_subrev_u32 v{vCHK+1}, s{S_H1}, v{vCHK+1}",
           f"    v_cmp_ne_u32 vcc, v{vCHK}, v{vCHK+1}", f"    v_cmp_le_u32 {sp(S_MSK)}, 16, v{vCHK}",
           f"    s_cmp_ge_u32 s{S_CNT}, 0x100000", "    s_cbranch_scc1 L_ann_ok",
           f"    s_or_b64 vcc, vcc, {sp(S_MSK)}", "    s_cbranch_scc1 L_ann_l",
           f"    v_cmp_ne_u32 vcc, s{S_XCC}, v{vCHK}", "    s_nop 1", "    s_cmp_lg_u64 vcc, 0"]
if not P.get("forceslow"): C.tail += ["    s_cbranch_scc0 L_ann_ok"]
C.tail += ["    ; members on several XCDs: the L2-local stores fall out of range; L_slow0/1 publish through memory instead",
           f"    s_mov_b32 s{S_MODE}, 1", f"    v_or_b32 v{VM0}, 2.0, v{VM0}", f"    v_or_b32 v{VM1}, 2.0, v{VM1}",
           f"    v_mov_b32 v{VFS}, v{VFL}", f"    v_mov_b32 v{VFL}, 2.0", "    s_branch L_ann_ok"]
C.e(f"v_add_u32 v{AD[0]}, s{S_T0}, v{AD[6]}")
C.e(f"v_xor_b32 v{AD[2]}, 32, v{AD[0]}")
C.e(f"v_xor_b32 v{AD[4]}, 0x4000, v{AD[0]}")
C.e(f"v_xor_b32 v{AD[6]}, 0x4000, v{AD[2]}")
for r in (0, 2, 4, 6): C.e(f"v_add_u32 v{AD[r+1]}, 0x10000, v{AD[r]}")
vXW, vXR = RF + 80, RF + 81
C.e(f"s_mul_i32 s{S_T0}, s{S_W}, 5120")
C.e(f"s_xor_b32 s{S_T1}, s{S_W}, 1")
C.e(f"s_mul_i32 s{S_T1}, s{S_T1}, 5120")
C.e(f"v_lshlrev_b32 v{vXR}, 4, v1")
C.e(f"v_add_u32 v{vXR}, {LDS_STG}, v{vXR}")
C.e(f"v_add_u32 v{vXW}, s{S_T0}, v{vXR}")
C.e(f"v_add_u32 v{vXR}, s{S_T1}, v{vXR}")

DQ = RF + 4
def hreg(p, kk): return RH + 4 * (2 * p + kk)
VL16 = 170
if P["split"]: C.e(f"v_lshlrev_b32 v{VL16}, 4, v1")
def hst(p, kk, pol):
    if P["split"] and p < 2: return f"buffer_store_dwordx4 {q4(hreg(p, kk))}, v{VL16}, {sq(SRD_WS)}, s{S_MB[0, 1]} offen offset:{(2 * kk + p) * 1024} sc1"
    return f"buffer_store_dwordx4 {q4(hreg(p, kk))}, v{VM1 if kk else VM0}, {sq(SRD_OUT)}, s{S_MB[0, 1 - p // 2]} offen offset:{(p & 1) * 128}{pol}"
def flag(v, both=False):
    C.e(f"v_mov_b32 v{VT1}, {v}")
    C.vm(f"buffer_store_dword v{VT1}, v{VFL}, {sq(SRD_WS)}, 0 offen offset:256", ("fl", v))
    if both: C.vm(f"buffer_store_dword v{VT1}, v{VFS}, {sq(SRD_WS)}, 0 offen offset:256 sc1", ("fl", v))
def slow(s):
    C.e(f"s_cmp_lg_u32 s{S_MODE}, 0")
    C.e(f"s_cbranch_scc1 L_slow{s}")
    C.lab(f"L_slow{s}_done")
    ps = (2, 3) if s == 0 else (0, 1)
    C.tail += [f"L_slow{s}:", f"    v_xor_b32 v{VM0}, 2.0, v{VM0}", f"    v_xor_b32 v{VM1}, 2.0, v{VM1}"]
    C.tail += ["    " + hst(p, kk, " sc1") for p in ps for kk in range(2)]
    C.tail += [f"    v_mov_b32 v{VT1}, {s + 1}", "    s_waitcnt vmcnt(0) lgkmcnt(0)",
               f"    buffer_store_dword v{VT1}, v{VFS}, {sq(SRD_WS)}, 0 offen offset:256 sc1"]
    if s == 0 and not P["split"]: C.tail += [f"    v_xor_b32 v{VM0}, 2.0, v{VM0}", f"    v_xor_b32 v{VM1}, 2.0, v{VM1}"]
    C.tail += ["    s_waitcnt vmcnt(0)", f"    s_branch L_slow{s}_done"]
def check(name, v, done=False):
    rdi = f"ds_read_b128 {q4(DQ)}, v{VRDY} offset:16" if done else f"ds_read_b32 v{VT0}, v{VRDY}"
    red = [f"    v_min3_u32 v{VT0}, v{DQ}, v{DQ+1}, v{DQ+2}", f"    v_min_u32 v{VT0}, v{VT0}, v{DQ+3}", "    s_nop 0"] if done else []
    C.e(f"s_cmp_ge_u32 s{S_T1}, {v}")
    C.e(f"s_cbranch_scc0 L_spin{name}")
    C.lab(f"L_back{name}")
    if name != "W2" and not P["xs"]: C.stamp()
    C.tail += [f"L_spin{name}:", f"    s_mov_b32 s{S_CNT}, 0", f"L_spin{name}_l:",
               "    " + rdi, f"    s_add_u32 s{S_CNT}, s{S_CNT}, 1", "    s_waitcnt lgkmcnt(0)", *red,
               f"    v_readfirstlane_b32 s{S_T1}, v{VT0}", f"    s_cmp_ge_u32 s{S_CNT}, 0x800000", f"    s_cbranch_scc1 L_back{name}",
               f"    s_cmp_ge_u32 s{S_T1}, {v}", f"    s_cbranch_scc0 L_spin{name}_l", f"    s_branch L_back{name}"]

C.c("---- h = c_out * silu(c_in * acc + bias), two elements per packed op; the sibling's pixels first")
tiles = [(p, a) for p in (2, 3, 0, 1) for a in range(4)]
U = RF
def cvt(p, a):
    A_ = RA + 4 * (4 * p + a)
    for o in (0, 2): C.e(f"v_cvt_pk_bf16_f32 v{hreg(p, a >> 1) + 2 * (a & 1) + o // 2}, v{A_+o}, v{A_+o+1}")
def publish(p, a):
    kk = a >> 1
    C.vm(hst(p, kk, ""), ("st", 1 - p // 2))
    if p >= 2: C.lds(f"ds_write_b128 v{vXW}, {q4(hreg(p, kk))} offset:{((p & 1) * 2 + kk) * 1024}", "xw")
def acc1(n): return RA + 4 * (4 * tiles[n][0] + tiles[n][1])
def ok(n): return 0 <= n < 16
for n in range(-2, 17):
    if ok(n + 1):
        for o in range(4): C.e(f"v_exp_f32 v{acc1(n+1)+o}, v{U + 4*((n+1)&3) + o}")
    C.l.append("@GAP")
    if ok(n - 2) and n % 2 == 1: publish(*tiles[n - 2])
    if ok(n - 1):
        for o in (0, 2): C.e(f"v_pk_mul_f32 {q2(acc1(n-1)+o)}, {q2(acc1(n-1)+o)}, {q2(U + 4*((n-1)&3) + o)}")
    if ok(n + 2):
        for o in (0, 2): C.e(f"v_pk_fma_f32 {q2(U + 4*((n+2)&3) + o)}, {q2(acc1(n+2)+o)}, {sp(S_S1)}, {q2(RBI + 4*tiles[n+2][1] + o)}")
    if ok(n):
        for o in range(4): C.e(f"v_rcp_f32 v{acc1(n)+o}, v{acc1(n)+o}")
    if ok(n + 1):
        for o in (0, 2): C.e(f"v_pk_fma_f32 {q2(acc1(n+1)+o)}, {q2(acc1(n+1)+o)}, {sp(S_IK)}, {sp(S_IK)}")
    if ok(n - 1): cvt(*tiles[n - 1])
    C.l.append("@GAP")
    if n == 9: slow(0)
    if n == 10:
        C.need("xw")
        C.e("s_barrier")
        C.stamp()
        for p2 in range(2):
            for kk in range(2): C.lds(f"ds_read_b128 {q4(hreg(2 + p2, kk))}, v{vXR} offset:{(p2 * 2 + kk) * 1024}", "xr")
    if P["flA"] < 0 and n == 10 - P["flA"]:
        C.vneed(("st", 0)); flag(1)
    if n == 15 and P["chkA"] < 8: C.lds(f"ds_read_b32 v{VT0}, v{VRDY}", ("rdy", "A"))
publish(*tiles[-1])
if not P['split']: slow(1)
C.stamp()

poolq = [RF + 4 * i for i in range(NPOOL)]
rem = poolq[9:21] + [RBI + 4 * i for i in range(4)] + [RX + 4 * i for i in range(8)]
def rq_(s, m, kk, p): return rem[12 * s + 4 * (m - 1) + 2 * kk + p]
units = []
for t in range(2):
    for rho in range(4):
        for p in range(2): units.append((2 * rho + t, p, RX + 8 * rho + 4 * p, ("sel", t), True, None))
def snake(jts, areg, m, far, kk, tag):
    for n, jt in enumerate(jts):
        for p in ((0, 1) if n % 2 == 0 else (1, 0)):
            units.append((jt, p, areg(p), ("o", m, far, kk, jt), False, tag(p)))
for far in (1, 0):
    for kk in range(2): snake(range(8), lambda p: hreg(2 * far + p, kk), 0, far, kk, lambda p: "xr" if far else None)
for m in (1, 2, 3):
    for kk in range(2): snake(range(8), lambda p: rq_(0, m, kk, p), m, 1, kk, lambda p: ("pl", 0, m, kk, p))
for m in range(1, 4 - P["bm"]):
    for kk in range(2): snake(range(8), lambda p: rq_(1, m, kk, p), m, 0, kk, lambda p: ("pl", 1, m, kk, p))
for blk in range(4):
    for m in range(4 - P["bm"], 4):
        for kk in range(2): snake((2 * blk, 2 * blk + 1), lambda p: rq_(1, m, kk, p), m, 0, kk, lambda p: ("pl", 1, m, kk, p))
NU = len(units)
def rd2(k, i, r):
    if i is None: return None
    _, m, far, kk, jt = k
    base = (4 * m + kk) * 8192
    a_ = AD[4 * far + 2 * (jt & 1) + (base >= 65536)]
    C.lds(f"ds_read_b64_tr_b16 {q2(r + 2 * i)}, v{a_} offset:{base % 65536 + 4096 * i + 256 * (jt >> 1)}", k)
pool2 = Pool(poolq[2:9])
rq, reg, issue, fu = stream([(u[3],) if u[3][0] == "o" else () for u in units], rd2, P["pf2"], pool2, None, 0)
first_remote = min(i for i, u in enumerate(units) if isinstance(u[5], tuple))
first_m3 = min(i for i, u in enumerate(units) if u[3][0] == "o" and u[3][1] == M_LATE)
last = {blk: max(i for i, u in enumerate(units) if u[0] // 2 == blk) for blk in range(4)}
opol = POL[P["outpol"]]; ldpol = POL[P["ldpol"]]
sched = {}
def at(i, kind, x): sched.setdefault(i, []).append((kind, x))
def done_check(i, name, v):
    at(i - 10, "m", lambda: C.lds(f"ds_read_b128 {q4(DQ)}, v{VRDY} offset:16", ("rdy", name)))
    at(i - 3, "m", lambda: C.need(("rdy", name)))
    at(i - 3, "v", f"v_min3_u32 v{VT0}, v{DQ}, v{DQ+1}, v{DQ+2}")
    at(i - 2, "v", f"v_min_u32 v{VT0}, v{VT0}, v{DQ+3}")
    at(i - 1, "v", f"v_readfirstlane_b32 s{S_T1}, v{VT0}")
    at(i, "m", lambda: check(name, v, True))
def rdy_check(i, name, v):
    if i >= 8: at(i - 8, "m", lambda: C.lds(f"ds_read_b32 v{VT0}, v{VRDY}", ("rdy", name)))
    at(i - 1, "m", lambda: C.need(("rdy", name)))
    at(i - 1, "v", f"v_readfirstlane_b32 s{S_T1}, v{VT0}")
    at(i, "m", lambda: check(name, v))
done_check(first_remote - P["pf2"] - 3, "W1", 1)
done_check(first_m3 - P["pf2"] - 3, "W2", 2)
for x in (first_remote - P["pf2"] - 3, first_m3 - P["pf2"] - 3):
    for y in (P["chkA"], P["chkB"]): assert y < x - 3 or y - 8 > x, (x, y)
for s, nm_ in ((0, "A"), (1, "B")):
    i0 = P["chk" + nm_]
    rdy_check(i0, nm_, s + 1)
    n = 0
    for m in (1, 2, 3):
        for kk in range(2):
            for p in range(2):
                at(i0 + (n * P["ldgap" + nm_]) // 2, "m", lambda s=s, m=m, kk=kk, p=p: C.vm(
                    f"buffer_load_dwordx4 {q4(rq_(s, m, kk, p))}, v{VL16}, {sq(SRD_WS)}, s{S_MB[m, s]} offen offset:{(2 * kk + p) * 1024} sc1" if s and P["split"] else
                    f"buffer_load_dwordx4 {q4(rq_(s, m, kk, p))}, v{VM1 if kk else VM0}, {sq(SRD_OUT)}, s{S_MB[m, s]} offen offset:{p * 128}{ldpol}", ("pl", s, m, kk, p)))
                n += 1
    if not (s and P["split"]): at(P["ack" + nm_], "m", lambda s=s: (C.vneed(("pl", s, 3, 1, 1)), flag(3 + s, True)))
assert P["chkB"] >= 16 + 2
if P["flA"] >= 0: at(P["flA"], "m", lambda: (C.vneed(("st", 0)), flag(1)))
at(P["flB"], "m", lambda: (C.vneed(("st", 1)), flag(2, P["split"])))
assert P["flB"] >= 16
assert P["flA"] <= P["chkA"] and P["flB"] <= P["chkB"] and P["flB"] < P["ackA"] < P["ackB"]
TMP = RF
for blk in range(4):
    t0 = last[blk] + 5
    dat = RA + 16 * blk; so = (blk & 1) * 2560
    for g in range(4):
        for o in range(2): at(t0 + 2 * g + o, "v", f"v_cvt_pk_bf16_f32 v{TMP + 2*g + o}, v{dat + 4*g + 2*o}, v{dat + 4*g + 2*o + 1}")
        at(t0 + 2 * g + 2, "m", lambda g=g, so=so, blk=blk: C.lds(f"ds_write_b64 v{VSW}, {q2(TMP + 2*g)} offset:{so + 1280 * (g >> 1) + 32 * (g & 1)}", ("sw", blk)))
    for k in range(2):
        at(t0 + 9 + k, "m", lambda k=k, so=so, blk=blk, dat=dat: C.lds(f"ds_read_b128 {q4(dat + 4*k)}, v{VSR} offset:{so + 1280*k}", ("sr", blk, k)))
    if P["split"]:
        if blk == 2: rdy_check(t0 - 12, "O2", 3)
    elif blk % 2 == 0: rdy_check(t0 + 16, f"O{blk}", 3 + blk // 2)
    def st(k, blk=blk, dat=dat):
        if k: C.e(f"s_add_u32 s{S_OB[blk]}, s{S_OB[blk]}, 0x20000")
        C.need(("sr", blk, k))
        C.vm(f"buffer_store_dwordx4 {q4(dat + 4*k)}, v{VOUT}, {sq(SRD_OUT)}, s{S_OB[blk]} offen{POL[P['outpol0']] if P['split'] and blk < 2 else opol}", ("out", blk))
    for k in range(2): at(t0 + 17 + k, "m", lambda k=k, st=st: st(k))
assert P["ackA"] < last[0] + 21 and P["ackB"] < last[2] + 21
ie = P["chkB"] + 20
at(ie, "m", lambda: (C.c("member 0 moves the group's epoch on (every member read it long ago: their progress words came after it)"),
                     C.e(f"s_lshl_b32 s{S_T0}, s{S_Q}, 28")))
at(ie, "v", f"v_lshl_or_b32 v{TMP}, v0, 24, s{S_T0}")
at(ie + 1, "v", f"v_mov_b32 v{TMP+1}, s{S_EN}")
at(ie + 2, "m", lambda: C.vm(f"buffer_store_dword v{TMP+1}, v{TMP}, {sq(SRD_WS)}, s{S_EP} offen sc1", "epst"))
def pre_wait(i):
    if i >= NU: return
    u = units[i]
    if isinstance(u[5], tuple): C.vneed(u[5])
    C.need(u[3], *([u[5]] if u[5] == "xr" else []))
for it in sched.pop(-1, []) + [x for i in sorted(k for k in sched if k < 0) for x in sched.pop(i)]: raise SystemExit("negative slot")
for i, u in enumerate(units):
    jt, p, ar, bk, first, tag = u
    if i in P["xs"]:
        C.stamp(); C.smem = False
    pre_wait(i)
    br = RS + 2 - 2 * bk[1] if bk[0] == "sel" else reg[bk]
    acc = RA + 4 * (2 * jt + p)
    C.e(f"v_mfma_f32_16x16x32_bf16 {q4(acc)}, {q4(ar)}, {q4(br)}, {'0' if first else q4(acc)}")
    if rq and fu[rq[0][0]] <= i + P["pf2"] + 1: issue(i)
    C.l.append("@GAP")
    items = sched.pop(i, [])
    for k, x in items:
        if k == "m": x()
    pre_wait(i + 1)
    for k, x in items:
        if k == "v": C.e(x)
C.stamp()
C.e("s_nop 7")
for i in sorted(sched):
    for k, x in sorted(sched[i], key=lambda y: y[0]):
        if k == "v": C.e(x)
        else: x()
C.stamp()
if P["stamps"] or "probe" in P:
    C.e("s_waitcnt vmcnt(0)"); C.stamp()
if "probe" in P or P.get("rt"):
    C.e("s_waitcnt lgkmcnt(0)")
    if "probe" in P:
        C.e("s_sub_u32 s96, s96, s100"); C.e("s_lshl_b32 s96, s96, 2"); C.e("s_add_u32 s96, s96, 2000")
        if "pwg" in P:
            C.e(f"s_cmp_eq_u32 s2, {P['pwg']}"); C.e("s_cselect_b32 s96, s96, 0")
    else: C.e(f"s_mov_b32 s96, {P['rt']}")
    C.lab("L_rt")
    C.e("s_memrealtime s[98:99]"); C.e("s_waitcnt lgkmcnt(0)"); C.e("s_sub_u32 s98, s98, s100")
    C.e("s_cmp_lt_u32 s98, s96"); C.e("s_cbranch_scc1 L_rt")
C.dump_stamps()
C.e("s_endpgm")

nm = P["name"]
hdr = open("standalone__edm_precond__diffusion.s.ref").read().split("; Override")[0]
out = [hdr.rstrip(),
       "; generated by gen/gen.py  " + " ".join(sys.argv[1:]),
       f"; @launch grid=(256,1,1) block=(512,1,1) lds={LDS_TOTAL}",
       '.amdgcn_target "amdgcn-amd-amdhsa--gfx950"', ".text", f".globl {nm}_kernel", f".p2align {P['align']}",
       f".type {nm}_kernel,@function", f"{nm}_kernel:"]
body = h.l + L.l[:L_HEAD] + C.l + C.tail + L.l[L_HEAD:] + ["L_end:"]
if P["warm"]:
    import subprocess, re, tempfile, os
    n0 = len(h.l) + L_HEAD + len(C.l)
    body = body[:n0] + ["@COLD"] + [y for x in body[n0:] for y in ([x, "@COLD"] if re.match(r"\s+s_(branch|barrier)\b", x) else [x])]
    def addrs(lines):
        t = [f"L_g{i}:" if x in ("@GAP", "@COLD") else x for i, x in enumerate(lines)]
        t = [y for x in t for y in (["s_nop 0"] * 24 if x == "@HOPS" else [x])]
        d = tempfile.mkdtemp()
        open(d + "/a.s", "w").write("\n".join(out + t) + "\n")
        subprocess.run(["clang", "-x", "assembler", "-target", "amdgcn-amd-amdhsa", "-mcpu=gfx950", "-c", d + "/a.s", "-o", d + "/a.o"], check=True)
        o = subprocess.run(["llvm-objdump", "-t", d + "/a.o"], capture_output=True, text=True).stdout
        return {int(m.group(2)): int(m.group(1), 16) for m in re.finditer(r"^([0-9a-f]+) .* L_g(\d+)$", o, re.M)}
    ad = addrs(body)
    START = 0x300
    step = P.get("hopstep", 4096)
    picks = []; nb = step; lastc = -999
    for i in sorted(ad):
        a_ = ad[i] + START + 4 * len(picks)
        if body[i] == "@GAP" and a_ >= nb:
            picks.append(i); nb = (a_ // step + 1) * step
        elif body[i] == "@COLD" and a_ - lastc >= P.get("coldstep", 256):
            picks.append(i); lastc = a_
    assert len(picks) <= 12, len(picks)
    rep = {i: [f"L_hop{k}:", "    s_cbranch_execz L_warm_ret"] for k, i in enumerate(picks)}
    tab = [y for k in range(12) for y in ([f"    s_cmp_eq_u32 s{S_T0}, {4 * (D + P['hop0']) + 4 + k}", f"    s_cbranch_scc1 L_hop{k}"] if k < len(picks) else ["    s_nop 0"] * 2)]
    rep[body.index("@HOPS")] = tab
    body = [y for i, x in enumerate(body) for y in (rep.get(i, []) if x in ("@GAP", "@COLD", "@HOPS") else [x])]
else:
    body = [x for x in body if x != "@GAP"]
out += body
out += ['.section .rodata,"a"', ".p2align 6", f".amdhsa_kernel {nm}_kernel",
        "  .amdhsa_next_free_vgpr 256", "  .amdhsa_next_free_sgpr 102", "  .amdhsa_accum_offset 256",
        "  .amdhsa_group_segment_fixed_size 0", "  .amdhsa_kernarg_size 64", "  .amdhsa_user_sgpr_count 2",
        "  .amdhsa_user_sgpr_kernarg_segment_ptr 1", "  .amdhsa_system_sgpr_workgroup_id_x 1", ".end_amdhsa_kernel"]
print("\n".join(out))
```

```python
import sys, json

P = dict(align=12, ntx=0, D=4, thr=4, stamps=0, codepf=1, wo_touch=99, prime=1, lt=(2, 4, 1), exp=0, fstart=20, xs=(),
         lead=12, pf2=8,
         fl=(None, -15, None, 42),
         chk=(56, None, 116, None), ldgap=(10, 10, 6, 6), bm=3,
         outpol=("sc1", "sc1", "sc1", "sc1"),
         name="standalone__edm_precond__diffusion")
for a in sys.argv[1:]:
    k, v = a.split("=", 1)
    try: P[k] = json.loads(v)
    except Exception: P[k] = v

POL = {"plain": "", "sc1": " sc1", "nt": " nt", "ntsc1": " sc1 nt"}
WSB = 0x8000
WS_BYTES = 0x808000
HC0, HK0, HC1, HK1 = 0x9E3779B1, 0x7F4A7C15, 0x85EBCA77, 0xC2B2AE3D
STAMP_OFF = 0x900000
LDS_MISC = 131072
LDS_BIAS = LDS_MISC
LDS_RDY = LDS_MISC + 2048
LDS_STG = LDS_MISC + 4096
LDS_TOTAL = LDS_STG + 4 * 5120

class Prog:
    def __init__(s):
        s.l = []; s.lq = []; s.vq = []; s.smem = False; s.nst = 0; s.tail = []; s.is_c = False
    def e(s, t): s.l.append("    " + t)
    def lab(s, t): s.l.append(t + ":")
    def c(s, t): s.l.append("    ; " + t)
    def lds(s, t, tag):
        s.e(t); s.lq.append(tag)
    def vm(s, t, tag):
        s.e(t); s.vq.append(tag); assert len(s.vq) <= 63
    def need(s, *tags):
        idx = max([i for i, t in enumerate(s.lq) if t in tags], default=-1)
        if idx < 0: return False
        n = min(len(s.lq) - 1 - idx, 15)
        if s.smem: n = 0; s.smem = False
        s.e(f"s_waitcnt lgkmcnt({n})"); s.lq = s.lq[len(s.lq) - n:] if n else []
        return True
    def vneed(s, *tags):
        idx = max([i for i, t in enumerate(s.vq) if t in tags], default=-1)
        if idx < 0: return False
        n = len(s.vq) - 1 - idx
        s.e(f"s_waitcnt vmcnt({n})"); s.vq = s.vq[len(s.vq) - n:] if n else []
        return True
    def stamp(s):
        if "probe" in P:
            if s.nst == P["probe"] and s.is_c:
                s.e("s_memrealtime s[96:97]"); s.smem = True
            s.nst += 1
        if P["stamps"]:
            s.e(f"{'s_memtime' if P['stamps'] == 1 else 's_memrealtime'} s[{68 + 2 * s.nst}:{69 + 2 * s.nst}]"); s.nst += 1; s.smem = True
            assert s.nst <= 17
    def dump_stamps(s):
        if not P["stamps"]: return
        s.e("s_waitcnt lgkmcnt(0) vmcnt(0)")
        s.e("v_mov_b32 v14, 0")
        for i in range(1, s.nst):
            s.e(f"s_sub_u32 s{68+2*i}, s{68+2*i}, s68")
            s.e(f"v_writelane_b32 v14, s{68+2*i}, {i}")
        s.e("s_lshl_b32 s3, s2, 11")
        s.e(f"s_add_u32 s3, s3, {STAMP_OFF}")
        s.e("v_lshl_add_u32 v15, v0, 2, s3")
        s.e("global_store_dword v15, v14, s[18:19]")

def q4(r): return f"v[{r}:{r+3}]"
def q2(r): return f"v[{r}:{r+1}]"
def sq(d): return f"s[{d}:{d+3}]"
def sp(d): return f"s[{d}:{d+1}]"

S_EP, S_EN = 20, 21
S_W, S_Q, S_GL, S_G, S_OWN, S_TILE = 22, 23, 24, 25, 26, 27
SRD_A, SRD_B, SRD_C = 28, 32, 36
S_OB = 40
S_T0, S_T1, S_T2, S_T3 = 44, 45, 46, 47
S_S1, S_IK, S_MSK = 48, 50, 52
S_MB = {(m, s): 54 + 2 * m + s for m in range(4) for s in range(2)}
S_CNT, S_H0, S_H1, S_XCC, S_MODE = 62, 63, 64, 65, 66
S_N, S_LB, S_XO, S_WO = 40, 41, 42, 43

h = Prog()
h.stamp()
if P.get("rt") or "probe" in P: h.e("s_memrealtime s[100:101]")
h.e("s_load_dwordx16 s[4:19], s[0:1], 0")
h.e("s_cmp_ge_u32 s2, 0x100")
h.e("s_cbranch_scc1 L_exit")
h.e("v_lshrrev_b32 v2, 6, v0")
h.e("v_and_b32 v1, 63, v0")
h.e(f"v_readfirstlane_b32 s{S_W}, v2")
h.e(f"s_lshr_b32 s{S_T0}, s2, 3")
if P["codepf"]:
    h.c("pull this kernel's code into the L2 (one 128-byte line per wave)")
    h.e("s_getpc_b64 s[20:21]")
    h.lab("L_pc")
    h.e(f"s_lshl_b32 s{S_T1}, s{S_T0}, 3")
    h.e(f"v_add_lshl_u32 v3, v2, s{S_T1}, 7")
    h.e("v_min_u32 v3, L_end-L_pc-4, v3")
    h.e("global_load_dword v15, v3, s[20:21]")
h.e(f"s_and_b32 s{S_Q}, s{S_T0}, 3")
h.e(f"s_lshr_b32 s{S_GL}, s{S_T0}, 2")
h.e(f"s_and_b32 s{S_T1}, s2, 7")
h.e(f"s_lshl3_add_u32 s{S_G}, s{S_GL}, s{S_T1}")
h.e(f"s_lshr_b32 s{S_T0}, s{S_G}, 5")
h.e(f"s_lshl_b32 s{S_TILE}, s{S_T0}, 22")
h.e(f"s_and_b32 s{S_T1}, s{S_G}, 31")
h.e(f"s_lshl_b32 s{S_T1}, s{S_T1}, 8")
h.e(f"s_add_u32 s{S_TILE}, s{S_TILE}, s{S_T1}")
h.e(f"s_cmp_lt_u32 s{S_W}, 4")
h.e("s_cbranch_scc1 L_compute")

L = Prog(); L.nst = h.nst
D = P["D"]
ntx = " nt" if P["ntx"] else ""
L.c("---------------- loader waves: wave 4+i brings rows 4i..4i+3 of every 16-row step")
L.e("v_lshrrev_b32 v4, 4, v1")
L.e("v_lshlrev_b32 v6, 1, v2")
L.e("v_xor_b32 v6, v6, v1")
L.e("v_and_b32 v6, 3, v6")
L.e("v_lshlrev_b32 v6, 4, v6")
L.e("v_bfe_u32 v5, v0, 2, 2")
L.e("v_and_b32 v2, 3, v2")
L.e("v_lshl_add_u32 v5, v2, 2, v5")
L.e("v_lshl_add_u32 v7, v4, 6, v6")
L.e("v_lshl_add_u32 v2, v5, 13, v7")
L.e(f"v_add_u32 v2, s{S_TILE}, v2")
L.e(f"s_lshl_b32 s{S_T0}, s{S_Q}, 8")
L.e(f"v_lshl_add_u32 v5, v5, 10, s{S_T0}")
L.e("v_add_u32 v3, v5, v7")
L.e(f"s_and_b32 s{S_LB}, s{S_W}, 3")
L.e(f"s_lshl_b32 s{S_LB}, s{S_LB}, 10")
L.e(f"s_mov_b32 s{S_N}, 0")
L.e(f"s_add_u32 s{S_T2}, s{S_Q}, s{S_GL}")
if P["lt"]:
    per = P["lt"][0]
    L.e(f"s_lshl_b32 s{S_T1}, s{S_GL}, 16"); L.e(f"s_add_u32 s{S_T0}, s{S_T0}, s{S_T1}")
    L.e(f"s_lshl_b32 s{S_T1}, s{S_LB}, 4"); L.e(f"s_add_u32 s{S_T0}, s{S_T0}, s{S_T1}")
    L.e(f"s_lshl_b32 s{S_T1}, s2, 11"); L.e(f"s_and_b32 s{S_T1}, s{S_T1}, {hex(0x3c00 & ~(per * 1024 - 1))}"); L.e(f"s_add_u32 s{S_T0}, s{S_T0}, s{S_T1}")
    L.e(f"v_bfe_u32 v13, v1, 1, {per.bit_length() - 1}" if per > 1 else "v_mov_b32 v13, 0")
    L.e(f"v_lshl_add_u32 v14, v13, 10, s{S_T0}")
    L.e("v_and_b32 v13, 1, v1"); L.e("v_lshl_add_u32 v14, v13, 7, v14")
    L.e(f"s_mov_b32 s{S_T3}, 0x3c00")
L.e("v_and_b32 v8, 7, v1")
L.e("v_lshlrev_b32 v8, 2, v8")
L.e(f"v_add_u32 v8, {LDS_RDY}, v8")
L.e("v_mov_b32 v9, 0")
L.e("ds_write_b32 v8, v9")
L.e("v_and_b32 v11, 3, v1")
L.e(f"s_lshl_b32 s{S_T0}, s{S_G}, 9")
L.e(f"v_lshl_add_u32 v12, v11, 4, s{S_T0}")
L.e(f"s_mov_b32 s{SRD_A+2}, 0x800000"); L.e(f"s_mov_b32 s{SRD_A+3}, 0x20000")
L.e(f"s_mov_b32 s{SRD_B+2}, 0x80000"); L.e(f"s_mov_b32 s{SRD_B+3}, 0x20000")
L.e("s_waitcnt lgkmcnt(0)")
L.e(f"s_mov_b64 {sp(SRD_A)}, s[4:5]")
L.e(f"s_mov_b64 {sp(SRD_B)}, s[8:9]")
L.lab("L_ld1")
L.c("slot n holds 32 rows: block n/4 of quarter (n+member+group)&3, so that every row is first fetched by few workgroups")
L.e(f"s_add_u32 s{S_T0}, s{S_N}, s{S_T2}")
L.e(f"s_and_b32 s{S_T0}, s{S_T0}, 3")
L.e(f"s_lshr_b32 s{S_T1}, s{S_N}, 2")
L.e(f"s_lshl2_add_u32 s{S_T0}, s{S_T0}, s{S_T1}")
L.e(f"s_mov_b32 m0, s{S_LB}")
L.e(f"s_lshl_b32 s{S_XO}, s{S_T0}, 18")
L.e(f"buffer_load_dwordx4 v2, {sq(SRD_A)}, s{S_XO} offen{ntx} lds")
L.e(f"s_add_u32 m0, s{S_LB}, 0x1000")
L.e(f"s_lshl_b32 s{S_WO}, s{S_T0}, 15")
L.e(f"buffer_load_dwordx4 v3, {sq(SRD_B)}, s{S_WO} offen lds")
L.e(f"s_add_u32 m0, s{S_LB}, 0x2000")
L.e(f"s_add_u32 s{S_XO}, s{S_XO}, 0x20000")
L.e(f"buffer_load_dwordx4 v2, {sq(SRD_A)}, s{S_XO} offen{ntx} lds")
L.e(f"s_add_u32 m0, s{S_LB}, 0x3000")
L.e(f"s_add_u32 s{S_WO}, s{S_WO}, 0x4000")
L.e(f"buffer_load_dwordx4 v3, {sq(SRD_B)}, s{S_WO} offen lds")
if P["lt"]:
    per, ph = P["lt"][:2]
    L.c("a few rows of w_out towards the caches; the values are not used")
    if len(P["lt"]) > 2:
        L.e(f"s_cmp_lg_u32 s{S_N}, {ph}")
        L.e("s_cbranch_scc1 L_notouch")
    elif per > 1:
        L.e(f"s_and_b32 s{S_T0}, s{S_N}, {per - 1}")
        L.e(f"s_cmp_lg_u32 s{S_T0}, {ph}")
        L.e("s_cbranch_scc1 L_notouch")
    L.e(f"global_load_dword v10, v14, s[12:13]")
    L.e(f"v_add_u32 v13, {per * 1024}, v14")
    L.e(f"v_bfi_b32 v14, s{S_T3}, v13, v14")
    L.lab("L_notouch")
L.e(f"s_add_u32 s{S_LB}, s{S_LB}, 0x4000")
L.e(f"s_and_b32 s{S_LB}, s{S_LB}, 0x1ffff")
L.e(f"s_add_u32 s{S_N}, s{S_N}, 1")
L.e(f"s_cmp_lt_u32 s{S_N}, {D}")
L.e("s_cbranch_scc1 L_ld1")
L.e(f"s_waitcnt vmcnt({4 * (D - 1)})")
L.e("s_barrier")
L.e(f"s_cmp_lt_u32 s{S_N}, 16")
L.e("s_cbranch_scc1 L_ld1")
L.stamp()
L.c("w_out: 64 rows per step, starting at this member's own quarter")
L.e(f"s_mov_b64 {sp(SRD_B)}, s[12:13]")
L.e(f"s_lshl_b32 s{S_WO}, s{S_Q}, 17")
L.lab("L_ld2")
for p in range(4):
    L.e(f"s_add_u32 m0, s{S_LB}, {hex(p * 4096)}" if p else f"s_mov_b32 m0, s{S_LB}")
    L.e(f"s_add_u32 s{S_T0}, s{S_WO}, {hex(p * 0x4000)}" if p else f"s_add_u32 s{S_N}, s{S_N}, 1")
    L.e(f"buffer_load_dwordx4 v3, {sq(SRD_B)}, s{S_T0 if p else S_WO} offen lds")
L.e(f"s_add_u32 s{S_LB}, s{S_LB}, 0x4000")
L.e(f"s_add_u32 s{S_WO}, s{S_WO}, 0x10000")
L.e(f"s_and_b32 s{S_WO}, s{S_WO}, 0x7ffff")
L.e(f"s_cmp_lt_u32 s{S_N}, {16 + D}")
L.e("s_cbranch_scc0 L_ld3")
L.e(f"s_waitcnt vmcnt({4 * (D - 1)})")
L.e("s_barrier")
L.e("s_branch L_ld2")
L.lab("L_ld3")
assert P["thr"] <= 16 and D <= 6
L.e(f"s_waitcnt vmcnt({P['thr']})")
L.e(f"s_cmp_lg_u32 s{S_N}, 22")
L.e("s_cbranch_scc1 L_ld4")
if P["prime"]:
    L.c("bring the progress line into the L2 early; this value is not used")
    L.e("global_load_dword v16, v12, s[18:19] offset:256 sc1")
L.e("s_barrier")
L.lab("L_ld4")
L.e(f"s_cmp_lt_u32 s{S_N}, 24")
L.e("s_cbranch_scc1 L_ld2")
L.e(f"s_lshl_b32 s{S_T0}, s{S_W}, 2")
L.e(f"s_add_u32 s{S_T0}, s{S_T0}, {LDS_RDY}")
L.e(f"v_mov_b32 v8, s{S_T0}")
L.e("v_mov_b32 v9, 1")
L.e(f"v_mov_b32 v13, {LDS_RDY}")
L.e(f"s_mov_b32 s{S_CNT}, 0")
L.e("s_waitcnt vmcnt(0)")
L.e("ds_write_b32 v8, v9")
L.stamp()
L.e(f"s_cmp_lg_u32 s{S_W}, 4")
L.e("s_cbranch_scc1 L_fin")
L.c("wave 4: relay the smallest progress word of the group into LDS")
L.lab("L_poll")
L.e("global_load_dwordx4 v[16:19], v12, s[18:19] offset:256 sc1")
L.e(f"s_add_u32 s{S_CNT}, s{S_CNT}, 1")
L.e("s_waitcnt vmcnt(0)")
L.e("v_min3_u32 v16, v16, v17, v18")
L.e("v_min_u32 v16, v16, v19")
L.e("s_nop 1")
L.e("v_min_u32_dpp v16, v16, v16 quad_perm:[1,0,3,2] row_mask:0xf bank_mask:0xf")
L.e("s_nop 1")
L.e("v_min_u32_dpp v16, v16, v16 quad_perm:[2,3,0,1] row_mask:0xf bank_mask:0xf")
L.e("ds_write_b32 v13, v16")
L.e(f"v_readfirstlane_b32 s{S_T0}, v16")
L.e(f"s_cmp_ge_u32 s{S_CNT}, 0x100000")
L.e(f"s_cselect_b32 s{S_T0}, 4, s{S_T0}")
L.e(f"s_cmp_lt_u32 s{S_T0}, 4")
L.e("s_cbranch_scc1 L_poll")
L.lab("L_fin")
L.stamp()
L.dump_stamps()
L.lab("L_exit")
L.e("s_endpgm")

C = Prog(); C.nst = h.nst; C.is_c = True
if P["codepf"]: C.vq.append("code")
AD = list(range(2, 10))
VL16, VXW, VFL, VXR, VT0, VT1, VSW, VSR, VOUT, VRDY = 10, 11, 12, 13, 14, 15, 16, 17, 18, 19
RA, RH, RX, RBI, RS = 20, 84, 116, 148, 164
VFS = 170
RF = 172; NPOOL = (256 - RF) // 4
SRD_WS, SRD_OUT, SRD_WO = SRD_A, SRD_B, SRD_C
C.lab("L_compute")
C.c("---------------- compute waves")
T = RH
vG, vC, vEMBA, vSIGA, vT0A, vSIG, vEMB, vEP, vZ, vANN, vJ, vL4, vTCH, vBW, vBR, vCHK, vCHA = \
    T, T+1, T+2, T+3, T+4, T+5, T+6, T+7, T+8, T+12, T+14, T+15, T+16, T+17, T+18, T+26, T+28
C.e(f"s_lshl_b32 s{S_T0}, s{S_Q}, 8")
C.e(f"v_lshl_add_u32 v{vEMBA}, v1, 2, s{S_T0}")
C.e(f"s_lshr_b32 s{S_T0}, s{S_TILE}, 21")
C.e(f"v_mov_b32 v{vSIGA}, s{S_T0}")
C.c("thread 0 resets this workgroup's four progress words, then announces that (and its XCD) under this launch's tag")
C.e(f"v_lshlrev_b32 v{vT0A}, 24, v0")
for i in range(4): C.e(f"v_mov_b32 v{vZ+i}, 0")
C.e(f"s_lshl_b32 s{S_EP}, s{S_G}, 9")
C.e(f"s_lshl4_add_u32 s{S_T2}, s{S_Q}, s{S_EP}")
C.e(f"s_mov_b32 s{SRD_WS+2}, {hex(WS_BYTES)}"); C.e(f"s_mov_b32 s{SRD_WS+3}, 0x20000")
C.e(f"s_getreg_b32 s{S_XCC}, hwreg(HW_REG_XCC_ID, 0, 4)")
C.e("s_waitcnt lgkmcnt(0)")
C.e(f"s_mov_b64 {sp(SRD_WS)}, s[18:19]")
C.vm(f"buffer_store_dwordx4 {q4(vZ)}, v{vT0A}, {sq(SRD_WS)}, s{S_T2} offen offset:256 sc1", "clr")
C.vm(f"buffer_load_dword v{vEP}, v{vZ}, {sq(SRD_WS)}, s{S_EP} offen sc1", "ep")
C.vm(f"global_load_ushort v{vSIG}, v{vSIGA}, s[6:7]", "sig")
C.vm(f"global_load_dword v{vEMB}, v{vEMBA}, s[10:11]", "emb")
for t in [
    f"v_lshrrev_b32 v{vG}, 4, v1", f"v_bfe_u32 v{vC}, v1, 2, 2", f"v_lshlrev_b32 v{vC}, 6, v{vC}",
    f"v_lshl_add_u32 v{AD[0]}, v{vG}, 10, v{vC}", f"v_and_b32 v{vC}, 1, v{vG}", f"v_lshl_add_u32 v{AD[0]}, v{vC}, 5, v{AD[0]}",
    f"v_and_b32 v{vC}, 3, v1", f"v_lshl_add_u32 v{AD[6]}, v{vC}, 3, v{AD[0]}",
    f"s_lshl_b32 s{S_T0}, s{S_W}, 8", f"v_add_u32 v{AD[2]}, s{S_T0}, v{AD[6]}",
    f"s_and_b32 s{S_T3}, s{S_W}, 1", f"s_lshl_b32 s{S_T1}, s{S_T3}, 9",
    f"v_add_u32 v{AD[0]}, s{S_T1}, v{AD[6]}",
    f"v_xor_b32 v{AD[1]}, 32, v{AD[0]}", f"v_xor_b32 v{AD[3]}, 32, v{AD[2]}",
    f"v_xor_b32 v{AD[4]}, 0x100, v{AD[2]}", f"v_xor_b32 v{AD[5]}, 0x100, v{AD[3]}",
    f"s_lshl_b32 s{S_T1}, s{S_T3}, 14", f"v_add_u32 v{AD[6]}, s{S_T1}, v{AD[6]}",
    f"s_mov_b64 {sp(SRD_WO)}, s[12:13]", f"s_mov_b32 s{SRD_WO+2}, 0x80000", f"s_mov_b32 s{SRD_WO+3}, 0x20000",
    f"s_mov_b64 {sp(SRD_OUT)}, s[14:15]", f"s_mov_b32 s{SRD_OUT+2}, 0x800000", f"s_mov_b32 s{SRD_OUT+3}, 0x20000",
    f"v_lshrrev_b32 v{vL4}, 2, v1", f"v_and_b32 v{vJ}, 15, v1",
    f"s_lshl_b32 s{S_T0}, s{S_GL}, 16", f"s_lshl_b32 s{S_T1}, s{S_W}, 14", f"s_add_u32 s{S_T0}, s{S_T0}, s{S_T1}",
    f"s_lshl_b32 s{S_T1}, s{S_Q}, 8", f"s_add_u32 s{S_T0}, s{S_T0}, s{S_T1}",
    f"v_lshl_add_u32 v{vTCH}, v{vL4}, 10, s{S_T0}", f"v_lshl_add_u32 v{vTCH}, v{vC}, 6, v{vTCH}",
    f"s_lshl2_add_u32 s{S_T2}, s{S_W}, s{S_T2}", f"v_lshl_add_u32 v{VFL}, v1, 24, s{S_T2}",
    f"v_lshlrev_b32 v{vCHA}, 3, v{vC}", f"s_mov_b32 s{S_MODE}, 0",
    f"s_lshl_b32 s{S_T0}, s{S_W}, 9", f"s_add_u32 s{S_T0}, s{S_T0}, {LDS_BIAS}", f"v_lshl_add_u32 v{vBW}, v1, 3, s{S_T0}",
    f"s_lshl_b32 s{S_T1}, s{S_T3}, 8", f"s_add_u32 s{S_T0}, s{S_T0}, s{S_T1}",
    f"v_lshl_add_u32 v{vBR}, v{vG}, 4, s{S_T0}",
    f"s_mul_i32 s{S_T0}, s{S_W}, 5120", f"s_add_u32 s{S_T0}, s{S_T0}, {LDS_STG}",
    f"v_lshlrev_b32 v{VL16}, 4, v1", f"v_add_u32 v{VXW}, s{S_T0}, v{VL16}",
    f"v_mul_u32_u24 v{VSW}, 80, v{vJ}", f"v_lshl_add_u32 v{VSW}, v{vG}, 3, v{VSW}", f"v_add_u32 v{VSW}, s{S_T0}, v{VSW}",
    f"v_mul_u32_u24 v{VSR}, 80, v{vL4}", f"v_lshl_add_u32 v{VSR}, v{vC}, 4, v{VSR}", f"v_add_u32 v{VSR}, s{S_T0}, v{VSR}",
    f"s_xor_b32 s{S_T0}, s{S_W}, 1", f"s_mul_i32 s{S_T0}, s{S_T0}, 5120", f"s_add_u32 s{S_T0}, s{S_T0}, {LDS_STG}",
    f"v_add_u32 v{VXR}, s{S_T0}, v{VL16}",
    f"s_lshl_b32 s{S_T0}, s{S_Q}, 20", f"s_add_u32 s{S_T0}, s{S_T0}, s{S_TILE}", f"s_lshl_b32 s{S_T1}, s{S_W}, 6",
    f"s_add_u32 s{S_T0}, s{S_T0}, s{S_T1}", f"v_lshl_add_u32 v{VOUT}, v{vL4}, 13, s{S_T0}", f"v_lshl_add_u32 v{VOUT}, v{vC}, 4, v{VOUT}",
    f"v_mov_b32 v{VRDY}, {LDS_RDY}", f"s_sub_u32 s{S_OWN}, 0, s{S_GL}", f"s_and_b32 s{S_OWN}, s{S_OWN}, 3", f"s_mov_b32 s{S_OB}, 0",
    f"s_lshl4_add_u32 s{S_T1}, s{S_G}, s{S_W}", f"s_lshl_b32 s{S_T1}, s{S_T1}, 12", f"s_add_u32 s{S_T1}, s{S_T1}, {hex(WSB)}",
    ]: C.e(t)
for m in range(4):
    C.e(f"s_add_u32 s{S_T3}, s{S_Q}, {m}"); C.e(f"s_and_b32 s{S_T3}, s{S_T3}, 3"); C.e(f"s_lshl_b32 s{S_T3}, s{S_T3}, 14")
    C.e(f"s_add_u32 s{S_MB[m, 1]}, s{S_T3}, s{S_T1}")
    C.e(f"s_xor_b32 s{S_MB[m, 0]}, s{S_MB[m, 1]}, {hex(0x1000 * (m > 0))}")
    C.e(f"s_add_u32 s{S_MB[m, 0]}, s{S_MB[m, 0]}, 0x400000")

F = []
F.append(lambda: C.vneed("clr", "ep", "sig", "emb"))
F += [f"v_readfirstlane_b32 s{S_T3}, v{vEP}",
      f"s_mul_i32 s{S_H0}, s{S_T3}, {hex(HC0)}", f"s_add_u32 s{S_H0}, s{S_H0}, {hex(HK0)}",
      f"s_mul_i32 s{S_H1}, s{S_T3}, {hex(HC1)}", f"s_add_u32 s{S_H1}, s{S_H1}, {hex(HK1)}",
      f"s_add_u32 s{S_H0}, s{S_H0}, s{S_XCC}", f"s_add_u32 s{S_H1}, s{S_H1}, s{S_XCC}",
      f"v_mov_b32 v{vANN}, s{S_H0}", f"v_mov_b32 v{vANN+1}, s{S_H1}", f"s_lshl3_add_u32 s{S_T0}, s{S_Q}, s{S_EP}"]
F.append(lambda: C.vm(f"buffer_store_dwordx2 {q2(vANN)}, v{vT0A}, {sq(SRD_WS)}, s{S_T0} offen offset:128 sc1", "ann"))
F += [f"s_add_u32 s{S_EN}, s{S_T3}, 1"]
sg, a, b2, cs, cn = vSIG, T + 20, T + 21, T + 22, T + 23
def rnd(r): return [f"v_cvt_pk_bf16_f32 v{r}, v{r}, v{r}", f"v_lshlrev_b32 v{r}, 16, v{r}"]
F += [f"v_lshlrev_b32 v{sg}, 16, v{sg}", f"v_mul_f32 v{a}, v{sg}, v{sg}"] + rnd(a)
F += [f"v_add_f32 v{a}, 0x3e800000, v{a}"] + rnd(a)
F += [f"v_rcp_f32 v{cs}, v{a}", f"v_sqrt_f32 v{a}, v{a}"] + rnd(cs) + rnd(a)
F += [f"v_mul_f32 v{cs}, 0x3e800000, v{cs}", f"v_rcp_f32 v{a}, v{a}", f"v_lshrrev_b32 v{cs}, 16, v{cs}", f"v_mul_f32 v{b2}, 0.5, v{sg}"]
F += [f"v_mul_f32 v{b2}, v{b2}, v{a}"] + rnd(b2) + rnd(a)
F += [f"v_log_f32 v{cn}, v{sg}", f"v_mul_f32 v{a}, 0xbfb8aa3b, v{a}", f"v_mul_f32 v{cn}, 0x3f317218, v{cn}"] + rnd(cn)
F += [f"v_max_f32 v{b2}, 0x03800000, v{b2}", f"v_mul_f32 v{b2}, 0xbf317218, v{b2}", f"v_rcp_f32 v{b2}, v{b2}"]
F += [f"v_mul_f32 v{cn}, 0x3e800000, v{cn}"]
F += [f"v_readfirstlane_b32 s{S_S1}, v{a}", f"v_readfirstlane_b32 s{S_IK}, v{b2}", f"s_mov_b32 s{S_S1+1}, s{S_S1}", f"s_mov_b32 s{S_IK+1}, s{S_IK}"]
e0, e1 = T + 24, T + 25
F += [f"v_lshlrev_b32 v{e0}, 16, v{vEMB}", f"v_and_b32 v{e1}, 0xffff0000, v{vEMB}",
      f"v_mul_f32 v{e0}, v{cn}, v{e0}", f"v_mul_f32 v{e1}, v{cn}, v{e1}",
      f"v_cvt_pk_bf16_f32 v{e1}, v{e0}, v{e1}", f"v_lshlrev_b32 v{e0}, 16, v{e1}", f"v_and_b32 v{e1}, 0xffff0000, v{e1}",
      f"v_mul_f32 v{e0}, 0xbfb8aa3b, v{e0}", f"v_mul_f32 v{e1}, 0xbfb8aa3b, v{e1}"]
F.append(("lds", f"ds_write_b64 v{vBW}, {q2(e0)}", "biasw"))
for i in range(4):
    F.append(("lds", f"ds_read_b128 {q4(RBI + 4 * i)}, v{vBR} offset:{i * 64}", "bias"))
F += [f"v_and_b32 v{e0}, 1, v1", f"v_lshlrev_b32 v{e0}, 4, v{e0}", f"v_lshlrev_b32 v{cs}, v{e0}, v{cs}",
      f"v_lshrrev_b32 v{e0}, 1, v{vJ}", f"v_lshlrev_b32 v{e1}, 1, v{vG}", f"v_sub_u32 v{e0}, v{e0}, v{e1}",
      f"v_cmp_eq_u32 vcc, 0, v{e0}", f"v_mov_b32 v{RS}, 0", f"v_cndmask_b32 v{RS+2}, 0, v{cs}, vcc",
      f"v_cmp_eq_u32 vcc, 1, v{e0}", f"v_mov_b32 v{RS+1}, 0", f"v_cndmask_b32 v{RS+3}, 0, v{cs}, vcc",
      f"v_mov_b32 v{RS+4}, 0", f"v_mov_b32 v{RS+5}, 0"]
def ann_check():
    C.e(f"s_or_b64 vcc, vcc, {sp(S_MSK)}")
    if P.get("forceslow"): C.e("s_cmp_eq_u32 0, 0")
    C.e("s_cbranch_scc1 L_ann_wait")
    C.lab("L_ann_ok")
G = [lambda: (C.c("all four members have reset their progress words in this launch, and one L2 serves all of them"), C.vneed("chk", "touch")),
     f"v_cmp_ne_u32 vcc, s{S_H0}, v{vCHK}", f"v_cmp_ne_u32 {sp(S_MSK)}, s{S_H1}, v{vCHK+1}", f"v_mov_b32 v{AD[0]}, v{AD[6]}", ann_check,
     f"v_xor_b32 v{AD[2]}, 32, v{AD[0]}", f"v_xor_b32 v{AD[4]}, 0x4000, v{AD[0]}", f"v_xor_b32 v{AD[6]}, 0x4000, v{AD[2]}"]
G += [f"v_add_u32 v{AD[r+1]}, 0x10000, v{AD[r]}" for r in (0, 2, 4, 6)]
C.tail += ["L_ann_wait:", f"    s_mov_b32 s{S_CNT}, 0",
           f"    s_sub_u32 s{S_H0}, s{S_H0}, s{S_XCC}", f"    s_sub_u32 s{S_H1}, s{S_H1}, s{S_XCC}", "L_ann_l:",
           f"    buffer_load_dwordx2 {q2(vCHK)}, v{vCHA}, {sq(SRD_WS)}, s{S_EP} offen offset:128 sc1",
           f"    s_add_u32 s{S_CNT}, s{S_CNT}, 1", "    s_waitcnt vmcnt(0)",
           f"    v_subrev_u32 v{vCHK}, s{S_H0}, v{vCHK}", f"    v_subrev_u32 v{vCHK+1}, s{S_H1}, v{vCHK+1}",
           f"    v_cmp_ne_u32 vcc, v{vCHK}, v{vCHK+1}", f"    v_cmp_le_u32 {sp(S_MSK)}, 16, v{vCHK}",
           f"    s_cmp_ge_u32 s{S_CNT}, 0x100000", "    s_cbranch_scc1 L_ann_ok",
           f"    s_or_b64 vcc, vcc, {sp(S_MSK)}", "    s_cbranch_scc1 L_ann_l",
           f"    v_cmp_ne_u32 vcc, s{S_XCC}, v{vCHK}", "    s_nop 1", "    s_cmp_lg_u64 vcc, 0"]
if not P.get("forceslow"): C.tail += ["    s_cbranch_scc0 L_ann_ok"]
C.tail += ["    ; members on several XCDs: the L2-local progress stores fall out of range; L_slow stores through memory instead",
           f"    s_mov_b32 s{S_MODE}, 1", f"    v_mov_b32 v{VFS}, v{VFL}", f"    v_mov_b32 v{VFL}, 2.0", "    s_branch L_ann_ok"]

if P.get('nofill'): F = F[:13]
class Pool:
    def __init__(s, regs): s.free = list(regs); s.rel = []
    def get(s, now):
        s.free += [r for t, r in s.rel if t <= now]; s.rel = [(t, r) for t, r in s.rel if t > now]
        assert s.free, "fragment pool empty"
        return s.free.pop(0)
    def put(s, t, r): s.rel.append((t, r))

def stream(units, read, pool):
    firstuse, lastuse = {}, {}
    for i, u in enumerate(units):
        for k in u:
            firstuse.setdefault(k, i); lastuse[k] = i
    rq = [(k, i) for k in sorted(firstuse, key=lambda k: firstuse[k]) for i in range(2)]
    reg = {}
    def issue(now):
        k, i = rq.pop(0)
        if i == 0:
            reg[k] = pool.get(now); pool.put(lastuse[k] + 2, reg[k])
        read(k, i, reg[k])
    return rq, reg, issue, firstuse
def run(f):
    if isinstance(f, str): C.e(f)
    elif isinstance(f, tuple): C.lds(f[1], f[2])
    else: f()

SEQ = [(0,0),(0,1),(1,1),(1,0),(1,2),(0,2),(2,2),(2,1),(2,0),(2,3),(1,3),(0,3),(3,3),(3,2),(3,1),(3,0)]
u1 = [(("w", n, a), ("x", n, p)) for n in range(16) for a, p in SEQ]
def rd1(k, i, r):
    kind, n, t = k
    base = (n % 4) * 16384 + 8192 * i
    if kind == "w": a_, off = AD[t & 1], 4096 + 256 * (t >> 1)
    else: a_, off = AD[2 + 2 * (t >> 1) + (t & 1)], 0
    C.lds(f"ds_read_b64_tr_b16 {q2(r + 2 * i)}, v{a_} offset:{base + off}", k)
rq, reg, issue, fu = stream(u1, rd1, Pool([RF + 4 * i for i in range(NPOOL)]))
C.stamp()
C.e("s_barrier")
C.stamp()
barred = 0
def issue1(now):
    global barred
    n = rq[0][0][1]
    if n > barred:
        barred = n
        if n % 4 == 0:
            for r in AD[:6]: C.e(f"v_xor_b32 v{r}, 0x10000, v{r}")
        C.e("s_barrier")
        if n == P["wo_touch"]:
            C.c("this workgroup's share of w_out into the L2; the values are not used")
            C.vm(f"buffer_load_dword v{VT1}, v{vTCH}, {sq(SRD_WO)}, 0 offen", "touch")
        if n == 12 - D: C.vm(f"buffer_load_dwordx2 {q2(vCHK)}, v{vCHA}, {sq(SRD_WS)}, s{S_EP} offen offset:128 sc1", "chk")
    issue(now)
for _ in range(P["lead"]): issue1(0)
for i, (ka, kb) in enumerate(u1):
    if i and i % 64 == 0 and not P["xs"]: C.stamp()
    if i in P.get("xs1", ()):
        C.stamp(); C.smem = False
    C.need(ka, kb)
    acc = RA + 4 * (4 * kb[2] + ka[2])
    C.e(f"v_mfma_f32_16x16x32_bf16 {q4(acc)}, {q4(reg[ka])}, {q4(reg[kb])}, {'0' if i < 16 else q4(acc)}")
    if rq: issue1(i)
    elif G: run(G.pop(0))
    if i % 16 == 9 and not P.get('nocap'):
        n = i // 16
        C.e(f"s_cmp_eq_u32 s{S_OWN}, {n & 3}")
        C.e(f"s_cbranch_scc0 L_keep{n}")
        for t in range(2):
            for o in range(4): C.e(f"v_mov_b32 v{RX + 8 * (n // 4) + 4 * t + o}, v{reg['x', n, t] + o}")
        C.lab(f"L_keep{n}")
        continue
    waited = i + 1 < len(u1) and C.need(*u1[i + 1])
    if F and i >= P["fstart"] and not waited: run(F.pop(0))
for f in G: run(f)
assert not F and not C.lq
C.stamp()

DQ = RF + 4
def hreg(p, kk): return RH + 4 * (2 * p + kk)
def flag(j):
    if not (P["exp"] & 2): C.vneed(("st", j))
    C.e(f"v_mov_b32 v{VT1}, {j + 1}")
    C.vm(f"buffer_store_dword v{VT1}, v{VFL}, {sq(SRD_WS)}, 0 offen offset:256", ("fl", j))
def check(name, v, done=False):
    rdi = f"ds_read_b128 {q4(DQ)}, v{VRDY} offset:16" if done else f"ds_read_b32 v{VT0}, v{VRDY}"
    red = [f"    v_min3_u32 v{VT0}, v{DQ}, v{DQ+1}, v{DQ+2}", f"    v_min_u32 v{VT0}, v{VT0}, v{DQ+3}", "    s_nop 0"] if done else []
    C.e(f"s_cmp_ge_u32 s{S_T1}, {v}")
    if not (P["exp"] & 1) or done: C.e(f"s_cbranch_scc0 L_spin{name}")
    C.lab(f"L_back{name}")
    if not done and not P["xs"]: C.stamp()
    C.tail += [f"L_spin{name}:", f"    s_mov_b32 s{S_CNT}, 0", f"L_spin{name}_l:",
               "    " + rdi, f"    s_add_u32 s{S_CNT}, s{S_CNT}, 1", "    s_waitcnt lgkmcnt(0)", *red,
               f"    v_readfirstlane_b32 s{S_T1}, v{VT0}", f"    s_cmp_ge_u32 s{S_CNT}, 0x800000", f"    s_cbranch_scc1 L_back{name}",
               f"    s_cmp_ge_u32 s{S_T1}, {v}", f"    s_cbranch_scc0 L_spin{name}_l", f"    s_branch L_back{name}"]

C.c("---- h = c_out * silu(c_in * acc + bias), two elements per packed op; the sibling's pixels first")
tiles = [(p0 + p, 2 * kk + a) for p0 in (2, 0) for kk in range(2) for p in range(2) for a in range(2)]
U = RF
def acc1(n): return RA + 4 * (4 * tiles[n][0] + tiles[n][1])
def ok(n): return 0 <= n < 16
def publish(n):
    p, a = tiles[n]; kk = a >> 1
    if not (P["exp"] & 8): C.vm(f"buffer_store_dwordx4 {q4(hreg(p, kk))}, v{VL16}, {sq(SRD_WS)}, s{S_MB[0, 1 - p // 2]} offen offset:{(2 * kk + (p & 1)) * 1024} sc1", ("st", n // 4))
    if p >= 2: C.lds(f"ds_write_b128 v{VXW}, {q4(hreg(p, kk))} offset:{((p & 1) * 2 + kk) * 1024}", "xw")
for n in range(-2, 17):
    if ok(n + 1):
        for o in range(4): C.e(f"v_exp_f32 v{acc1(n+1)+o}, v{U + 4*((n+1)&3) + o}")
    if ok(n - 2) and n % 2 == 1: publish(n - 2)
    if ok(n - 1):
        for o in (0, 2): C.e(f"v_pk_mul_f32 {q2(acc1(n-1)+o)}, {q2(acc1(n-1)+o)}, {q2(U + 4*((n-1)&3) + o)}")
    if ok(n + 2):
        for o in (0, 2): C.e(f"v_pk_fma_f32 {q2(U + 4*((n+2)&3) + o)}, {q2(acc1(n+2)+o)}, {sp(S_S1)}, {q2(RBI + 4*tiles[n+2][1] + o)}")
    if ok(n):
        for o in range(4): C.e(f"v_rcp_f32 v{acc1(n)+o}, v{acc1(n)+o}")
    if ok(n + 1):
        for o in (0, 2): C.e(f"v_pk_fma_f32 {q2(acc1(n+1)+o)}, {q2(acc1(n+1)+o)}, {sp(S_IK)}, {sp(S_IK)}")
    if ok(n - 1):
        p, a = tiles[n - 1]
        for o in (0, 2): C.e(f"v_cvt_pk_bf16_f32 v{hreg(p, a >> 1) + 2 * (a & 1) + o // 2}, v{acc1(n-1)+o}, v{acc1(n-1)+o+1}")
    if n == 10:
        C.need("xw")
        C.e("s_barrier")
        C.stamp()
        for p2 in range(2):
            for kk in range(2): C.lds(f"ds_read_b128 {q4(hreg(2 + p2, kk))}, v{VXR} offset:{(p2 * 2 + kk) * 1024}", "xr")
    for j in range(4):
        if P["fl"][j] is not None and P["fl"][j] == -n and n > 0:
            assert n >= 4 * j + 5
            flag(j)
publish(15)
C.e(f"s_cmp_lg_u32 s{S_MODE}, 0")
C.e("s_cbranch_scc1 L_slow")
C.lab("L_slow_done")
C.tail += ["L_slow:", f"    v_mov_b32 v{VT1}, 4", "    s_waitcnt vmcnt(0) lgkmcnt(0)",
           f"    buffer_store_dword v{VT1}, v{VFS}, {sq(SRD_WS)}, 0 offen offset:256 sc1", "    s_waitcnt vmcnt(0)", "    s_branch L_slow_done"]
C.stamp()

poolq = [RF + 4 * i for i in range(NPOOL)]
rem = poolq[9:21] + [RBI + 4 * i for i in range(4)] + [RX + 4 * i for i in range(8)]
def rq_(j, m, p): return rem[6 * j + 2 * (m - 1) + p]
units = []
for t in range(2):
    for rho in range(4):
        for p in range(2): units.append((2 * rho + t, p, RX + 8 * rho + 4 * p, ("sel", t), True, None))
def snake(jts, areg, m, far, kk, tag):
    for n, jt in enumerate(jts):
        for p in ((0, 1) if n % 2 == 0 else (1, 0)):
            units.append((jt, p, areg(p), ("o", m, far, kk, jt), False, tag(p)))
for far in (1, 0):
    for kk in range(2): snake(range(8), lambda p: hreg(2 * far + p, kk), 0, far, kk, lambda p: "xr" if far else None)
steps = [(j, m) for j in range(4) for m in (1, 2, 3)]
nbm = 2 * P["bm"]
def remote(jts, j, m): snake(jts, lambda p: rq_(j, m, p), m, 1 - j // 2, j & 1, lambda p: ("pl", j, m, p))
for j, m in steps[:12 - nbm]: remote(range(8), j, m)
for blk in range(4):
    for j, m in steps[12 - nbm:]: remote((2 * blk, 2 * blk + 1), j, m)
NU = len(units)
def rd2(k, i, r):
    _, m, far, kk, jt = k
    base = (4 * m + kk) * 8192
    a_ = AD[4 * far + 2 * (jt & 1) + (base >= 65536)]
    C.lds(f"ds_read_b64_tr_b16 {q2(r + 2 * i)}, v{a_} offset:{base % 65536 + 4096 * i + 256 * (jt >> 1)}", k)
rq, reg, issue, fu = stream([(u[3],) if u[3][0] == "o" else () for u in units], rd2, Pool(poolq[2:9]))
first_remote = min(i for i, u in enumerate(units) if isinstance(u[5], tuple))
last = {blk: max(i for i, u in enumerate(units) if u[0] // 2 == blk) for blk in range(4)}
sched = {}
def at(i, kind, x): sched.setdefault(i, []).append((kind, x))
busy = []
def claim(a_, b_):
    assert a_ >= 0 and all(b_ < x or a_ > y for x, y in busy), ("checks overlap", a_, b_, busy)
    busy.append((a_, b_))
iw = P.get("chkW", first_remote - P["pf2"] - 3)
assert iw <= first_remote - P["pf2"] - 3
claim(iw - 3, iw)
at(iw - 10, "m", lambda: C.lds(f"ds_read_b128 {q4(DQ)}, v{VRDY} offset:16", ("rdy", "W")))
at(iw - 3, "m", lambda: C.need(("rdy", "W")))
at(iw - 3, "v", f"v_min3_u32 v{VT0}, v{DQ}, v{DQ+1}, v{DQ+2}")
at(iw - 2, "v", f"v_min_u32 v{VT0}, v{VT0}, v{DQ+3}")
at(iw - 1, "v", f"v_readfirstlane_b32 s{S_T1}, v{VT0}")
at(iw, "m", lambda: check("W", 1, True))
nextld = 0
for j in range(4):
    i0 = P["chk"][j]
    if i0 is not None:
        top = max(x for x in range(j, 4) if all(P["chk"][y] is None for y in range(j + 1, x + 1)))
        claim(i0 - 7, i0)
        at(i0 - 7, "m", lambda j=j: C.lds(f"ds_read_b32 v{VT0}, v{VRDY}", ("rdy", j)))
        at(i0 - 1, "m", lambda j=j: C.need(("rdy", j)))
        at(i0 - 1, "v", f"v_readfirstlane_b32 s{S_T1}, v{VT0}")
        at(i0, "m", lambda j=j, top=top: check(j, top + 1))
        assert P["fl"][top] is not None and P["fl"][top] <= i0
        nextld = max(nextld, 2 * i0)
    for m in (1, 2, 3):
        for p in range(2):
            assert j < 2 or nextld // 2 >= 18
            assert nextld // 2 < min(i for i, u in enumerate(units) if u[5] == ("pl", j, m, p))
            if not (P["exp"] & 4): at(nextld // 2, "m", lambda j=j, m=m, p=p: C.vm(
                f"buffer_load_dwordx4 {q4(rq_(j, m, p))}, v{VL16}, {sq(SRD_WS)}, s{S_MB[m, j // 2]} offen offset:{(2 * (j & 1) + p) * 1024} sc1", ("pl", j, m, p)))
            nextld += P["ldgap"] if isinstance(P["ldgap"], int) else P["ldgap"][j]
    if P["fl"][j] is not None and P["fl"][j] >= 0: at(P["fl"][j], "m", lambda j=j: flag(j))
assert P["fl"][3] >= 16
TMP = RF
for blk in range(4):
    t0 = last[blk] + 5
    dat = RA + 16 * blk; so = (blk & 1) * 2560
    for g in range(4):
        for o in range(2): at(t0 + 2 * g + o, "v", f"v_cvt_pk_bf16_f32 v{TMP + 2*g + o}, v{dat + 4*g + 2*o}, v{dat + 4*g + 2*o + 1}")
        at(t0 + 2 * g + 2, "m", lambda g=g, so=so, blk=blk: C.lds(f"ds_write_b64 v{VSW}, {q2(TMP + 2*g)} offset:{so + 1280 * (g >> 1) + 32 * (g & 1)}", ("sw", blk)))
    for k in range(2):
        at(t0 + 5 + 4 * k, "m", lambda k=k, so=so, blk=blk, dat=dat: C.lds(f"ds_read_b128 {q4(dat + 4*k)}, v{VSR} offset:{so + 1280*k}", ("sr", blk, k)))
    def st(k, blk=blk, dat=dat):
        C.need(("sr", blk, k))
        if not (P["exp"] & 16) or blk == 3: C.vm(f"buffer_store_dwordx4 {q4(dat + 4*k)}, v{VOUT}, {sq(SRD_OUT)}, s{S_OB} offen{POL[P['outpol'][blk]]}", ("out", blk))
        if (blk, k) != (3, 1): C.e(f"s_add_u32 s{S_OB}, s{S_OB}, 0x20000")
    for k in range(2): at(t0 + 13 + 5 * k, "m", lambda k=k, st=st: st(k))
ie = nextld // 2 + 4
at(ie, "m", lambda: (C.c("member 0 moves the group's epoch on (every member read it long ago: their progress words came after it)"),
                     C.e(f"s_lshl_b32 s{S_T0}, s{S_Q}, 28")))
at(ie, "v", f"v_lshl_or_b32 v{TMP}, v0, 24, s{S_T0}")
at(ie + 1, "v", f"v_mov_b32 v{TMP+1}, s{S_EN}")
at(ie + 2, "m", lambda: C.vm(f"buffer_store_dword v{TMP+1}, v{TMP}, {sq(SRD_WS)}, s{S_EP} offen sc1", "epst"))
assert ie + 3 < last[0] + 5
def pre_wait(i):
    if i >= NU: return
    u = units[i]
    if isinstance(u[5], tuple): C.vneed(u[5])
    C.need(u[3], *([u[5]] if u[5] == "xr" else []))
for i, u in enumerate(units):
    jt, p, ar, bk, first, tag = u
    if i in P["xs"]:
        C.stamp(); C.smem = False
    pre_wait(i)
    br = RS + 2 - 2 * bk[1] if bk[0] == "sel" else reg[bk]
    acc = RA + 4 * (2 * jt + p)
    C.e(f"v_mfma_f32_16x16x32_bf16 {q4(acc)}, {q4(ar)}, {q4(br)}, {'0' if first else q4(acc)}")
    if rq and fu[rq[0][0]] <= i + P["pf2"] + 1: issue(i)
    items = sched.pop(i, [])
    for k, x in items:
        if k == "m": x()
    pre_wait(i + 1)
    for k, x in items:
        if k == "v": C.e(x)
C.stamp()
C.e("s_nop 5")
for i in sorted(sched):
    for k, x in sorted(sched[i], key=lambda y: y[0]):
        if k == "v": C.e(x)
        else: x()
C.stamp()
if P["stamps"] or "probe" in P:
    C.e("s_waitcnt vmcnt(0)"); C.stamp()
if "probe" in P or P.get("rt"):
    C.e("s_waitcnt lgkmcnt(0)")
    if "probe" in P:
        C.e("s_sub_u32 s96, s96, s100"); C.e("s_lshl_b32 s96, s96, 2"); C.e("s_add_u32 s96, s96, 2000")
        if "pwg" in P:
            C.e(f"s_cmp_eq_u32 s2, {P['pwg']}"); C.e("s_cselect_b32 s96, s96, 0")
    else:
        C.e(f"s_mov_b32 s96, {P['rt']}")
        if "pwg" in P:
            C.e(f"s_cmp_eq_u32 s2, {P['pwg']}"); C.e("s_cselect_b32 s96, s96, 0")
    C.lab("L_rt")
    C.e("s_memrealtime s[98:99]"); C.e("s_waitcnt lgkmcnt(0)"); C.e("s_sub_u32 s98, s98, s100")
    C.e("s_cmp_lt_u32 s98, s96"); C.e("s_cbranch_scc1 L_rt")
C.dump_stamps()
C.e("s_endpgm")

nm = P["name"]
hdr = open("standalone__edm_precond__diffusion.s.ref").read().split("; Override")[0]
out = [hdr.rstrip(),
       "; generated by gen/gen.py  " + " ".join(sys.argv[1:]),
       f"; @launch grid=(256,1,1) block=(512,1,1) lds={LDS_TOTAL}",
       '.amdgcn_target "amdgcn-amd-amdhsa--gfx950"', ".text", f".globl {nm}_kernel", f".p2align {P['align']}",
       f".type {nm}_kernel,@function", f"{nm}_kernel:"]
out += h.l + L.l + C.l + C.tail + ["L_end:"]
out += ['.section .rodata,"a"', ".p2align 6", f".amdhsa_kernel {nm}_kernel",
        "  .amdhsa_next_free_vgpr 256", "  .amdhsa_next_free_sgpr 102", "  .amdhsa_accum_offset 256",
        "  .amdhsa_group_segment_fixed_size 0", "  .amdhsa_kernarg_size 64", "  .amdhsa_user_sgpr_count 2",
        "  .amdhsa_user_sgpr_kernarg_segment_ptr 1", "  .amdhsa_system_sgpr_workgroup_id_x 1", ".end_amdhsa_kernel"]
print("\n".join(out))
```

```python
import sys, json

P = dict(align=12, ntx=0, D=4, thr=4, stamps=0, codepf=1, wo_touch=99, prime=1, lt=(2, 4, 1), exp=0, stlb=1, perm=tuple(range(16)), chkn=8, w4=0, sil=0, fstart=20, xs=(),
         lead=12, pf2=8,
         fl=(None, -15, None, 42),
         chk=(56, None, 116, None), ldgap=(10, 10, 6, 6), bm=3,
         outpol=("sc1", "sc1", "sc1", "sc1"),
         name="standalone__edm_precond__diffusion")
for a in sys.argv[1:]:
    k, v = a.split("=", 1)
    try: P[k] = json.loads(v)
    except Exception: P[k] = v

POL = {"plain": "", "sc1": " sc1", "nt": " nt", "ntsc1": " sc1 nt"}
WS_BYTES = 0x1000000
HC0, HK0, HC1, HK1 = 0x9E3779B1, 0x7F4A7C15, 0x85EBCA77, 0xC2B2AE3D
STAMP_OFF = 0x1100000
LDS_MISC = 131072
LDS_BIAS = LDS_MISC
LDS_RDY = LDS_MISC + 2048
LDS_STG = LDS_MISC + 4096
LDS_TOTAL = LDS_STG + 4 * 5120

class Prog:
    def __init__(s):
        s.l = []; s.lq = []; s.vq = []; s.smem = False; s.nst = 0; s.tail = []; s.is_c = False
    def e(s, t): s.l.append("    " + t)
    def lab(s, t): s.l.append(t + ":")
    def c(s, t): s.l.append("    ; " + t)
    def lds(s, t, tag):
        s.e(t); s.lq.append(tag)
    def vm(s, t, tag):
        s.e(t); s.vq.append(tag); assert len(s.vq) <= 63
    def need(s, *tags):
        idx = max([i for i, t in enumerate(s.lq) if t in tags], default=-1)
        if idx < 0: return False
        n = min(len(s.lq) - 1 - idx, 15)
        if s.smem: n = 0; s.smem = False
        s.e(f"s_waitcnt lgkmcnt({n})"); s.lq = s.lq[len(s.lq) - n:] if n else []
        return True
    def vneed(s, *tags):
        idx = max([i for i, t in enumerate(s.vq) if t in tags], default=-1)
        if idx < 0: return False
        n = len(s.vq) - 1 - idx
        s.e(f"s_waitcnt vmcnt({n})"); s.vq = s.vq[len(s.vq) - n:] if n else []
        return True
    def stamp(s):
        if "probe" in P:
            if s.nst == P["probe"] and s.is_c:
                s.e("s_memrealtime s[96:97]"); s.smem = True
            s.nst += 1
        if P["stamps"]:
            s.e(f"{'s_memtime' if P['stamps'] == 1 else 's_memrealtime'} s[{68 + 2 * s.nst}:{69 + 2 * s.nst}]"); s.nst += 1; s.smem = True
            assert s.nst <= 17
    def dump_stamps(s):
        if not P["stamps"]: return
        s.e("s_waitcnt lgkmcnt(0) vmcnt(0)")
        s.e("v_mov_b32 v14, 0")
        for i in range(1, s.nst):
            s.e(f"s_sub_u32 s{68+2*i}, s{68+2*i}, s68")
            s.e(f"v_writelane_b32 v14, s{68+2*i}, {i}")
        s.e("s_lshl_b32 s3, s2, 11")
        s.e(f"s_add_u32 s3, s3, {STAMP_OFF}")
        s.e("v_lshl_add_u32 v15, v0, 2, s3")
        s.e("global_store_dword v15, v14, s[18:19]")

def q4(r): return f"v[{r}:{r+3}]"
def q2(r): return f"v[{r}:{r+1}]"
def sq(d): return f"s[{d}:{d+3}]"
def sp(d): return f"s[{d}:{d+1}]"

S_EP, S_EN = 20, 21
S_W, S_Q, S_GL, S_G, S_OWN, S_TILE = 22, 23, 24, 25, 26, 27
SRD_A, SRD_B, SRD_C = 28, 32, 36
S_OB = 40
S_T0, S_T1, S_T2, S_T3 = 44, 45, 46, 47
S_S1, S_IK, S_MSK = 48, 50, 52
S_MB = {(m, s): 54 + 2 * m + s for m in range(4) for s in range(2)}
S_CNT, S_H0, S_H1, S_XCC, S_MODE = 62, 63, 64, 65, 66
S_N, S_LB, S_XO, S_WO = 40, 41, 42, 43

h = Prog()
h.stamp()
if P.get("rt") or "probe" in P: h.e("s_memrealtime s[100:101]")
h.e("s_load_dwordx16 s[4:19], s[0:1], 0")
h.e("s_cmp_ge_u32 s2, 0x100")
h.e("s_cbranch_scc1 L_exit")
h.e("v_lshrrev_b32 v2, 6, v0")
h.e("v_and_b32 v1, 63, v0")
h.e(f"v_readfirstlane_b32 s{S_W}, v2")
h.e(f"s_lshr_b32 s{S_T0}, s2, 3")
if P["codepf"]:
    h.c("pull this kernel's code into the L2 (one 128-byte line per wave)")
    h.e("s_getpc_b64 s[20:21]")
    h.lab("L_pc")
    h.e(f"s_lshl_b32 s{S_T1}, s{S_T0}, 3")
    h.e(f"v_add_lshl_u32 v3, v2, s{S_T1}, 7")
    h.e("v_min_u32 v3, L_end-L_pc-4, v3")
    h.e("global_load_dword v15, v3, s[20:21]")
h.e(f"s_and_b32 s{S_Q}, s{S_T0}, 3")
h.e(f"s_lshr_b32 s{S_GL}, s{S_T0}, 2")
h.e(f"s_and_b32 s{S_T1}, s2, 7")
h.e(f"s_lshl3_add_u32 s{S_G}, s{S_GL}, s{S_T1}")
h.e(f"s_lshr_b32 s{S_T0}, s{S_G}, 5")
h.e(f"s_lshl_b32 s{S_TILE}, s{S_T0}, 22")
h.e(f"s_and_b32 s{S_T1}, s{S_G}, 31")
h.e(f"s_lshl_b32 s{S_T1}, s{S_T1}, 8")
h.e(f"s_add_u32 s{S_TILE}, s{S_TILE}, s{S_T1}")
h.e(f"s_cmp_lt_u32 s{S_W}, 4")
h.e("s_cbranch_scc1 L_compute")

L = Prog(); L.nst = h.nst
D = P["D"]
ntx = " nt" if P["ntx"] else ""
L.c("---------------- loader waves: wave 4+i brings rows 4i..4i+3 of every 16-row step")
L.e("v_lshrrev_b32 v4, 4, v1")
L.e("v_lshlrev_b32 v6, 1, v2")
L.e("v_xor_b32 v6, v6, v1")
L.e("v_and_b32 v6, 3, v6")
L.e("v_lshlrev_b32 v6, 4, v6")
L.e("v_bfe_u32 v5, v0, 2, 2")
L.e("v_and_b32 v2, 3, v2")
L.e("v_lshl_add_u32 v5, v2, 2, v5")
L.e("v_lshl_add_u32 v7, v4, 6, v6")
L.e("v_lshl_add_u32 v2, v5, 13, v7")
L.e(f"v_add_u32 v2, s{S_TILE}, v2")
L.e(f"s_lshl_b32 s{S_T0}, s{S_Q}, 8")
L.e(f"v_lshl_add_u32 v5, v5, 10, s{S_T0}")
L.e("v_add_u32 v3, v5, v7")
L.e(f"s_and_b32 s{S_LB}, s{S_W}, 3")
L.e(f"s_lshl_b32 s{S_LB}, s{S_LB}, 10")
L.e(f"s_mov_b32 s{S_N}, 0")
L.e(f"s_add_u32 s{S_T2}, s{S_Q}, s{S_GL}")
PERM = list(P["perm"]); assert sorted(PERM) == list(range(16))
tab = sum(v << (4 * n) for n, v in enumerate(PERM))
L.e(f"s_mov_b32 s48, {hex(tab & 0xffffffff)}"); L.e(f"s_mov_b32 s49, {hex(tab >> 32)}")
if P["lt"]:
    per = P["lt"][0]
    L.e(f"s_lshl_b32 s{S_T1}, s{S_GL}, 16"); L.e(f"s_add_u32 s{S_T0}, s{S_T0}, s{S_T1}")
    L.e(f"s_lshl_b32 s{S_T1}, s{S_LB}, 4"); L.e(f"s_add_u32 s{S_T0}, s{S_T0}, s{S_T1}")
    L.e(f"s_lshl_b32 s{S_T1}, s2, 11"); L.e(f"s_and_b32 s{S_T1}, s{S_T1}, {hex(0x3c00 & ~(per * 1024 - 1))}"); L.e(f"s_add_u32 s{S_T0}, s{S_T0}, s{S_T1}")
    L.e(f"v_bfe_u32 v13, v1, 1, {per.bit_length() - 1}" if per > 1 else "v_mov_b32 v13, 0")
    L.e(f"v_lshl_add_u32 v14, v13, 10, s{S_T0}")
    L.e("v_and_b32 v13, 1, v1"); L.e("v_lshl_add_u32 v14, v13, 7, v14")
    L.e(f"s_mov_b32 s{S_T3}, 0x3c00")
L.e("v_and_b32 v8, 7, v1")
L.e("v_lshlrev_b32 v8, 2, v8")
L.e(f"v_add_u32 v8, {LDS_RDY}, v8")
L.e("v_mov_b32 v9, 0")
L.e("ds_write_b32 v8, v9")
L.e("v_and_b32 v11, 3, v1")
L.e(f"s_lshl_b32 s{S_T0}, s{S_G}, 18")
L.e(f"v_lshl_add_u32 v12, v11, 4, s{S_T0}")
L.e(f"s_mov_b32 s{SRD_A+2}, 0x800000"); L.e(f"s_mov_b32 s{SRD_A+3}, 0x20000")
L.e(f"s_mov_b32 s{SRD_B+2}, 0x80000"); L.e(f"s_mov_b32 s{SRD_B+3}, 0x20000")
if P.get("lst"): L.stamp()
L.e("s_waitcnt lgkmcnt(0)")
if P.get("lst"): L.stamp()
L.e(f"s_mov_b64 {sp(SRD_A)}, s[4:5]")
L.e(f"s_mov_b64 {sp(SRD_B)}, s[8:9]")
L.lab("L_ld1")
L.c("slot n holds 32 rows: block n/4 of quarter (n+member+group)&3, so that every row is first fetched by few workgroups")
L.e(f"s_add_u32 s{S_T0}, s48, s{S_T2}")
L.e(f"s_and_b32 s{S_T0}, s{S_T0}, 3")
L.e(f"s_bfe_u32 s{S_T1}, s48, 0x20002")
L.e("s_lshr_b64 s[48:49], s[48:49], 4")
L.e(f"s_lshl2_add_u32 s{S_T0}, s{S_T0}, s{S_T1}")
L.e(f"s_mov_b32 m0, s{S_LB}")
L.e(f"s_lshl_b32 s{S_XO}, s{S_T0}, 18")
L.e(f"buffer_load_dwordx4 v2, {sq(SRD_A)}, s{S_XO} offen{ntx} lds")
L.e(f"s_add_u32 m0, s{S_LB}, 0x1000")
L.e(f"s_lshl_b32 s{S_WO}, s{S_T0}, 15")
L.e(f"buffer_load_dwordx4 v3, {sq(SRD_B)}, s{S_WO} offen lds")
L.e(f"s_add_u32 m0, s{S_LB}, 0x2000")
L.e(f"s_add_u32 s{S_XO}, s{S_XO}, 0x20000")
L.e(f"buffer_load_dwordx4 v2, {sq(SRD_A)}, s{S_XO} offen{ntx} lds")
L.e(f"s_add_u32 m0, s{S_LB}, 0x3000")
L.e(f"s_add_u32 s{S_WO}, s{S_WO}, 0x4000")
L.e(f"buffer_load_dwordx4 v3, {sq(SRD_B)}, s{S_WO} offen lds")
if P["lt"]:
    per, ph = P["lt"][:2]
    L.c("a few rows of w_out towards the caches; the values are not used")
    if len(P["lt"]) > 2:
        L.e(f"s_cmp_lg_u32 s{S_N}, {ph}")
        L.e("s_cbranch_scc1 L_notouch")
    elif per > 1:
        L.e(f"s_and_b32 s{S_T0}, s{S_N}, {per - 1}")
        L.e(f"s_cmp_lg_u32 s{S_T0}, {ph}")
        L.e("s_cbranch_scc1 L_notouch")
    L.e(f"global_load_dword v10, v14, s[12:13]")
    if P["stlb"]:
        L.c("first touch of the output page on the scalar path (address translation only)")
        L.e(f"s_lshl_b32 s{S_T0}, s{S_Q}, 20"); L.e(f"s_add_u32 s{S_T0}, s{S_T0}, s{S_TILE}")
        L.e(f"s_load_dword s54, s[14:15], s{S_T0}")
    L.e(f"v_add_u32 v13, {per * 1024}, v14")
    L.e(f"v_bfi_b32 v14, s{S_T3}, v13, v14")
    L.lab("L_notouch")
L.e(f"s_add_u32 s{S_LB}, s{S_LB}, 0x4000")
L.e(f"s_and_b32 s{S_LB}, s{S_LB}, 0x1ffff")
L.e(f"s_add_u32 s{S_N}, s{S_N}, 1")
L.e(f"s_cmp_lt_u32 s{S_N}, {D}")
L.e("s_cbranch_scc1 L_ld1")
L.e(f"s_waitcnt vmcnt({4 * (D - 1)})")
L.e("s_barrier")
L.e(f"s_cmp_lt_u32 s{S_N}, 16")
L.e("s_cbranch_scc1 L_ld1")
L.stamp()
L.c("w_out: 64 rows per step, starting at this member's own quarter")
L.e(f"s_mov_b64 {sp(SRD_B)}, s[12:13]")
L.e(f"s_lshl_b32 s{S_WO}, s{S_Q}, 17")
L.lab("L_ld2")
for p in range(4):
    L.e(f"s_add_u32 m0, s{S_LB}, {hex(p * 4096)}" if p else f"s_mov_b32 m0, s{S_LB}")
    L.e(f"s_add_u32 s{S_T0}, s{S_WO}, {hex(p * 0x4000)}" if p else f"s_add_u32 s{S_N}, s{S_N}, 1")
    L.e(f"buffer_load_dwordx4 v3, {sq(SRD_B)}, s{S_T0 if p else S_WO} offen lds")
L.e(f"s_add_u32 s{S_LB}, s{S_LB}, 0x4000")
L.e(f"s_add_u32 s{S_WO}, s{S_WO}, 0x10000")
L.e(f"s_and_b32 s{S_WO}, s{S_WO}, 0x7ffff")
L.e(f"s_cmp_lt_u32 s{S_N}, {16 + D}")
L.e("s_cbranch_scc0 L_ld3")
L.e(f"s_waitcnt vmcnt({4 * (D - 1)})")
L.e("s_barrier")
L.e("s_branch L_ld2")
L.lab("L_ld3")
assert P["thr"] <= 16 and D <= 6
L.e(f"s_waitcnt vmcnt({P['thr']})")
L.e(f"s_cmp_lg_u32 s{S_N}, 22")
L.e("s_cbranch_scc1 L_ld4")
if P["prime"]:
    L.c("bring the progress line into the L2 early; this value is not used")
    L.e("global_load_dword v16, v12, s[18:19] offset:256 sc1")
L.e("s_barrier")
L.lab("L_ld4")
L.e(f"s_cmp_lt_u32 s{S_N}, 24")
L.e("s_cbranch_scc1 L_ld2")
L.e(f"s_lshl_b32 s{S_T0}, s{S_W}, 2")
L.e(f"s_add_u32 s{S_T0}, s{S_T0}, {LDS_RDY}")
L.e(f"v_mov_b32 v8, s{S_T0}")
L.e("v_mov_b32 v9, 1")
L.e(f"v_mov_b32 v13, {LDS_RDY}")
L.e(f"s_mov_b32 s{S_CNT}, 0")
L.e("s_waitcnt vmcnt(0)")
L.e("ds_write_b32 v8, v9")
L.stamp()
L.e(f"s_cmp_lg_u32 s{S_W}, 4")
L.e("s_cbranch_scc1 L_fin")
L.c("wave 4: relay the smallest progress word of the group into LDS")
L.lab("L_poll")
L.e("global_load_dwordx4 v[16:19], v12, s[18:19] offset:256 sc1")
L.e(f"s_add_u32 s{S_CNT}, s{S_CNT}, 1")
L.e("s_waitcnt vmcnt(0)")
L.e("v_min3_u32 v16, v16, v17, v18")
L.e("v_min_u32 v16, v16, v19")
L.e("s_nop 1")
L.e("v_min_u32_dpp v16, v16, v16 quad_perm:[1,0,3,2] row_mask:0xf bank_mask:0xf")
L.e("s_nop 1")
L.e("v_min_u32_dpp v16, v16, v16 quad_perm:[2,3,0,1] row_mask:0xf bank_mask:0xf")
L.e("ds_write_b32 v13, v16")
L.e(f"v_readfirstlane_b32 s{S_T0}, v16")
L.e(f"s_cmp_ge_u32 s{S_CNT}, 0x100000")
L.e(f"s_cselect_b32 s{S_T0}, 4, s{S_T0}")
L.e(f"s_cmp_lt_u32 s{S_T0}, 4")
L.e("s_cbranch_scc1 L_poll")
L.lab("L_fin")
L.stamp()
L.dump_stamps()
L.lab("L_exit")
L.e("s_endpgm")

C = Prog(); C.nst = h.nst; C.is_c = True
if P["codepf"]: C.vq.append("code")
AD = list(range(2, 10))
VL16, VXW, VFL, VXR, VT0, VT1, VSW, VSR, VOUT, VRDY = 10, 11, 12, 13, 14, 15, 16, 17, 18, 19
RA, RH, RX, RBI, RS = 20, 84, 116, 148, 164
VFS = 170
RF = 172; NPOOL = (256 - RF) // 4
SRD_WS, SRD_OUT, SRD_WO = SRD_A, SRD_B, SRD_C
C.lab("L_compute")
C.c("---------------- compute waves")
T = RH
vG, vC, vEMBA, vSIGA, vT0A, vSIG, vEMB, vEP, vZ, vANN, vJ, vL4, vTCH, vBW, vBR, vCHK, vCHA = \
    T, T+1, T+2, T+3, T+4, T+5, T+6, T+7, T+8, T+12, T+14, T+15, T+16, T+17, T+18, T+26, T+28
C.e(f"s_lshl_b32 s{S_T0}, s{S_Q}, 8")
C.e(f"v_lshl_add_u32 v{vEMBA}, v1, 2, s{S_T0}")
C.e(f"s_lshr_b32 s{S_T0}, s{S_TILE}, 21")
C.e(f"v_mov_b32 v{vSIGA}, s{S_T0}")
C.c("thread 0 resets this workgroup's four progress words, then announces that (and its XCD) under this launch's tag")
C.e(f"v_lshlrev_b32 v{vT0A}, 24, v0")
for i in range(4): C.e(f"v_mov_b32 v{vZ+i}, 0")
C.e(f"s_lshl_b32 s{S_EP}, s{S_G}, 18")
C.e(f"s_lshl4_add_u32 s{S_T2}, s{S_Q}, s{S_EP}")
C.e(f"s_mov_b32 s{SRD_WS+2}, {hex(WS_BYTES)}"); C.e(f"s_mov_b32 s{SRD_WS+3}, 0x20000")
C.e(f"s_getreg_b32 s{S_XCC}, hwreg(HW_REG_XCC_ID, 0, 4)")
C.e("s_waitcnt lgkmcnt(0)")
C.e(f"s_mov_b64 {sp(SRD_WS)}, s[18:19]")
C.vm(f"buffer_store_dwordx4 {q4(vZ)}, v{vT0A}, {sq(SRD_WS)}, s{S_T2} offen offset:256 sc1", "clr")
C.vm(f"buffer_load_dword v{vEP}, v{vZ}, {sq(SRD_WS)}, s{S_EP} offen sc1", "ep")
C.vm(f"global_load_ushort v{vSIG}, v{vSIGA}, s[6:7]", "sig")
C.vm(f"global_load_dword v{vEMB}, v{vEMBA}, s[10:11]", "emb")
for t in [
    f"v_lshrrev_b32 v{vG}, 4, v1", f"v_bfe_u32 v{vC}, v1, 2, 2", f"v_lshlrev_b32 v{vC}, 6, v{vC}",
    f"v_lshl_add_u32 v{AD[0]}, v{vG}, 10, v{vC}", f"v_and_b32 v{vC}, 1, v{vG}", f"v_lshl_add_u32 v{AD[0]}, v{vC}, 5, v{AD[0]}",
    f"v_and_b32 v{vC}, 3, v1", f"v_lshl_add_u32 v{AD[6]}, v{vC}, 3, v{AD[0]}",
    f"s_lshl_b32 s{S_T0}, s{S_W}, 8", f"v_add_u32 v{AD[2]}, s{S_T0}, v{AD[6]}",
    f"s_and_b32 s{S_T3}, s{S_W}, 1", f"s_lshl_b32 s{S_T1}, s{S_T3}, 9",
    f"v_add_u32 v{AD[0]}, s{S_T1}, v{AD[6]}",
    f"v_xor_b32 v{AD[1]}, 32, v{AD[0]}", f"v_xor_b32 v{AD[3]}, 32, v{AD[2]}",
    f"v_xor_b32 v{AD[4]}, 0x100, v{AD[2]}", f"v_xor_b32 v{AD[5]}, 0x100, v{AD[3]}",
    f"s_lshl_b32 s{S_T1}, s{S_T3}, 14", f"v_add_u32 v{AD[6]}, s{S_T1}, v{AD[6]}",
    f"s_mov_b64 {sp(SRD_WO)}, s[12:13]", f"s_mov_b32 s{SRD_WO+2}, 0x80000", f"s_mov_b32 s{SRD_WO+3}, 0x20000",
    f"s_mov_b64 {sp(SRD_OUT)}, s[14:15]", f"s_mov_b32 s{SRD_OUT+2}, 0x800000", f"s_mov_b32 s{SRD_OUT+3}, 0x20000",
    f"v_lshrrev_b32 v{vL4}, 2, v1", f"v_and_b32 v{vJ}, 15, v1",
    f"s_lshl_b32 s{S_T0}, s{S_GL}, 16", f"s_lshl_b32 s{S_T1}, s{S_W}, 14", f"s_add_u32 s{S_T0}, s{S_T0}, s{S_T1}",
    f"s_lshl_b32 s{S_T1}, s{S_Q}, 8", f"s_add_u32 s{S_T0}, s{S_T0}, s{S_T1}",
    f"v_lshl_add_u32 v{vTCH}, v{vL4}, 10, s{S_T0}", f"v_lshl_add_u32 v{vTCH}, v{vC}, 6, v{vTCH}",
    f"s_lshl2_add_u32 s{S_T2}, s{S_W}, s{S_T2}", f"v_lshl_add_u32 v{VFL}, v1, 24, s{S_T2}",
    f"v_lshlrev_b32 v{vCHA}, 3, v{vC}", f"s_mov_b32 s{S_MODE}, 0",
    f"s_lshl_b32 s{S_T0}, s{S_W}, 9", f"s_add_u32 s{S_T0}, s{S_T0}, {LDS_BIAS}", f"v_lshl_add_u32 v{vBW}, v1, 3, s{S_T0}",
    f"s_lshl_b32 s{S_T1}, s{S_T3}, 8", f"s_add_u32 s{S_T0}, s{S_T0}, s{S_T1}",
    f"v_lshl_add_u32 v{vBR}, v{vG}, 4, s{S_T0}",
    f"s_mul_i32 s{S_T0}, s{S_W}, 5120", f"s_add_u32 s{S_T0}, s{S_T0}, {LDS_STG}",
    f"v_lshlrev_b32 v{VL16}, 4, v1", f"v_add_u32 v{VXW}, s{S_T0}, v{VL16}",
    f"v_mul_u32_u24 v{VSW}, 80, v{vJ}", f"v_lshl_add_u32 v{VSW}, v{vG}, 3, v{VSW}", f"v_add_u32 v{VSW}, s{S_T0}, v{VSW}",
    f"v_mul_u32_u24 v{VSR}, 80, v{vL4}", f"v_lshl_add_u32 v{VSR}, v{vC}, 4, v{VSR}", f"v_add_u32 v{VSR}, s{S_T0}, v{VSR}",
    f"s_xor_b32 s{S_T0}, s{S_W}, 1", f"s_mul_i32 s{S_T0}, s{S_T0}, 5120", f"s_add_u32 s{S_T0}, s{S_T0}, {LDS_STG}",
    f"v_add_u32 v{VXR}, s{S_T0}, v{VL16}",
    f"s_lshl_b32 s{S_T0}, s{S_Q}, 20", f"s_add_u32 s{S_T0}, s{S_T0}, s{S_TILE}", f"s_lshl_b32 s{S_T1}, s{S_W}, 6",
    f"s_add_u32 s{S_T0}, s{S_T0}, s{S_T1}", f"v_lshl_add_u32 v{VOUT}, v{vL4}, 13, s{S_T0}", f"v_lshl_add_u32 v{VOUT}, v{vC}, 4, v{VOUT}",
    f"v_mov_b32 v{VRDY}, {LDS_RDY}", f"s_sub_u32 s{S_OWN}, 0, s{S_GL}", f"s_and_b32 s{S_OWN}, s{S_OWN}, 3", f"s_mov_b32 s{S_OB}, 0",
    f"s_lshl_b32 s{S_T1}, s{S_W}, 12", f"s_add_u32 s{S_T1}, s{S_T1}, s{S_EP}", f"s_add_u32 s{S_T1}, s{S_T1}, 0x10000",
    ]: C.e(t)
for m in range(4):
    C.e(f"s_add_u32 s{S_T3}, s{S_Q}, {m}"); C.e(f"s_and_b32 s{S_T3}, s{S_T3}, 3"); C.e(f"s_lshl_b32 s{S_T3}, s{S_T3}, 14")
    C.e(f"s_add_u32 s{S_MB[m, 1]}, s{S_T3}, s{S_T1}")
    C.e(f"s_xor_b32 s{S_MB[m, 0]}, s{S_MB[m, 1]}, {hex(0x1000 * (m > 0))}")
    C.e(f"s_add_u32 s{S_MB[m, 0]}, s{S_MB[m, 0]}, 0x10000")

F = []
F.append(lambda: C.vneed("clr", "ep", "sig", "emb"))
F += [f"v_readfirstlane_b32 s{S_T3}, v{vEP}",
      f"s_mul_i32 s{S_H0}, s{S_T3}, {hex(HC0)}", f"s_add_u32 s{S_H0}, s{S_H0}, {hex(HK0)}",
      f"s_mul_i32 s{S_H1}, s{S_T3}, {hex(HC1)}", f"s_add_u32 s{S_H1}, s{S_H1}, {hex(HK1)}",
      f"s_add_u32 s{S_H0}, s{S_H0}, s{S_XCC}", f"s_add_u32 s{S_H1}, s{S_H1}, s{S_XCC}",
      f"v_mov_b32 v{vANN}, s{S_H0}", f"v_mov_b32 v{vANN+1}, s{S_H1}", f"s_lshl3_add_u32 s{S_T0}, s{S_Q}, s{S_EP}"]
F.append(lambda: C.vm(f"buffer_store_dwordx2 {q2(vANN)}, v{vT0A}, {sq(SRD_WS)}, s{S_T0} offen offset:128 sc1", "ann"))
F += [f"s_add_u32 s{S_EN}, s{S_T3}, 1"]
sg, a, b2, cs, cn = vSIG, T + 20, T + 21, T + 22, T + 23
def rnd(r): return [f"v_cvt_pk_bf16_f32 v{r}, v{r}, v{r}", f"v_lshlrev_b32 v{r}, 16, v{r}"]
F += [f"v_lshlrev_b32 v{sg}, 16, v{sg}", f"v_mul_f32 v{a}, v{sg}, v{sg}"] + rnd(a)
F += [f"v_add_f32 v{a}, 0x3e800000, v{a}"] + rnd(a)
F += [f"v_rcp_f32 v{cs}, v{a}", f"v_sqrt_f32 v{a}, v{a}"] + rnd(cs) + rnd(a)
F += [f"v_mul_f32 v{cs}, 0x3e800000, v{cs}", f"v_rcp_f32 v{a}, v{a}", f"v_lshrrev_b32 v{cs}, 16, v{cs}", f"v_mul_f32 v{b2}, 0.5, v{sg}"]
F += [f"v_mul_f32 v{b2}, v{b2}, v{a}"] + rnd(b2) + rnd(a)
F += [f"v_log_f32 v{cn}, v{sg}", f"v_mul_f32 v{a}, 0xbfb8aa3b, v{a}", f"v_mul_f32 v{cn}, 0x3f317218, v{cn}"] + rnd(cn)
F += [f"v_max_f32 v{b2}, 0x03800000, v{b2}", f"v_mul_f32 v{b2}, 0xbf317218, v{b2}", f"v_rcp_f32 v{b2}, v{b2}"]
F += [f"v_mul_f32 v{cn}, 0x3e800000, v{cn}"]
F += [f"v_readfirstlane_b32 s{S_S1}, v{a}", f"v_readfirstlane_b32 s{S_IK}, v{b2}", f"s_mov_b32 s{S_S1+1}, s{S_S1}", f"s_mov_b32 s{S_IK+1}, s{S_IK}"]
e0, e1 = T + 24, T + 25
F += [f"v_lshlrev_b32 v{e0}, 16, v{vEMB}", f"v_and_b32 v{e1}, 0xffff0000, v{vEMB}",
      f"v_mul_f32 v{e0}, v{cn}, v{e0}", f"v_mul_f32 v{e1}, v{cn}, v{e1}",
      f"v_cvt_pk_bf16_f32 v{e1}, v{e0}, v{e1}", f"v_lshlrev_b32 v{e0}, 16, v{e1}", f"v_and_b32 v{e1}, 0xffff0000, v{e1}",
      f"v_mul_f32 v{e0}, 0xbfb8aa3b, v{e0}", f"v_mul_f32 v{e1}, 0xbfb8aa3b, v{e1}"]
F.append(("lds", f"ds_write_b64 v{vBW}, {q2(e0)}", "biasw"))
for i in range(4):
    F.append(("lds", f"ds_read_b128 {q4(RBI + 4 * i)}, v{vBR} offset:{i * 64}", "bias"))
F += [f"v_and_b32 v{e0}, 1, v1", f"v_lshlrev_b32 v{e0}, 4, v{e0}", f"v_lshlrev_b32 v{cs}, v{e0}, v{cs}",
      f"v_lshrrev_b32 v{e0}, 1, v{vJ}", f"v_lshlrev_b32 v{e1}, 1, v{vG}", f"v_sub_u32 v{e0}, v{e0}, v{e1}",
      f"v_cmp_eq_u32 vcc, 0, v{e0}", f"v_mov_b32 v{RS}, 0", f"v_cndmask_b32 v{RS+2}, 0, v{cs}, vcc",
      f"v_cmp_eq_u32 vcc, 1, v{e0}", f"v_mov_b32 v{RS+1}, 0", f"v_cndmask_b32 v{RS+3}, 0, v{cs}, vcc",
      f"v_mov_b32 v{RS+4}, 0", f"v_mov_b32 v{RS+5}, 0"]
def ann_check():
    C.e(f"s_or_b64 vcc, vcc, {sp(S_MSK)}")
    if P.get("forceslow"): C.e("s_cmp_eq_u32 0, 0")
    C.e("s_cbranch_scc1 L_ann_wait")
    C.lab("L_ann_ok")
G = [lambda: (C.c("all four members have reset their progress words in this launch, and one L2 serves all of them"), C.vneed("chk", "touch")),
     f"v_cmp_ne_u32 vcc, s{S_H0}, v{vCHK}", f"v_cmp_ne_u32 {sp(S_MSK)}, s{S_H1}, v{vCHK+1}", f"v_mov_b32 v{AD[0]}, v{AD[6]}", ann_check,
     f"v_xor_b32 v{AD[2]}, 32, v{AD[0]}", f"v_xor_b32 v{AD[4]}, 0x4000, v{AD[0]}", f"v_xor_b32 v{AD[6]}, 0x4000, v{AD[2]}"]
G += [f"v_add_u32 v{AD[r+1]}, 0x10000, v{AD[r]}" for r in (0, 2, 4, 6)]
C.tail += ["L_ann_wait:", f"    s_mov_b32 s{S_CNT}, 0",
           f"    s_sub_u32 s{S_H0}, s{S_H0}, s{S_XCC}", f"    s_sub_u32 s{S_H1}, s{S_H1}, s{S_XCC}", "L_ann_l:",
           f"    buffer_load_dwordx2 {q2(vCHK)}, v{vCHA}, {sq(SRD_WS)}, s{S_EP} offen offset:128 sc1",
           f"    s_add_u32 s{S_CNT}, s{S_CNT}, 1", "    s_waitcnt vmcnt(0)",
           f"    v_subrev_u32 v{vCHK}, s{S_H0}, v{vCHK}", f"    v_subrev_u32 v{vCHK+1}, s{S_H1}, v{vCHK+1}",
           f"    v_cmp_ne_u32 vcc, v{vCHK}, v{vCHK+1}", f"    v_cmp_le_u32 {sp(S_MSK)}, 16, v{vCHK}",
           f"    s_cmp_ge_u32 s{S_CNT}, 0x100000", "    s_cbranch_scc1 L_ann_ok",
           f"    s_or_b64 vcc, vcc, {sp(S_MSK)}", "    s_cbranch_scc1 L_ann_l",
           f"    v_cmp_ne_u32 vcc, s{S_XCC}, v{vCHK}", "    s_nop 1", "    s_cmp_lg_u64 vcc, 0"]
if not P.get("forceslow"): C.tail += ["    s_cbranch_scc0 L_ann_ok"]
C.tail += ["    ; members on several XCDs: the L2-local progress stores fall out of range; L_slow stores through memory instead",
           f"    s_mov_b32 s{S_MODE}, 1", f"    v_mov_b32 v{VFS}, v{VFL}", f"    v_mov_b32 v{VFL}, 2.0", "    s_branch L_ann_ok"]

if P.get('nofill'): F = F[:13]
class Pool:
    def __init__(s, regs): s.free = list(regs); s.rel = []
    def get(s, now):
        s.free += [r for t, r in s.rel if t <= now]; s.rel = [(t, r) for t, r in s.rel if t > now]
        assert s.free, "fragment pool empty"
        return s.free.pop(0)
    def put(s, t, r): s.rel.append((t, r))

def stream(units, read, pool):
    firstuse, lastuse = {}, {}
    for i, u in enumerate(units):
        for k in u:
            firstuse.setdefault(k, i); lastuse[k] = i
    rq = [(k, i) for k in sorted(firstuse, key=lambda k: firstuse[k]) for i in range(2)]
    reg = {}
    def issue(now):
        k, i = rq.pop(0)
        if i == 0:
            reg[k] = pool.get(now); pool.put(lastuse[k] + 2, reg[k])
        read(k, i, reg[k])
    return rq, reg, issue, firstuse
def run(f):
    if isinstance(f, str): C.e(f)
    elif isinstance(f, tuple): C.lds(f[1], f[2])
    else: f()

SEQ = [(0,0),(0,1),(1,1),(1,0),(1,2),(0,2),(2,2),(2,1),(2,0),(2,3),(1,3),(0,3),(3,3),(3,2),(3,1),(3,0)]
u1 = [(("w", n, a), ("x", n, p)) for n in range(16) for a, p in SEQ]
def rd1(k, i, r):
    kind, n, t = k
    base = (n % 4) * 16384 + 8192 * i
    if kind == "w": a_, off = AD[t & 1], 4096 + 256 * (t >> 1)
    else: a_, off = AD[2 + 2 * (t >> 1) + (t & 1)], 0
    C.lds(f"ds_read_b64_tr_b16 {q2(r + 2 * i)}, v{a_} offset:{base + off}", k)
rq, reg, issue, fu = stream(u1, rd1, Pool([RF + 4 * i for i in range(NPOOL)]))
C.stamp()
C.e("s_barrier")
C.stamp()
barred = 0
def issue1(now):
    global barred
    n = rq[0][0][1]
    if n > barred:
        barred = n
        if n % 4 == 0:
            for r in AD[:6]: C.e(f"v_xor_b32 v{r}, 0x10000, v{r}")
        C.e("s_barrier")
        if n == P["wo_touch"]:
            C.c("this workgroup's share of w_out into the L2; the values are not used")
            C.vm(f"buffer_load_dword v{VT1}, v{vTCH}, {sq(SRD_WO)}, 0 offen", "touch")
        if n == P['chkn']: C.vm(f"buffer_load_dwordx2 {q2(vCHK)}, v{vCHA}, {sq(SRD_WS)}, s{S_EP} offen offset:128 sc1", "chk")
    issue(now)
for _ in range(P["lead"]): issue1(0)
for i, (ka, kb) in enumerate(u1):
    if i and i % 64 == 0 and not P["xs"]: C.stamp()
    if i in P.get("xs1", ()):
        C.stamp(); C.smem = False
    C.need(ka, kb)
    acc = RA + 4 * (4 * kb[2] + ka[2])
    C.e(f"v_mfma_f32_16x16x32_bf16 {q4(acc)}, {q4(reg[ka])}, {q4(reg[kb])}, {'0' if i < 16 else q4(acc)}")
    if rq: issue1(i)
    elif G: run(G.pop(0))
    if i % 16 == 9 and not P.get('nocap'):
        n = i // 16
        C.e(f"s_cmp_eq_u32 s{S_OWN}, {PERM[n] & 3}")
        C.e(f"s_cbranch_scc0 L_keep{n}")
        for t in range(2):
            for o in range(4): C.e(f"v_mov_b32 v{RX + 8 * (PERM[n] // 4) + 4 * t + o}, v{reg['x', n, t] + o}")
        C.lab(f"L_keep{n}")
        continue
    waited = i + 1 < len(u1) and C.need(*u1[i + 1])
    if F and i >= P["fstart"] and not waited: run(F.pop(0))
for f in G: run(f)
assert not F and not C.lq
C.stamp()

DQ = RF + 4
def hreg(p, kk): return RH + 4 * (2 * p + kk)
def flag(j):
    if not (P["exp"] & 2): C.vneed(("st", j))
    C.e(f"v_mov_b32 v{VT1}, {j + 1}")
    C.vm(f"buffer_store_dword v{VT1}, v{VFL}, {sq(SRD_WS)}, 0 offen offset:256", ("fl", j))
def check(name, v, done=False):
    rdi = f"ds_read_b128 {q4(DQ)}, v{VRDY} offset:16" if done else f"ds_read_b32 v{VT0}, v{VRDY}"
    red = [f"    v_min3_u32 v{VT0}, v{DQ}, v{DQ+1}, v{DQ+2}", f"    v_min_u32 v{VT0}, v{VT0}, v{DQ+3}", "    s_nop 0"] if done else []
    C.e(f"s_cmp_ge_u32 s{S_T1}, {v}")
    if not (P["exp"] & 1) or done: C.e(f"s_cbranch_scc0 L_spin{name}")
    C.lab(f"L_back{name}")
    if not done and not P["xs"]: C.stamp()
    C.tail += [f"L_spin{name}:", f"    s_mov_b32 s{S_CNT}, 0", f"L_spin{name}_l:",
               "    " + rdi, f"    s_add_u32 s{S_CNT}, s{S_CNT}, 1", "    s_waitcnt lgkmcnt(0)", *red,
               f"    v_readfirstlane_b32 s{S_T1}, v{VT0}", f"    s_cmp_ge_u32 s{S_CNT}, 0x800000", f"    s_cbranch_scc1 L_back{name}",
               f"    s_cmp_ge_u32 s{S_T1}, {v}", f"    s_cbranch_scc0 L_spin{name}_l", f"    s_branch L_back{name}"]

C.c("---- h = c_out * silu(c_in * acc + bias), two elements per packed op; the sibling's pixels first")
tiles = [(p0 + p, 2 * kk + a) for p0 in (2, 0) for kk in range(2) for p in range(2) for a in range(2)]
U = RF
def acc1(n): return RA + 4 * (4 * tiles[n][0] + tiles[n][1])
def ok(n): return 0 <= n < 16
def publish(n):
    p, a = tiles[n]; kk = a >> 1
    if not (P["exp"] & 8): C.vm(f"buffer_store_dwordx4 {q4(hreg(p, kk))}, v{VL16}, {sq(SRD_WS)}, s{S_MB[0, 1 - p // 2]} offen offset:{(2 * kk + (p & 1)) * 1024} sc1", ("st", n // 4))
    if p >= 2: C.lds(f"ds_write_b128 v{VXW}, {q4(hreg(p, kk))} offset:{((p & 1) * 2 + kk) * 1024}", "xw")
for n in range(-2, 17):
    E = [f"v_exp_f32 v{acc1(n+1)+o}, v{U + 4*((n+1)&3) + o}" for o in range(4)] if ok(n + 1) else []
    M = [f"v_pk_mul_f32 {q2(acc1(n-1)+o)}, {q2(acc1(n-1)+o)}, {q2(U + 4*((n-1)&3) + o)}" for o in (0, 2)] if ok(n - 1) else []
    A1 = [f"v_pk_fma_f32 {q2(U + 4*((n+2)&3) + o)}, {q2(acc1(n+2)+o)}, {sp(S_S1)}, {q2(RBI + 4*tiles[n+2][1] + o)}" for o in (0, 2)] if ok(n + 2) else []
    R = [f"v_rcp_f32 v{acc1(n)+o}, v{acc1(n)+o}" for o in range(4)] if ok(n) else []
    A2 = [f"v_pk_fma_f32 {q2(acc1(n+1)+o)}, {q2(acc1(n+1)+o)}, {sp(S_IK)}, {sp(S_IK)}" for o in (0, 2)] if ok(n + 1) else []
    V = []
    if ok(n - 1):
        p, a = tiles[n - 1]
        V = [f"v_cvt_pk_bf16_f32 v{hreg(p, a >> 1) + 2 * (a & 1) + o // 2}, v{acc1(n-1)+o}, v{acc1(n-1)+o+1}" for o in (0, 2)]
    def weave(a_, b_):
        r = []
        for i in range(max(len(a_), len(b_))): r += a_[i:i+1] + b_[i:i+1]
        return r
    if P["sil"]:
        if ok(n - 2) and n % 2 == 1: publish(n - 2)
        for t in weave(E, M + A1) + weave(R, V + A2): C.e(t)
    else:
        for t in E: C.e(t)
        if ok(n - 2) and n % 2 == 1: publish(n - 2)
        for t in M + A1 + R + A2 + V: C.e(t)
    if n == 10:
        C.need("xw")
        C.e("s_barrier")
        C.stamp()
        for p2 in range(2):
            for kk in range(2): C.lds(f"ds_read_b128 {q4(hreg(2 + p2, kk))}, v{VXR} offset:{(p2 * 2 + kk) * 1024}", "xr")
    for j in range(4):
        if P["fl"][j] is not None and P["fl"][j] == -n and n > 0:
            assert n >= 4 * j + 5
            flag(j)
publish(15)
C.e(f"s_cmp_lg_u32 s{S_MODE}, 0")
C.e("s_cbranch_scc1 L_slow")
C.lab("L_slow_done")
C.tail += ["L_slow:", f"    v_mov_b32 v{VT1}, 4", "    s_waitcnt vmcnt(0) lgkmcnt(0)",
           f"    buffer_store_dword v{VT1}, v{VFS}, {sq(SRD_WS)}, 0 offen offset:256 sc1", "    s_waitcnt vmcnt(0)", "    s_branch L_slow_done"]
C.stamp()

poolq = [RF + 4 * i for i in range(NPOOL)]
rem = poolq[9:21] + [RBI + 4 * i for i in range(4)] + [RX + 4 * i for i in range(8)]
def rq_(j, m, p): return rem[6 * j + 2 * (m - 1) + p]
units = []
for t in range(2):
    for rho in range(4):
        for p in range(2): units.append((2 * rho + t, p, RX + 8 * rho + 4 * p, ("sel", t), True, None))
def snake(jts, areg, m, far, kk, tag):
    for n, jt in enumerate(jts):
        for p in ((0, 1) if n % 2 == 0 else (1, 0)):
            units.append((jt, p, areg(p), ("o", m, far, kk, jt), False, tag(p)))
for far in (1, 0):
    for kk in range(2): snake(range(8), lambda p: hreg(2 * far + p, kk), 0, far, kk, lambda p: "xr" if far else None)
steps = [(j, m) for j in range(4) for m in (1, 2, 3)]
nbm = 2 * P["bm"]
def remote(jts, j, m): snake(jts, lambda p: rq_(j, m, p), m, 1 - j // 2, j & 1, lambda p: ("pl", j, m, p))
for j, m in steps[:12 - nbm]: remote(range(8), j, m)
for blk in range(4):
    for j, m in steps[12 - nbm:]: remote((2 * blk, 2 * blk + 1), j, m)
NU = len(units)
def rd2(k, i, r):
    _, m, far, kk, jt = k
    base = (4 * m + kk) * 8192
    a_ = AD[4 * far + 2 * (jt & 1) + (base >= 65536)]
    C.lds(f"ds_read_b64_tr_b16 {q2(r + 2 * i)}, v{a_} offset:{base % 65536 + 4096 * i + 256 * (jt >> 1)}", k)
rq, reg, issue, fu = stream([(u[3],) if u[3][0] == "o" else () for u in units], rd2, Pool(poolq[2:9]))
first_remote = min(i for i, u in enumerate(units) if isinstance(u[5], tuple))
last = {blk: max(i for i, u in enumerate(units) if u[0] // 2 == blk) for blk in range(4)}
sched = {}
def at(i, kind, x): sched.setdefault(i, []).append((kind, x))
busy = []
def claim(a_, b_):
    assert a_ >= 0 and all(b_ < x or a_ > y for x, y in busy), ("checks overlap", a_, b_, busy)
    busy.append((a_, b_))
iw = P.get("chkW", first_remote - P["pf2"] - 3)
assert iw <= first_remote - P["pf2"] - 3
claim(iw - 3, iw)
at(iw - 10, "m", lambda: C.lds(f"ds_read_b128 {q4(DQ)}, v{VRDY} offset:16", ("rdy", "W")))
at(iw - 3, "m", lambda: C.need(("rdy", "W")))
at(iw - 3, "v", f"v_min3_u32 v{VT0}, v{DQ}, v{DQ+1}, v{DQ+2}")
at(iw - 2, "v", f"v_min_u32 v{VT0}, v{VT0}, v{DQ+3}")
at(iw - 1, "v", f"v_readfirstlane_b32 s{S_T1}, v{VT0}")
at(iw, "m", lambda: check("W", 1, True))
nextld = 0
for j in range(4):
    i0 = P["chk"][j]
    if i0 is not None:
        top = max(x for x in range(j, 4) if all(P["chk"][y] is None for y in range(j + 1, x + 1)))
        claim(i0 - 7, i0)
        at(i0 - 7, "m", lambda j=j: C.lds(f"ds_read_b32 v{VT0}, v{VRDY}", ("rdy", j)))
        at(i0 - 1, "m", lambda j=j: C.need(("rdy", j)))
        at(i0 - 1, "v", f"v_readfirstlane_b32 s{S_T1}, v{VT0}")
        at(i0, "m", lambda j=j, top=top: check(j, top + 1))
        assert P["fl"][top] is not None and P["fl"][top] <= i0
        nextld = max(nextld, 2 * i0)
    for m in (1, 2, 3):
        for p in range(2):
            assert j < 2 or nextld // 2 >= 18
            assert nextld // 2 < min(i for i, u in enumerate(units) if u[5] == ("pl", j, m, p))
            if not (P["exp"] & 4): at(nextld // 2, "m", lambda j=j, m=m, p=p: C.vm(
                f"buffer_load_dwordx4 {q4(rq_(j, m, p))}, v{VL16}, {sq(SRD_WS)}, s{S_MB[m, j // 2]} offen offset:{(2 * (j & 1) + p) * 1024} sc1", ("pl", j, m, p)))
            nextld += P["ldgap"] if isinstance(P["ldgap"], int) else P["ldgap"][j]
    if P["fl"][j] is not None and P["fl"][j] >= 0: at(P["fl"][j], "m", lambda j=j: flag(j))
assert P["fl"][3] >= 16
TMP = RF
for blk in range(4):
    t0 = last[blk] + 5
    dat = RA + 16 * blk; so = (blk & 1) * 2560
    for g in range(4):
        for o in range(2): at(t0 + 2 * g + o, "v", f"v_cvt_pk_bf16_f32 v{TMP + 2*g + o}, v{dat + 4*g + 2*o}, v{dat + 4*g + 2*o + 1}")
        at(t0 + 2 * g + 2, "m", lambda g=g, so=so, blk=blk: C.lds(f"ds_write_b64 v{VSW}, {q2(TMP + 2*g)} offset:{so + 1280 * (g >> 1) + 32 * (g & 1)}", ("sw", blk)))
    for k in range(2):
        at(t0 + 5 + 4 * k, "m", lambda k=k, so=so, blk=blk, dat=dat: C.lds(f"ds_read_b128 {q4(dat + 4*k)}, v{VSR} offset:{so + 1280*k}", ("sr", blk, k)))
    def st(k, blk=blk, dat=dat):
        C.need(("sr", blk, k))
        if not (P["exp"] & 16) or blk == 3: C.vm(f"buffer_store_dwordx4 {q4(dat + 4*k)}, v{VOUT}, {sq(SRD_OUT)}, s{S_OB} offen{POL[P['outpol'][blk]]}", ("out", blk))
        if (blk, k) != (3, 1): C.e(f"s_add_u32 s{S_OB}, s{S_OB}, 0x20000")
    for k in range(2): at(t0 + 13 + 5 * k, "m", lambda k=k, st=st: st(k))
ie = nextld // 2 + 4
at(ie, "m", lambda: (C.c("member 0 moves the group's epoch on (every member read it long ago: their progress words came after it)"),
                     C.e(f"s_lshl_b32 s{S_T0}, s{S_Q}, 28")))
at(ie, "v", f"v_lshl_or_b32 v{TMP}, v0, 24, s{S_T0}")
at(ie + 1, "v", f"v_mov_b32 v{TMP+1}, s{S_EN}")
at(ie + 2, "m", lambda: C.vm(f"buffer_store_dword v{TMP+1}, v{TMP}, {sq(SRD_WS)}, s{S_EP} offen sc1", "epst"))
assert ie + 3 < last[0] + 5
def pre_wait(i):
    if i >= NU: return
    u = units[i]
    if isinstance(u[5], tuple): C.vneed(u[5])
    ks = [u[3]]
    if P["w4"] and u[3] in C.lq and i + 2 < NU: ks.append(units[i + 2][3])
    C.need(*ks, *([u[5]] if u[5] == "xr" else []))
for i, u in enumerate(units):
    jt, p, ar, bk, first, tag = u
    if i in P["xs"]:
        C.stamp(); C.smem = False
    pre_wait(i)
    br = RS + 2 - 2 * bk[1] if bk[0] == "sel" else reg[bk]
    acc = RA + 4 * (2 * jt + p)
    C.e(f"v_mfma_f32_16x16x32_bf16 {q4(acc)}, {q4(ar)}, {q4(br)}, {'0' if first else q4(acc)}")
    if rq and fu[rq[0][0]] <= i + P["pf2"] + 1: issue(i)
    items = sched.pop(i, [])
    for k, x in items:
        if k == "m": x()
    pre_wait(i + 1)
    for k, x in items:
        if k == "v": C.e(x)
C.stamp()
C.e("s_nop 5")
for i in sorted(sched):
    for k, x in sorted(sched[i], key=lambda y: y[0]):
        if k == "v": C.e(x)
        else: x()
C.stamp()
if P["stamps"] or "probe" in P:
    C.e("s_waitcnt vmcnt(0)"); C.stamp()
if "probe" in P or P.get("rt"):
    C.e("s_waitcnt lgkmcnt(0)")
    if "probe" in P:
        C.e("s_sub_u32 s96, s96, s100"); C.e("s_lshl_b32 s96, s96, 2"); C.e("s_add_u32 s96, s96, 2000")
        if "pwg" in P:
            C.e(f"s_cmp_eq_u32 s2, {P['pwg']}"); C.e("s_cselect_b32 s96, s96, 0")
    else:
        C.e(f"s_mov_b32 s96, {P['rt']}")
        if "pwg" in P:
            C.e(f"s_cmp_eq_u32 s2, {P['pwg']}"); C.e("s_cselect_b32 s96, s96, 0")
    C.lab("L_rt")
    C.e("s_memrealtime s[98:99]"); C.e("s_waitcnt lgkmcnt(0)"); C.e("s_sub_u32 s98, s98, s100")
    C.e("s_cmp_lt_u32 s98, s96"); C.e("s_cbranch_scc1 L_rt")
C.dump_stamps()
C.e("s_endpgm")

nm = P["name"]
hdr = open("standalone__edm_precond__diffusion.s.ref").read().split("; Override")[0]
out = [hdr.rstrip(),
       "; generated by gen/gen.py  " + " ".join(sys.argv[1:]),
       f"; @launch grid=(256,1,1) block=(512,1,1) lds={LDS_TOTAL}",
       '.amdgcn_target "amdgcn-amd-amdhsa--gfx950"', ".text", f".globl {nm}_kernel", f".p2align {P['align']}",
       f".type {nm}_kernel,@function", f"{nm}_kernel:"]
out += h.l + L.l + C.l + C.tail + ["L_end:"]
out += ['.section .rodata,"a"', ".p2align 6", f".amdhsa_kernel {nm}_kernel",
        "  .amdhsa_next_free_vgpr 256", "  .amdhsa_next_free_sgpr 102", "  .amdhsa_accum_offset 256",
        "  .amdhsa_group_segment_fixed_size 0", "  .amdhsa_kernarg_size 64", "  .amdhsa_user_sgpr_count 2",
        "  .amdhsa_user_sgpr_kernarg_segment_ptr 1", "  .amdhsa_system_sgpr_workgroup_id_x 1", ".end_amdhsa_kernel"]
print("\n".join(out))
```

```python
import sys, json

P = dict(align=12, ntx=0, D=4, thr=4, stamps=0, codepf=1, wo_touch=99, prime=1, lt=(2, 4, 1), exp=0, hl=256, lay=1, full=0, wrot=0, gmap=0, pre=1, cap=1, rmask=None, fp=0, nb=10, hold=None, b16a=None, na=22, wbar=1, l2=0, fillpos=18, ack=150, stlb=0, perm=tuple(range(16)), chkn=8, w4=0, sil=0, fstart=20, xs=(),
         lead=12, pf2=8,
         fl=(None, -15, None, 42),
         chk=(56, None, 116, None), ldgap=(10, 10, 6, 6), bm=3,
         outpol=("sc1", "sc1", "sc1", "sc1"),
         name="standalone__edm_precond__diffusion")
for a in sys.argv[1:]:
    k, v = a.split("=", 1)
    try: P[k] = json.loads(v)
    except Exception: P[k] = v

POL = {"plain": "", "sc1": " sc1", "nt": " nt", "ntsc1": " sc1 nt"}
WS_BYTES = 0x1000000
HC0, HK0, HC1, HK1 = 0x9E3779B1, 0x7F4A7C15, 0x85EBCA77, 0xC2B2AE3D
STAMP_OFF = 0x1100000
LDS_MISC = 131072
LDS_BIAS = LDS_MISC
LDS_RDY = LDS_MISC + 2048
LDS_STG = LDS_MISC + 4096
LDS_TOTAL = LDS_STG + 4 * 5120

LS = P['l2'] - 1
ROTS = [(0, 1, 2, 3), (0, 2, 3, 1), (0, 3, 1, 2), (0, 1, 2, 3)]
ROTTAB = sum(x << (8 * k + 2 * m) for k, r in enumerate(ROTS) for m, x in enumerate(r))
class Prog:
    def __init__(s):
        s.l = []; s.lq = []; s.vq = []; s.smem = False; s.nst = 0; s.tail = []; s.is_c = False
    def e(s, t): s.l.append("    " + t)
    def lab(s, t): s.l.append(t + ":")
    def c(s, t): s.l.append("    ; " + t)
    def lds(s, t, tag):
        s.e(t); s.lq.append(tag)
    def vm(s, t, tag):
        s.e(t); s.vq.append(tag); assert len(s.vq) <= 63
    def need(s, *tags):
        idx = max([i for i, t in enumerate(s.lq) if t in tags], default=-1)
        if idx < 0: return False
        n = min(len(s.lq) - 1 - idx, 15)
        if s.smem: n = 0; s.smem = False
        s.e(f"s_waitcnt lgkmcnt({n})"); s.lq = s.lq[len(s.lq) - n:] if n else []
        return True
    def vneed(s, *tags):
        idx = max([i for i, t in enumerate(s.vq) if t in tags], default=-1)
        if idx < 0: return False
        n = len(s.vq) - 1 - idx
        s.e(f"s_waitcnt vmcnt({n})"); s.vq = s.vq[len(s.vq) - n:] if n else []
        return True
    def stamp(s):
        if "probe" in P:
            if s.nst == P["probe"] and s.is_c:
                s.e("s_memrealtime s[96:97]"); s.smem = True
            s.nst += 1
        if P["stamps"]:
            s.e(f"{'s_memtime' if P['stamps'] == 1 else 's_memrealtime'} s[{68 + 2 * s.nst}:{69 + 2 * s.nst}]"); s.nst += 1; s.smem = True
            assert s.nst <= 17
    def dump_stamps(s):
        if not P["stamps"]: return
        s.e("s_waitcnt lgkmcnt(0) vmcnt(0)")
        s.e("v_mov_b32 v14, 0")
        for i in range(1, s.nst):
            s.e(f"s_sub_u32 s{68+2*i}, s{68+2*i}, s68")
            s.e(f"v_writelane_b32 v14, s{68+2*i}, {i}")
        s.e("s_lshl_b32 s3, s2, 11")
        s.e(f"s_add_u32 s3, s3, {STAMP_OFF}")
        s.e("v_lshl_add_u32 v15, v0, 2, s3")
        s.e("global_store_dword v15, v14, s[18:19]")

def q4(r): return f"v[{r}:{r+3}]"
def q2(r): return f"v[{r}:{r+1}]"
def sq(d): return f"s[{d}:{d+3}]"
def sp(d): return f"s[{d}:{d+1}]"

S_EP, S_EN = 20, 21
S_W, S_Q, S_GL, S_G, S_OWN, S_TILE = 22, 23, 24, 25, 26, 27
SRD_A, SRD_B, SRD_C = 28, 32, 36
S_OB = 40
S_T0, S_T1, S_T2, S_T3 = 44, 45, 46, 47
S_S1, S_IK, S_MSK = 48, 50, 52
S_MB = {(m, s): 54 + 2 * m + s for m in range(4) for s in range(2)}
S_CNT, S_H0, S_H1, S_XCC, S_MODE = 62, 63, 64, 65, 66
S_N, S_LB, S_XO, S_WO = 40, 41, 42, 43

h = Prog()
h.stamp()
if P.get("rt") or "probe" in P: h.e("s_memrealtime s[100:101]")
h.e("s_load_dwordx16 s[4:19], s[0:1], 0")
h.e("s_cmp_ge_u32 s2, 0x100")
h.e("s_cbranch_scc1 L_exit")
h.e("v_lshrrev_b32 v2, 6, v0")
h.e("v_and_b32 v1, 63, v0")
h.e(f"v_readfirstlane_b32 s{S_W}, v2")
h.e(f"s_lshr_b32 s{S_T0}, s2, 3")
if P["codepf"]:
    h.c("pull this kernel's code into the L2 (one 128-byte line per wave)")
    h.e("s_getpc_b64 s[20:21]")
    h.lab("L_pc")
    h.e(f"s_lshl_b32 s{S_T1}, s{S_T0}, 3")
    h.e(f"v_add_lshl_u32 v3, v2, s{S_T1}, 7")
    h.e("v_min_u32 v3, L_end-L_pc-4, v3")
    h.e("global_load_dword v15, v3, s[20:21]")
h.e(f"s_and_b32 s{S_Q}, s{S_T0}, 3")
h.e(f"s_lshr_b32 s{S_GL}, s{S_T0}, 2")
h.e(f"s_and_b32 s{S_T1}, s2, 7")
if P["gmap"] == 1: h.e(f"s_lshl3_add_u32 s{S_G}, s{S_T1}, s{S_GL}")
elif P["gmap"] == 2:
    h.e(f"s_and_b32 s{S_G}, s{S_GL}, 3"); h.e(f"s_lshl2_add_u32 s{S_G}, s{S_T1}, s{S_G}")
    h.e(f"s_and_b32 s{S_T1}, s{S_GL}, 4"); h.e(f"s_lshl3_add_u32 s{S_G}, s{S_T1}, s{S_G}")
else: h.e(f"s_lshl3_add_u32 s{S_G}, s{S_GL}, s{S_T1}")
h.e(f"s_lshr_b32 s{S_T0}, s{S_G}, 5")
h.e(f"s_lshl_b32 s{S_TILE}, s{S_T0}, 22")
h.e(f"s_and_b32 s{S_T1}, s{S_G}, 31")
h.e(f"s_lshl_b32 s{S_T1}, s{S_T1}, 8")
h.e(f"s_add_u32 s{S_TILE}, s{S_TILE}, s{S_T1}")
h.e(f"s_cmp_lt_u32 s{S_W}, 4")
h.e("s_cbranch_scc1 L_compute")

L = Prog(); L.nst = h.nst
D = P["D"]
ntx = " nt" if P["ntx"] else ""
L.c("---------------- loader waves: wave 4+i brings rows 4i..4i+3 of every 16-row step")
L.e("v_lshrrev_b32 v4, 4, v1")
L.e("v_lshlrev_b32 v6, 1, v2")
L.e("v_xor_b32 v6, v6, v1")
L.e("v_and_b32 v6, 3, v6")
L.e("v_lshlrev_b32 v6, 4, v6")
L.e("v_bfe_u32 v5, v0, 2, 2")
L.e("v_and_b32 v2, 3, v2")
L.e("v_lshl_add_u32 v5, v2, 2, v5")
L.e("v_lshl_add_u32 v7, v4, 6, v6")
L.e("v_lshl_add_u32 v2, v5, 13, v7")
L.e(f"v_add_u32 v2, s{S_TILE}, v2")
L.e(f"s_lshl_b32 s{S_T0}, s{S_Q}, 8")
L.e(f"v_lshl_add_u32 v5, v5, 10, s{S_T0}")
L.e("v_add_u32 v3, v5, v7")
L.e(f"s_and_b32 s{S_LB}, s{S_W}, 3")
L.e(f"s_lshl_b32 s{S_LB}, s{S_LB}, 10")
L.e(f"s_mov_b32 s{S_N}, 0")
L.e(f"s_add_u32 s{S_T2}, s{S_Q}, s{S_GL}")
PERM = list(P["perm"]); assert sorted(PERM) == list(range(16))
tab = sum(v << (4 * n) for n, v in enumerate(PERM))
if P["rmask"]: L.e(f"s_mov_b32 s50, {hex(sum(P['rmask'][v // 4] << (2 * n) for n, v in enumerate(PERM)))}")
L.e(f"s_mov_b32 s48, {hex(tab & 0xffffffff)}"); L.e(f"s_mov_b32 s49, {hex(tab >> 32)}")
if P["lt"]:
    per = P["lt"][0]
    L.e(f"s_lshl_b32 s{S_T1}, s{S_GL}, 16"); L.e(f"s_add_u32 s{S_T0}, s{S_T0}, s{S_T1}")
    L.e(f"s_lshl_b32 s{S_T1}, s{S_LB}, 4"); L.e(f"s_add_u32 s{S_T0}, s{S_T0}, s{S_T1}")
    L.e(f"s_lshl_b32 s{S_T1}, s2, 11"); L.e(f"s_and_b32 s{S_T1}, s{S_T1}, {hex(0x3c00 & ~(per * 1024 - 1))}"); L.e(f"s_add_u32 s{S_T0}, s{S_T0}, s{S_T1}")
    L.e(f"v_bfe_u32 v13, v1, 1, {per.bit_length() - 1}" if per > 1 else "v_mov_b32 v13, 0")
    L.e(f"v_lshl_add_u32 v14, v13, 10, s{S_T0}")
    L.e("v_and_b32 v13, 1, v1"); L.e("v_lshl_add_u32 v14, v13, 7, v14")
    L.e(f"s_mov_b32 s{S_T3}, 0x3c00")
L.e("v_and_b32 v8, 7, v1")
L.e("v_lshlrev_b32 v8, 2, v8")
L.e(f"v_add_u32 v8, {LDS_RDY}, v8")
L.e("v_mov_b32 v9, 0")
L.e("ds_write_b32 v8, v9")
L.e("v_and_b32 v11, 3, v1")
L.e(f"s_lshl_b32 s{S_T0}, s{S_G}, {9 if P['lay'] else 18}")
L.e(f"v_lshl_add_u32 v12, v11, 4, s{S_T0}")
L.e(f"s_mov_b32 s{SRD_A+2}, 0x800000"); L.e(f"s_mov_b32 s{SRD_A+3}, 0x20000")
L.e(f"s_mov_b32 s{SRD_B+2}, 0x80000"); L.e(f"s_mov_b32 s{SRD_B+3}, 0x20000")
if P.get("lst"): L.stamp()
L.e("s_waitcnt lgkmcnt(0)")
if P.get("lst"): L.stamp()
L.e(f"s_mov_b64 {sp(SRD_A)}, s[4:5]")
L.e(f"s_mov_b64 {sp(SRD_B)}, s[8:9]")
L.lab("L_ld1")
L.c("slot n holds 32 rows: block n/4 of quarter (n+member+group)&3, so that every row is first fetched by few workgroups")
if P["rmask"]:
    L.e(f"s_and_b32 s{S_T0}, s50, s{S_T2}")
    L.e("s_lshr_b32 s50, s50, 2")
    L.e(f"s_xor_b32 s{S_T0}, s{S_T0}, s48")
else: L.e(f"s_add_u32 s{S_T0}, s48, s{S_T2}")
L.e(f"s_and_b32 s{S_T0}, s{S_T0}, 3")
L.e(f"s_bfe_u32 s{S_T1}, s48, 0x20002")
L.e("s_lshr_b64 s[48:49], s[48:49], 4")
L.e(f"s_lshl2_add_u32 s{S_T0}, s{S_T0}, s{S_T1}")
L.e(f"s_mov_b32 m0, s{S_LB}")
L.e(f"s_lshl_b32 s{S_XO}, s{S_T0}, 18")
L.e(f"buffer_load_dwordx4 v2, {sq(SRD_A)}, s{S_XO} offen{ntx} lds")
L.e(f"s_add_u32 m0, s{S_LB}, 0x1000")
L.e(f"s_lshl_b32 s{S_WO}, s{S_T0}, 15")
L.e(f"buffer_load_dwordx4 v3, {sq(SRD_B)}, s{S_WO} offen lds")
L.e(f"s_add_u32 m0, s{S_LB}, 0x2000")
L.e(f"s_add_u32 s{S_XO}, s{S_XO}, 0x20000")
L.e(f"buffer_load_dwordx4 v2, {sq(SRD_A)}, s{S_XO} offen{ntx} lds")
L.e(f"s_add_u32 m0, s{S_LB}, 0x3000")
L.e(f"s_add_u32 s{S_WO}, s{S_WO}, 0x4000")
if not P.get("halfw"): L.e(f"buffer_load_dwordx4 v3, {sq(SRD_B)}, s{S_WO} offen lds")
if P["lt"]:
    per, ph = P["lt"][:2]
    L.c("a few rows of w_out towards the caches; the values are not used")
    if len(P["lt"]) > 2:
        L.e(f"s_cmp_lg_u32 s{S_N}, {ph}")
        L.e("s_cbranch_scc1 L_notouch")
    elif per > 1:
        L.e(f"s_and_b32 s{S_T0}, s{S_N}, {per - 1}")
        L.e(f"s_cmp_lg_u32 s{S_T0}, {ph}")
        L.e("s_cbranch_scc1 L_notouch")
    L.e(f"global_load_dword v10, v14, s[12:13]")
    if P["stlb"]:
        L.c("first touch of the output page on the scalar path (address translation only)")
        L.e(f"s_lshl_b32 s{S_T0}, s{S_Q}, 20"); L.e(f"s_add_u32 s{S_T0}, s{S_T0}, s{S_TILE}")
        L.e(f"s_load_dword s54, s[14:15], s{S_T0}")
    L.e(f"v_add_u32 v13, {per * 1024}, v14")
    L.e(f"v_bfi_b32 v14, s{S_T3}, v13, v14")
    L.lab("L_notouch")
L.e(f"s_add_u32 s{S_LB}, s{S_LB}, 0x4000")
L.e(f"s_and_b32 s{S_LB}, s{S_LB}, 0x1ffff")
L.e(f"s_add_u32 s{S_N}, s{S_N}, 1")
L.e(f"s_cmp_lt_u32 s{S_N}, {D}")
L.e("s_cbranch_scc1 L_ld1")
L.e(f"s_waitcnt vmcnt({(3 if P.get('halfw') else 4) * (D - 1)})")
L.e("s_barrier")
L.e(f"s_cmp_lt_u32 s{S_N}, 16")
L.e("s_cbranch_scc1 L_ld1")
L.stamp()
if P["l2"]:
    L.e(f"s_lshl_b32 s{S_T0}, s{S_W}, 4"); L.e(f"s_lshl_b32 s{S_T1}, s{S_Q}, 7"); L.e(f"s_add_u32 s{S_T0}, s{S_T0}, s{S_T1}")
    L.e("v_lshrrev_b32 v24, 2, v1"); L.e(f"v_add_lshl_u32 v24, v24, s{S_T0}, 13"); L.e("v_lshl_add_u32 v24, v11, 6, v24"); L.e(f"v_add_u32 v24, s{S_TILE}, v24")
L.c("w_out: 64 rows per step, starting at this member's own quarter")
L.e(f"s_mov_b64 {sp(SRD_B)}, s[12:13]")
L.e(f"s_lshl_b32 s{S_WO}, s{S_Q}, 17")
if P["wrot"]:
    assert not P["fp"] and P.get("n16", 22) == 22 and D <= 5
    L.c("the order of the other members, and of the two steps of a member, differs between groups: few fetch a row first")
    L.e(f"s_lshr_b32 s{S_T1}, s{S_GL}, 1")
    L.e(f"s_lshl_b32 s{S_T1}, s{S_T1}, 3")
    L.e(f"s_lshr_b32 s51, {hex(ROTTAB)}, s{S_T1}")
    L.e(f"s_and_b32 s52, s{S_GL}, {1 if P['wrot'] == 1 else 0}")
    L.e(f"s_mov_b32 s53, s{S_LB}")
L.lab("L_ld2")
if P["wrot"]:
    L.e(f"s_xor_b32 s{S_T0}, s{S_N}, s52")
    L.e(f"s_and_b32 s{S_T0}, s{S_T0}, 7")
    L.e(f"s_lshl_b32 s{S_LB}, s{S_T0}, 14")
    L.e(f"s_add_u32 s{S_LB}, s{S_LB}, s53")
    L.e(f"s_and_b32 s{S_T1}, s{S_T0}, 6")
    L.e(f"s_lshr_b32 s{S_T1}, s51, s{S_T1}")
    L.e(f"s_add_u32 s{S_T1}, s{S_T1}, s{S_Q}")
    L.e(f"s_and_b32 s{S_T1}, s{S_T1}, 3")
    L.e(f"s_and_b32 s{S_T0}, s{S_T0}, 1")
    L.e(f"s_lshl1_add_u32 s{S_T0}, s{S_T1}, s{S_T0}")
    L.e(f"s_lshl_b32 s{S_WO}, s{S_T0}, 16")
if P["l2"] and P["fillpos"]:
    L.e(f"s_cmp_lg_u32 s{S_N}, {P['fillpos']}")
    L.e("s_cbranch_scc1 L_nofill")
    L.c("make the L2-local hand-off lines valid ahead of their readers; the values are not used")
    L.e("global_load_dword v10, v24, s[14:15]")
    L.lab("L_nofill")
for p in range(4):
    L.e(f"s_add_u32 m0, s{S_LB}, {hex(p * 4096)}" if p else f"s_mov_b32 m0, s{S_LB}")
    L.e(f"s_add_u32 s{S_T0}, s{S_WO}, {hex(p * 0x4000)}" if p else f"s_add_u32 s{S_N}, s{S_N}, 1")
    L.e(f"buffer_load_dwordx4 v3, {sq(SRD_B)}, s{S_T0 if p else S_WO} offen lds")
if not P["wrot"]:
    L.e(f"s_add_u32 s{S_LB}, s{S_LB}, 0x4000")
    L.e(f"s_add_u32 s{S_WO}, s{S_WO}, 0x10000")
    L.e(f"s_and_b32 s{S_WO}, s{S_WO}, 0x7ffff")
L.e(f"s_cmp_lt_u32 s{S_N}, {16 + D + P['cap']}")
L.e("s_cbranch_scc0 L_ld3")
L.e(f"s_waitcnt vmcnt({4 * (D - 1)})")
L.e("s_barrier")
L.e("s_branch L_ld2")
if P["fp"]:
    L.lab("L_ld3")
    L.e(f"s_waitcnt vmcnt({P['thr']})")
    L.e(f"s_cmp_lt_u32 s{S_N}, 22")
    L.e("s_cbranch_scc1 L_ld2")
    L.e(f"s_cmp_gt_u32 s{S_N}, 22")
    L.e("s_cbranch_scc1 L_ld4")
    if P["prime"]:
        L.c("bring the progress line into the L2 early; this value is not used")
        L.e("global_load_dword v16, v12, s[18:19] offset:256 sc1")
    L.e(f"s_lshl_b32 s{S_T0}, s{S_W}, 2")
    L.e(f"s_add_u32 s{S_T0}, s{S_T0}, {LDS_RDY}")
    L.e(f"v_mov_b32 v8, s{S_T0}")
    L.e(f"s_cmp_lt_u32 s{S_W}, 6")
    L.e(f"s_cselect_b32 s{S_T0}, 2, 1")
    L.e(f"v_mov_b32 v9, s{S_T0}")
    L.e(f"v_mov_b32 v13, {LDS_RDY}")
    L.e(f"s_mov_b32 s{S_CNT}, 0")
    L.e("s_waitcnt vmcnt(0)")
    L.e("ds_write_b32 v8, v9")
    L.e("s_barrier")
    L.e("s_cbranch_scc1 L_ld5")
    L.c("waves 6 and 7 bring the last two steps: their own pieces, then those of waves 4 and 5")
    L.lab("L_ld4")
    L.e(f"s_cmp_lg_u32 s{S_N}, 24")
    L.e("s_cbranch_scc1 L_ld4b")
    L.e("v_subrev_u32 v3, 0x2000, v3")
    L.e(f"s_sub_u32 s{S_LB}, s{S_LB}, 0x8800")
    L.e(f"s_sub_u32 s{S_WO}, s{S_WO}, 0x20000")
    L.e(f"s_and_b32 s{S_WO}, s{S_WO}, 0x7ffff")
    L.lab("L_ld4b")
    L.e(f"s_cmp_lt_u32 s{S_N}, 26")
    L.e("s_cbranch_scc1 L_ld2")
    L.e("v_mov_b32 v9, 2")
    L.e("s_waitcnt vmcnt(0)")
    L.e("ds_write_b32 v8, v9")
    L.lab("L_ld5")
    L.stamp()
elif P["b16a"] is None:
    L.lab("L_ld3")
    assert P["thr"] <= 16 and D <= 6
    L.e(f"s_waitcnt vmcnt({P['thr']})")
    assert P.get("n16", 22) <= 22 + P["cap"]
    L.e(f"s_cmp_lg_u32 s{S_N}, {P.get('n16', 22)}")
    L.e("s_cbranch_scc1 L_ld4")
    if P["prime"]:
        L.c("bring the progress line into the L2 early; this value is not used")
        L.e("global_load_dword v16, v12, s[18:19] offset:256 sc1")
    L.e("s_barrier")
    L.lab("L_ld4")
    L.e(f"s_cmp_lt_u32 s{S_N}, 24")
    L.e("s_cbranch_scc1 L_ld2")
    L.e(f"s_lshl_b32 s{S_T0}, s{S_W}, 2")
    L.e(f"s_add_u32 s{S_T0}, s{S_T0}, {LDS_RDY}")
    L.e(f"v_mov_b32 v8, s{S_T0}")
    L.e("v_mov_b32 v9, 1")
    L.e(f"v_mov_b32 v13, {LDS_RDY}")
    L.e(f"s_mov_b32 s{S_CNT}, 0")
    L.e("s_waitcnt vmcnt(0)")
    L.e("ds_write_b32 v8, v9")
    L.stamp()
else:
    L.lab("L_ld3")
    assert 16 + D <= P["na"] <= 22
    L.e(f"s_cmp_lg_u32 s{S_N}, {P['na']}")
    L.e("s_cbranch_scc1 L_ld4")
    L.e("s_barrier")
    L.lab("L_ld4")
    L.e(f"s_waitcnt vmcnt({P['thr']})")
    L.e(f"s_cmp_lt_u32 s{S_N}, 24")
    L.e("s_cbranch_scc1 L_ld2")
    if P["prime"]:
        L.c("bring the progress line into the L2 early; this value is not used")
        L.e("global_load_dword v16, v12, s[18:19] offset:256 sc1")
    L.e(f"v_mov_b32 v13, {LDS_RDY}")
    L.e(f"s_mov_b32 s{S_CNT}, 0")
    if P["wbar"]:
        L.e(f"s_waitcnt vmcnt({int(bool(P['prime']))})")
        L.stamp()
        L.e("s_barrier")
    else:
        L.e(f"s_lshl_b32 s{S_T0}, s{S_W}, 2")
        L.e(f"s_add_u32 s{S_T0}, s{S_T0}, {LDS_RDY}")
        L.e(f"v_mov_b32 v8, s{S_T0}")
        L.e("v_mov_b32 v9, 1")
        L.e("s_barrier")
        L.e("s_waitcnt vmcnt(0)")
        L.e("ds_write_b32 v8, v9")
        L.stamp()
L.e(f"s_cmp_lg_u32 s{S_W}, 4")
L.e("s_cbranch_scc1 L_fin")
L.c("wave 4: relay the smallest progress word of the group into LDS")
L.lab("L_poll")
L.e("global_load_dwordx4 v[16:19], v12, s[18:19] offset:256 sc1")
L.e(f"s_add_u32 s{S_CNT}, s{S_CNT}, 1")
L.e("s_waitcnt vmcnt(0)")
L.e("v_min3_u32 v16, v16, v17, v18")
L.e("v_min_u32 v16, v16, v19")
L.e("s_nop 1")
L.e("v_min_u32_dpp v16, v16, v16 quad_perm:[1,0,3,2] row_mask:0xf bank_mask:0xf")
L.e("s_nop 1")
L.e("v_min_u32_dpp v16, v16, v16 quad_perm:[2,3,0,1] row_mask:0xf bank_mask:0xf")
L.e("ds_write_b32 v13, v16")
L.e(f"v_readfirstlane_b32 s{S_T0}, v16")
L.e(f"s_cmp_ge_u32 s{S_CNT}, 0x100000")
L.e(f"s_cselect_b32 s{S_T0}, 5, s{S_T0}")
L.e(f"s_cmp_lt_u32 s{S_T0}, {4 + bool(P['l2'])}")
L.e("s_cbranch_scc1 L_poll")
L.lab("L_fin")
L.stamp()
L.dump_stamps()
L.lab("L_exit")
L.e("s_endpgm")

C = Prog(); C.nst = h.nst; C.is_c = True
if P["codepf"]: C.vq.append("code")
AD = list(range(2, 10))
VL16, VXW, VFL, VXR, VT0, VT1, VSW, VSR, VOUT, VRDY = 10, 11, 12, 13, 14, 15, 16, 17, 18, 19
RA, RH, RX, RBI, RS = 20, 84, 116, 148, 164
VFS, VM = 170, 171
RF = 172; NPOOL = (256 - RF) // 4
SRD_WS, SRD_OUT, SRD_WO = SRD_A, SRD_B, SRD_C
C.lab("L_compute")
C.c("---------------- compute waves")
T = RH
vG, vC, vEMBA, vSIGA, vT0A, vSIG, vEMB, vEP, vZ, vANN, vJ, vL4, vTCH, vBW, vBR, vCHK, vCHA = \
    T, T+1, T+2, T+3, T+4, T+5, T+6, T+7, T+8, T+12, T+14, T+15, T+16, T+17, T+18, T+26, T+28
C.e(f"s_lshl_b32 s{S_T0}, s{S_Q}, 8")
C.e(f"v_lshl_add_u32 v{vEMBA}, v1, 2, s{S_T0}")
C.e(f"s_lshr_b32 s{S_T0}, s{S_TILE}, 21")
C.e(f"v_mov_b32 v{vSIGA}, s{S_T0}")
C.c("thread 0 resets this workgroup's four progress words, then announces that (and its XCD) under this launch's tag")
C.e(f"v_lshlrev_b32 v{vT0A}, 24, v0")
for i in range(4): C.e(f"v_mov_b32 v{vZ+i}, 0")
C.e(f"s_lshl_b32 s{S_EP}, s{S_G}, {9 if P['lay'] else 18}")
C.e(f"s_lshl4_add_u32 s{S_T2}, s{S_Q}, s{S_EP}")
C.e(f"s_mov_b32 s{SRD_WS+2}, {hex(WS_BYTES)}"); C.e(f"s_mov_b32 s{SRD_WS+3}, 0x20000")
C.e(f"s_getreg_b32 s{S_XCC}, hwreg(HW_REG_XCC_ID, 0, 4)")
C.e("s_waitcnt lgkmcnt(0)")
C.vm(f"global_load_ushort v{vSIG}, v{vSIGA}, s[6:7]", "sig")
C.vm(f"global_load_dword v{vEMB}, v{vEMBA}, s[10:11]", "emb")
C.e(f"s_mov_b64 {sp(SRD_WS)}, s[18:19]")
C.vm(f"buffer_load_dword v{vEP}, v{vZ}, {sq(SRD_WS)}, s{S_EP} offen sc1", "ep")
C.vm(f"buffer_store_dwordx4 {q4(vZ)}, v{vT0A}, {sq(SRD_WS)}, s{S_T2} offen offset:256 sc1", "clr")
for t in [
    f"v_lshrrev_b32 v{vG}, 4, v1", f"v_bfe_u32 v{vC}, v1, 2, 2", f"v_lshlrev_b32 v{vC}, 6, v{vC}",
    f"v_lshl_add_u32 v{AD[0]}, v{vG}, 10, v{vC}", f"v_and_b32 v{vC}, 1, v{vG}", f"v_lshl_add_u32 v{AD[0]}, v{vC}, 5, v{AD[0]}",
    f"v_and_b32 v{vC}, 3, v1", f"v_lshl_add_u32 v{AD[6]}, v{vC}, 3, v{AD[0]}",
    f"s_lshl_b32 s{S_T0}, s{S_W}, 8", f"v_add_u32 v{AD[2]}, s{S_T0}, v{AD[6]}",
    f"s_and_b32 s{S_T3}, s{S_W}, 1", f"s_lshl_b32 s{S_T1}, s{S_T3}, 9",
    f"v_add_u32 v{AD[0]}, s{S_T1}, v{AD[6]}",
    f"v_xor_b32 v{AD[1]}, 32, v{AD[0]}", f"v_xor_b32 v{AD[3]}, 32, v{AD[2]}",
    f"v_xor_b32 v{AD[4]}, 0x100, v{AD[2]}", f"v_xor_b32 v{AD[5]}, 0x100, v{AD[3]}",
    f"s_lshl_b32 s{S_T1}, s{S_T3}, 14", f"v_add_u32 v{AD[6]}, s{S_T1}, v{AD[6]}",
    f"s_mov_b64 {sp(SRD_WO)}, s[12:13]", f"s_mov_b32 s{SRD_WO+2}, 0x80000", f"s_mov_b32 s{SRD_WO+3}, 0x20000",
    f"s_mov_b64 {sp(SRD_OUT)}, s[14:15]", f"s_mov_b32 s{SRD_OUT+2}, 0x800000", f"s_mov_b32 s{SRD_OUT+3}, 0x20000",
    f"v_lshrrev_b32 v{vL4}, 2, v1", f"v_and_b32 v{vJ}, 15, v1",
    f"s_lshl_b32 s{S_T0}, s{S_GL}, 16", f"s_lshl_b32 s{S_T1}, s{S_W}, 14", f"s_add_u32 s{S_T0}, s{S_T0}, s{S_T1}",
    f"s_lshl_b32 s{S_T1}, s{S_Q}, 8", f"s_add_u32 s{S_T0}, s{S_T0}, s{S_T1}",
    f"v_lshl_add_u32 v{vTCH}, v{vL4}, 10, s{S_T0}", f"v_lshl_add_u32 v{vTCH}, v{vC}, 6, v{vTCH}",
    f"s_lshl2_add_u32 s{S_T2}, s{S_W}, s{S_T2}", f"v_lshl_add_u32 v{VFL}, v1, 24, s{S_T2}",
    f"v_lshlrev_b32 v{vCHA}, 3, v{vC}", f"s_mov_b32 s{S_MODE}, 0",
    f"s_lshl_b32 s{S_T0}, s{S_W}, 9", f"s_add_u32 s{S_T0}, s{S_T0}, {LDS_BIAS}", f"v_lshl_add_u32 v{vBW}, v1, 3, s{S_T0}",
    f"s_lshl_b32 s{S_T1}, s{S_T3}, 8", f"s_add_u32 s{S_T0}, s{S_T0}, s{S_T1}",
    f"v_lshl_add_u32 v{vBR}, v{vG}, 4, s{S_T0}",
    f"s_mul_i32 s{S_T0}, s{S_W}, 5120", f"s_add_u32 s{S_T0}, s{S_T0}, {LDS_STG}",
    f"v_lshlrev_b32 v{VL16}, 4, v1", f"v_add_u32 v{VXW}, s{S_T0}, v{VL16}",
    f"v_mul_u32_u24 v{VSW}, 80, v{vJ}", f"v_lshl_add_u32 v{VSW}, v{vG}, 3, v{VSW}", f"v_add_u32 v{VSW}, s{S_T0}, v{VSW}",
    f"v_mul_u32_u24 v{VSR}, 80, v{vL4}", f"v_lshl_add_u32 v{VSR}, v{vC}, 4, v{VSR}", f"v_add_u32 v{VSR}, s{S_T0}, v{VSR}",
    f"s_xor_b32 s{S_T0}, s{S_W}, 1", f"s_mul_i32 s{S_T0}, s{S_T0}, 5120", f"s_add_u32 s{S_T0}, s{S_T0}, {LDS_STG}",
    f"v_add_u32 v{VXR}, s{S_T0}, v{VL16}",
    f"s_lshl_b32 s{S_T0}, s{S_Q}, 20", f"s_add_u32 s{S_T0}, s{S_T0}, s{S_TILE}", f"s_lshl_b32 s{S_T1}, s{S_W}, 6",
    f"s_add_u32 s{S_T0}, s{S_T0}, s{S_T1}", f"v_lshl_add_u32 v{VOUT}, v{vL4}, 13, s{S_T0}", f"v_lshl_add_u32 v{VOUT}, v{vC}, 4, v{VOUT}",
    f"v_mov_b32 v{VRDY}, {LDS_RDY}", f"s_sub_u32 s{S_OWN}, 0, s{S_GL}", f"s_and_b32 s{S_OWN}, s{S_OWN}, 3", f"s_mov_b32 s{S_OB}, 0",
    f"s_lshl_b32 s{S_T1}, s{S_W}, 12", f"s_add_u32 s{S_T1}, s{S_T1}, s{S_EP}", f"s_add_u32 s{S_T1}, s{S_T1}, 0x10000",
    ]: C.e(t)
if P["cap"]:
    C.e(f"s_lshl_b32 s{S_T0}, s{S_OWN}, 14"); C.e(f"v_add_u32 v{AD[7]}, s{S_T0}, v{AD[2]}"); C.e(f"v_add_u32 v{VT0}, s{S_T0}, v{AD[3]}")
if P["hl"] < 1024:
    sh = P["hl"].bit_length() - 1 - 4
    C.e(f"v_lshrrev_b32 v{VT1-1 if False else vANN}, {sh}, v1"); C.e(f"v_and_b32 v{VL16}, {(1 << sh) - 1}, v1"); C.e(f"v_lshlrev_b32 v{VL16}, 4, v{VL16}")
    C.e(f"v_lshl_add_u32 v{VL16}, v{vANN}, {sh + 6 + (P['lay'] == 1)}, v{VL16}")
if P["lay"] == 1:
    C.e(f"s_lshl4_add_u32 s{S_T1}, s{S_G}, s{S_W}"); C.e(f"s_lshl_b32 s{S_T1}, s{S_T1}, 13"); C.e(f"s_add_u32 s{S_T1}, s{S_T1}, 0x8000")
if P["lay"] == 2:
    C.e(f"s_lshl4_add_u32 s{S_T1}, s{S_G}, s{S_W}"); C.e(f"s_lshl_b32 s{S_T1}, s{S_T1}, 12"); C.e(f"s_add_u32 s{S_T1}, s{S_T1}, 0x8000")
if P["full"]:
    for t in [f"s_lshl_b32 s{S_T0}, s{S_Q}, 20", f"s_add_u32 s{S_T0}, s{S_T0}, s{S_TILE}", f"s_lshl_b32 s{S_CNT}, s{S_W}, 16",
              f"s_add_u32 s{S_T0}, s{S_T0}, s{S_CNT}", f"v_lshl_add_u32 v{VOUT}, v{vG}, 13, s{S_T0}", f"v_lshl_add_u32 v{VOUT}, v{vJ}, 4, v{VOUT}",
              f"s_lshl_b32 s{S_T0}, s{S_W}, 6", f"s_add_u32 s{S_T0}, s{S_T0}, {LDS_STG}",
              f"v_mul_u32_u24 v{VSW}, 0x110, v{vJ}", f"v_lshl_add_u32 v{VSW}, v{vG}, 3, v{VSW}", f"v_add_u32 v{VSW}, s{S_T0}, v{VSW}",
              f"s_mul_i32 s{S_T0}, s{S_W}, {8 * 272}", f"s_add_u32 s{S_T0}, s{S_T0}, {LDS_STG}",
              f"v_mul_u32_u24 v{VSR}, 0x110, v{vG}", f"v_lshl_add_u32 v{VSR}, v{vJ}, 4, v{VSR}", f"v_add_u32 v{VSR}, s{S_T0}, v{VSR}"]: C.e(t)
OWNR = {0: S_Q, 1: 41, 2: 42, 3: 43}
if P["rmask"]:
    C.e(f"s_add_u32 s{S_T3}, s{S_Q}, s{S_GL}")
    for k in set(P["rmask"]) - {0}:
        C.e(f"s_and_b32 s{OWNR[k]}, s{S_T3}, {k}"); C.e(f"s_xor_b32 s{OWNR[k]}, s{OWNR[k]}, s{S_Q}")
if P["wrot"]:
    C.e(f"s_lshr_b32 s{S_CNT}, s{S_GL}, 1"); C.e(f"s_lshl_b32 s{S_CNT}, s{S_CNT}, 3"); C.e(f"s_lshr_b32 s{S_CNT}, {hex(ROTTAB)}, s{S_CNT}")
for m in range(4):
    if P["wrot"]:
        C.e(f"s_add_u32 s{S_T3}, s{S_Q}, s{S_CNT}"); C.e(f"s_lshr_b32 s{S_CNT}, s{S_CNT}, 2")
    else: C.e(f"s_add_u32 s{S_T3}, s{S_Q}, {m}")
    C.e(f"s_and_b32 s{S_T3}, s{S_T3}, 3"); C.e(f"s_lshl_b32 s{S_T3}, s{S_T3}, {14 + (P['lay'] == 1)}")
    C.e(f"s_add_u32 s{S_MB[m, 1]}, s{S_T3}, s{S_T1}")
    C.e(f"s_xor_b32 s{S_MB[m, 0]}, s{S_MB[m, 1]}, {hex((0x2000 if P['lay'] == 1 else 0x1000) * (m > 0))}")
    C.e(f"s_add_u32 s{S_MB[m, 0]}, s{S_MB[m, 0]}, {hex((0x10000, 4 * P['hl'], 0x400000)[P['lay']])}")
    if P["l2"]:
        C.e(f"s_lshl_b32 s{S_T3}, s{S_T3}, 6"); C.e(f"s_xor_b32 s{S_T0}, s{S_W}, {int(m > 0 and LS == 0)}"); C.e(f"s_add_u32 s{S_T0}, s{S_T0}, 4")
        C.e(f"s_lshl_b32 s{S_T0}, s{S_T0}, 17"); C.e(f"s_add_u32 s{S_MB[m, LS]}, s{S_T3}, s{S_T0}")

if P["l2"]:
    for t in [f"v_lshrrev_b32 v{VM}, 3, v1", f"v_lshlrev_b32 v{VM}, 13, v{VM}", f"v_and_b32 v{VFS}, 7, v1",
              f"v_lshl_add_u32 v{VM}, v{VFS}, 4, v{VM}", f"v_add_u32 v{VM}, s{S_TILE}, v{VM}", f"v_mov_b32 v{VFS}, 2.0"]: C.e(t)
F = []
F.append(lambda: C.vneed("clr", "ep", "sig", "emb"))
F += [f"v_readfirstlane_b32 s{S_T3}, v{vEP}",
      f"s_mul_i32 s{S_H0}, s{S_T3}, {hex(HC0)}", f"s_add_u32 s{S_H0}, s{S_H0}, {hex(HK0)}",
      f"s_mul_i32 s{S_H1}, s{S_T3}, {hex(HC1)}", f"s_add_u32 s{S_H1}, s{S_H1}, {hex(HK1)}",
      f"s_add_u32 s{S_H0}, s{S_H0}, s{S_XCC}", f"s_add_u32 s{S_H1}, s{S_H1}, s{S_XCC}",
      f"v_mov_b32 v{vANN}, s{S_H0}", f"v_mov_b32 v{vANN+1}, s{S_H1}", f"s_lshl3_add_u32 s{S_T0}, s{S_Q}, s{S_EP}"]
F.append(lambda: C.vm(f"buffer_store_dwordx2 {q2(vANN)}, v{vT0A}, {sq(SRD_WS)}, s{S_T0} offen offset:128 sc1", "ann"))
F += [f"s_add_u32 s{S_EN}, s{S_T3}, 1"]
sg, a, b2, cs, cn = vSIG, T + 20, T + 21, T + 22, T + 23
def rnd(r): return [f"v_cvt_pk_bf16_f32 v{r}, v{r}, v{r}", f"v_lshlrev_b32 v{r}, 16, v{r}"]
F += [f"v_lshlrev_b32 v{sg}, 16, v{sg}", f"v_mul_f32 v{a}, v{sg}, v{sg}"] + rnd(a)
F += [f"v_add_f32 v{a}, 0x3e800000, v{a}"] + rnd(a)
F += [f"v_rcp_f32 v{cs}, v{a}", f"v_sqrt_f32 v{a}, v{a}"] + rnd(cs) + rnd(a)
F += [f"v_mul_f32 v{cs}, 0x3e800000, v{cs}", f"v_rcp_f32 v{a}, v{a}", f"v_lshrrev_b32 v{cs}, 16, v{cs}", f"v_mul_f32 v{b2}, 0.5, v{sg}"]
F += [f"v_mul_f32 v{b2}, v{b2}, v{a}"] + rnd(b2) + rnd(a)
F += [f"v_log_f32 v{cn}, v{sg}", f"v_mul_f32 v{a}, 0xbfb8aa3b, v{a}", f"v_mul_f32 v{cn}, 0x3f317218, v{cn}"] + rnd(cn)
F += [f"v_max_f32 v{b2}, 0x03800000, v{b2}", f"v_mul_f32 v{b2}, 0xbf317218, v{b2}", f"v_rcp_f32 v{b2}, v{b2}"]
F += [f"v_mul_f32 v{cn}, 0x3e800000, v{cn}"]
F += [f"v_readfirstlane_b32 s{S_S1}, v{a}", f"v_readfirstlane_b32 s{S_IK}, v{b2}", f"s_mov_b32 s{S_S1+1}, s{S_S1}", f"s_mov_b32 s{S_IK+1}, s{S_IK}"]
e0, e1 = T + 24, T + 25
F += [f"v_lshlrev_b32 v{e0}, 16, v{vEMB}", f"v_and_b32 v{e1}, 0xffff0000, v{vEMB}",
      f"v_mul_f32 v{e0}, v{cn}, v{e0}", f"v_mul_f32 v{e1}, v{cn}, v{e1}",
      f"v_cvt_pk_bf16_f32 v{e1}, v{e0}, v{e1}", f"v_lshlrev_b32 v{e0}, 16, v{e1}", f"v_and_b32 v{e1}, 0xffff0000, v{e1}",
      f"v_mul_f32 v{e0}, 0xbfb8aa3b, v{e0}", f"v_mul_f32 v{e1}, 0xbfb8aa3b, v{e1}"]
F.append(("lds", f"ds_write_b64 v{vBW}, {q2(e0)}", "biasw"))
for i in range(4):
    F.append(("lds", f"ds_read_b128 {q4(RBI + 4 * i)}, v{vBR} offset:{i * 64}", "bias"))
F += [f"v_and_b32 v{e0}, 1, v1", f"v_lshlrev_b32 v{e0}, 4, v{e0}", f"v_lshlrev_b32 v{cs}, v{e0}, v{cs}",
      f"v_lshrrev_b32 v{e0}, 1, v{vJ}", f"v_lshlrev_b32 v{e1}, 1, v{vG}", f"v_sub_u32 v{e0}, v{e0}, v{e1}",
      f"v_cmp_eq_u32 vcc, 0, v{e0}", f"v_mov_b32 v{RS}, 0", f"v_cndmask_b32 v{RS+2}, 0, v{cs}, vcc",
      f"v_cmp_eq_u32 vcc, 1, v{e0}", f"v_mov_b32 v{RS+1}, 0", f"v_cndmask_b32 v{RS+3}, 0, v{cs}, vcc",
      f"v_mov_b32 v{RS+4}, 0", f"v_mov_b32 v{RS+5}, 0"]
def ann_check():
    C.e(f"s_or_b64 vcc, vcc, {sp(S_MSK)}")
    if P.get("forceslow"): C.e("s_cmp_eq_u32 0, 0")
    C.e("s_cbranch_scc1 L_ann_wait")
    C.lab("L_ann_ok")
G = [lambda: (C.c("all four members have reset their progress words in this launch, and one L2 serves all of them"), C.vneed("chk", "touch")),
     f"v_cmp_ne_u32 vcc, s{S_H0}, v{vCHK}", f"v_cmp_ne_u32 {sp(S_MSK)}, s{S_H1}, v{vCHK+1}", f"v_mov_b32 v{AD[0]}, v{AD[6]}", ann_check,
     f"v_xor_b32 v{AD[2]}, 32, v{AD[0]}", f"v_xor_b32 v{AD[4]}, 0x4000, v{AD[0]}", f"v_xor_b32 v{AD[6]}, 0x4000, v{AD[2]}"]
G += [f"v_add_u32 v{AD[r+1]}, 0x10000, v{AD[r]}" for r in (0, 2, 4, 6)]
C.tail += ["L_ann_wait:", f"    s_mov_b32 s{S_CNT}, 0",
           f"    s_sub_u32 s{S_H0}, s{S_H0}, s{S_XCC}", f"    s_sub_u32 s{S_H1}, s{S_H1}, s{S_XCC}", "L_ann_l:",
           f"    buffer_load_dwordx2 {q2(vCHK)}, v{vCHA}, {sq(SRD_WS)}, s{S_EP} offen offset:128 sc1",
           f"    s_add_u32 s{S_CNT}, s{S_CNT}, 1", "    s_waitcnt vmcnt(0)",
           f"    v_subrev_u32 v{vCHK}, s{S_H0}, v{vCHK}", f"    v_subrev_u32 v{vCHK+1}, s{S_H1}, v{vCHK+1}",
           f"    v_cmp_ne_u32 vcc, v{vCHK}, v{vCHK+1}", f"    v_cmp_le_u32 {sp(S_MSK)}, 16, v{vCHK}",
           f"    s_cmp_ge_u32 s{S_CNT}, 0x100000", "    s_cbranch_scc1 L_ann_ok",
           f"    s_or_b64 vcc, vcc, {sp(S_MSK)}", "    s_cbranch_scc1 L_ann_l",
           f"    v_cmp_ne_u32 vcc, s{S_XCC}, v{vCHK}", "    s_nop 1", "    s_cmp_lg_u64 vcc, 0"]
if not P.get("forceslow"): C.tail += ["    s_cbranch_scc0 L_ann_ok"]
C.tail += ["    ; members on several XCDs: the L2-local progress stores fall out of range; L_slow stores through memory instead",
           f"    s_mov_b32 s{S_MODE}, 1", f"    v_mov_b32 v{VFS}, v{VFL}", f"    v_mov_b32 v{VFL}, 2.0"]
if P["l2"]: C.tail += [f"    v_or_b32 v{VM}, 2.0, v{VM}"]
C.tail += ["    s_branch L_ann_ok"]

if P.get('nofill'): F = F[:13]
class Pool:
    def __init__(s, regs): s.free = list(regs); s.rel = []
    def get(s, now):
        s.free += [r for t, r in s.rel if t <= now]; s.rel = [(t, r) for t, r in s.rel if t > now]
        assert s.free, "fragment pool empty"
        return s.free.pop(0)
    def put(s, t, r): s.rel.append((t, r))

def stream(units, read, pool):
    firstuse, lastuse = {}, {}
    for i, u in enumerate(units):
        for k in u:
            firstuse.setdefault(k, i); lastuse[k] = i
    rq = [(k, i) for k in sorted(firstuse, key=lambda k: firstuse[k]) for i in range(2)]
    reg = {}
    def issue(now):
        k, i = rq.pop(0)
        if i == 0:
            reg[k] = pool.get(now); pool.put(lastuse[k] + 2, reg[k])
        read(k, i, reg[k])
    return rq, reg, issue, firstuse
def run(f):
    if isinstance(f, str): C.e(f)
    elif isinstance(f, tuple): C.lds(f[1], f[2])
    else: f()

SEQ = [(0,0),(0,1),(1,1),(1,0),(1,2),(0,2),(2,2),(2,1),(2,0),(2,3),(1,3),(0,3),(3,3),(3,2),(3,1),(3,0)]
u1 = [(("w", n, a), ("x", n, p)) for n in range(16) for a, p in SEQ]
def rd1(k, i, r):
    kind, n, t = k
    base = (n % 4) * 16384 + 8192 * i
    if kind == "w": a_, off = AD[t & 1], 4096 + 256 * (t >> 1)
    else: a_, off = AD[2 + 2 * (t >> 1) + (t & 1)], 0
    C.lds(f"ds_read_b64_tr_b16 {q2(r + 2 * i)}, v{a_} offset:{base + off}", k)
rq, reg, issue, fu = stream(u1, rd1, Pool([RF + 4 * i for i in range(NPOOL)]))
if P["pre"]:
    import re
    FA, FB = F[:13], F[13:]
    C.c("per-launch constants, while the first rows are still under way")
    C.vneed("sig", "emb")
    prev = ""
    for f in FB + (FA if P["pre"] == 2 else []):
        if isinstance(f, str):
            d = re.match(r"(v_\w+) (v\d+|vcc),", prev)
            if d and re.search(rf"\b{d.group(2)}\b", f.split(",", 1)[1]):
                if d.group(1).startswith(("v_rcp", "v_sqrt", "v_log")) or f.startswith("v_readfirstlane"): C.e("s_nop 0")
            if f.startswith("v_cndmask"): C.e("s_nop 0")
            prev = f
        run(f)
    F = FA if P["pre"] == 1 else []
C.stamp()
C.e("s_barrier")
C.stamp()
barred = 0
def issue1(now):
    global barred
    n = rq[0][0][1]
    if n > barred:
        barred = n
        if n % 4 == 0:
            assert not any(t[0] == "cap" for t in C.lq if isinstance(t, tuple))
            for r in AD[:6] + ([AD[7], VT0] if P["cap"] else []): C.e(f"v_xor_b32 v{r}, 0x10000, v{r}")
        C.e("s_barrier")
        if P["cap"] and n % 4 == 3:
            C.c("keep this member's own rows of x (all four slots of the round are still in place)")
            for t in range(2):
                for i in range(2): C.lds(f"ds_read_b64_tr_b16 {q2(RX + 8 * (n // 4) + 4 * t + 2 * i)}, v{(AD[7], VT0)[t]} offset:{8192 * i}", ("cap", n))
        if n == P["wo_touch"]:
            C.c("this workgroup's share of w_out into the L2; the values are not used")
            C.vm(f"buffer_load_dword v{VT1}, v{vTCH}, {sq(SRD_WO)}, 0 offen", "touch")
        if n == P['chkn']: C.vm(f"buffer_load_dwordx2 {q2(vCHK)}, v{vCHA}, {sq(SRD_WS)}, s{S_EP} offen offset:128 sc1", "chk")
    issue(now)
for _ in range(P["lead"]): issue1(0)
for i, (ka, kb) in enumerate(u1):
    if i and i % 64 == 0 and not P["xs"]: C.stamp()
    if i in P.get("xs1", ()):
        C.stamp(); C.smem = False
    C.need(ka, kb)
    acc = RA + 4 * (4 * kb[2] + ka[2])
    if not (P.get("skip1") and i >= 16 and i % P["skip1"] == 0):
        C.e(f"v_mfma_f32_16x16x32_bf16 {q4(acc)}, {q4(reg[ka])}, {q4(reg[kb])}, {'0' if i < 16 else q4(acc)}")
    if rq: issue1(i)
    elif G: run(G.pop(0))
    if P["cap"] and i == 256 - P["lead"]:
        assert not any(t[0] == "cap" for t in C.lq if isinstance(t, tuple)) and D <= 4 and PERM == list(range(16)) and not P["rmask"]
        C.e("s_barrier")
    if i % 16 == 9 and not P.get('nocap') and not P["cap"]:
        n = i // 16
        C.e(f"s_cmp_eq_u32 s{OWNR[P['rmask'][PERM[n] // 4]] if P['rmask'] else S_OWN}, {PERM[n] & 3}")
        C.e(f"s_cbranch_scc0 L_keep{n}")
        for t in range(2):
            for o in range(4): C.e(f"v_mov_b32 v{RX + 8 * (PERM[n] // 4) + 4 * t + o}, v{reg['x', n, t] + o}")
        C.lab(f"L_keep{n}")
        continue
    waited = i + 1 < len(u1) and C.need(*u1[i + 1])
    if F and i >= P["fstart"] and not waited: run(F.pop(0))
for f in G: run(f)
assert not F and not C.lq
if P["b16a"] == -3: C.e("s_barrier")
C.stamp()

DQ = RF + 4
def hreg(p, kk): return RH + 4 * (2 * p + kk)
def flag(j):
    if not (P["exp"] & 2): C.vneed(("st", j))
    C.e(f"v_mov_b32 v{VT1}, {j + 1}")
    C.vm(f"buffer_store_dword v{VT1}, v{VFL}, {sq(SRD_WS)}, 0 offen offset:256", ("fl", j))
def check(name, v, done=False):
    rdi = f"ds_read_b128 {q4(DQ)}, v{VRDY} offset:16" if done else f"ds_read_b32 v{VT0}, v{VRDY}"
    red = [f"    v_min3_u32 v{VT0}, v{DQ}, v{DQ+1}, v{DQ+2}", f"    v_min_u32 v{VT0}, v{VT0}, v{DQ+3}", "    s_nop 0"] if done else []
    C.e(f"s_cmp_ge_u32 s{S_T1}, {v}")
    if not (P["exp"] & 1) or done: C.e(f"s_cbranch_scc0 L_spin{name}")
    C.lab(f"L_back{name}")
    if not done and not P["xs"]: C.stamp()
    C.tail += [f"L_spin{name}:", f"    s_mov_b32 s{S_CNT}, 0", f"L_spin{name}_l:",
               "    " + rdi, f"    s_add_u32 s{S_CNT}, s{S_CNT}, 1", "    s_waitcnt lgkmcnt(0)", *red,
               f"    v_readfirstlane_b32 s{S_T1}, v{VT0}", f"    s_cmp_ge_u32 s{S_CNT}, 0x800000", f"    s_cbranch_scc1 L_back{name}",
               f"    s_cmp_ge_u32 s{S_T1}, {v}", f"    s_cbranch_scc0 L_spin{name}_l", f"    s_branch L_back{name}"]

C.c("---- h = c_out * silu(c_in * acc + bias), two elements per packed op; the sibling's pixels first")
tiles = [(p0 + p, 2 * kk + a) for p0 in (2, 0) for kk in range(2) for p in range(2) for a in range(2)]
U = RF
def acc1(n): return RA + 4 * (4 * tiles[n][0] + tiles[n][1])
def ok(n): return 0 <= n < 16
def gstore(n):
    p, a = tiles[n]; kk = a >> 1
    if LS == 1 - p // 2:
        C.vm(f"buffer_store_dwordx4 {q4(hreg(p, kk))}, v{VM}, {sq(SRD_OUT)}, s{S_MB[0, LS]} offen offset:{(p & 1) * 128}", ("st", n // 4))
        if n % 8 == 3: C.e(f"s_add_u32 s{S_MB[0, LS]}, s{S_MB[0, LS]}, 0x10000")
    elif not (P["exp"] & 8) and not (P["exp"] & 64 and p >= 2):
        C.vm(f"buffer_store_dwordx4 {q4(hreg(p, kk))}, v{VL16}, {sq(SRD_WS)}, s{S_MB[0, 1 - p // 2]} offen offset:{(2 * kk + (p & 1)) * P['hl']} sc1", ("st", n // 4))
def publish(n):
    p, a = tiles[n]; kk = a >> 1
    if P["hold"] is None: gstore(n)
    if p >= 2: C.lds(f"ds_write_b128 v{VXW}, {q4(hreg(p, kk))} offset:{((p & 1) * 2 + kk) * 1024}", "xw")
HOLD = P["hold"] or []
def xr(f):
    p2, kk = f & 1, f >> 1
    C.lds(f"ds_read_b128 {q4(hreg(2 + p2, kk))}, v{VXR} offset:{(p2 * 2 + kk) * 1024}", "xr")
for n in range(-2, 17):
    E = [f"v_exp_f32 v{acc1(n+1)+o}, v{U + 4*((n+1)&3) + o}" for o in range(4)] if ok(n + 1) else []
    M = [f"v_pk_mul_f32 {q2(acc1(n-1)+o)}, {q2(acc1(n-1)+o)}, {q2(U + 4*((n-1)&3) + o)}" for o in (0, 2)] if ok(n - 1) else []
    A1 = [f"v_pk_fma_f32 {q2(U + 4*((n+2)&3) + o)}, {q2(acc1(n+2)+o)}, {sp(S_S1)}, {q2(RBI + 4*tiles[n+2][1] + o)}" for o in (0, 2)] if ok(n + 2) else []
    R = [f"v_rcp_f32 v{acc1(n)+o}, v{acc1(n)+o}" for o in range(4)] if ok(n) else []
    if P.get("norcp"): R = []
    A2 = [f"v_pk_fma_f32 {q2(acc1(n+1)+o)}, {q2(acc1(n+1)+o)}, {sp(S_IK)}, {sp(S_IK)}" for o in (0, 2)] if ok(n + 1) else []
    V = []
    if ok(n - 1):
        p, a = tiles[n - 1]
        V = [f"v_cvt_pk_bf16_f32 v{hreg(p, a >> 1) + 2 * (a & 1) + o // 2}, v{acc1(n-1)+o}, v{acc1(n-1)+o+1}" for o in (0, 2)]
    def weave(a_, b_):
        r = []
        for i in range(max(len(a_), len(b_))): r += a_[i:i+1] + b_[i:i+1]
        return r
    if P["sil"]:
        if ok(n - 2) and n % 2 == 1: publish(n - 2)
        for t in weave(E, M + A1) + weave(R, V + A2): C.e(t)
    else:
        for t in E: C.e(t)
        if ok(n - 2) and n % 2 == 1: publish(n - 2)
        for t in M + A1 + R + A2 + V: C.e(t)
    if n == P["b16a"]: C.e("s_barrier")
    if n == 9 and LS == 0:
        C.e(f"s_cmp_lg_u32 s{S_MODE}, 0")
        C.e("s_cbranch_scc1 L_slow0")
        C.lab("L_slow0_done")
        C.tail += ["L_slow0:", f"    v_xor_b32 v{VM}, 2.0, v{VM}", f"    s_sub_u32 s{S_T0}, s{S_MB[0, 0]}, 0x10000"]
        C.tail += [f"    buffer_store_dwordx4 {q4(hreg(p, kk))}, v{VM}, {sq(SRD_OUT)}, s{S_MB[0, 0] if kk else S_T0} offen offset:{(p & 1) * 128} sc1" for p in (2, 3) for kk in range(2)]
        C.tail += ["    s_waitcnt vmcnt(0)", "    s_branch L_slow0_done"]
    if n == P["nb"]:
        C.need("xw")
        C.e("s_barrier")
        C.stamp()
    for f, pos in enumerate(HOLD):
        if pos == -n and n > 0:
            assert n >= 2 * f + 2
            gstore(2 * f + 1)
    if n == max([P["nb"]] + [-x for x in HOLD[:4]]):
        assert all(x < 0 for x in HOLD[:4])
        C.e("s_nop 0")
        for f in range(4): xr(f)
    for j in range(4):
        if P["fl"][j] is not None and P["fl"][j] == -n and n > 0:
            assert n >= 4 * j + 5
            flag(j)
publish(15)
def slow():
    C.e(f"s_cmp_lg_u32 s{S_MODE}, 0")
    C.e("s_cbranch_scc1 L_slow")
    C.lab("L_slow_done")
SLOWPOS = max(HOLD + [-1])
if SLOWPOS < 0: slow()
C.tail += ["L_slow:"]
if LS == 1:
    C.tail += [f"    v_xor_b32 v{VM}, 2.0, v{VM}", f"    s_sub_u32 s{S_T0}, s{S_MB[0, 1]}, 0x10000"]
    C.tail += [f"    buffer_store_dwordx4 {q4(hreg(p, kk))}, v{VM}, {sq(SRD_OUT)}, s{S_MB[0, 1] if kk else S_T0} offen offset:{(p & 1) * 128} sc1" for p in (0, 1) for kk in range(2)]
C.tail += [f"    v_mov_b32 v{VT1}, 4", "    s_waitcnt vmcnt(0) lgkmcnt(0)",
           f"    buffer_store_dword v{VT1}, v{VFS}, {sq(SRD_WS)}, 0 offen offset:256 sc1", "    s_waitcnt vmcnt(0)", "    s_branch L_slow_done"]
C.stamp()

poolq = [RF + 4 * i for i in range(NPOOL)]
rem = poolq[9:21] + [RBI + 4 * i for i in range(4)] + [RX + 4 * i for i in range(8)]
def rq_(j, m, p): return rem[6 * j + 2 * (m - 1) + p]
units = []
for t in range(2):
    for rho in range(4):
        for p in range(2): units.append((2 * rho + t, p, RX + 8 * rho + 4 * p, ("sel", t), True, None))
def snake(jts, areg, m, far, kk, tag):
    for n, jt in enumerate(jts):
        for p in ((0, 1) if n % 2 == 0 else (1, 0)):
            units.append((jt, p, areg(p), ("o", m, far, kk, jt), False, tag(p)))
for far in (1, 0):
    for kk in range(2): snake(range(8), lambda p: hreg(2 * far + p, kk), 0, far, kk, lambda p: "xr" if far else None)
steps = [(j, m) for j in range(4) for m in (1, 2, 3)]
if P['fp']: steps = [(0,1),(0,2),(1,1),(1,2),(0,3),(1,3)] + steps[6:]
nbm = 2 * P["bm"]
def remote(jts, j, m): snake(jts, lambda p: rq_(j, m, p), m, 1 - j // 2, j & 1, lambda p: ("pl", j, m, p))
for j, m in steps[:12 - nbm]: remote(range(8), j, m)
for blk in range(4):
    for j, m in steps[12 - nbm:]: remote((2 * blk, 2 * blk + 1), j, m)
NU = len(units)
def rd2(k, i, r):
    _, m, far, kk, jt = k
    base = (4 * m + kk) * 8192
    a_ = AD[4 * far + 2 * (jt & 1) + (base >= 65536)]
    C.lds(f"ds_read_b64_tr_b16 {q2(r + 2 * i)}, v{a_} offset:{base % 65536 + 4096 * i + 256 * (jt >> 1)}", k)
rq, reg, issue, fu = stream([(u[3],) if u[3][0] == "o" else () for u in units], rd2, Pool(poolq[2:9]))
first_remote = min(i for i, u in enumerate(units) if isinstance(u[5], tuple))
last = {blk: max(i for i, u in enumerate(units) if u[0] // 2 == blk) for blk in range(4)}
sched = {}
def at(i, kind, x): sched.setdefault(i, []).append((kind, x))
busy = []
def claim(a_, b_):
    assert a_ >= 0 and all(b_ < x or a_ > y for x, y in busy), ("checks overlap", a_, b_, busy)
    busy.append((a_, b_))
if P["fp"]: first_remote = min(i for i, u in enumerate(units) if u[3][0] == "o" and u[3][1] == 3)
iw = P.get("chkW", first_remote - P["pf2"] - 3)
assert iw <= first_remote - P["pf2"] - 3
if P['b16a'] is None or not P['wbar']:
    claim(iw - 3, iw)
    at(iw - 10, "m", lambda: C.lds(f"ds_read_b128 {q4(DQ)}, v{VRDY} offset:16", ("rdy", "W")))
    at(iw - 3, "m", lambda: C.need(("rdy", "W")))
    at(iw - 3, "v", f"v_min3_u32 v{VT0}, v{DQ}, v{DQ+1}, v{DQ+2}")
    at(iw - 2, "v", f"v_min_u32 v{VT0}, v{VT0}, v{DQ+3}")
    at(iw - 1, "v", f"v_readfirstlane_b32 s{S_T1}, v{VT0}")
    at(iw, "m", lambda: check("W", 1 + P["fp"], True))
nextld = 0
assert not P["fp"] or (P["chk"][1] is None and LS != 0)
for j0 in range(4):
    j = j0
    i0 = P["chk"][j]
    if i0 is not None:
        top = max(x for x in range(j, 4) if all(P["chk"][y] is None for y in range(j + 1, x + 1)))
        claim(i0 - 7, i0)
        at(i0 - 7, "m", lambda j=j: C.lds(f"ds_read_b32 v{VT0}, v{VRDY}", ("rdy", j)))
        at(i0 - 1, "m", lambda j=j: C.need(("rdy", j)))
        at(i0 - 1, "v", f"v_readfirstlane_b32 s{S_T1}, v{VT0}")
        at(i0, "m", lambda j=j, top=top: check(j, top + 1))
        assert P["fl"][top] is not None and P["fl"][top] <= i0
        nextld = max(nextld, 2 * i0)
    for j, m in steps[3 * j0:3 * j0 + 3]:
        for p in range(2):
            assert j < 2 or nextld // 2 >= 18
            assert nextld // 2 < min(i for i, u in enumerate(units) if u[5] == ("pl", j, m, p))
            if LS == j // 2:
                def ld(j=j, m=m, p=p):
                    C.vm(f"buffer_load_dwordx4 {q4(rq_(j, m, p))}, v{VM}, {sq(SRD_OUT)}, s{S_MB[m, LS]} offen offset:{p * 128} sc1", ("pl", j, m, p))
                    if j % 2 == 0 and p == 1: C.e(f"s_add_u32 s{S_MB[m, LS]}, s{S_MB[m, LS]}, 0x10000")
                at(nextld // 2, "m", ld)
            elif not (P["exp"] & 4) and not (P["exp"] & 128 and j < 2): at(nextld // 2, "m", lambda j=j, m=m, p=p: C.vm(
                f"buffer_load_dwordx4 {q4(rq_(j, m, p))}, v{VL16}, {sq(SRD_WS)}, s{S_MB[m, j // 2]} offen offset:{(2 * (j & 1) + p) * P['hl']} sc1", ("pl", j, m, p)))
            nextld += P["ldgap"] if isinstance(P["ldgap"], int) else P["ldgap"][j]
    j = j0
    if P["fl"][j] is not None and P["fl"][j] >= 0: at(P["fl"][j], "m", lambda j=j: flag(j))
assert P["fl"][3] >= 16
if P["l2"]:
    def ack():
        C.vneed(("pl", 2 * LS + 1, 3, 1))
        C.e(f"v_mov_b32 v{VT1}, 5")
        C.vm(f"buffer_store_dword v{VT1}, v{VFL}, {sq(SRD_WS)}, 0 offen offset:256", "ack")
        C.vm(f"buffer_store_dword v{VT1}, v{VFS}, {sq(SRD_WS)}, 0 offen offset:256 sc1", "ack")
    at(P["ack"], "m", ack)
    assert P["ack"] > P["fl"][3]
    io = last[2] + P.get('iod', -4)
    assert io < last[2] + 18
    assert P["ack"] < io - 7
    claim(io - 7, io)
    at(io - 7, "m", lambda: C.lds(f"ds_read_b32 v{VT0}, v{VRDY}", ("rdy", "O")))
    at(io - 1, "m", lambda: C.need(("rdy", "O")))
    at(io - 1, "v", f"v_readfirstlane_b32 s{S_T1}, v{VT0}")
    at(io, "m", lambda: check("O", 5))
    P["outpol"] = list(P["outpol"][:2]) + ["plain", "plain"]
for f, pos in enumerate(HOLD):
    if pos >= 0:
        at(pos, "m", lambda f=f: gstore(2 * f + 1))
        assert all(x is None or x > pos for x in P["fl"][f // 2:])
if SLOWPOS >= 0:
    at(SLOWPOS + 1, "m", slow)
    assert SLOWPOS + 1 < min(x for x in P["chk"] if x is not None) - 7
TMP = RF
if P["full"]:
    for blk in range(4):
        t0 = last[blk] + 5
        dat = RA + 16 * blk; so = (blk & 1) * 8704
        for g in range(4):
            for o in range(2): at(t0 + 2 * g + o, "v", f"v_cvt_pk_bf16_f32 v{TMP + 2*g + o}, v{dat + 4*g + 2*o}, v{dat + 4*g + 2*o + 1}")
            at(t0 + 2 * g + 2, "m", lambda g=g, so=so, blk=blk: C.lds(f"ds_write_b64 v{VSW}, {q2(TMP + 2*g)} offset:{so + 16 * 272 * (g >> 1) + 32 * (g & 1)}", ("sw", blk)))
        def sync(blk=blk, so=so, dat=dat):
            C.need(("sw", blk), ("sr", blk - 1, 1))
            C.e("s_barrier")
            for k in range(2): C.lds(f"ds_read_b128 {q4(dat + 4*k)}, v{VSR} offset:{so + 4 * 272 * k}", ("sr", blk, k))
        at(t0 + 8 + P["full"], "m", sync)
        def st(k, blk=blk, dat=dat):
            C.need(("sr", blk, k))
            C.vm(f"buffer_store_dwordx4 {q4(dat + 4*k)}, v{VOUT}, {sq(SRD_OUT)}, s{S_OB} offen{POL[P['outpol'][blk]]}", ("out", blk))
            if (blk, k) != (3, 1): C.e(f"s_add_u32 s{S_OB}, s{S_OB}, {hex(0x38000 if k else 0x8000)}")
        for k in range(2): at(t0 + 8 + P["full"] + 7 + 4 * k, "m", lambda k=k, st=st: st(k))
else:
    for blk in range(4):
        t0 = last[blk] + 5
        dat = RA + 16 * blk; so = (blk & 1) * 2560
        for g in range(4):
            for o in range(2): at(t0 + 2 * g + o, "v", f"v_cvt_pk_bf16_f32 v{TMP + 2*g + o}, v{dat + 4*g + 2*o}, v{dat + 4*g + 2*o + 1}")
            at(t0 + 2 * g + 2, "m", lambda g=g, so=so, blk=blk: C.lds(f"ds_write_b64 v{VSW}, {q2(TMP + 2*g)} offset:{so + 1280 * (g >> 1) + 32 * (g & 1)}", ("sw", blk)))
        for k in range(2):
            at(t0 + 5 + 4 * k, "m", lambda k=k, so=so, blk=blk, dat=dat: C.lds(f"ds_read_b128 {q4(dat + 4*k)}, v{VSR} offset:{so + 1280*k}", ("sr", blk, k)))
        def st(k, blk=blk, dat=dat):
            C.need(("sr", blk, k))
            if not (P["exp"] & 16) or blk == 3: C.vm(f"buffer_store_dwordx4 {q4(dat + 4*k)}, v{VOUT}, {sq(SRD_OUT)}, s{S_OB} offen{POL[P['outpol'][blk]]}", ("out", blk))
            if (blk, k) != (3, 1): C.e(f"s_add_u32 s{S_OB}, s{S_OB}, 0x20000")
        for k in range(2): at(t0 + 13 + 5 * k, "m", lambda k=k, st=st: st(k))
ie = nextld // 2 + 4
at(ie, "m", lambda: (C.c("member 0 moves the group's epoch on (every member read it long ago: their progress words came after it)"),
                     C.e(f"s_lshl_b32 s{S_T0}, s{S_Q}, 28")))
at(ie, "v", f"v_lshl_or_b32 v{TMP}, v0, 24, s{S_T0}")
at(ie + 1, "v", f"v_mov_b32 v{TMP+1}, s{S_EN}")
at(ie + 2, "m", lambda: C.vm(f"buffer_store_dword v{TMP+1}, v{TMP}, {sq(SRD_WS)}, s{S_EP} offen sc1", "epst"))
assert ie + 3 < last[0] + 5
def pre_wait(i):
    if i >= NU: return
    u = units[i]
    if isinstance(u[5], tuple): C.vneed(u[5])
    ks = [u[3]]
    if P["w4"] and u[3] in C.lq and i + 2 < NU: ks.append(units[i + 2][3])
    C.need(*ks, *([u[5]] if u[5] == "xr" else []))
for i, u in enumerate(units):
    jt, p, ar, bk, first, tag = u
    if i in P["xs"]:
        C.stamp(); C.smem = False
    pre_wait(i)
    br = RS + 2 - 2 * bk[1] if bk[0] == "sel" else reg[bk]
    acc = RA + 4 * (2 * jt + p)
    if not any(a_ <= i < b_ for a_, b_ in P.get("skip", ())):
        C.e(f"v_mfma_f32_16x16x32_bf16 {q4(acc)}, {q4(ar)}, {q4(br)}, {'0' if first else q4(acc)}")
    if rq and fu[rq[0][0]] <= i + P["pf2"] + 1: issue(i)
    items = sched.pop(i, [])
    for k, x in items:
        if k == "m": x()
    pre_wait(i + 1)
    for k, x in items:
        if k == "v": C.e(x)
C.stamp()
C.e("s_nop 5")
for i in sorted(sched):
    for k, x in sorted(sched[i], key=lambda y: y[0]):
        if k == "v": C.e(x)
        else: x()
C.stamp()
if P["stamps"] or "probe" in P:
    C.e("s_waitcnt vmcnt(0)")
    if P.get("probe") == -1: P["probe"] = C.nst
    C.stamp()
if "probe" in P or P.get("rt"):
    C.e("s_waitcnt lgkmcnt(0)")
    if "probe" in P:
        C.e("s_sub_u32 s96, s96, s100"); C.e("s_lshl_b32 s96, s96, 2"); C.e("s_add_u32 s96, s96, 2000")
        if "pwg" in P:
            C.e(f"s_cmp_eq_u32 s2, {P['pwg']}"); C.e("s_cselect_b32 s96, s96, 0")
    else:
        C.e(f"s_mov_b32 s96, {P['rt']}")
        if "pwg" in P:
            C.e(f"s_cmp_eq_u32 s2, {P['pwg']}"); C.e("s_cselect_b32 s96, s96, 0")
    C.lab("L_rt")
    C.e("s_memrealtime s[98:99]"); C.e("s_waitcnt lgkmcnt(0)"); C.e("s_sub_u32 s98, s98, s100")
    C.e("s_cmp_lt_u32 s98, s96"); C.e("s_cbranch_scc1 L_rt")
C.dump_stamps()
C.e("s_endpgm")

nm = P["name"]
hdr = open("standalone__edm_precond__diffusion.s.ref").read().split("; Override")[0]
out = [hdr.rstrip(),
       "; generated by gen/gen.py  " + " ".join(sys.argv[1:]),
       f"; @launch grid=(256,1,1) block=(512,1,1) lds={LDS_TOTAL}",
       '.amdgcn_target "amdgcn-amd-amdhsa--gfx950"', ".text", f".globl {nm}_kernel", f".p2align {P['align']}",
       f".type {nm}_kernel,@function", f"{nm}_kernel:"]
out += h.l + L.l + C.l + C.tail + ["L_end:"]
out += ['.section .rodata,"a"', ".p2align 6", f".amdhsa_kernel {nm}_kernel",
        "  .amdhsa_next_free_vgpr 256", "  .amdhsa_next_free_sgpr 102", "  .amdhsa_accum_offset 256",
        "  .amdhsa_group_segment_fixed_size 0", "  .amdhsa_kernarg_size 64", "  .amdhsa_user_sgpr_count 2",
        "  .amdhsa_user_sgpr_kernarg_segment_ptr 1", "  .amdhsa_system_sgpr_workgroup_id_x 1", ".end_amdhsa_kernel"]
print("\n".join(out))
```

```python
import sys, json

P = dict(align=12, ntx=0, D=4, thr=4, stamps=0, codepf=1, wo_touch=99, prime=1, lt=(2, 4, 1), exp=0, inl=(), hl=256, lay=1, full=0, wrot=0, gmap=0, pre=1, cap=1, rmask=None, fp=0, nb=12, hold=None, b16a=None, na=22, wbar=1, l2=0, fillpos=18, ack=150, stlb=0, perm=tuple(range(16)), chkn=8, w4=1, sil=0, fstart=20, xs=(),
         lead=12, pf2=8,
         fl=(None, -15, None, 42),
         chk=(56, None, 116, None), ldgap=(10, 10, 6, 6), bm=3,
         outpol=("nt", "nt", "nt", "nt"),
         name="standalone__edm_precond__diffusion")
for a in sys.argv[1:]:
    k, v = a.split("=", 1)
    try: P[k] = json.loads(v)
    except Exception: P[k] = v

POL = {"plain": "", "sc1": " sc1", "nt": " nt", "ntsc1": " sc1 nt", "sc01": " sc0 sc1"}
WS_BYTES = 0x1000000
HC0, HK0, HC1, HK1 = 0x9E3779B1, 0x7F4A7C15, 0x85EBCA77, 0xC2B2AE3D
STAMP_OFF = 0x1100000
LDS_MISC = 131072
LDS_BIAS = LDS_MISC
LDS_RDY = LDS_MISC + 2048
LDS_STG = LDS_MISC + 4096
LDS_TOTAL = LDS_STG + 4 * 5120

LS = P['l2'] - 1
ROTS = [(0, 1, 2, 3), (0, 2, 3, 1), (0, 3, 1, 2), (0, 1, 2, 3)]
ROTTAB = sum(x << (8 * k + 2 * m) for k, r in enumerate(ROTS) for m, x in enumerate(r))
class Prog:
    def __init__(s):
        s.l = []; s.lq = []; s.vq = []; s.smem = False; s.nst = 0; s.tail = []; s.is_c = False
    def e(s, t): s.l.append("    " + t)
    def lab(s, t): s.l.append(t + ":")
    def c(s, t): s.l.append("    ; " + t)
    def lds(s, t, tag):
        s.e(t); s.lq.append(tag)
    def vm(s, t, tag):
        s.e(t); s.vq.append(tag); assert len(s.vq) <= 63
    def need(s, *tags):
        idx = max([i for i, t in enumerate(s.lq) if t in tags], default=-1)
        if idx < 0: return False
        n = min(len(s.lq) - 1 - idx, 15)
        if s.smem: n = 0; s.smem = False
        s.e(f"s_waitcnt lgkmcnt({n})"); s.lq = s.lq[len(s.lq) - n:] if n else []
        return True
    def vneed(s, *tags):
        idx = max([i for i, t in enumerate(s.vq) if t in tags], default=-1)
        if idx < 0: return False
        n = len(s.vq) - 1 - idx
        s.e(f"s_waitcnt vmcnt({n})"); s.vq = s.vq[len(s.vq) - n:] if n else []
        return True
    def stamp(s):
        if "probe" in P:
            if s.nst == P["probe"] and s.is_c:
                s.e("s_memrealtime s[96:97]"); s.smem = True
            s.nst += 1
        if P["stamps"]:
            s.e(f"{'s_memtime' if P['stamps'] == 1 else 's_memrealtime'} s[{68 + 2 * s.nst}:{69 + 2 * s.nst}]"); s.nst += 1; s.smem = True
            assert s.nst <= 17
    def dump_stamps(s):
        if not P["stamps"]: return
        s.e("s_waitcnt lgkmcnt(0) vmcnt(0)")
        s.e("v_mov_b32 v14, 0")
        for i in range(1, s.nst):
            s.e(f"s_sub_u32 s{68+2*i}, s{68+2*i}, s68")
            s.e(f"v_writelane_b32 v14, s{68+2*i}, {i}")
        s.e("v_writelane_b32 v14, s68, 0")
        s.e("s_lshl_b32 s3, s2, 11")
        s.e(f"s_add_u32 s3, s3, {STAMP_OFF}")
        s.e("v_lshl_add_u32 v15, v0, 2, s3")
        s.e("global_store_dword v15, v14, s[18:19]")

def q4(r): return f"v[{r}:{r+3}]"
def q2(r): return f"v[{r}:{r+1}]"
def sq(d): return f"s[{d}:{d+3}]"
def sp(d): return f"s[{d}:{d+1}]"

S_EP, S_EN = 20, 21
S_W, S_Q, S_GL, S_G, S_OWN, S_TILE = 22, 23, 24, 25, 26, 27
SRD_A, SRD_B, SRD_C = 28, 32, 36
S_OB = 40
S_T0, S_T1, S_T2, S_T3 = 44, 45, 46, 47
S_S1, S_IK, S_MSK = 48, 50, 52
S_MB = {(m, s): 54 + 2 * m + s for m in range(4) for s in range(2)}
S_CNT, S_H0, S_H1, S_XCC, S_MODE = 62, 63, 64, 65, 66
S_N, S_LB, S_XO, S_WO = 40, 41, 42, 43

h = Prog()
h.stamp()
if P.get("rt") or "probe" in P: h.e("s_memrealtime s[100:101]")
h.e("s_load_dwordx16 s[4:19], s[0:1], 0")
h.e("s_cmp_ge_u32 s2, 0x100")
h.e("s_cbranch_scc1 L_exit")
h.e("v_lshrrev_b32 v2, 6, v0")
h.e("v_and_b32 v1, 63, v0")
h.e(f"v_readfirstlane_b32 s{S_W}, v2")
h.e(f"s_lshr_b32 s{S_T0}, s2, 3")
if P["codepf"]:
    h.c("pull this kernel's code into the L2 (one 128-byte line per wave)")
    h.e("s_getpc_b64 s[20:21]")
    h.lab("L_pc")
    h.e(f"s_lshl_b32 s{S_T1}, s{S_T0}, 3")
    h.e(f"v_add_lshl_u32 v3, v2, s{S_T1}, 7")
    h.e("v_min_u32 v3, L_end-L_pc-4, v3")
    h.e("global_load_dword v15, v3, s[20:21]")
h.e(f"s_and_b32 s{S_Q}, s{S_T0}, 3")
h.e(f"s_lshr_b32 s{S_GL}, s{S_T0}, 2")
h.e(f"s_and_b32 s{S_T1}, s2, 7")
if P["gmap"] == 1: h.e(f"s_lshl3_add_u32 s{S_G}, s{S_T1}, s{S_GL}")
elif P["gmap"] == 2:
    h.e(f"s_and_b32 s{S_G}, s{S_GL}, 3"); h.e(f"s_lshl2_add_u32 s{S_G}, s{S_T1}, s{S_G}")
    h.e(f"s_and_b32 s{S_T1}, s{S_GL}, 4"); h.e(f"s_lshl3_add_u32 s{S_G}, s{S_T1}, s{S_G}")
else: h.e(f"s_lshl3_add_u32 s{S_G}, s{S_GL}, s{S_T1}")
h.e(f"s_lshr_b32 s{S_T0}, s{S_G}, 5")
h.e(f"s_lshl_b32 s{S_TILE}, s{S_T0}, 22")
h.e(f"s_and_b32 s{S_T1}, s{S_G}, 31")
h.e(f"s_lshl_b32 s{S_T1}, s{S_T1}, 8")
h.e(f"s_add_u32 s{S_TILE}, s{S_TILE}, s{S_T1}")
h.e(f"s_cmp_lt_u32 s{S_W}, 4")
h.e("s_cbranch_scc1 L_compute")

L = Prog(); L.nst = h.nst
D = P["D"]
ntx = " nt" if P["ntx"] else ""
L.c("---------------- loader waves: wave 4+i brings rows 4i..4i+3 of every 16-row step")
if P.get("priol"): L.e(f"s_setprio {P['priol']}")
L.e("v_lshrrev_b32 v4, 4, v1")
L.e("v_lshlrev_b32 v6, 1, v2")
L.e("v_xor_b32 v6, v6, v1")
L.e("v_and_b32 v6, 3, v6")
L.e("v_lshlrev_b32 v6, 4, v6")
L.e("v_bfe_u32 v5, v0, 2, 2")
L.e("v_and_b32 v2, 3, v2")
L.e("v_lshl_add_u32 v5, v2, 2, v5")
L.e("v_lshl_add_u32 v7, v4, 6, v6")
L.e("v_lshl_add_u32 v2, v5, 13, v7")
L.e(f"v_add_u32 v2, s{S_TILE}, v2")
L.e(f"s_lshl_b32 s{S_T0}, s{S_Q}, 8")
L.e(f"v_lshl_add_u32 v5, v5, 10, s{S_T0}")
L.e("v_add_u32 v3, v5, v7")
L.e(f"s_and_b32 s{S_LB}, s{S_W}, 3")
L.e(f"s_lshl_b32 s{S_LB}, s{S_LB}, 10")
L.e(f"s_mov_b32 s{S_N}, 0")
L.e(f"s_add_u32 s{S_T2}, s{S_Q}, s{S_GL}")
PERM = list(P["perm"]); assert sorted(PERM) == list(range(16))
tab = sum(v << (4 * n) for n, v in enumerate(PERM))
if P["rmask"]: L.e(f"s_mov_b32 s50, {hex(sum(P['rmask'][v // 4] << (2 * n) for n, v in enumerate(PERM)))}")
L.e(f"s_mov_b32 s48, {hex(tab & 0xffffffff)}"); L.e(f"s_mov_b32 s49, {hex(tab >> 32)}")
if P["lt"]:
    per = P["lt"][0]
    L.e(f"s_lshl_b32 s{S_T1}, s{S_GL}, 16"); L.e(f"s_add_u32 s{S_T0}, s{S_T0}, s{S_T1}")
    L.e(f"s_lshl_b32 s{S_T1}, s{S_LB}, 4"); L.e(f"s_add_u32 s{S_T0}, s{S_T0}, s{S_T1}")
    L.e(f"s_lshl_b32 s{S_T1}, s2, 11"); L.e(f"s_and_b32 s{S_T1}, s{S_T1}, {hex(0x3c00 & ~(per * 1024 - 1))}"); L.e(f"s_add_u32 s{S_T0}, s{S_T0}, s{S_T1}")
    L.e(f"v_bfe_u32 v13, v1, 1, {per.bit_length() - 1}" if per > 1 else "v_mov_b32 v13, 0")
    L.e(f"v_lshl_add_u32 v14, v13, 10, s{S_T0}")
    L.e("v_and_b32 v13, 1, v1"); L.e("v_lshl_add_u32 v14, v13, 7, v14")
    L.e(f"s_mov_b32 s{S_T3}, 0x3c00")
L.e("v_and_b32 v8, 7, v1")
L.e("v_lshlrev_b32 v8, 2, v8")
L.e(f"v_add_u32 v8, {LDS_RDY}, v8")
L.e("v_mov_b32 v9, 0")
L.e("ds_write_b32 v8, v9")
L.e("v_and_b32 v11, 3, v1")
L.e(f"s_lshl_b32 s{S_T0}, s{S_G}, {9 if P['lay'] else 18}")
L.e(f"v_lshl_add_u32 v12, v11, 4, s{S_T0}")
L.e(f"s_mov_b32 s{SRD_A+2}, 0x800000"); L.e(f"s_mov_b32 s{SRD_A+3}, 0x20000")
L.e(f"s_mov_b32 s{SRD_B+2}, 0x80000"); L.e(f"s_mov_b32 s{SRD_B+3}, 0x20000")
if P.get("lst"): L.stamp()
L.e("s_waitcnt lgkmcnt(0)")
if P.get("lst"): L.stamp()
L.e(f"s_mov_b64 {sp(SRD_A)}, s[4:5]")
L.e(f"s_mov_b64 {sp(SRD_B)}, s[8:9]")
L.lab("L_ld1")
L.c("slot n holds 32 rows: block n/4 of quarter (n+member+group)&3, so that every row is first fetched by few workgroups")
if P["rmask"]:
    L.e(f"s_and_b32 s{S_T0}, s50, s{S_T2}")
    L.e("s_lshr_b32 s50, s50, 2")
    L.e(f"s_xor_b32 s{S_T0}, s{S_T0}, s48")
else: L.e(f"s_add_u32 s{S_T0}, s48, s{S_T2}")
L.e(f"s_and_b32 s{S_T0}, s{S_T0}, 3")
L.e(f"s_bfe_u32 s{S_T1}, s48, 0x20002")
L.e("s_lshr_b64 s[48:49], s[48:49], 4")
L.e(f"s_lshl2_add_u32 s{S_T0}, s{S_T0}, s{S_T1}")
L.e(f"s_mov_b32 m0, s{S_LB}")
L.e(f"s_lshl_b32 s{S_XO}, s{S_T0}, 18")
L.e(f"buffer_load_dwordx4 v2, {sq(SRD_A)}, s{S_XO} offen{ntx} lds")
L.e(f"s_add_u32 m0, s{S_LB}, 0x1000")
L.e(f"s_lshl_b32 s{S_WO}, s{S_T0}, 15")
L.e(f"buffer_load_dwordx4 v3, {sq(SRD_B)}, s{S_WO} offen lds")
L.e(f"s_add_u32 m0, s{S_LB}, 0x2000")
L.e(f"s_add_u32 s{S_XO}, s{S_XO}, 0x20000")
L.e(f"buffer_load_dwordx4 v2, {sq(SRD_A)}, s{S_XO} offen{ntx} lds")
L.e(f"s_add_u32 m0, s{S_LB}, 0x3000")
L.e(f"s_add_u32 s{S_WO}, s{S_WO}, 0x4000")
if not P.get("halfw"): L.e(f"buffer_load_dwordx4 v3, {sq(SRD_B)}, s{S_WO} offen lds")
if P["lt"]:
    per, ph = P["lt"][:2]
    L.c("a few rows of w_out towards the caches; the values are not used")
    if len(P["lt"]) > 2:
        L.e(f"s_cmp_lg_u32 s{S_N}, {ph}")
        L.e("s_cbranch_scc1 L_notouch")
    elif per > 1:
        L.e(f"s_and_b32 s{S_T0}, s{S_N}, {per - 1}")
        L.e(f"s_cmp_lg_u32 s{S_T0}, {ph}")
        L.e("s_cbranch_scc1 L_notouch")
    L.e(f"global_load_dword v10, v14, s[12:13]")
    if P["stlb"]:
        L.c("first touch of the output page on the scalar path (address translation only)")
        L.e(f"s_lshl_b32 s{S_T0}, s{S_Q}, 20"); L.e(f"s_add_u32 s{S_T0}, s{S_T0}, s{S_TILE}")
        L.e(f"s_load_dword s54, s[14:15], s{S_T0}")
    L.e(f"v_add_u32 v13, {per * 1024}, v14")
    L.e(f"v_bfi_b32 v14, s{S_T3}, v13, v14")
    L.lab("L_notouch")
L.e(f"s_add_u32 s{S_LB}, s{S_LB}, 0x4000")
L.e(f"s_and_b32 s{S_LB}, s{S_LB}, 0x1ffff")
L.e(f"s_add_u32 s{S_N}, s{S_N}, 1")
L.e(f"s_cmp_lt_u32 s{S_N}, {D}")
L.e("s_cbranch_scc1 L_ld1")
L.e(f"s_waitcnt vmcnt({(3 if P.get('halfw') else 4) * (D - 1)})")
L.e("s_barrier")
L.e(f"s_cmp_lt_u32 s{S_N}, 16")
L.e("s_cbranch_scc1 L_ld1")
L.stamp()
if P["l2"]:
    L.e(f"s_lshl_b32 s{S_T0}, s{S_W}, 4"); L.e(f"s_lshl_b32 s{S_T1}, s{S_Q}, 7"); L.e(f"s_add_u32 s{S_T0}, s{S_T0}, s{S_T1}")
    L.e("v_lshrrev_b32 v24, 2, v1"); L.e(f"v_add_lshl_u32 v24, v24, s{S_T0}, 13"); L.e("v_lshl_add_u32 v24, v11, 6, v24"); L.e(f"v_add_u32 v24, s{S_TILE}, v24")
L.c("w_out: 64 rows per step, starting at this member's own quarter")
L.e(f"s_mov_b64 {sp(SRD_B)}, s[12:13]")
L.e(f"s_lshl_b32 s{S_WO}, s{S_Q}, 17")
if P["wrot"]:
    assert not P["fp"] and P.get("n16", 22) == 22 and D <= 5
    L.c("the order of the other members, and of the two steps of a member, differs between groups: few fetch a row first")
    L.e(f"s_lshr_b32 s{S_T1}, s{S_GL}, 1")
    L.e(f"s_lshl_b32 s{S_T1}, s{S_T1}, 3")
    L.e(f"s_lshr_b32 s51, {hex(ROTTAB)}, s{S_T1}")
    L.e(f"s_and_b32 s52, s{S_GL}, {1 if P['wrot'] == 1 else 0}")
    L.e(f"s_mov_b32 s53, s{S_LB}")
L.lab("L_ld2")
if P["wrot"]:
    L.e(f"s_xor_b32 s{S_T0}, s{S_N}, s52")
    L.e(f"s_and_b32 s{S_T0}, s{S_T0}, 7")
    L.e(f"s_lshl_b32 s{S_LB}, s{S_T0}, 14")
    L.e(f"s_add_u32 s{S_LB}, s{S_LB}, s53")
    L.e(f"s_and_b32 s{S_T1}, s{S_T0}, 6")
    L.e(f"s_lshr_b32 s{S_T1}, s51, s{S_T1}")
    L.e(f"s_add_u32 s{S_T1}, s{S_T1}, s{S_Q}")
    L.e(f"s_and_b32 s{S_T1}, s{S_T1}, 3")
    L.e(f"s_and_b32 s{S_T0}, s{S_T0}, 1")
    L.e(f"s_lshl1_add_u32 s{S_T0}, s{S_T1}, s{S_T0}")
    L.e(f"s_lshl_b32 s{S_WO}, s{S_T0}, 16")
if P["l2"] and P["fillpos"]:
    L.e(f"s_cmp_lg_u32 s{S_N}, {P['fillpos']}")
    L.e("s_cbranch_scc1 L_nofill")
    L.c("make the L2-local hand-off lines valid ahead of their readers; the values are not used")
    L.e("global_load_dword v10, v24, s[14:15]")
    L.lab("L_nofill")
for p in range(4):
    L.e(f"s_add_u32 m0, s{S_LB}, {hex(p * 4096)}" if p else f"s_mov_b32 m0, s{S_LB}")
    L.e(f"s_add_u32 s{S_T0}, s{S_WO}, {hex(p * 0x4000)}" if p else f"s_add_u32 s{S_N}, s{S_N}, 1")
    L.e(f"buffer_load_dwordx4 v3, {sq(SRD_B)}, s{S_T0 if p else S_WO} offen lds")
if not P["wrot"]:
    L.e(f"s_add_u32 s{S_LB}, s{S_LB}, 0x4000")
    L.e(f"s_add_u32 s{S_WO}, s{S_WO}, 0x10000")
    L.e(f"s_and_b32 s{S_WO}, s{S_WO}, 0x7ffff")
L.e(f"s_cmp_lt_u32 s{S_N}, {16 + D + P['cap']}")
L.e("s_cbranch_scc0 L_ld3")
L.e(f"s_waitcnt vmcnt({4 * (D - 1)})")
L.e("s_barrier")
L.e("s_branch L_ld2")
if P["fp"]:
    L.lab("L_ld3")
    L.e(f"s_waitcnt vmcnt({P['thr']})")
    L.e(f"s_cmp_lt_u32 s{S_N}, 22")
    L.e("s_cbranch_scc1 L_ld2")
    L.e(f"s_cmp_gt_u32 s{S_N}, 22")
    L.e("s_cbranch_scc1 L_ld4")
    if P["prime"]:
        L.c("bring the progress line into the L2 early; this value is not used")
        L.e("global_load_dword v16, v12, s[18:19] offset:256 sc1")
    L.e(f"s_lshl_b32 s{S_T0}, s{S_W}, 2")
    L.e(f"s_add_u32 s{S_T0}, s{S_T0}, {LDS_RDY}")
    L.e(f"v_mov_b32 v8, s{S_T0}")
    L.e(f"s_cmp_lt_u32 s{S_W}, 6")
    L.e(f"s_cselect_b32 s{S_T0}, 2, 1")
    L.e(f"v_mov_b32 v9, s{S_T0}")
    L.e(f"v_mov_b32 v13, {LDS_RDY}")
    L.e(f"s_mov_b32 s{S_CNT}, 0")
    L.e("s_waitcnt vmcnt(0)")
    L.e("ds_write_b32 v8, v9")
    L.e("s_barrier")
    L.e("s_cbranch_scc1 L_ld5")
    L.c("waves 6 and 7 bring the last two steps: their own pieces, then those of waves 4 and 5")
    L.lab("L_ld4")
    L.e(f"s_cmp_lg_u32 s{S_N}, 24")
    L.e("s_cbranch_scc1 L_ld4b")
    L.e("v_subrev_u32 v3, 0x2000, v3")
    L.e(f"s_sub_u32 s{S_LB}, s{S_LB}, 0x8800")
    L.e(f"s_sub_u32 s{S_WO}, s{S_WO}, 0x20000")
    L.e(f"s_and_b32 s{S_WO}, s{S_WO}, 0x7ffff")
    L.lab("L_ld4b")
    L.e(f"s_cmp_lt_u32 s{S_N}, 26")
    L.e("s_cbranch_scc1 L_ld2")
    L.e("v_mov_b32 v9, 2")
    L.e("s_waitcnt vmcnt(0)")
    L.e("ds_write_b32 v8, v9")
    L.lab("L_ld5")
    L.stamp()
elif P["b16a"] is None:
    L.lab("L_ld3")
    assert P["thr"] <= 16 and D <= 6
    L.e(f"s_waitcnt vmcnt({P['thr']})")
    assert P.get("n16", 22) <= 22 + P["cap"]
    L.e(f"s_cmp_lg_u32 s{S_N}, {P.get('n16', 22)}")
    L.e("s_cbranch_scc1 L_ld4")
    if P["prime"]:
        L.c("bring the progress line into the L2 early; this value is not used")
        L.e("global_load_dword v16, v12, s[18:19] offset:256 sc1")
    L.e("s_barrier")
    L.lab("L_ld4")
    L.e(f"s_cmp_lt_u32 s{S_N}, 24")
    L.e("s_cbranch_scc1 L_ld2")
    L.e(f"s_lshl_b32 s{S_T0}, s{S_W}, 2")
    L.e(f"s_add_u32 s{S_T0}, s{S_T0}, {LDS_RDY}")
    L.e(f"v_mov_b32 v8, s{S_T0}")
    L.e("v_mov_b32 v9, 1")
    L.e(f"v_mov_b32 v13, {LDS_RDY}")
    L.e(f"s_mov_b32 s{S_CNT}, 0")
    L.e("s_waitcnt vmcnt(0)")
    L.e("ds_write_b32 v8, v9")
    L.stamp()
else:
    L.lab("L_ld3")
    assert 16 + D <= P["na"] <= 22
    L.e(f"s_cmp_lg_u32 s{S_N}, {P['na']}")
    L.e("s_cbranch_scc1 L_ld4")
    L.e("s_barrier")
    L.lab("L_ld4")
    L.e(f"s_waitcnt vmcnt({P['thr']})")
    L.e(f"s_cmp_lt_u32 s{S_N}, 24")
    L.e("s_cbranch_scc1 L_ld2")
    if P["prime"]:
        L.c("bring the progress line into the L2 early; this value is not used")
        L.e("global_load_dword v16, v12, s[18:19] offset:256 sc1")
    L.e(f"v_mov_b32 v13, {LDS_RDY}")
    L.e(f"s_mov_b32 s{S_CNT}, 0")
    if P["wbar"]:
        L.e(f"s_waitcnt vmcnt({int(bool(P['prime']))})")
        L.stamp()
        L.e("s_barrier")
    else:
        L.e(f"s_lshl_b32 s{S_T0}, s{S_W}, 2")
        L.e(f"s_add_u32 s{S_T0}, s{S_T0}, {LDS_RDY}")
        L.e(f"v_mov_b32 v8, s{S_T0}")
        L.e("v_mov_b32 v9, 1")
        L.e("s_barrier")
        L.e("s_waitcnt vmcnt(0)")
        L.e("ds_write_b32 v8, v9")
        L.stamp()
L.e(f"s_cmp_lg_u32 s{S_W}, 4")
L.e("s_cbranch_scc1 L_fin")
L.c("wave 4: relay the smallest progress word of the group into LDS")
L.lab("L_poll")
L.e("global_load_dwordx4 v[16:19], v12, s[18:19] offset:256 sc1")
L.e(f"s_add_u32 s{S_CNT}, s{S_CNT}, 1")
L.e("s_waitcnt vmcnt(0)")
L.e("v_min3_u32 v16, v16, v17, v18")
L.e("v_min_u32 v16, v16, v19")
L.e("s_nop 1")
L.e("v_min_u32_dpp v16, v16, v16 quad_perm:[1,0,3,2] row_mask:0xf bank_mask:0xf")
L.e("s_nop 1")
L.e("v_min_u32_dpp v16, v16, v16 quad_perm:[2,3,0,1] row_mask:0xf bank_mask:0xf")
L.e("ds_write_b32 v13, v16")
L.e(f"v_readfirstlane_b32 s{S_T0}, v16")
L.e(f"s_cmp_ge_u32 s{S_CNT}, 0x1000000")
L.e(f"s_cselect_b32 s{S_T0}, 5, s{S_T0}")
L.e(f"s_cmp_lt_u32 s{S_T0}, {4 + bool(P['l2'])}")
L.e("s_cbranch_scc1 L_poll")
L.lab("L_fin")
L.stamp()
L.dump_stamps()
L.lab("L_exit")
L.e("s_endpgm")

C = Prog(); C.nst = h.nst; C.is_c = True
if P["codepf"]: C.vq.append("code")
AD = list(range(2, 10))
VL16, VXW, VFL, VXR, VT0, VT1, VSW, VSR, VOUT, VRDY = 10, 11, 12, 13, 14, 15, 16, 17, 18, 19
RA, RH, RX, RBI, RS = 20, 84, 116, 148, 164
VFS, VM = 170, 171
RF = 172; NPOOL = (256 - RF) // 4
SRD_WS, SRD_OUT, SRD_WO = SRD_A, SRD_B, SRD_C
C.lab("L_compute")
C.c("---------------- compute waves")
if P.get("prioc"): C.e(f"s_setprio {P['prioc']}")
T = RH
vG, vC, vEMBA, vSIGA, vT0A, vSIG, vEMB, vEP, vZ, vANN, vJ, vL4, vTCH, vBW, vBR, vCHK, vCHA = \
    T, T+1, T+2, T+3, T+4, T+5, T+6, T+7, T+8, T+12, T+14, T+15, T+16, T+17, T+18, T+26, T+28
C.e(f"s_lshl_b32 s{S_T0}, s{S_Q}, 8")
C.e(f"v_lshl_add_u32 v{vEMBA}, v1, 2, s{S_T0}")
C.e(f"s_lshr_b32 s{S_T0}, s{S_TILE}, 21")
C.e(f"v_mov_b32 v{vSIGA}, s{S_T0}")
C.c("thread 0 resets this workgroup's four progress words, then announces that (and its XCD) under this launch's tag")
C.e(f"v_lshlrev_b32 v{vT0A}, 24, v0")
for i in range(4): C.e(f"v_mov_b32 v{vZ+i}, 0")
C.e(f"s_lshl_b32 s{S_EP}, s{S_G}, {9 if P['lay'] else 18}")
C.e(f"s_lshl4_add_u32 s{S_T2}, s{S_Q}, s{S_EP}")
C.e(f"s_mov_b32 s{SRD_WS+2}, {hex(WS_BYTES)}"); C.e(f"s_mov_b32 s{SRD_WS+3}, 0x20000")
C.e(f"s_getreg_b32 s{S_XCC}, hwreg(HW_REG_XCC_ID, 0, 4)")
C.e("s_waitcnt lgkmcnt(0)")
C.vm(f"global_load_ushort v{vSIG}, v{vSIGA}, s[6:7]", "sig")
C.vm(f"global_load_dword v{vEMB}, v{vEMBA}, s[10:11]", "emb")
C.e(f"s_mov_b64 {sp(SRD_WS)}, s[18:19]")
C.vm(f"buffer_load_dword v{vEP}, v{vZ}, {sq(SRD_WS)}, s{S_EP} offen sc1", "ep")
C.vm(f"buffer_store_dwordx4 {q4(vZ)}, v{vT0A}, {sq(SRD_WS)}, s{S_T2} offen offset:256 sc1", "clr")
for t in [
    f"v_lshrrev_b32 v{vG}, 4, v1", f"v_bfe_u32 v{vC}, v1, 2, 2", f"v_lshlrev_b32 v{vC}, 6, v{vC}",
    f"v_lshl_add_u32 v{AD[0]}, v{vG}, 10, v{vC}", f"v_and_b32 v{vC}, 1, v{vG}", f"v_lshl_add_u32 v{AD[0]}, v{vC}, 5, v{AD[0]}",
    f"v_and_b32 v{vC}, 3, v1", f"v_lshl_add_u32 v{AD[6]}, v{vC}, 3, v{AD[0]}",
    f"s_lshl_b32 s{S_T0}, s{S_W}, 8", f"v_add_u32 v{AD[2]}, s{S_T0}, v{AD[6]}",
    f"s_and_b32 s{S_T3}, s{S_W}, 1", f"s_lshl_b32 s{S_T1}, s{S_T3}, 9",
    f"v_add_u32 v{AD[0]}, s{S_T1}, v{AD[6]}",
    f"v_xor_b32 v{AD[1]}, 32, v{AD[0]}", f"v_xor_b32 v{AD[3]}, 32, v{AD[2]}",
    f"v_xor_b32 v{AD[4]}, 0x100, v{AD[2]}", f"v_xor_b32 v{AD[5]}, 0x100, v{AD[3]}",
    f"s_lshl_b32 s{S_T1}, s{S_T3}, 14", f"v_add_u32 v{AD[6]}, s{S_T1}, v{AD[6]}",
    f"s_mov_b64 {sp(SRD_WO)}, s[12:13]", f"s_mov_b32 s{SRD_WO+2}, 0x80000", f"s_mov_b32 s{SRD_WO+3}, 0x20000",
    f"s_mov_b64 {sp(SRD_OUT)}, s[14:15]", f"s_mov_b32 s{SRD_OUT+2}, 0x800000", f"s_mov_b32 s{SRD_OUT+3}, 0x20000",
    f"v_lshrrev_b32 v{vL4}, 2, v1", f"v_and_b32 v{vJ}, 15, v1",
    f"s_lshl_b32 s{S_T0}, s{S_GL}, 16", f"s_lshl_b32 s{S_T1}, s{S_W}, 14", f"s_add_u32 s{S_T0}, s{S_T0}, s{S_T1}",
    f"s_lshl_b32 s{S_T1}, s{S_Q}, 8", f"s_add_u32 s{S_T0}, s{S_T0}, s{S_T1}",
    f"v_lshl_add_u32 v{vTCH}, v{vL4}, 10, s{S_T0}", f"v_lshl_add_u32 v{vTCH}, v{vC}, 6, v{vTCH}",
    f"s_lshl2_add_u32 s{S_T2}, s{S_W}, s{S_T2}", f"v_lshl_add_u32 v{VFL}, v1, 24, s{S_T2}",
    f"v_lshlrev_b32 v{vCHA}, 3, v{vC}", f"s_mov_b32 s{S_MODE}, 0",
    f"s_lshl_b32 s{S_T0}, s{S_W}, 9", f"s_add_u32 s{S_T0}, s{S_T0}, {LDS_BIAS}", f"v_lshl_add_u32 v{vBW}, v1, 3, s{S_T0}",
    f"s_lshl_b32 s{S_T1}, s{S_T3}, 8", f"s_add_u32 s{S_T0}, s{S_T0}, s{S_T1}",
    f"v_lshl_add_u32 v{vBR}, v{vG}, 4, s{S_T0}",
    f"s_mul_i32 s{S_T0}, s{S_W}, 5120", f"s_add_u32 s{S_T0}, s{S_T0}, {LDS_STG}",
    f"v_lshlrev_b32 v{VL16}, 4, v1", f"v_add_u32 v{VXW}, s{S_T0}, v{VL16}",
    f"v_mul_u32_u24 v{VSW}, 80, v{vJ}", f"v_lshl_add_u32 v{VSW}, v{vG}, 3, v{VSW}", f"v_add_u32 v{VSW}, s{S_T0}, v{VSW}",
    f"v_mul_u32_u24 v{VSR}, 80, v{vL4}", f"v_lshl_add_u32 v{VSR}, v{vC}, 4, v{VSR}", f"v_add_u32 v{VSR}, s{S_T0}, v{VSR}",
    f"s_xor_b32 s{S_T0}, s{S_W}, 1", f"s_mul_i32 s{S_T0}, s{S_T0}, 5120", f"s_add_u32 s{S_T0}, s{S_T0}, {LDS_STG}",
    f"v_add_u32 v{VXR}, s{S_T0}, v{VL16}",
    f"s_lshl_b32 s{S_T0}, s{S_Q}, 20", f"s_add_u32 s{S_T0}, s{S_T0}, s{S_TILE}", f"s_lshl_b32 s{S_T1}, s{S_W}, 6",
    f"s_add_u32 s{S_T0}, s{S_T0}, s{S_T1}", f"v_lshl_add_u32 v{VOUT}, v{vL4}, 13, s{S_T0}", f"v_lshl_add_u32 v{VOUT}, v{vC}, 4, v{VOUT}",
    f"v_mov_b32 v{VRDY}, {LDS_RDY}", f"s_sub_u32 s{S_OWN}, 0, s{S_GL}", f"s_and_b32 s{S_OWN}, s{S_OWN}, 3", f"s_mov_b32 s{S_OB}, 0",
    f"s_lshl_b32 s{S_T1}, s{S_W}, 12", f"s_add_u32 s{S_T1}, s{S_T1}, s{S_EP}", f"s_add_u32 s{S_T1}, s{S_T1}, 0x10000",
    ]: C.e(t)
if P["cap"]:
    C.e(f"s_lshl_b32 s{S_T0}, s{S_OWN}, 14"); C.e(f"v_add_u32 v{AD[7]}, s{S_T0}, v{AD[2]}"); C.e(f"v_add_u32 v{VT0}, s{S_T0}, v{AD[3]}")
if P["hl"] < 1024:
    sh = P["hl"].bit_length() - 1 - 4
    C.e(f"v_lshrrev_b32 v{VT1-1 if False else vANN}, {sh}, v1"); C.e(f"v_and_b32 v{VL16}, {(1 << sh) - 1}, v1"); C.e(f"v_lshlrev_b32 v{VL16}, 4, v{VL16}")
    C.e(f"v_lshl_add_u32 v{VL16}, v{vANN}, {sh + 6 + (P['lay'] == 1)}, v{VL16}")
if P["lay"] == 1:
    C.e(f"s_lshl4_add_u32 s{S_T1}, s{S_G}, s{S_W}"); C.e(f"s_lshl_b32 s{S_T1}, s{S_T1}, 13"); C.e(f"s_add_u32 s{S_T1}, s{S_T1}, 0x8000")
if P["lay"] == 2:
    C.e(f"s_lshl4_add_u32 s{S_T1}, s{S_G}, s{S_W}"); C.e(f"s_lshl_b32 s{S_T1}, s{S_T1}, 12"); C.e(f"s_add_u32 s{S_T1}, s{S_T1}, 0x8000")
if P["full"]:
    for t in [f"s_lshl_b32 s{S_T0}, s{S_Q}, 20", f"s_add_u32 s{S_T0}, s{S_T0}, s{S_TILE}", f"s_lshl_b32 s{S_CNT}, s{S_W}, 16",
              f"s_add_u32 s{S_T0}, s{S_T0}, s{S_CNT}", f"v_lshl_add_u32 v{VOUT}, v{vG}, 13, s{S_T0}", f"v_lshl_add_u32 v{VOUT}, v{vJ}, 4, v{VOUT}",
              f"s_lshl_b32 s{S_T0}, s{S_W}, 6", f"s_add_u32 s{S_T0}, s{S_T0}, {LDS_STG}",
              f"v_mul_u32_u24 v{VSW}, 0x110, v{vJ}", f"v_lshl_add_u32 v{VSW}, v{vG}, 3, v{VSW}", f"v_add_u32 v{VSW}, s{S_T0}, v{VSW}",
              f"s_mul_i32 s{S_T0}, s{S_W}, {8 * 272}", f"s_add_u32 s{S_T0}, s{S_T0}, {LDS_STG}",
              f"v_mul_u32_u24 v{VSR}, 0x110, v{vG}", f"v_lshl_add_u32 v{VSR}, v{vJ}, 4, v{VSR}", f"v_add_u32 v{VSR}, s{S_T0}, v{VSR}"]: C.e(t)
OWNR = {0: S_Q, 1: 41, 2: 42, 3: 43}
if P["rmask"]:
    C.e(f"s_add_u32 s{S_T3}, s{S_Q}, s{S_GL}")
    for k in set(P["rmask"]) - {0}:
        C.e(f"s_and_b32 s{OWNR[k]}, s{S_T3}, {k}"); C.e(f"s_xor_b32 s{OWNR[k]}, s{OWNR[k]}, s{S_Q}")
if P["wrot"]:
    C.e(f"s_lshr_b32 s{S_CNT}, s{S_GL}, 1"); C.e(f"s_lshl_b32 s{S_CNT}, s{S_CNT}, 3"); C.e(f"s_lshr_b32 s{S_CNT}, {hex(ROTTAB)}, s{S_CNT}")
for m in range(4):
    if P["wrot"]:
        C.e(f"s_add_u32 s{S_T3}, s{S_Q}, s{S_CNT}"); C.e(f"s_lshr_b32 s{S_CNT}, s{S_CNT}, 2")
    else: C.e(f"s_add_u32 s{S_T3}, s{S_Q}, {m}")
    C.e(f"s_and_b32 s{S_T3}, s{S_T3}, 3"); C.e(f"s_lshl_b32 s{S_T3}, s{S_T3}, {14 + (P['lay'] == 1)}")
    C.e(f"s_add_u32 s{S_MB[m, 1]}, s{S_T3}, s{S_T1}")
    C.e(f"s_xor_b32 s{S_MB[m, 0]}, s{S_MB[m, 1]}, {hex((0x2000 if P['lay'] == 1 else 0x1000) * (m > 0))}")
    C.e(f"s_add_u32 s{S_MB[m, 0]}, s{S_MB[m, 0]}, {hex((0x10000, 4 * P['hl'], 0x400000)[P['lay']])}")
    if P["l2"]:
        C.e(f"s_lshl_b32 s{S_T3}, s{S_T3}, {6 - (P['lay'] == 1)}"); C.e(f"s_xor_b32 s{S_T0}, s{S_W}, {int(m > 0 and LS == 0)}"); C.e(f"s_add_u32 s{S_T0}, s{S_T0}, 4")
        C.e(f"s_lshl_b32 s{S_T0}, s{S_T0}, 17"); C.e(f"s_add_u32 s{S_MB[m, LS]}, s{S_T3}, s{S_T0}")

if P["l2"]:
    for t in [f"v_lshrrev_b32 v{VM}, 3, v1", f"v_lshlrev_b32 v{VM}, 13, v{VM}", f"v_and_b32 v{VFS}, 7, v1",
              f"v_lshl_add_u32 v{VM}, v{VFS}, 4, v{VM}", f"v_add_u32 v{VM}, s{S_TILE}, v{VM}", f"v_mov_b32 v{VFS}, 2.0"]: C.e(t)
F = []
F.append(lambda: C.vneed("clr", "ep", "sig", "emb"))
F += [f"v_readfirstlane_b32 s{S_T3}, v{vEP}",
      f"s_mul_i32 s{S_H0}, s{S_T3}, {hex(HC0)}", f"s_add_u32 s{S_H0}, s{S_H0}, {hex(HK0)}",
      f"s_mul_i32 s{S_H1}, s{S_T3}, {hex(HC1)}", f"s_add_u32 s{S_H1}, s{S_H1}, {hex(HK1)}",
      f"s_add_u32 s{S_H0}, s{S_H0}, s{S_XCC}", f"s_add_u32 s{S_H1}, s{S_H1}, s{S_XCC}",
      f"v_mov_b32 v{vANN}, s{S_H0}", f"v_mov_b32 v{vANN+1}, s{S_H1}", f"s_lshl3_add_u32 s{S_T0}, s{S_Q}, s{S_EP}"]
F.append(lambda: C.vm(f"buffer_store_dwordx2 {q2(vANN)}, v{vT0A}, {sq(SRD_WS)}, s{S_T0} offen offset:128 sc1", "ann"))
F += [f"s_add_u32 s{S_EN}, s{S_T3}, 1"]
sg, a, b2, cs, cn = vSIG, T + 20, T + 21, T + 22, T + 23
def rnd(r): return [f"v_cvt_pk_bf16_f32 v{r}, v{r}, v{r}", f"v_lshlrev_b32 v{r}, 16, v{r}"]
F += [f"v_lshlrev_b32 v{sg}, 16, v{sg}", f"v_mul_f32 v{a}, v{sg}, v{sg}"] + rnd(a)
F += [f"v_add_f32 v{a}, 0x3e800000, v{a}"] + rnd(a)
F += [f"v_rcp_f32 v{cs}, v{a}", f"v_sqrt_f32 v{a}, v{a}"] + rnd(cs) + rnd(a)
F += [f"v_mul_f32 v{cs}, 0x3e800000, v{cs}", f"v_rcp_f32 v{a}, v{a}", f"v_lshrrev_b32 v{cs}, 16, v{cs}", f"v_mul_f32 v{b2}, 0.5, v{sg}"]
F += [f"v_mul_f32 v{b2}, v{b2}, v{a}"] + rnd(b2) + rnd(a)
F += [f"v_log_f32 v{cn}, v{sg}", f"v_mul_f32 v{a}, 0xbfb8aa3b, v{a}", f"v_mul_f32 v{cn}, 0x3f317218, v{cn}"] + rnd(cn)
F += [f"v_max_f32 v{b2}, 0x03800000, v{b2}", f"v_mul_f32 v{b2}, 0xbf317218, v{b2}", f"v_rcp_f32 v{b2}, v{b2}"]
F += [f"v_mul_f32 v{cn}, 0x3e800000, v{cn}"]
F += [f"v_readfirstlane_b32 s{S_S1}, v{a}", f"v_readfirstlane_b32 s{S_IK}, v{b2}", f"s_mov_b32 s{S_S1+1}, s{S_S1}", f"s_mov_b32 s{S_IK+1}, s{S_IK}"]
e0, e1 = T + 24, T + 25
F += [f"v_lshlrev_b32 v{e0}, 16, v{vEMB}", f"v_and_b32 v{e1}, 0xffff0000, v{vEMB}",
      f"v_mul_f32 v{e0}, v{cn}, v{e0}", f"v_mul_f32 v{e1}, v{cn}, v{e1}",
      f"v_cvt_pk_bf16_f32 v{e1}, v{e0}, v{e1}", f"v_lshlrev_b32 v{e0}, 16, v{e1}", f"v_and_b32 v{e1}, 0xffff0000, v{e1}",
      f"v_mul_f32 v{e0}, 0xbfb8aa3b, v{e0}", f"v_mul_f32 v{e1}, 0xbfb8aa3b, v{e1}"]
F.append(("lds", f"ds_write_b64 v{vBW}, {q2(e0)}", "biasw"))
for i in range(4):
    F.append(("lds", f"ds_read_b128 {q4(RBI + 4 * i)}, v{vBR} offset:{i * 64}", "bias"))
F += [f"v_and_b32 v{e0}, 1, v1", f"v_lshlrev_b32 v{e0}, 4, v{e0}", f"v_lshlrev_b32 v{cs}, v{e0}, v{cs}",
      f"v_lshrrev_b32 v{e0}, 1, v{vJ}", f"v_lshlrev_b32 v{e1}, 1, v{vG}", f"v_sub_u32 v{e0}, v{e0}, v{e1}",
      f"v_cmp_eq_u32 vcc, 0, v{e0}", f"v_mov_b32 v{RS}, 0", f"v_cndmask_b32 v{RS+2}, 0, v{cs}, vcc",
      f"v_cmp_eq_u32 vcc, 1, v{e0}", f"v_mov_b32 v{RS+1}, 0", f"v_cndmask_b32 v{RS+3}, 0, v{cs}, vcc",
      f"v_mov_b32 v{RS+4}, 0", f"v_mov_b32 v{RS+5}, 0"]
def ann_check():
    C.e(f"s_or_b64 vcc, vcc, {sp(S_MSK)}")
    if P.get("forceslow"): C.e("s_cmp_eq_u32 0, 0")
    C.e("s_cbranch_scc1 L_ann_wait")
    C.lab("L_ann_ok")
G = [lambda: (C.c("all four members have reset their progress words in this launch, and one L2 serves all of them"), C.vneed("chk", "touch")),
     f"v_cmp_ne_u32 vcc, s{S_H0}, v{vCHK}", f"v_cmp_ne_u32 {sp(S_MSK)}, s{S_H1}, v{vCHK+1}", f"v_mov_b32 v{AD[0]}, v{AD[6]}", ann_check,
     f"v_xor_b32 v{AD[2]}, 32, v{AD[0]}", f"v_xor_b32 v{AD[4]}, 0x4000, v{AD[0]}", f"v_xor_b32 v{AD[6]}, 0x4000, v{AD[2]}"]
G += [f"v_add_u32 v{AD[r+1]}, 0x10000, v{AD[r]}" for r in (0, 2, 4, 6)]
C.tail += ["L_ann_wait:", f"    s_mov_b32 s{S_CNT}, 0",
           f"    s_sub_u32 s{S_H0}, s{S_H0}, s{S_XCC}", f"    s_sub_u32 s{S_H1}, s{S_H1}, s{S_XCC}", "L_ann_l:",
           f"    buffer_load_dwordx2 {q2(vCHK)}, v{vCHA}, {sq(SRD_WS)}, s{S_EP} offen offset:128 sc1",
           f"    s_add_u32 s{S_CNT}, s{S_CNT}, 1", "    s_waitcnt vmcnt(0)",
           f"    v_subrev_u32 v{vCHK}, s{S_H0}, v{vCHK}", f"    v_subrev_u32 v{vCHK+1}, s{S_H1}, v{vCHK+1}",
           f"    v_cmp_ne_u32 vcc, v{vCHK}, v{vCHK+1}", f"    v_cmp_le_u32 {sp(S_MSK)}, 16, v{vCHK}",
           f"    s_cmp_ge_u32 s{S_CNT}, 0x1000000", "    s_cbranch_scc1 L_ann_ok",
           f"    s_or_b64 vcc, vcc, {sp(S_MSK)}", "    s_cbranch_scc1 L_ann_l",
           f"    v_cmp_ne_u32 vcc, s{S_XCC}, v{vCHK}", "    s_nop 1", "    s_cmp_lg_u64 vcc, 0"]
if not P.get("forceslow"): C.tail += ["    s_cbranch_scc0 L_ann_ok"]
C.tail += ["    ; members on several XCDs: the L2-local progress stores fall out of range; L_slow stores through memory instead",
           f"    s_mov_b32 s{S_MODE}, 1", f"    v_mov_b32 v{VFS}, v{VFL}", f"    v_mov_b32 v{VFL}, 2.0"]
if P["l2"]: C.tail += [f"    v_or_b32 v{VM}, 2.0, v{VM}"]
C.tail += ["    s_branch L_ann_ok"]

if P.get('nofill'): F = F[:13]
class Pool:
    def __init__(s, regs): s.free = list(regs); s.rel = []
    def get(s, now):
        s.free += [r for t, r in s.rel if t <= now]; s.rel = [(t, r) for t, r in s.rel if t > now]
        assert s.free, "fragment pool empty"
        return s.free.pop(0)
    def put(s, t, r): s.rel.append((t, r))

def stream(units, read, pool):
    firstuse, lastuse = {}, {}
    for i, u in enumerate(units):
        for k in u:
            firstuse.setdefault(k, i); lastuse[k] = i
    rq = [(k, i) for k in sorted(firstuse, key=lambda k: firstuse[k]) for i in range(2)]
    reg = {}
    def issue(now):
        k, i = rq.pop(0)
        if i == 0:
            reg[k] = pool.get(now); pool.put(lastuse[k] + 2, reg[k])
        read(k, i, reg[k])
    return rq, reg, issue, firstuse
def run(f):
    if isinstance(f, str): C.e(f)
    elif isinstance(f, tuple): C.lds(f[1], f[2])
    else: f()

SEQ = [(0,0),(0,1),(1,1),(1,0),(1,2),(0,2),(2,2),(2,1),(2,0),(2,3),(1,3),(0,3),(3,3),(3,2),(3,1),(3,0)]
u1 = [(("w", n, a), ("x", n, p)) for n in range(16) for a, p in SEQ]
def rd1(k, i, r):
    kind, n, t = k
    base = (n % 4) * 16384 + 8192 * i
    if kind == "w": a_, off = AD[t & 1], 4096 + 256 * (t >> 1)
    else: a_, off = AD[2 + 2 * (t >> 1) + (t & 1)], 0
    C.lds(f"ds_read_b64_tr_b16 {q2(r + 2 * i)}, v{a_} offset:{base + off}", k)
rq, reg, issue, fu = stream(u1, rd1, Pool([RF + 4 * i for i in range(NPOOL)]))
if P["pre"]:
    import re
    FA, FB = F[:13], F[13:]
    C.c("per-launch constants, while the first rows are still under way")
    C.vneed("sig", "emb")
    prev = ""
    for f in FB + (FA if P["pre"] == 2 else []):
        if isinstance(f, str):
            d = re.match(r"(v_\w+) (v\d+|vcc),", prev)
            if d and re.search(rf"\b{d.group(2)}\b", f.split(",", 1)[1]):
                if d.group(1).startswith(("v_rcp", "v_sqrt", "v_log")) or f.startswith("v_readfirstlane"): C.e("s_nop 0")
            if f.startswith("v_cndmask"): C.e("s_nop 0")
            prev = f
        run(f)
    F = FA if P["pre"] == 1 else []
C.stamp()
C.e("s_barrier")
C.stamp()
barred = 0
def issue1(now):
    global barred
    n = rq[0][0][1]
    if n > barred:
        barred = n
        if n % 4 == 0:
            assert not any(t[0] == "cap" for t in C.lq if isinstance(t, tuple))
            for r in AD[:6] + ([AD[7], VT0] if P["cap"] else []): C.e(f"v_xor_b32 v{r}, 0x10000, v{r}")
        C.e("s_barrier")
        if P["cap"] and n % 4 == 3:
            C.c("keep this member's own rows of x (all four slots of the round are still in place)")
            for t in range(2):
                for i in range(2): C.lds(f"ds_read_b64_tr_b16 {q2(RX + 8 * (n // 4) + 4 * t + 2 * i)}, v{(AD[7], VT0)[t]} offset:{8192 * i}", ("cap", n))
        if n == P.get("afill"):
            C.e(f"v_lshlrev_b32 v{vTCH}, 13, v{vL4}"); C.e(f"v_lshl_add_u32 v{vTCH}, v{vC}, 6, v{vTCH}"); C.e(f"v_add_u32 v{vTCH}, s{S_TILE}, v{vTCH}")
            C.vm(f"buffer_atomic_or v{vZ}, v{vTCH}, {sq(SRD_OUT)}, s{S_MB[0, LS]} offen", "touch")
        if n == P["wo_touch"]:
            C.c("this workgroup's share of w_out into the L2; the values are not used")
            C.vm(f"buffer_load_dword v{VT1}, v{vTCH}, {sq(SRD_WO)}, 0 offen", "touch")
        if n == P['chkn']: C.vm(f"buffer_load_dwordx2 {q2(vCHK)}, v{vCHA}, {sq(SRD_WS)}, s{S_EP} offen offset:128 sc1", "chk")
    issue(now)
for _ in range(P["lead"]): issue1(0)
for i, (ka, kb) in enumerate(u1):
    if i and i % 64 == 0 and not P["xs"]: C.stamp()
    if i in P.get("xs1", ()):
        C.stamp(); C.smem = False
    C.need(ka, kb)
    acc = RA + 4 * (4 * kb[2] + ka[2])
    if not (P.get("skip1") and i >= 16 and i % P["skip1"] == 0):
        C.e(f"v_mfma_f32_16x16x32_bf16 {q4(acc)}, {q4(reg[ka])}, {q4(reg[kb])}, {'0' if i < 16 else q4(acc)}")
    if rq: issue1(i)
    elif G: run(G.pop(0))
    if P["cap"] and i == 256 - P["lead"]:
        assert not any(t[0] == "cap" for t in C.lq if isinstance(t, tuple)) and D <= 4 and PERM == list(range(16)) and not P["rmask"]
        C.e("s_barrier")
    if i % 16 == 9 and not P.get('nocap') and not P["cap"]:
        n = i // 16
        C.e(f"s_cmp_eq_u32 s{OWNR[P['rmask'][PERM[n] // 4]] if P['rmask'] else S_OWN}, {PERM[n] & 3}")
        C.e(f"s_cbranch_scc0 L_keep{n}")
        for t in range(2):
            for o in range(4): C.e(f"v_mov_b32 v{RX + 8 * (PERM[n] // 4) + 4 * t + o}, v{reg['x', n, t] + o}")
        C.lab(f"L_keep{n}")
        continue
    waited = i + 1 < len(u1) and C.need(*u1[i + 1])
    if F and i >= P["fstart"] and not waited: run(F.pop(0))
for f in G: run(f)
assert not F and not C.lq
if P["b16a"] == -3: C.e("s_barrier")
C.stamp()

DQ = RF + 4
def hreg(p, kk): return RH + 4 * (2 * p + kk)
def flag(j):
    if not (P["exp"] & 2): C.vneed(("st", j))
    C.e(f"v_mov_b32 v{VT1}, {j + 1}")
    C.vm(f"buffer_store_dword v{VT1}, v{VFL}, {sq(SRD_WS)}, 0 offen offset:256", ("fl", j))
def check(name, v, done=False):
    rdi = f"ds_read_b128 {q4(DQ)}, v{VRDY} offset:16" if done else f"ds_read_b32 v{VT0}, v{VRDY}"
    red = [f"    v_min3_u32 v{VT0}, v{DQ}, v{DQ+1}, v{DQ+2}", f"    v_min_u32 v{VT0}, v{VT0}, v{DQ+3}", "    s_nop 0"] if done else []
    C.e(f"s_cmp_ge_u32 s{S_T1}, {v}")
    if name in P["inl"]:
        C.e(f"s_cbranch_scc1 L_back{name}")
        C.e(f"s_mov_b32 s{S_CNT}, 0")
        C.lab(f"L_spin{name}_l")
        for t in [rdi, f"s_add_u32 s{S_CNT}, s{S_CNT}, 1", "s_waitcnt lgkmcnt(0)", *[x.strip() for x in red], f"v_readfirstlane_b32 s{S_T1}, v{VT0}",
                  f"s_cmp_ge_u32 s{S_CNT}, 0x4000000", f"s_cselect_b32 s{S_T1}, {v}, s{S_T1}", f"s_cmp_ge_u32 s{S_T1}, {v}", f"s_cbranch_scc0 L_spin{name}_l"]: C.e(t)
        C.lab(f"L_back{name}")
        if not done and not P["xs"]: C.stamp()
        return
    if not (P["exp"] & 1) or done: C.e(f"s_cbranch_scc0 L_spin{name}")
    C.lab(f"L_back{name}")
    if not done and not P["xs"]: C.stamp()
    C.tail += [f"L_spin{name}:", f"    s_mov_b32 s{S_CNT}, 0", f"L_spin{name}_l:",
               "    " + rdi, f"    s_add_u32 s{S_CNT}, s{S_CNT}, 1", "    s_waitcnt lgkmcnt(0)", *red,
               f"    v_readfirstlane_b32 s{S_T1}, v{VT0}", f"    s_cmp_ge_u32 s{S_CNT}, 0x4000000", f"    s_cbranch_scc1 L_back{name}",
               f"    s_cmp_ge_u32 s{S_T1}, {v}", f"    s_cbranch_scc0 L_spin{name}_l", f"    s_branch L_back{name}"]

C.c("---- h = c_out * silu(c_in * acc + bias), two elements per packed op; the sibling's pixels first")
tiles = [(p0 + p, 2 * kk + a) for p0 in (2, 0) for kk in range(2) for p in range(2) for a in range(2)]
U = RF
def acc1(n): return RA + 4 * (4 * tiles[n][0] + tiles[n][1])
def ok(n): return 0 <= n < 16
def gstore(n):
    p, a = tiles[n]; kk = a >> 1
    if LS == 1 - p // 2:
        C.vm(f"buffer_store_dwordx4 {q4(hreg(p, kk))}, v{VM}, {sq(SRD_OUT)}, s{S_MB[0, LS]} offen offset:{(p & 1) * 128}", ("st", n // 4))
        if n % 8 == 3: C.e(f"s_add_u32 s{S_MB[0, LS]}, s{S_MB[0, LS]}, 0x10000")
    elif not (P["exp"] & 8) and not (P["exp"] & 64 and p >= 2):
        C.vm(f"buffer_store_dwordx4 {q4(hreg(p, kk))}, v{VL16}, {sq(SRD_WS)}, s{S_MB[0, 1 - p // 2]} offen offset:{(2 * kk + (p & 1)) * P['hl']}{POL[P.get('hpol', 'sc1')]}", ("st", n // 4))
def publish(n):
    p, a = tiles[n]; kk = a >> 1
    if P["hold"] is None: gstore(n)
    if p >= 2: C.lds(f"ds_write_b128 v{VXW}, {q4(hreg(p, kk))} offset:{((p & 1) * 2 + kk) * 1024}", "xw")
HOLD = P["hold"] or []
def xr(f):
    p2, kk = f & 1, f >> 1
    C.lds(f"ds_read_b128 {q4(hreg(2 + p2, kk))}, v{VXR} offset:{(p2 * 2 + kk) * 1024}", "xr")
for n in range(-2, 17):
    E = [f"v_exp_f32 v{acc1(n+1)+o}, v{U + 4*((n+1)&3) + o}" for o in range(4)] if ok(n + 1) else []
    M = [f"v_pk_mul_f32 {q2(acc1(n-1)+o)}, {q2(acc1(n-1)+o)}, {q2(U + 4*((n-1)&3) + o)}" for o in (0, 2)] if ok(n - 1) else []
    A1 = [f"v_pk_fma_f32 {q2(U + 4*((n+2)&3) + o)}, {q2(acc1(n+2)+o)}, {sp(S_S1)}, {q2(RBI + 4*tiles[n+2][1] + o)}" for o in (0, 2)] if ok(n + 2) else []
    R = [f"v_rcp_f32 v{acc1(n)+o}, v{acc1(n)+o}" for o in range(4)] if ok(n) else []
    if P.get("norcp"): R = []
    A2 = [f"v_pk_fma_f32 {q2(acc1(n+1)+o)}, {q2(acc1(n+1)+o)}, {sp(S_IK)}, {sp(S_IK)}" for o in (0, 2)] if ok(n + 1) else []
    V = []
    if ok(n - 1):
        p, a = tiles[n - 1]
        V = [f"v_cvt_pk_bf16_f32 v{hreg(p, a >> 1) + 2 * (a & 1) + o // 2}, v{acc1(n-1)+o}, v{acc1(n-1)+o+1}" for o in (0, 2)]
    def weave(a_, b_):
        r = []
        for i in range(max(len(a_), len(b_))): r += a_[i:i+1] + b_[i:i+1]
        return r
    if P["sil"]:
        if ok(n - 2) and n % 2 == 1: publish(n - 2)
        for t in weave(E, M + A1) + weave(R, V + A2): C.e(t)
    else:
        for t in E: C.e(t)
        if ok(n - 2) and n % 2 == 1: publish(n - 2)
        for t in M + A1 + R + A2 + V: C.e(t)
    if n == P["b16a"]: C.e("s_barrier")
    if n == 9 and LS == 0:
        C.e(f"s_cmp_lg_u32 s{S_MODE}, 0")
        C.e("s_cbranch_scc1 L_slow0")
        C.lab("L_slow0_done")
        C.tail += ["L_slow0:", f"    v_xor_b32 v{VM}, 2.0, v{VM}", f"    s_sub_u32 s{S_T0}, s{S_MB[0, 0]}, 0x10000"]
        C.tail += [f"    buffer_store_dwordx4 {q4(hreg(p, kk))}, v{VM}, {sq(SRD_OUT)}, s{S_MB[0, 0] if kk else S_T0} offen offset:{(p & 1) * 128} sc1" for p in (2, 3) for kk in range(2)]
        C.tail += ["    s_waitcnt vmcnt(0)", "    s_branch L_slow0_done"]
    if n == P["nb"]:
        C.need("xw")
        C.e("s_barrier")
        C.stamp()
    for f, pos in enumerate(HOLD):
        if pos == -n and n > 0:
            assert n >= 2 * f + 2
            gstore(2 * f + 1)
    if n == max([P["nb"]] + [-x for x in HOLD[:4]]):
        assert all(x < 0 for x in HOLD[:4])
        C.e("s_nop 0")
        for f in range(4): xr(f)
    for j in range(4):
        if P["fl"][j] is not None and P["fl"][j] == -n and n > 0:
            assert n >= 4 * j + 5
            flag(j)
publish(15)
def slow():
    C.e(f"s_cmp_lg_u32 s{S_MODE}, 0")
    C.e("s_cbranch_scc1 L_slow")
    C.lab("L_slow_done")
SLOWPOS = max(HOLD + [-1])
if SLOWPOS < 0: slow()
C.tail += ["L_slow:"]
if LS == 1:
    C.tail += [f"    v_xor_b32 v{VM}, 2.0, v{VM}", f"    s_sub_u32 s{S_T0}, s{S_MB[0, 1]}, 0x10000"]
    C.tail += [f"    buffer_store_dwordx4 {q4(hreg(p, kk))}, v{VM}, {sq(SRD_OUT)}, s{S_MB[0, 1] if kk else S_T0} offen offset:{(p & 1) * 128} sc1" for p in (0, 1) for kk in range(2)]
C.tail += [f"    v_mov_b32 v{VT1}, 4", "    s_waitcnt vmcnt(0) lgkmcnt(0)",
           f"    buffer_store_dword v{VT1}, v{VFS}, {sq(SRD_WS)}, 0 offen offset:256 sc1", "    s_waitcnt vmcnt(0)", "    s_branch L_slow_done"]
C.stamp()

poolq = [RF + 4 * i for i in range(NPOOL)]
rem = poolq[9:21] + [RBI + 4 * i for i in range(4)] + [RX + 4 * i for i in range(8)]
def rq_(j, m, p): return rem[6 * j + 2 * (m - 1) + p]
units = []
for t in range(2):
    for rho in range(4):
        for p in range(2): units.append((2 * rho + t, p, RX + 8 * rho + 4 * p, ("sel", t), True, None))
def snake(jts, areg, m, far, kk, tag):
    for n, jt in enumerate(jts):
        for p in ((0, 1) if n % 2 == 0 else (1, 0)):
            units.append((jt, p, areg(p), ("o", m, far, kk, jt), False, tag(p)))
for far in (1, 0):
    for kk in range(2): snake(range(8), lambda p: hreg(2 * far + p, kk), 0, far, kk, lambda p: "xr" if far else None)
steps = [(j, m) for j in range(4) for m in (1, 2, 3)]
if P['fp']: steps = [(0,1),(0,2),(1,1),(1,2),(0,3),(1,3)] + steps[6:]
nbm = 2 * P["bm"]
def remote(jts, j, m): snake(jts, lambda p: rq_(j, m, p), m, 1 - j // 2, j & 1, lambda p: ("pl", j, m, p))
for j, m in steps[:12 - nbm]: remote(range(8), j, m)
for blk in range(4):
    for j, m in steps[12 - nbm:]: remote((2 * blk, 2 * blk + 1), j, m)
NU = len(units)
def rd2(k, i, r):
    _, m, far, kk, jt = k
    base = (4 * m + kk) * 8192
    a_ = AD[4 * far + 2 * (jt & 1) + (base >= 65536)]
    C.lds(f"ds_read_b64_tr_b16 {q2(r + 2 * i)}, v{a_} offset:{base % 65536 + 4096 * i + 256 * (jt >> 1)}", k)
rq, reg, issue, fu = stream([(u[3],) if u[3][0] == "o" else () for u in units], rd2, Pool(poolq[2:9]))
first_remote = min(i for i, u in enumerate(units) if isinstance(u[5], tuple))
last = {blk: max(i for i, u in enumerate(units) if u[0] // 2 == blk) for blk in range(4)}
sched = {}
def at(i, kind, x): sched.setdefault(i, []).append((kind, x))
busy = []
def claim(a_, b_):
    assert a_ >= 0 and all(b_ < x or a_ > y for x, y in busy), ("checks overlap", a_, b_, busy)
    busy.append((a_, b_))
if P["fp"]: first_remote = min(i for i, u in enumerate(units) if u[3][0] == "o" and u[3][1] == 3)
iw = P.get("chkW", first_remote - P["pf2"] - 3)
assert iw <= first_remote - P["pf2"] - 3
if P['b16a'] is None or not P['wbar']:
    claim(iw - 3, iw)
    at(iw - 10, "m", lambda: C.lds(f"ds_read_b128 {q4(DQ)}, v{VRDY} offset:16", ("rdy", "W")))
    at(iw - 3, "m", lambda: C.need(("rdy", "W")))
    at(iw - 3, "v", f"v_min3_u32 v{VT0}, v{DQ}, v{DQ+1}, v{DQ+2}")
    at(iw - 2, "v", f"v_min_u32 v{VT0}, v{VT0}, v{DQ+3}")
    at(iw - 1, "v", f"v_readfirstlane_b32 s{S_T1}, v{VT0}")
    at(iw, "m", lambda: check("W", 1 + P["fp"], True))
nextld = 0
assert not P["fp"] or (P["chk"][1] is None and LS != 0)
for j0 in range(4):
    j = j0
    i0 = P["chk"][j]
    if i0 is not None:
        top = max(x for x in range(j, 4) if all(P["chk"][y] is None for y in range(j + 1, x + 1)))
        claim(i0 - 7, i0)
        at(i0 - 7, "m", lambda j=j: C.lds(f"ds_read_b32 v{VT0}, v{VRDY}", ("rdy", j)))
        at(i0 - 1, "m", lambda j=j: C.need(("rdy", j)))
        at(i0 - 1, "v", f"v_readfirstlane_b32 s{S_T1}, v{VT0}")
        at(i0, "m", lambda j=j, top=top: check(j, top + 1))
        assert P["fl"][top] is not None and P["fl"][top] <= i0
        nextld = max(nextld, 2 * i0)
    for j, m in steps[3 * j0:3 * j0 + 3]:
        for p in range(2):
            assert j < 2 or nextld // 2 >= 18
            assert nextld // 2 < min(i for i, u in enumerate(units) if u[5] == ("pl", j, m, p))
            if LS == j // 2:
                def ld(j=j, m=m, p=p):
                    C.vm(f"buffer_load_dwordx4 {q4(rq_(j, m, p))}, v{VM}, {sq(SRD_OUT)}, s{S_MB[m, LS]} offen offset:{p * 128} sc1", ("pl", j, m, p))
                    if j % 2 == 0 and p == 1: C.e(f"s_add_u32 s{S_MB[m, LS]}, s{S_MB[m, LS]}, 0x10000")
                at(nextld // 2, "m", ld)
            elif not (P["exp"] & 4) and not (P["exp"] & 128 and j < 2): at(nextld // 2, "m", lambda j=j, m=m, p=p: C.vm(
                f"buffer_load_dwordx4 {q4(rq_(j, m, p))}, v{VL16}, {sq(SRD_WS)}, s{S_MB[m, j // 2]} offen offset:{(2 * (j & 1) + p) * P['hl']}{POL[P.get('ldpol', 'sc1')]}", ("pl", j, m, p)))
            nextld += P["ldgap"] if isinstance(P["ldgap"], int) else P["ldgap"][j]
    j = j0
    if P["fl"][j] is not None and P["fl"][j] >= 0: at(P["fl"][j], "m", lambda j=j: flag(j))
assert P["fl"][3] >= 16
if P["l2"]:
    def ack():
        C.vneed(("pl", 2 * LS + 1, 3, 1))
        C.e(f"v_mov_b32 v{VT1}, 5")
        C.vm(f"buffer_store_dword v{VT1}, v{VFL}, {sq(SRD_WS)}, 0 offen offset:256", "ack")
        C.vm(f"buffer_store_dword v{VT1}, v{VFS}, {sq(SRD_WS)}, 0 offen offset:256 sc1", "ack")
    at(P["ack"], "m", ack)
    assert P["ack"] > P["fl"][3]
    io = last[2] + P.get('iod', -4)
    assert io < last[2] + 18
    assert P["ack"] < io - 7
    claim(io - 7, io)
    at(io - 7, "m", lambda: C.lds(f"ds_read_b32 v{VT0}, v{VRDY}", ("rdy", "O")))
    at(io - 1, "m", lambda: C.need(("rdy", "O")))
    at(io - 1, "v", f"v_readfirstlane_b32 s{S_T1}, v{VT0}")
    at(io, "m", lambda: check("O", 5))
    P["outpol"] = list(P["outpol"][:2]) + ["plain", "plain"]
for f, pos in enumerate(HOLD):
    if pos >= 0:
        at(pos, "m", lambda f=f: gstore(2 * f + 1))
        assert all(x is None or x > pos for x in P["fl"][f // 2:])
if SLOWPOS >= 0:
    at(SLOWPOS + 1, "m", slow)
    assert SLOWPOS + 1 < min(x for x in P["chk"] if x is not None) - 7
TMP = RF
if P["full"]:
    for blk in range(4):
        t0 = last[blk] + 5
        dat = RA + 16 * blk; so = (blk & 1) * 8704
        for g in range(4):
            for o in range(2): at(t0 + 2 * g + o, "v", f"v_cvt_pk_bf16_f32 v{TMP + 2*g + o}, v{dat + 4*g + 2*o}, v{dat + 4*g + 2*o + 1}")
            at(t0 + 2 * g + 2, "m", lambda g=g, so=so, blk=blk: C.lds(f"ds_write_b64 v{VSW}, {q2(TMP + 2*g)} offset:{so + 16 * 272 * (g >> 1) + 32 * (g & 1)}", ("sw", blk)))
        def sync(blk=blk, so=so, dat=dat):
            C.need(("sw", blk), ("sr", blk - 1, 1))
            C.e("s_barrier")
            for k in range(2): C.lds(f"ds_read_b128 {q4(dat + 4*k)}, v{VSR} offset:{so + 4 * 272 * k}", ("sr", blk, k))
        at(t0 + 8 + P["full"], "m", sync)
        def st(k, blk=blk, dat=dat):
            C.need(("sr", blk, k))
            C.vm(f"buffer_store_dwordx4 {q4(dat + 4*k)}, v{VOUT}, {sq(SRD_OUT)}, s{S_OB} offen{POL[P['outpol'][blk]]}", ("out", blk))
            if (blk, k) != (3, 1): C.e(f"s_add_u32 s{S_OB}, s{S_OB}, {hex(0x38000 if k else 0x8000)}")
        for k in range(2): at(t0 + 8 + P["full"] + 7 + 4 * k, "m", lambda k=k, st=st: st(k))
else:
    for blk in range(4):
        t0 = last[blk] + 5
        dat = RA + 16 * blk; so = (blk & 1) * 2560
        for g in range(4):
            for o in range(2): at(t0 + 2 * g + o, "v", f"v_cvt_pk_bf16_f32 v{TMP + 2*g + o}, v{dat + 4*g + 2*o}, v{dat + 4*g + 2*o + 1}")
            at(t0 + 2 * g + 2, "m", lambda g=g, so=so, blk=blk: C.lds(f"ds_write_b64 v{VSW}, {q2(TMP + 2*g)} offset:{so + 1280 * (g >> 1) + 32 * (g & 1)}", ("sw", blk)))
        for k in range(2):
            at(t0 + 5 + 4 * k, "m", lambda k=k, so=so, blk=blk, dat=dat: C.lds(f"ds_read_b128 {q4(dat + 4*k)}, v{VSR} offset:{so + 1280*k}", ("sr", blk, k)))
        def st(k, blk=blk, dat=dat):
            C.need(("sr", blk, k))
            if not (P["exp"] & 16) or blk == 3: C.vm(f"buffer_store_dwordx4 {q4(dat + 4*k)}, v{VOUT}, {sq(SRD_OUT)}, s{S_OB} offen{POL[P['outpol'][blk]]}", ("out", blk))
            if (blk, k) != (3, 1): C.e(f"s_add_u32 s{S_OB}, s{S_OB}, 0x20000")
        for k in range(2): at(t0 + 13 + 5 * k, "m", lambda k=k, st=st: st(k))
ie = nextld // 2 + 4
at(ie, "m", lambda: (C.c("member 0 moves the group's epoch on (every member read it long ago: their progress words came after it)"),
                     C.e(f"s_lshl_b32 s{S_T0}, s{S_Q}, 28")))
at(ie, "v", f"v_lshl_or_b32 v{TMP}, v0, 24, s{S_T0}")
at(ie + 1, "v", f"v_mov_b32 v{TMP+1}, s{S_EN}")
at(ie + 2, "m", lambda: C.vm(f"buffer_store_dword v{TMP+1}, v{TMP}, {sq(SRD_WS)}, s{S_EP} offen sc1", "epst"))
assert ie + 3 < last[0] + 5
def pre_wait(i):
    if i >= NU: return
    u = units[i]
    if isinstance(u[5], tuple): C.vneed(u[5])
    ks = [u[3]]
    if P["w4"] and u[3] in C.lq and i + 2 < NU: ks.append(units[i + 2][3])
    C.need(*ks, *([u[5]] if u[5] == "xr" else []))
for i, u in enumerate(units):
    jt, p, ar, bk, first, tag = u
    if i in P["xs"]:
        C.stamp(); C.smem = False
    pre_wait(i)
    br = RS + 2 - 2 * bk[1] if bk[0] == "sel" else reg[bk]
    acc = RA + 4 * (2 * jt + p)
    if not any(a_ <= i < b_ for a_, b_ in P.get("skip", ())):
        C.e(f"v_mfma_f32_16x16x32_bf16 {q4(acc)}, {q4(ar)}, {q4(br)}, {'0' if first else q4(acc)}")
    if rq and fu[rq[0][0]] <= i + P["pf2"] + 1: issue(i)
    items = sched.pop(i, [])
    for k, x in items:
        if k == "m": x()
    pre_wait(i + 1)
    for k, x in items:
        if k == "v": C.e(x)
C.stamp()
C.e("s_nop 5")
for i in sorted(sched):
    for k, x in sorted(sched[i], key=lambda y: y[0]):
        if k == "v": C.e(x)
        else: x()
C.stamp()
if P["stamps"] or "probe" in P:
    C.e("s_waitcnt vmcnt(0)")
    if P.get("probe") == -1: P["probe"] = C.nst
    C.stamp()
if "probe" in P or P.get("rt"):
    C.e("s_waitcnt lgkmcnt(0)")
    if "probe" in P:
        C.e("s_sub_u32 s96, s96, s100"); C.e("s_lshl_b32 s96, s96, 2"); C.e("s_add_u32 s96, s96, 2000")
        if "pwg" in P:
            C.e(f"s_cmp_eq_u32 s2, {P['pwg']}"); C.e("s_cselect_b32 s96, s96, 0")
    else:
        C.e(f"s_mov_b32 s96, {P['rt']}")
        if "pwg" in P:
            C.e(f"s_cmp_eq_u32 s2, {P['pwg']}"); C.e("s_cselect_b32 s96, s96, 0")
    C.lab("L_rt")
    C.e("s_memrealtime s[98:99]"); C.e("s_waitcnt lgkmcnt(0)"); C.e("s_sub_u32 s98, s98, s100")
    C.e("s_cmp_lt_u32 s98, s96"); C.e("s_cbranch_scc1 L_rt")
C.dump_stamps()
C.e("s_endpgm")

nm = P["name"]
hdr = open("standalone__edm_precond__diffusion.s.ref").read().split("; Override")[0]
out = [hdr.rstrip(),
       "; generated by gen/gen.py  " + " ".join(sys.argv[1:]),
       f"; @launch grid=(256,1,1) block=(512,1,1) lds={LDS_TOTAL}",
       '.amdgcn_target "amdgcn-amd-amdhsa--gfx950"', ".text", f".globl {nm}_kernel", f".p2align {P['align']}",
       f".type {nm}_kernel,@function", f"{nm}_kernel:"]
out += h.l + L.l + C.l + C.tail + ["L_end:"]
out += ['.section .rodata,"a"', ".p2align 6", f".amdhsa_kernel {nm}_kernel",
        "  .amdhsa_next_free_vgpr 256", "  .amdhsa_next_free_sgpr 102", "  .amdhsa_accum_offset 256",
        "  .amdhsa_group_segment_fixed_size 0", "  .amdhsa_kernarg_size 64", "  .amdhsa_user_sgpr_count 2",
        "  .amdhsa_user_sgpr_kernarg_segment_ptr 1", "  .amdhsa_system_sgpr_workgroup_id_x 1", ".end_amdhsa_kernel"]
print("\n".join(out))
```

```python
import sys, json

P = dict(align=12, ntx=0, D=4, thr=4, stamps=0, codepf=1, wo_touch=99, prime=1, lt=(2, 4, 1), exp=0, inl=(), hl=256, lay=1, full=0, wrot=0, gmap=0, pre=1, cap=1, rmask=None, fp=0, nb=12, hold=None, b16a=None, na=22, wbar=1, l2=0, fillpos=18, ack=150, stlb=0, perm=tuple(range(16)), chkn=8, w4=1, sil=0, fstart=20, xs=(),
         lead=12, pf2=8,
         fl=(None, -15, None, 42),
         chk=(56, None, 116, None), ldgap=(10, 10, 6, 6), bm=3,
         outpol=("nt", "nt", "nt", "nt"),
         name="standalone__edm_precond__diffusion")
for a in sys.argv[1:]:
    k, v = a.split("=", 1)
    try: P[k] = json.loads(v)
    except Exception: P[k] = v

POL = {"plain": "", "sc1": " sc1", "nt": " nt", "ntsc1": " sc1 nt", "sc01": " sc0 sc1"}
WS_BYTES = 0x1000000
HC0, HK0, HC1, HK1 = 0x9E3779B1, 0x7F4A7C15, 0x85EBCA77, 0xC2B2AE3D
STAMP_OFF = 0x1100000
LDS_MISC = 131072
LDS_BIAS = LDS_MISC
LDS_RDY = LDS_MISC + 2048
LDS_STG = LDS_MISC + 4096
LDS_TOTAL = LDS_STG + 4 * 5120

LS = P['l2'] - 1
ROTS = [(0, 1, 2, 3), (0, 2, 3, 1), (0, 3, 1, 2), (0, 1, 2, 3)]
ROTTAB = sum(x << (8 * k + 2 * m) for k, r in enumerate(ROTS) for m, x in enumerate(r))
class Prog:
    def __init__(s):
        s.l = []; s.lq = []; s.vq = []; s.smem = False; s.nst = 0; s.tail = []; s.is_c = False
    def e(s, t): s.l.append("    " + t)
    def lab(s, t): s.l.append(t + ":")
    def c(s, t): s.l.append("    ; " + t)
    def lds(s, t, tag):
        s.e(t); s.lq.append(tag)
    def vm(s, t, tag):
        s.e(t); s.vq.append(tag); assert len(s.vq) <= 63
    def need(s, *tags):
        idx = max([i for i, t in enumerate(s.lq) if t in tags], default=-1)
        if idx < 0: return False
        n = min(len(s.lq) - 1 - idx, 15)
        if s.smem: n = 0; s.smem = False
        s.e(f"s_waitcnt lgkmcnt({n})"); s.lq = s.lq[len(s.lq) - n:] if n else []
        return True
    def vneed(s, *tags):
        idx = max([i for i, t in enumerate(s.vq) if t in tags], default=-1)
        if idx < 0: return False
        n = len(s.vq) - 1 - idx
        s.e(f"s_waitcnt vmcnt({n})"); s.vq = s.vq[len(s.vq) - n:] if n else []
        return True
    def stamp(s):
        if "probe" in P:
            if s.nst == P["probe"] and s.is_c:
                s.e("s_memrealtime s[96:97]"); s.smem = True
            s.nst += 1
        if P["stamps"]:
            s.e(f"{'s_memtime' if P['stamps'] == 1 else 's_memrealtime'} s[{68 + 2 * s.nst}:{69 + 2 * s.nst}]"); s.nst += 1; s.smem = True
            assert s.nst <= 17
    def dump_stamps(s):
        if not P["stamps"]: return
        s.e("s_waitcnt lgkmcnt(0) vmcnt(0)")
        s.e("v_mov_b32 v14, 0")
        for i in range(1, s.nst):
            s.e(f"s_sub_u32 s{68+2*i}, s{68+2*i}, s68")
            s.e(f"v_writelane_b32 v14, s{68+2*i}, {i}")
        s.e("v_writelane_b32 v14, s68, 0")
        s.e("s_lshl_b32 s3, s2, 11")
        s.e(f"s_add_u32 s3, s3, {STAMP_OFF}")
        s.e("v_lshl_add_u32 v15, v0, 2, s3")
        s.e("global_store_dword v15, v14, s[18:19]")

def q4(r): return f"v[{r}:{r+3}]"
def q2(r): return f"v[{r}:{r+1}]"
def sq(d): return f"s[{d}:{d+3}]"
def sp(d): return f"s[{d}:{d+1}]"

S_EP, S_EN = 20, 21
S_W, S_Q, S_GL, S_G, S_OWN, S_TILE = 22, 23, 24, 25, 26, 27
SRD_A, SRD_B, SRD_C = 28, 32, 36
S_OB = 40
S_T0, S_T1, S_T2, S_T3 = 44, 45, 46, 47
S_S1, S_IK, S_MSK = 48, 50, 52
S_MB = {(m, s): 54 + 2 * m + s for m in range(4) for s in range(2)}
S_CNT, S_H0, S_H1, S_XCC, S_MODE = 62, 63, 64, 65, 66
S_N, S_LB, S_XO, S_WO = 40, 41, 42, 43

h = Prog()
h.stamp()
if P.get("rt") or "probe" in P: h.e("s_memrealtime s[100:101]")
h.e("s_load_dwordx16 s[4:19], s[0:1], 0")
h.e("s_cmp_ge_u32 s2, 0x100")
h.e("s_cbranch_scc1 L_exit")
h.e("v_lshrrev_b32 v2, 6, v0")
h.e("v_and_b32 v1, 63, v0")
h.e(f"v_readfirstlane_b32 s{S_W}, v2")
h.e(f"s_lshr_b32 s{S_T0}, s2, 3")
if P["codepf"]:
    h.c("pull this kernel's code into the L2 (one 128-byte line per wave)")
    h.e("s_getpc_b64 s[20:21]")
    h.lab("L_pc")
    h.e(f"s_lshl_b32 s{S_T1}, s{S_T0}, 3")
    h.e(f"v_add_lshl_u32 v3, v2, s{S_T1}, 7")
    h.e("v_min_u32 v3, L_end-L_pc-4, v3")
    h.e("global_load_dword v15, v3, s[20:21]")
h.e(f"s_and_b32 s{S_Q}, s{S_T0}, 3")
h.e(f"s_lshr_b32 s{S_GL}, s{S_T0}, 2")
h.e(f"s_and_b32 s{S_T1}, s2, 7")
if P["gmap"] == 1: h.e(f"s_lshl3_add_u32 s{S_G}, s{S_T1}, s{S_GL}")
elif P["gmap"] == 2:
    h.e(f"s_and_b32 s{S_G}, s{S_GL}, 3"); h.e(f"s_lshl2_add_u32 s{S_G}, s{S_T1}, s{S_G}")
    h.e(f"s_and_b32 s{S_T1}, s{S_GL}, 4"); h.e(f"s_lshl3_add_u32 s{S_G}, s{S_T1}, s{S_G}")
else: h.e(f"s_lshl3_add_u32 s{S_G}, s{S_GL}, s{S_T1}")
h.e(f"s_lshr_b32 s{S_T0}, s{S_G}, 5")
h.e(f"s_lshl_b32 s{S_TILE}, s{S_T0}, 22")
h.e(f"s_and_b32 s{S_T1}, s{S_G}, 31")
h.e(f"s_lshl_b32 s{S_T1}, s{S_T1}, 8")
h.e(f"s_add_u32 s{S_TILE}, s{S_TILE}, s{S_T1}")
h.e(f"s_cmp_lt_u32 s{S_W}, 4")
h.e("s_cbranch_scc1 L_compute")

L = Prog(); L.nst = h.nst
D = P["D"]
ntx = " nt" if P["ntx"] == 1 else ""
L.c("---------------- loader waves: wave 4+i brings rows 4i..4i+3 of every 16-row step")
if P.get("priol"): L.e(f"s_setprio {P['priol']}")
L.e("v_lshrrev_b32 v4, 4, v1")
L.e("v_lshlrev_b32 v6, 1, v2")
L.e("v_xor_b32 v6, v6, v1")
L.e("v_and_b32 v6, 3, v6")
L.e("v_lshlrev_b32 v6, 4, v6")
L.e("v_bfe_u32 v5, v0, 2, 2")
L.e("v_and_b32 v2, 3, v2")
L.e("v_lshl_add_u32 v5, v2, 2, v5")
L.e("v_lshl_add_u32 v7, v4, 6, v6")
L.e("v_lshl_add_u32 v2, v5, 13, v7")
L.e(f"v_add_u32 v2, s{S_TILE}, v2")
L.e(f"s_lshl_b32 s{S_T0}, s{S_Q}, 8")
L.e(f"v_lshl_add_u32 v5, v5, 10, s{S_T0}")
L.e("v_add_u32 v3, v5, v7")
L.e(f"s_and_b32 s{S_LB}, s{S_W}, 3")
L.e(f"s_lshl_b32 s{S_LB}, s{S_LB}, 10")
L.e(f"s_mov_b32 s{S_N}, 0")
L.e(f"s_add_u32 s{S_T2}, s{S_Q}, s{S_GL}")
PERM = list(P["perm"]); assert sorted(PERM) == list(range(16))
tab = sum(v << (4 * n) for n, v in enumerate(PERM))
if P["rmask"]: L.e(f"s_mov_b32 s50, {hex(sum(P['rmask'][v // 4] << (2 * n) for n, v in enumerate(PERM)))}")
L.e(f"s_mov_b32 s48, {hex(tab & 0xffffffff)}"); L.e(f"s_mov_b32 s49, {hex(tab >> 32)}")
if P["lt"]:
    per = P["lt"][0]
    L.e(f"s_lshl_b32 s{S_T1}, s{S_GL}, 16"); L.e(f"s_add_u32 s{S_T0}, s{S_T0}, s{S_T1}")
    L.e(f"s_lshl_b32 s{S_T1}, s{S_LB}, 4"); L.e(f"s_add_u32 s{S_T0}, s{S_T0}, s{S_T1}")
    L.e(f"s_lshl_b32 s{S_T1}, s2, 11"); L.e(f"s_and_b32 s{S_T1}, s{S_T1}, {hex(0x3c00 & ~(per * 1024 - 1))}"); L.e(f"s_add_u32 s{S_T0}, s{S_T0}, s{S_T1}")
    L.e(f"v_bfe_u32 v13, v1, 1, {per.bit_length() - 1}" if per > 1 else "v_mov_b32 v13, 0")
    L.e(f"v_lshl_add_u32 v14, v13, 10, s{S_T0}")
    L.e("v_and_b32 v13, 1, v1"); L.e("v_lshl_add_u32 v14, v13, 7, v14")
    L.e(f"s_mov_b32 s{S_T3}, 0x3c00")
L.e("v_and_b32 v8, 7, v1")
L.e("v_lshlrev_b32 v8, 2, v8")
L.e(f"v_add_u32 v8, {LDS_RDY}, v8")
L.e("v_mov_b32 v9, 0")
L.e("ds_write_b32 v8, v9")
L.e("v_and_b32 v11, 3, v1")
L.e(f"s_lshl_b32 s{S_T0}, s{S_G}, {9 if P['lay'] else 18}")
L.e(f"v_lshl_add_u32 v12, v11, 4, s{S_T0}")
L.e(f"s_mov_b32 s{SRD_A+2}, 0x800000"); L.e(f"s_mov_b32 s{SRD_A+3}, 0x20000")
L.e(f"s_mov_b32 s{SRD_B+2}, 0x80000"); L.e(f"s_mov_b32 s{SRD_B+3}, 0x20000")
if P.get("lst"): L.stamp()
L.e("s_waitcnt lgkmcnt(0)")
if P.get("lst"): L.stamp()
L.e(f"s_mov_b64 {sp(SRD_A)}, s[4:5]")
L.e(f"s_mov_b64 {sp(SRD_B)}, s[8:9]")
L.lab("L_ld1")
L.c("slot n holds 32 rows: block n/4 of quarter (n+member+group)&3, so that every row is first fetched by few workgroups")
if P["rmask"]:
    L.e(f"s_and_b32 s{S_T0}, s50, s{S_T2}")
    L.e("s_lshr_b32 s50, s50, 2")
    L.e(f"s_xor_b32 s{S_T0}, s{S_T0}, s48")
else: L.e(f"s_add_u32 s{S_T0}, s48, s{S_T2}")
L.e(f"s_and_b32 s{S_T0}, s{S_T0}, 3")
L.e(f"s_bfe_u32 s{S_T1}, s48, 0x20002")
L.e("s_lshr_b64 s[48:49], s[48:49], 4")
L.e(f"s_lshl2_add_u32 s{S_T0}, s{S_T0}, s{S_T1}")
if P["ntx"] >= 2:
    L.e(f"s_and_b32 s{S_T1}, s{S_N}, 3")
    L.e(f"s_cmp_eq_u32 s{S_T1}, {0 if P['ntx'] < 4 else 3}")
    L.e(f"s_cbranch_scc{int(P['ntx'] == 3)} L_pl")
    for pol, lab in ((" nt", None), ("", "L_pl")):
        if lab: L.lab(lab)
        L.e(f"s_mov_b32 m0, s{S_LB}")
        L.e(f"s_lshl_b32 s{S_XO}, s{S_T0}, 18")
        L.e(f"buffer_load_dwordx4 v2, {sq(SRD_A)}, s{S_XO} offen{pol} lds")
        L.e(f"s_add_u32 m0, s{S_LB}, 0x2000")
        L.e(f"s_add_u32 s{S_XO}, s{S_XO}, 0x20000")
        L.e(f"buffer_load_dwordx4 v2, {sq(SRD_A)}, s{S_XO} offen{pol} lds")
        if not lab: L.e("s_branch L_pw")
    L.lab("L_pw")
    L.e(f"s_add_u32 m0, s{S_LB}, 0x1000")
    L.e(f"s_lshl_b32 s{S_WO}, s{S_T0}, 15")
    L.e(f"buffer_load_dwordx4 v3, {sq(SRD_B)}, s{S_WO} offen lds")
    L.e(f"s_add_u32 m0, s{S_LB}, 0x3000")
    L.e(f"s_add_u32 s{S_WO}, s{S_WO}, 0x4000")
    L.e(f"buffer_load_dwordx4 v3, {sq(SRD_B)}, s{S_WO} offen lds")
elif P.get("xxww"):
    L.e(f"s_mov_b32 m0, s{S_LB}")
    L.e(f"s_lshl_b32 s{S_XO}, s{S_T0}, 18")
    L.e(f"buffer_load_dwordx4 v2, {sq(SRD_A)}, s{S_XO} offen{ntx} lds")
    L.e(f"s_add_u32 m0, s{S_LB}, 0x2000")
    L.e(f"s_add_u32 s{S_XO}, s{S_XO}, 0x20000")
    L.e(f"buffer_load_dwordx4 v2, {sq(SRD_A)}, s{S_XO} offen{ntx} lds")
    L.e(f"s_add_u32 m0, s{S_LB}, 0x1000")
    L.e(f"s_lshl_b32 s{S_WO}, s{S_T0}, 15")
    L.e(f"buffer_load_dwordx4 v3, {sq(SRD_B)}, s{S_WO} offen lds")
    L.e(f"s_add_u32 m0, s{S_LB}, 0x3000")
    L.e(f"s_add_u32 s{S_WO}, s{S_WO}, 0x4000")
    L.e(f"buffer_load_dwordx4 v3, {sq(SRD_B)}, s{S_WO} offen lds")
else:
    L.e(f"s_mov_b32 m0, s{S_LB}")
    L.e(f"s_lshl_b32 s{S_XO}, s{S_T0}, 18")
    L.e(f"buffer_load_dwordx4 v2, {sq(SRD_A)}, s{S_XO} offen{ntx} lds")
    L.e(f"s_add_u32 m0, s{S_LB}, 0x1000")
    L.e(f"s_lshl_b32 s{S_WO}, s{S_T0}, 15")
    L.e(f"buffer_load_dwordx4 v3, {sq(SRD_B)}, s{S_WO} offen lds")
    L.e(f"s_add_u32 m0, s{S_LB}, 0x2000")
    L.e(f"s_add_u32 s{S_XO}, s{S_XO}, 0x20000")
    L.e(f"buffer_load_dwordx4 v2, {sq(SRD_A)}, s{S_XO} offen{ntx} lds")
    L.e(f"s_add_u32 m0, s{S_LB}, 0x3000")
    L.e(f"s_add_u32 s{S_WO}, s{S_WO}, 0x4000")
    if not P.get("halfw"): L.e(f"buffer_load_dwordx4 v3, {sq(SRD_B)}, s{S_WO} offen lds")
if P.get("wi") is not None:
    L.e(f"s_cmp_lg_u32 s{S_N}, {P['wi']}")
    L.e("s_cbranch_scc1 L_nowi")
    L.e("global_load_dword v10, v14, s[8:9]")
    L.lab("L_nowi")
if P["lt"]:
    per, ph = P["lt"][:2]
    L.c("a few rows of w_out towards the caches; the values are not used")
    if len(P["lt"]) > 2:
        L.e(f"s_cmp_lg_u32 s{S_N}, {ph}")
        L.e("s_cbranch_scc1 L_notouch")
    elif per > 1:
        L.e(f"s_and_b32 s{S_T0}, s{S_N}, {per - 1}")
        L.e(f"s_cmp_lg_u32 s{S_T0}, {ph}")
        L.e("s_cbranch_scc1 L_notouch")
    L.e(f"global_load_dword v10, v14, s[12:13]")
    if P["stlb"]:
        L.c("first touch of the output page on the scalar path (address translation only)")
        L.e(f"s_lshl_b32 s{S_T0}, s{S_Q}, 20"); L.e(f"s_add_u32 s{S_T0}, s{S_T0}, s{S_TILE}")
        L.e(f"s_load_dword s54, s[14:15], s{S_T0}")
    L.e(f"v_add_u32 v13, {per * 1024}, v14")
    L.e(f"v_bfi_b32 v14, s{S_T3}, v13, v14")
    L.lab("L_notouch")
L.e(f"s_add_u32 s{S_LB}, s{S_LB}, 0x4000")
L.e(f"s_and_b32 s{S_LB}, s{S_LB}, 0x1ffff")
L.e(f"s_add_u32 s{S_N}, s{S_N}, 1")
L.e(f"s_cmp_lt_u32 s{S_N}, {D}")
L.e("s_cbranch_scc1 L_ld1")
L.e(f"s_waitcnt vmcnt({(3 if P.get('halfw') else 4) * (D - 1)})")
L.e("s_barrier")
L.e(f"s_cmp_lt_u32 s{S_N}, 16")
L.e("s_cbranch_scc1 L_ld1")
L.stamp()
if P["l2"]:
    L.e(f"s_lshl_b32 s{S_T0}, s{S_W}, 4"); L.e(f"s_lshl_b32 s{S_T1}, s{S_Q}, 7"); L.e(f"s_add_u32 s{S_T0}, s{S_T0}, s{S_T1}")
    L.e("v_lshrrev_b32 v24, 2, v1"); L.e(f"v_add_lshl_u32 v24, v24, s{S_T0}, 13"); L.e("v_lshl_add_u32 v24, v11, 6, v24"); L.e(f"v_add_u32 v24, s{S_TILE}, v24")
L.c("w_out: 64 rows per step, starting at this member's own quarter")
L.e(f"s_mov_b64 {sp(SRD_B)}, s[12:13]")
L.e(f"s_lshl_b32 s{S_WO}, s{S_Q}, 17")
if P["wrot"]:
    assert not P["fp"] and P.get("n16", 22) == 22 and D <= 5
    L.c("the order of the other members, and of the two steps of a member, differs between groups: few fetch a row first")
    L.e(f"s_lshr_b32 s{S_T1}, s{S_GL}, 1")
    L.e(f"s_lshl_b32 s{S_T1}, s{S_T1}, 3")
    L.e(f"s_lshr_b32 s51, {hex(ROTTAB)}, s{S_T1}")
    L.e(f"s_and_b32 s52, s{S_GL}, {1 if P['wrot'] == 1 else 0}")
    L.e(f"s_mov_b32 s53, s{S_LB}")
L.lab("L_ld2")
if P["wrot"]:
    L.e(f"s_xor_b32 s{S_T0}, s{S_N}, s52")
    L.e(f"s_and_b32 s{S_T0}, s{S_T0}, 7")
    L.e(f"s_lshl_b32 s{S_LB}, s{S_T0}, 14")
    L.e(f"s_add_u32 s{S_LB}, s{S_LB}, s53")
    L.e(f"s_and_b32 s{S_T1}, s{S_T0}, 6")
    L.e(f"s_lshr_b32 s{S_T1}, s51, s{S_T1}")
    L.e(f"s_add_u32 s{S_T1}, s{S_T1}, s{S_Q}")
    L.e(f"s_and_b32 s{S_T1}, s{S_T1}, 3")
    L.e(f"s_and_b32 s{S_T0}, s{S_T0}, 1")
    L.e(f"s_lshl1_add_u32 s{S_T0}, s{S_T1}, s{S_T0}")
    L.e(f"s_lshl_b32 s{S_WO}, s{S_T0}, 16")
if P["l2"] and P["fillpos"]:
    L.e(f"s_cmp_lg_u32 s{S_N}, {P['fillpos']}")
    L.e("s_cbranch_scc1 L_nofill")
    L.c("make the L2-local hand-off lines valid ahead of their readers; the values are not used")
    L.e("global_load_dword v10, v24, s[14:15]")
    L.lab("L_nofill")
for p in range(4):
    L.e(f"s_add_u32 m0, s{S_LB}, {hex(p * 4096)}" if p else f"s_mov_b32 m0, s{S_LB}")
    L.e(f"s_add_u32 s{S_T0}, s{S_WO}, {hex(p * 0x4000)}" if p else f"s_add_u32 s{S_N}, s{S_N}, 1")
    L.e(f"buffer_load_dwordx4 v3, {sq(SRD_B)}, s{S_T0 if p else S_WO} offen lds")
if not P["wrot"]:
    L.e(f"s_add_u32 s{S_LB}, s{S_LB}, 0x4000")
    L.e(f"s_add_u32 s{S_WO}, s{S_WO}, 0x10000")
    L.e(f"s_and_b32 s{S_WO}, s{S_WO}, 0x7ffff")
L.e(f"s_cmp_lt_u32 s{S_N}, {16 + D + P['cap']}")
L.e("s_cbranch_scc0 L_ld3")
L.e(f"s_waitcnt vmcnt({4 * (D - 1)})")
L.e("s_barrier")
L.e("s_branch L_ld2")
if P["fp"]:
    L.lab("L_ld3")
    L.e(f"s_waitcnt vmcnt({P['thr']})")
    L.e(f"s_cmp_lt_u32 s{S_N}, 22")
    L.e("s_cbranch_scc1 L_ld2")
    L.e(f"s_cmp_gt_u32 s{S_N}, 22")
    L.e("s_cbranch_scc1 L_ld4")
    if P["prime"]:
        L.c("bring the progress line into the L2 early; this value is not used")
        L.e("global_load_dword v16, v12, s[18:19] offset:256 sc1")
    L.e(f"s_lshl_b32 s{S_T0}, s{S_W}, 2")
    L.e(f"s_add_u32 s{S_T0}, s{S_T0}, {LDS_RDY}")
    L.e(f"v_mov_b32 v8, s{S_T0}")
    L.e(f"s_cmp_lt_u32 s{S_W}, 6")
    L.e(f"s_cselect_b32 s{S_T0}, 2, 1")
    L.e(f"v_mov_b32 v9, s{S_T0}")
    L.e(f"v_mov_b32 v13, {LDS_RDY}")
    L.e(f"s_mov_b32 s{S_CNT}, 0")
    L.e("s_waitcnt vmcnt(0)")
    L.e("ds_write_b32 v8, v9")
    L.e("s_barrier")
    L.e("s_cbranch_scc1 L_ld5")
    L.c("waves 6 and 7 bring the last two steps: their own pieces, then those of waves 4 and 5")
    L.lab("L_ld4")
    L.e(f"s_cmp_lg_u32 s{S_N}, 24")
    L.e("s_cbranch_scc1 L_ld4b")
    L.e("v_subrev_u32 v3, 0x2000, v3")
    L.e(f"s_sub_u32 s{S_LB}, s{S_LB}, 0x8800")
    L.e(f"s_sub_u32 s{S_WO}, s{S_WO}, 0x20000")
    L.e(f"s_and_b32 s{S_WO}, s{S_WO}, 0x7ffff")
    L.lab("L_ld4b")
    L.e(f"s_cmp_lt_u32 s{S_N}, 26")
    L.e("s_cbranch_scc1 L_ld2")
    L.e("v_mov_b32 v9, 2")
    L.e("s_waitcnt vmcnt(0)")
    L.e("ds_write_b32 v8, v9")
    L.lab("L_ld5")
    L.stamp()
elif P["b16a"] is None:
    L.lab("L_ld3")
    assert P["thr"] <= 16 and D <= 6
    L.e(f"s_waitcnt vmcnt({P['thr']})")
    assert P.get("n16", 22) <= 22 + P["cap"]
    L.e(f"s_cmp_lg_u32 s{S_N}, {P.get('n16', 22)}")
    L.e("s_cbranch_scc1 L_ld4")
    if P["prime"]:
        L.c("bring the progress line into the L2 early; this value is not used")
        L.e("global_load_dword v16, v12, s[18:19] offset:256 sc1")
    L.e("s_barrier")
    L.lab("L_ld4")
    L.e(f"s_cmp_lt_u32 s{S_N}, 24")
    L.e("s_cbranch_scc1 L_ld2")
    L.e(f"s_lshl_b32 s{S_T0}, s{S_W}, 2")
    L.e(f"s_add_u32 s{S_T0}, s{S_T0}, {LDS_RDY}")
    L.e(f"v_mov_b32 v8, s{S_T0}")
    L.e("v_mov_b32 v9, 1")
    L.e(f"v_mov_b32 v13, {LDS_RDY}")
    L.e(f"s_mov_b32 s{S_CNT}, 0")
    L.e("s_waitcnt vmcnt(0)")
    L.e("ds_write_b32 v8, v9")
    L.stamp()
else:
    L.lab("L_ld3")
    assert 16 + D <= P["na"] <= 22
    L.e(f"s_cmp_lg_u32 s{S_N}, {P['na']}")
    L.e("s_cbranch_scc1 L_ld4")
    L.e("s_barrier")
    L.lab("L_ld4")
    L.e(f"s_waitcnt vmcnt({P['thr']})")
    L.e(f"s_cmp_lt_u32 s{S_N}, 24")
    L.e("s_cbranch_scc1 L_ld2")
    if P["prime"]:
        L.c("bring the progress line into the L2 early; this value is not used")
        L.e("global_load_dword v16, v12, s[18:19] offset:256 sc1")
    L.e(f"v_mov_b32 v13, {LDS_RDY}")
    L.e(f"s_mov_b32 s{S_CNT}, 0")
    if P["wbar"]:
        L.e(f"s_waitcnt vmcnt({int(bool(P['prime']))})")
        L.stamp()
        L.e("s_barrier")
    else:
        L.e(f"s_lshl_b32 s{S_T0}, s{S_W}, 2")
        L.e(f"s_add_u32 s{S_T0}, s{S_T0}, {LDS_RDY}")
        L.e(f"v_mov_b32 v8, s{S_T0}")
        L.e("v_mov_b32 v9, 1")
        L.e("s_barrier")
        L.e("s_waitcnt vmcnt(0)")
        L.e("ds_write_b32 v8, v9")
        L.stamp()
L.e(f"s_cmp_lg_u32 s{S_W}, 4")
L.e("s_cbranch_scc1 L_fin")
L.c("wave 4: relay the smallest progress word of the group into LDS")
L.lab("L_poll")
L.e("global_load_dwordx4 v[16:19], v12, s[18:19] offset:256 sc1")
L.e(f"s_add_u32 s{S_CNT}, s{S_CNT}, 1")
L.e("s_waitcnt vmcnt(0)")
L.e("v_min3_u32 v16, v16, v17, v18")
L.e("v_min_u32 v16, v16, v19")
L.e("s_nop 1")
L.e("v_min_u32_dpp v16, v16, v16 quad_perm:[1,0,3,2] row_mask:0xf bank_mask:0xf")
L.e("s_nop 1")
L.e("v_min_u32_dpp v16, v16, v16 quad_perm:[2,3,0,1] row_mask:0xf bank_mask:0xf")
L.e("ds_write_b32 v13, v16")
L.e(f"v_readfirstlane_b32 s{S_T0}, v16")
L.e(f"s_cmp_ge_u32 s{S_CNT}, 0x1000000")
L.e(f"s_cselect_b32 s{S_T0}, 5, s{S_T0}")
L.e(f"s_cmp_lt_u32 s{S_T0}, {4 + bool(P['l2'])}")
L.e("s_cbranch_scc1 L_poll")
L.lab("L_fin")
L.stamp()
L.dump_stamps()
L.lab("L_exit")
L.e("s_endpgm")

C = Prog(); C.nst = h.nst; C.is_c = True
if P["codepf"]: C.vq.append("code")
AD = list(range(2, 10))
VL16, VXW, VFL, VXR, VT0, VT1, VSW, VSR, VOUT, VRDY = 10, 11, 12, 13, 14, 15, 16, 17, 18, 19
RA, RH, RX, RBI, RS = 20, 84, 116, 148, 164
VFS, VM = 170, 171
RF = 172; NPOOL = (256 - RF) // 4
SRD_WS, SRD_OUT, SRD_WO = SRD_A, SRD_B, SRD_C
C.lab("L_compute")
C.c("---------------- compute waves")
if P.get("prioc"): C.e(f"s_setprio {P['prioc']}")
T = RH
vG, vC, vEMBA, vSIGA, vT0A, vSIG, vEMB, vEP, vZ, vANN, vJ, vL4, vTCH, vBW, vBR, vCHK, vCHA = \
    T, T+1, T+2, T+3, T+4, T+5, T+6, T+7, T+8, T+12, T+14, T+15, T+16, T+17, T+18, T+26, T+28
C.e(f"s_lshl_b32 s{S_T0}, s{S_Q}, 8")
C.e(f"v_lshl_add_u32 v{vEMBA}, v1, 2, s{S_T0}")
C.e(f"s_lshr_b32 s{S_T0}, s{S_TILE}, 21")
C.e(f"v_mov_b32 v{vSIGA}, s{S_T0}")
C.c("thread 0 resets this workgroup's four progress words, then announces that (and its XCD) under this launch's tag")
C.e(f"v_lshlrev_b32 v{vT0A}, 24, v0")
for i in range(4): C.e(f"v_mov_b32 v{vZ+i}, 0")
C.e(f"s_lshl_b32 s{S_EP}, s{S_G}, {9 if P['lay'] else 18}")
C.e(f"s_lshl4_add_u32 s{S_T2}, s{S_Q}, s{S_EP}")
C.e(f"s_mov_b32 s{SRD_WS+2}, {hex(WS_BYTES)}"); C.e(f"s_mov_b32 s{SRD_WS+3}, 0x20000")
C.e(f"s_getreg_b32 s{S_XCC}, hwreg(HW_REG_XCC_ID, 0, 4)")
C.e("s_waitcnt lgkmcnt(0)")
C.vm(f"global_load_ushort v{vSIG}, v{vSIGA}, s[6:7]", "sig")
C.vm(f"global_load_dword v{vEMB}, v{vEMBA}, s[10:11]", "emb")
C.e(f"s_mov_b64 {sp(SRD_WS)}, s[18:19]")
C.vm(f"buffer_load_dword v{vEP}, v{vZ}, {sq(SRD_WS)}, s{S_EP} offen sc1", "ep")
C.vm(f"buffer_store_dwordx4 {q4(vZ)}, v{vT0A}, {sq(SRD_WS)}, s{S_T2} offen offset:256 sc1", "clr")
for t in [
    f"v_lshrrev_b32 v{vG}, 4, v1", f"v_bfe_u32 v{vC}, v1, 2, 2", f"v_lshlrev_b32 v{vC}, 6, v{vC}",
    f"v_lshl_add_u32 v{AD[0]}, v{vG}, 10, v{vC}", f"v_and_b32 v{vC}, 1, v{vG}", f"v_lshl_add_u32 v{AD[0]}, v{vC}, 5, v{AD[0]}",
    f"v_and_b32 v{vC}, 3, v1", f"v_lshl_add_u32 v{AD[6]}, v{vC}, 3, v{AD[0]}",
    f"s_lshl_b32 s{S_T0}, s{S_W}, 8", f"v_add_u32 v{AD[2]}, s{S_T0}, v{AD[6]}",
    f"s_and_b32 s{S_T3}, s{S_W}, 1", f"s_lshl_b32 s{S_T1}, s{S_T3}, 9",
    f"v_add_u32 v{AD[0]}, s{S_T1}, v{AD[6]}",
    f"v_xor_b32 v{AD[1]}, 32, v{AD[0]}", f"v_xor_b32 v{AD[3]}, 32, v{AD[2]}",
    f"v_xor_b32 v{AD[4]}, 0x100, v{AD[2]}", f"v_xor_b32 v{AD[5]}, 0x100, v{AD[3]}",
    f"s_lshl_b32 s{S_T1}, s{S_T3}, 14", f"v_add_u32 v{AD[6]}, s{S_T1}, v{AD[6]}",
    f"s_mov_b64 {sp(SRD_WO)}, s[12:13]", f"s_mov_b32 s{SRD_WO+2}, 0x80000", f"s_mov_b32 s{SRD_WO+3}, 0x20000",
    f"s_mov_b64 {sp(SRD_OUT)}, s[14:15]", f"s_mov_b32 s{SRD_OUT+2}, 0x800000", f"s_mov_b32 s{SRD_OUT+3}, 0x20000",
    f"v_lshrrev_b32 v{vL4}, 2, v1", f"v_and_b32 v{vJ}, 15, v1",
    f"s_lshl_b32 s{S_T0}, s{S_GL}, 16", f"s_lshl_b32 s{S_T1}, s{S_W}, 14", f"s_add_u32 s{S_T0}, s{S_T0}, s{S_T1}",
    f"s_lshl_b32 s{S_T1}, s{S_Q}, 8", f"s_add_u32 s{S_T0}, s{S_T0}, s{S_T1}",
    f"v_lshl_add_u32 v{vTCH}, v{vL4}, 10, s{S_T0}", f"v_lshl_add_u32 v{vTCH}, v{vC}, 6, v{vTCH}",
    f"s_lshl2_add_u32 s{S_T2}, s{S_W}, s{S_T2}", f"v_lshl_add_u32 v{VFL}, v1, 24, s{S_T2}",
    f"v_lshlrev_b32 v{vCHA}, 3, v{vC}", f"s_mov_b32 s{S_MODE}, 0",
    f"s_lshl_b32 s{S_T0}, s{S_W}, 9", f"s_add_u32 s{S_T0}, s{S_T0}, {LDS_BIAS}", f"v_lshl_add_u32 v{vBW}, v1, 3, s{S_T0}",
    f"s_lshl_b32 s{S_T1}, s{S_T3}, 8", f"s_add_u32 s{S_T0}, s{S_T0}, s{S_T1}",
    f"v_lshl_add_u32 v{vBR}, v{vG}, 4, s{S_T0}",
    f"s_mul_i32 s{S_T0}, s{S_W}, 5120", f"s_add_u32 s{S_T0}, s{S_T0}, {LDS_STG}",
    f"v_lshlrev_b32 v{VL16}, 4, v1", f"v_add_u32 v{VXW}, s{S_T0}, v{VL16}",
    f"v_mul_u32_u24 v{VSW}, 80, v{vJ}", f"v_lshl_add_u32 v{VSW}, v{vG}, 3, v{VSW}", f"v_add_u32 v{VSW}, s{S_T0}, v{VSW}",
    f"v_mul_u32_u24 v{VSR}, 80, v{vL4}", f"v_lshl_add_u32 v{VSR}, v{vC}, 4, v{VSR}", f"v_add_u32 v{VSR}, s{S_T0}, v{VSR}",
    f"s_xor_b32 s{S_T0}, s{S_W}, 1", f"s_mul_i32 s{S_T0}, s{S_T0}, 5120", f"s_add_u32 s{S_T0}, s{S_T0}, {LDS_STG}",
    f"v_add_u32 v{VXR}, s{S_T0}, v{VL16}",
    f"s_lshl_b32 s{S_T0}, s{S_Q}, 20", f"s_add_u32 s{S_T0}, s{S_T0}, s{S_TILE}", f"s_lshl_b32 s{S_T1}, s{S_W}, 6",
    f"s_add_u32 s{S_T0}, s{S_T0}, s{S_T1}", f"v_lshl_add_u32 v{VOUT}, v{vL4}, 13, s{S_T0}", f"v_lshl_add_u32 v{VOUT}, v{vC}, 4, v{VOUT}",
    f"v_mov_b32 v{VRDY}, {LDS_RDY}", f"s_sub_u32 s{S_OWN}, 0, s{S_GL}", f"s_and_b32 s{S_OWN}, s{S_OWN}, 3", f"s_mov_b32 s{S_OB}, 0",
    f"s_lshl_b32 s{S_T1}, s{S_W}, 12", f"s_add_u32 s{S_T1}, s{S_T1}, s{S_EP}", f"s_add_u32 s{S_T1}, s{S_T1}, 0x10000",
    ]: C.e(t)
if P["cap"]:
    C.e(f"s_lshl_b32 s{S_T0}, s{S_OWN}, 14"); C.e(f"v_add_u32 v{AD[7]}, s{S_T0}, v{AD[2]}"); C.e(f"v_add_u32 v{VT0}, s{S_T0}, v{AD[3]}")
if P["hl"] < 1024:
    sh = P["hl"].bit_length() - 1 - 4
    C.e(f"v_lshrrev_b32 v{VT1-1 if False else vANN}, {sh}, v1"); C.e(f"v_and_b32 v{VL16}, {(1 << sh) - 1}, v1"); C.e(f"v_lshlrev_b32 v{VL16}, 4, v{VL16}")
    C.e(f"v_lshl_add_u32 v{VL16}, v{vANN}, {sh + 6 + (P['lay'] == 1)}, v{VL16}")
if P["lay"] == 1:
    C.e(f"s_lshl4_add_u32 s{S_T1}, s{S_G}, s{S_W}"); C.e(f"s_lshl_b32 s{S_T1}, s{S_T1}, 13"); C.e(f"s_add_u32 s{S_T1}, s{S_T1}, 0x8000")
if P["lay"] == 2:
    C.e(f"s_lshl4_add_u32 s{S_T1}, s{S_G}, s{S_W}"); C.e(f"s_lshl_b32 s{S_T1}, s{S_T1}, 12"); C.e(f"s_add_u32 s{S_T1}, s{S_T1}, 0x8000")
if P["full"]:
    for t in [f"s_lshl_b32 s{S_T0}, s{S_Q}, 20", f"s_add_u32 s{S_T0}, s{S_T0}, s{S_TILE}", f"s_lshl_b32 s{S_CNT}, s{S_W}, 16",
              f"s_add_u32 s{S_T0}, s{S_T0}, s{S_CNT}", f"v_lshl_add_u32 v{VOUT}, v{vG}, 13, s{S_T0}", f"v_lshl_add_u32 v{VOUT}, v{vJ}, 4, v{VOUT}",
              f"s_lshl_b32 s{S_T0}, s{S_W}, 6", f"s_add_u32 s{S_T0}, s{S_T0}, {LDS_STG}",
              f"v_mul_u32_u24 v{VSW}, 0x110, v{vJ}", f"v_lshl_add_u32 v{VSW}, v{vG}, 3, v{VSW}", f"v_add_u32 v{VSW}, s{S_T0}, v{VSW}",
              f"s_mul_i32 s{S_T0}, s{S_W}, {8 * 272}", f"s_add_u32 s{S_T0}, s{S_T0}, {LDS_STG}",
              f"v_mul_u32_u24 v{VSR}, 0x110, v{vG}", f"v_lshl_add_u32 v{VSR}, v{vJ}, 4, v{VSR}", f"v_add_u32 v{VSR}, s{S_T0}, v{VSR}"]: C.e(t)
OWNR = {0: S_Q, 1: 41, 2: 42, 3: 43}
if P["rmask"]:
    C.e(f"s_add_u32 s{S_T3}, s{S_Q}, s{S_GL}")
    for k in set(P["rmask"]) - {0}:
        C.e(f"s_and_b32 s{OWNR[k]}, s{S_T3}, {k}"); C.e(f"s_xor_b32 s{OWNR[k]}, s{OWNR[k]}, s{S_Q}")
if P["wrot"]:
    C.e(f"s_lshr_b32 s{S_CNT}, s{S_GL}, 1"); C.e(f"s_lshl_b32 s{S_CNT}, s{S_CNT}, 3"); C.e(f"s_lshr_b32 s{S_CNT}, {hex(ROTTAB)}, s{S_CNT}")
for m in range(4):
    if P["wrot"]:
        C.e(f"s_add_u32 s{S_T3}, s{S_Q}, s{S_CNT}"); C.e(f"s_lshr_b32 s{S_CNT}, s{S_CNT}, 2")
    else: C.e(f"s_add_u32 s{S_T3}, s{S_Q}, {m}")
    C.e(f"s_and_b32 s{S_T3}, s{S_T3}, 3"); C.e(f"s_lshl_b32 s{S_T3}, s{S_T3}, {14 + (P['lay'] == 1)}")
    C.e(f"s_add_u32 s{S_MB[m, 1]}, s{S_T3}, s{S_T1}")
    C.e(f"s_xor_b32 s{S_MB[m, 0]}, s{S_MB[m, 1]}, {hex((0x2000 if P['lay'] == 1 else 0x1000) * (m > 0))}")
    C.e(f"s_add_u32 s{S_MB[m, 0]}, s{S_MB[m, 0]}, {hex((0x10000, 4 * P['hl'], 0x400000)[P['lay']])}")
    if P["l2"]:
        C.e(f"s_lshl_b32 s{S_T3}, s{S_T3}, {6 - (P['lay'] == 1)}"); C.e(f"s_xor_b32 s{S_T0}, s{S_W}, {int(m > 0 and LS == 0)}"); C.e(f"s_add_u32 s{S_T0}, s{S_T0}, 4")
        C.e(f"s_lshl_b32 s{S_T0}, s{S_T0}, 17"); C.e(f"s_add_u32 s{S_MB[m, LS]}, s{S_T3}, s{S_T0}")

if P["l2"]:
    for t in [f"v_lshrrev_b32 v{VM}, 3, v1", f"v_lshlrev_b32 v{VM}, 13, v{VM}", f"v_and_b32 v{VFS}, 7, v1",
              f"v_lshl_add_u32 v{VM}, v{VFS}, 4, v{VM}", f"v_add_u32 v{VM}, s{S_TILE}, v{VM}", f"v_mov_b32 v{VFS}, 2.0"]: C.e(t)
F = []
F.append(lambda: C.vneed("clr", "ep", "sig", "emb"))
F += [f"v_readfirstlane_b32 s{S_T3}, v{vEP}",
      f"s_mul_i32 s{S_H0}, s{S_T3}, {hex(HC0)}", f"s_add_u32 s{S_H0}, s{S_H0}, {hex(HK0)}",
      f"s_mul_i32 s{S_H1}, s{S_T3}, {hex(HC1)}", f"s_add_u32 s{S_H1}, s{S_H1}, {hex(HK1)}",
      f"s_add_u32 s{S_H0}, s{S_H0}, s{S_XCC}", f"s_add_u32 s{S_H1}, s{S_H1}, s{S_XCC}",
      f"v_mov_b32 v{vANN}, s{S_H0}", f"v_mov_b32 v{vANN+1}, s{S_H1}", f"s_lshl3_add_u32 s{S_T0}, s{S_Q}, s{S_EP}"]
F.append(lambda: C.vm(f"buffer_store_dwordx2 {q2(vANN)}, v{vT0A}, {sq(SRD_WS)}, s{S_T0} offen offset:128 sc1", "ann"))
F += [f"s_add_u32 s{S_EN}, s{S_T3}, 1"]
sg, a, b2, cs, cn = vSIG, T + 20, T + 21, T + 22, T + 23
def rnd(r): return [f"v_cvt_pk_bf16_f32 v{r}, v{r}, v{r}", f"v_lshlrev_b32 v{r}, 16, v{r}"]
F += [f"v_lshlrev_b32 v{sg}, 16, v{sg}", f"v_mul_f32 v{a}, v{sg}, v{sg}"] + rnd(a)
F += [f"v_add_f32 v{a}, 0x3e800000, v{a}"] + rnd(a)
F += [f"v_rcp_f32 v{cs}, v{a}", f"v_sqrt_f32 v{a}, v{a}"] + rnd(cs) + rnd(a)
F += [f"v_mul_f32 v{cs}, 0x3e800000, v{cs}", f"v_rcp_f32 v{a}, v{a}", f"v_lshrrev_b32 v{cs}, 16, v{cs}", f"v_mul_f32 v{b2}, 0.5, v{sg}"]
F += [f"v_mul_f32 v{b2}, v{b2}, v{a}"] + rnd(b2) + rnd(a)
F += [f"v_log_f32 v{cn}, v{sg}", f"v_mul_f32 v{a}, 0xbfb8aa3b, v{a}", f"v_mul_f32 v{cn}, 0x3f317218, v{cn}"] + rnd(cn)
F += [f"v_max_f32 v{b2}, 0x03800000, v{b2}", f"v_mul_f32 v{b2}, 0xbf317218, v{b2}", f"v_rcp_f32 v{b2}, v{b2}"]
F += [f"v_mul_f32 v{cn}, 0x3e800000, v{cn}"]
F += [f"v_readfirstlane_b32 s{S_S1}, v{a}", f"v_readfirstlane_b32 s{S_IK}, v{b2}", f"s_mov_b32 s{S_S1+1}, s{S_S1}", f"s_mov_b32 s{S_IK+1}, s{S_IK}"]
e0, e1 = T + 24, T + 25
F += [f"v_lshlrev_b32 v{e0}, 16, v{vEMB}", f"v_and_b32 v{e1}, 0xffff0000, v{vEMB}",
      f"v_mul_f32 v{e0}, v{cn}, v{e0}", f"v_mul_f32 v{e1}, v{cn}, v{e1}",
      f"v_cvt_pk_bf16_f32 v{e1}, v{e0}, v{e1}", f"v_lshlrev_b32 v{e0}, 16, v{e1}", f"v_and_b32 v{e1}, 0xffff0000, v{e1}",
      f"v_mul_f32 v{e0}, 0xbfb8aa3b, v{e0}", f"v_mul_f32 v{e1}, 0xbfb8aa3b, v{e1}"]
F.append(("lds", f"ds_write_b64 v{vBW}, {q2(e0)}", "biasw"))
for i in range(4):
    F.append(("lds", f"ds_read_b128 {q4(RBI + 4 * i)}, v{vBR} offset:{i * 64}", "bias"))
F += [f"v_and_b32 v{e0}, 1, v1", f"v_lshlrev_b32 v{e0}, 4, v{e0}", f"v_lshlrev_b32 v{cs}, v{e0}, v{cs}",
      f"v_lshrrev_b32 v{e0}, 1, v{vJ}", f"v_lshlrev_b32 v{e1}, 1, v{vG}", f"v_sub_u32 v{e0}, v{e0}, v{e1}",
      f"v_cmp_eq_u32 vcc, 0, v{e0}", f"v_mov_b32 v{RS}, 0", f"v_cndmask_b32 v{RS+2}, 0, v{cs}, vcc",
      f"v_cmp_eq_u32 vcc, 1, v{e0}", f"v_mov_b32 v{RS+1}, 0", f"v_cndmask_b32 v{RS+3}, 0, v{cs}, vcc",
      f"v_mov_b32 v{RS+4}, 0", f"v_mov_b32 v{RS+5}, 0"]
def ann_check():
    C.e(f"s_or_b64 vcc, vcc, {sp(S_MSK)}")
    if P.get("forceslow"): C.e("s_cmp_eq_u32 0, 0")
    C.e("s_cbranch_scc1 L_ann_wait")
    C.lab("L_ann_ok")
G = [lambda: (C.c("all four members have reset their progress words in this launch, and one L2 serves all of them"), C.vneed("chk", "touch")),
     f"v_cmp_ne_u32 vcc, s{S_H0}, v{vCHK}", f"v_cmp_ne_u32 {sp(S_MSK)}, s{S_H1}, v{vCHK+1}", f"v_mov_b32 v{AD[0]}, v{AD[6]}", ann_check,
     f"v_xor_b32 v{AD[2]}, 32, v{AD[0]}", f"v_xor_b32 v{AD[4]}, 0x4000, v{AD[0]}", f"v_xor_b32 v{AD[6]}, 0x4000, v{AD[2]}"]
G += [f"v_add_u32 v{AD[r+1]}, 0x10000, v{AD[r]}" for r in (0, 2, 4, 6)]
C.tail += ["L_ann_wait:", f"    s_mov_b32 s{S_CNT}, 0",
           f"    s_sub_u32 s{S_H0}, s{S_H0}, s{S_XCC}", f"    s_sub_u32 s{S_H1}, s{S_H1}, s{S_XCC}", "L_ann_l:",
           f"    buffer_load_dwordx2 {q2(vCHK)}, v{vCHA}, {sq(SRD_WS)}, s{S_EP} offen offset:128 sc1",
           f"    s_add_u32 s{S_CNT}, s{S_CNT}, 1", "    s_waitcnt vmcnt(0)",
           f"    v_subrev_u32 v{vCHK}, s{S_H0}, v{vCHK}", f"    v_subrev_u32 v{vCHK+1}, s{S_H1}, v{vCHK+1}",
           f"    v_cmp_ne_u32 vcc, v{vCHK}, v{vCHK+1}", f"    v_cmp_le_u32 {sp(S_MSK)}, 16, v{vCHK}",
           f"    s_cmp_ge_u32 s{S_CNT}, 0x1000000", "    s_cbranch_scc1 L_ann_ok",
           f"    s_or_b64 vcc, vcc, {sp(S_MSK)}", "    s_cbranch_scc1 L_ann_l",
           f"    v_cmp_ne_u32 vcc, s{S_XCC}, v{vCHK}", "    s_nop 1", "    s_cmp_lg_u64 vcc, 0"]
if not P.get("forceslow"): C.tail += ["    s_cbranch_scc0 L_ann_ok"]
C.tail += ["    ; members on several XCDs: the L2-local progress stores fall out of range; L_slow stores through memory instead",
           f"    s_mov_b32 s{S_MODE}, 1", f"    v_mov_b32 v{VFS}, v{VFL}", f"    v_mov_b32 v{VFL}, 2.0"]
if P["l2"]: C.tail += [f"    v_or_b32 v{VM}, 2.0, v{VM}"]
C.tail += ["    s_branch L_ann_ok"]

if P.get('nofill'): F = F[:13]
class Pool:
    def __init__(s, regs): s.free = list(regs); s.rel = []
    def get(s, now):
        s.free += [r for t, r in s.rel if t <= now]; s.rel = [(t, r) for t, r in s.rel if t > now]
        assert s.free, "fragment pool empty"
        return s.free.pop(0)
    def put(s, t, r): s.rel.append((t, r))

def stream(units, read, pool):
    firstuse, lastuse = {}, {}
    for i, u in enumerate(units):
        for k in u:
            firstuse.setdefault(k, i); lastuse[k] = i
    rq = [(k, i) for k in sorted(firstuse, key=lambda k: firstuse[k]) for i in range(2)]
    reg = {}
    def issue(now):
        k, i = rq.pop(0)
        if i == 0:
            reg[k] = pool.get(now); pool.put(lastuse[k] + 2, reg[k])
        read(k, i, reg[k])
    return rq, reg, issue, firstuse
def run(f):
    if isinstance(f, str): C.e(f)
    elif isinstance(f, tuple): C.lds(f[1], f[2])
    else: f()

SEQ = [(0,0),(0,1),(1,1),(1,0),(1,2),(0,2),(2,2),(2,1),(2,0),(2,3),(1,3),(0,3),(3,3),(3,2),(3,1),(3,0)]
u1 = [(("w", n, a), ("x", n, p)) for n in range(16) for a, p in SEQ]
def rd1(k, i, r):
    kind, n, t = k
    base = (n % 4) * 16384 + 8192 * i
    if kind == "w": a_, off = AD[t & 1], 4096 + 256 * (t >> 1)
    else: a_, off = AD[2 + 2 * (t >> 1) + (t & 1)], 0
    C.lds(f"ds_read_b64_tr_b16 {q2(r + 2 * i)}, v{a_} offset:{base + off}", k)
rq, reg, issue, fu = stream(u1, rd1, Pool([RF + 4 * i for i in range(NPOOL)]))
if P["pre"]:
    import re
    FA, FB = F[:13], F[13:]
    C.c("per-launch constants, while the first rows are still under way")
    C.vneed("sig", "emb")
    prev = ""
    for f in FB + (FA if P["pre"] == 2 else []):
        if isinstance(f, str):
            d = re.match(r"(v_\w+) (v\d+|vcc),", prev)
            if d and re.search(rf"\b{d.group(2)}\b", f.split(",", 1)[1]):
                if d.group(1).startswith(("v_rcp", "v_sqrt", "v_log")) or f.startswith("v_readfirstlane"): C.e("s_nop 0")
            if f.startswith("v_cndmask"): C.e("s_nop 0")
            prev = f
        run(f)
    F = FA if P["pre"] == 1 else []
C.stamp()
C.e("s_barrier")
C.stamp()
barred = 0
def issue1(now):
    global barred
    n = rq[0][0][1]
    if n > barred:
        barred = n
        if n % 4 == 0:
            assert not any(t[0] == "cap" for t in C.lq if isinstance(t, tuple))
            for r in AD[:6] + ([AD[7], VT0] if P["cap"] else []): C.e(f"v_xor_b32 v{r}, 0x10000, v{r}")
        C.e("s_barrier")
        if P["cap"] and n % 4 == 3:
            C.c("keep this member's own rows of x (all four slots of the round are still in place)")
            for t in range(2):
                for i in range(2): C.lds(f"ds_read_b64_tr_b16 {q2(RX + 8 * (n // 4) + 4 * t + 2 * i)}, v{(AD[7], VT0)[t]} offset:{8192 * i}", ("cap", n))
        if n == P.get("afill"):
            C.e(f"v_lshlrev_b32 v{vTCH}, 13, v{vL4}"); C.e(f"v_lshl_add_u32 v{vTCH}, v{vC}, 6, v{vTCH}"); C.e(f"v_add_u32 v{vTCH}, s{S_TILE}, v{vTCH}")
            C.vm(f"buffer_atomic_or v{vZ}, v{vTCH}, {sq(SRD_OUT)}, s{S_MB[0, LS]} offen", "touch")
        if n == P["wo_touch"]:
            C.c("this workgroup's share of w_out into the L2; the values are not used")
            C.vm(f"buffer_load_dword v{VT1}, v{vTCH}, {sq(SRD_WO)}, 0 offen", "touch")
        if n == P['chkn']: C.vm(f"buffer_load_dwordx2 {q2(vCHK)}, v{vCHA}, {sq(SRD_WS)}, s{S_EP} offen offset:128 sc1", "chk")
    issue(now)
for _ in range(P["lead"]): issue1(0)
for i, (ka, kb) in enumerate(u1):
    if i and i % 64 == 0 and not P["xs"]: C.stamp()
    if i in P.get("xs1", ()):
        C.stamp(); C.smem = False
    C.need(ka, kb)
    acc = RA + 4 * (4 * kb[2] + ka[2])
    if not (P.get("skip1") and i >= 16 and i % P["skip1"] == 0):
        C.e(f"v_mfma_f32_16x16x32_bf16 {q4(acc)}, {q4(reg[ka])}, {q4(reg[kb])}, {'0' if i < 16 else q4(acc)}")
    if rq: issue1(i)
    elif G: run(G.pop(0))
    if P["cap"] and i == 256 - P["lead"]:
        assert not any(t[0] == "cap" for t in C.lq if isinstance(t, tuple)) and D <= 4 and PERM == list(range(16)) and not P["rmask"]
        C.e("s_barrier")
    if i % 16 == 9 and not P.get('nocap') and not P["cap"]:
        n = i // 16
        C.e(f"s_cmp_eq_u32 s{OWNR[P['rmask'][PERM[n] // 4]] if P['rmask'] else S_OWN}, {PERM[n] & 3}")
        C.e(f"s_cbranch_scc0 L_keep{n}")
        for t in range(2):
            for o in range(4): C.e(f"v_mov_b32 v{RX + 8 * (PERM[n] // 4) + 4 * t + o}, v{reg['x', n, t] + o}")
        C.lab(f"L_keep{n}")
        continue
    waited = i + 1 < len(u1) and C.need(*u1[i + 1])
    if F and i >= P["fstart"] and not waited: run(F.pop(0))
for f in G: run(f)
assert not F and not C.lq
if P["b16a"] == -3: C.e("s_barrier")
C.stamp()

DQ = RF + 4
def hreg(p, kk): return RH + 4 * (2 * p + kk)
def flag(j):
    if not (P["exp"] & 2): C.vneed(("st", j))
    C.e(f"v_mov_b32 v{VT1}, {j + 1}")
    C.vm(f"buffer_store_dword v{VT1}, v{VFL}, {sq(SRD_WS)}, 0 offen offset:256", ("fl", j))
def check(name, v, done=False):
    rdi = f"ds_read_b128 {q4(DQ)}, v{VRDY} offset:16" if done else f"ds_read_b32 v{VT0}, v{VRDY}"
    red = [f"    v_min3_u32 v{VT0}, v{DQ}, v{DQ+1}, v{DQ+2}", f"    v_min_u32 v{VT0}, v{VT0}, v{DQ+3}", "    s_nop 0"] if done else []
    C.e(f"s_cmp_ge_u32 s{S_T1}, {v}")
    if name in P["inl"]:
        C.e(f"s_cbranch_scc1 L_back{name}")
        C.e(f"s_mov_b32 s{S_CNT}, 0")
        C.lab(f"L_spin{name}_l")
        for t in [rdi, f"s_add_u32 s{S_CNT}, s{S_CNT}, 1", "s_waitcnt lgkmcnt(0)", *[x.strip() for x in red], f"v_readfirstlane_b32 s{S_T1}, v{VT0}",
                  f"s_cmp_ge_u32 s{S_CNT}, 0x4000000", f"s_cselect_b32 s{S_T1}, {v}, s{S_T1}", f"s_cmp_ge_u32 s{S_T1}, {v}", f"s_cbranch_scc0 L_spin{name}_l"]: C.e(t)
        C.lab(f"L_back{name}")
        if not done and not P["xs"]: C.stamp()
        return
    if not (P["exp"] & 1) or done: C.e(f"s_cbranch_scc0 L_spin{name}")
    C.lab(f"L_back{name}")
    if not done and not P["xs"]: C.stamp()
    C.tail += [f"L_spin{name}:", f"    s_mov_b32 s{S_CNT}, 0", f"L_spin{name}_l:",
               "    " + rdi, f"    s_add_u32 s{S_CNT}, s{S_CNT}, 1", "    s_waitcnt lgkmcnt(0)", *red,
               f"    v_readfirstlane_b32 s{S_T1}, v{VT0}", f"    s_cmp_ge_u32 s{S_CNT}, 0x4000000", f"    s_cbranch_scc1 L_back{name}",
               f"    s_cmp_ge_u32 s{S_T1}, {v}", f"    s_cbranch_scc0 L_spin{name}_l", f"    s_branch L_back{name}"]

C.c("---- h = c_out * silu(c_in * acc + bias), two elements per packed op; the sibling's pixels first")
tiles = [(p0 + p, 2 * kk + a) for p0 in (2, 0) for kk in range(2) for p in range(2) for a in range(2)]
U = RF
def acc1(n): return RA + 4 * (4 * tiles[n][0] + tiles[n][1])
def ok(n): return 0 <= n < 16
def gstore(n):
    p, a = tiles[n]; kk = a >> 1
    if LS == 1 - p // 2:
        C.vm(f"buffer_store_dwordx4 {q4(hreg(p, kk))}, v{VM}, {sq(SRD_OUT)}, s{S_MB[0, LS]} offen offset:{(p & 1) * 128}", ("st", n // 4))
        if n % 8 == 3: C.e(f"s_add_u32 s{S_MB[0, LS]}, s{S_MB[0, LS]}, 0x10000")
    elif not (P["exp"] & 8) and not (P["exp"] & 64 and p >= 2):
        C.vm(f"buffer_store_dwordx4 {q4(hreg(p, kk))}, v{VL16}, {sq(SRD_WS)}, s{S_MB[0, 1 - p // 2]} offen offset:{(2 * kk + (p & 1)) * P['hl']}{POL[P.get('hpol', 'sc1')]}", ("st", n // 4))
def publish(n):
    p, a = tiles[n]; kk = a >> 1
    if P["hold"] is None: gstore(n)
    if p >= 2: C.lds(f"ds_write_b128 v{VXW}, {q4(hreg(p, kk))} offset:{((p & 1) * 2 + kk) * 1024}", "xw")
HOLD = P["hold"] or []
def xr(f):
    p2, kk = f & 1, f >> 1
    C.lds(f"ds_read_b128 {q4(hreg(2 + p2, kk))}, v{VXR} offset:{(p2 * 2 + kk) * 1024}", "xr")
for n in range(-2, 17):
    E = [f"v_exp_f32 v{acc1(n+1)+o}, v{U + 4*((n+1)&3) + o}" for o in range(4)] if ok(n + 1) else []
    M = [f"v_pk_mul_f32 {q2(acc1(n-1)+o)}, {q2(acc1(n-1)+o)}, {q2(U + 4*((n-1)&3) + o)}" for o in (0, 2)] if ok(n - 1) else []
    A1 = [f"v_pk_fma_f32 {q2(U + 4*((n+2)&3) + o)}, {q2(acc1(n+2)+o)}, {sp(S_S1)}, {q2(RBI + 4*tiles[n+2][1] + o)}" for o in (0, 2)] if ok(n + 2) else []
    R = [f"v_rcp_f32 v{acc1(n)+o}, v{acc1(n)+o}" for o in range(4)] if ok(n) else []
    if P.get("norcp"): R = []
    A2 = [f"v_pk_fma_f32 {q2(acc1(n+1)+o)}, {q2(acc1(n+1)+o)}, {sp(S_IK)}, {sp(S_IK)}" for o in (0, 2)] if ok(n + 1) else []
    V = []
    if ok(n - 1):
        p, a = tiles[n - 1]
        V = [f"v_cvt_pk_bf16_f32 v{hreg(p, a >> 1) + 2 * (a & 1) + o // 2}, v{acc1(n-1)+o}, v{acc1(n-1)+o+1}" for o in (0, 2)]
    def weave(a_, b_):
        r = []
        for i in range(max(len(a_), len(b_))): r += a_[i:i+1] + b_[i:i+1]
        return r
    if P["sil"]:
        if ok(n - 2) and n % 2 == 1: publish(n - 2)
        for t in weave(E, M + A1) + weave(R, V + A2): C.e(t)
    else:
        for t in E: C.e(t)
        if ok(n - 2) and n % 2 == 1: publish(n - 2)
        for t in M + A1 + R + A2 + V: C.e(t)
    if n == P["b16a"]: C.e("s_barrier")
    if n == 9 and LS == 0:
        C.e(f"s_cmp_lg_u32 s{S_MODE}, 0")
        C.e("s_cbranch_scc1 L_slow0")
        C.lab("L_slow0_done")
        C.tail += ["L_slow0:", f"    v_xor_b32 v{VM}, 2.0, v{VM}", f"    s_sub_u32 s{S_T0}, s{S_MB[0, 0]}, 0x10000"]
        C.tail += [f"    buffer_store_dwordx4 {q4(hreg(p, kk))}, v{VM}, {sq(SRD_OUT)}, s{S_MB[0, 0] if kk else S_T0} offen offset:{(p & 1) * 128} sc1" for p in (2, 3) for kk in range(2)]
        C.tail += ["    s_waitcnt vmcnt(0)", "    s_branch L_slow0_done"]
    if n == P["nb"]:
        C.need("xw")
        C.e("s_barrier")
        C.stamp()
    for f, pos in enumerate(HOLD):
        if pos == -n and n > 0:
            assert n >= 2 * f + 2
            gstore(2 * f + 1)
    if n == max([P["nb"]] + [-x for x in HOLD[:4]]):
        assert all(x < 0 for x in HOLD[:4])
        C.e("s_nop 0")
        for f in range(4): xr(f)
    for j in range(4):
        if P["fl"][j] is not None and P["fl"][j] == -n and n > 0:
            assert n >= 4 * j + 5
            flag(j)
publish(15)
def slow():
    C.e(f"s_cmp_lg_u32 s{S_MODE}, 0")
    C.e("s_cbranch_scc1 L_slow")
    C.lab("L_slow_done")
SLOWPOS = max(HOLD + [-1])
if SLOWPOS < 0: slow()
C.tail += ["L_slow:"]
if LS == 1:
    C.tail += [f"    v_xor_b32 v{VM}, 2.0, v{VM}", f"    s_sub_u32 s{S_T0}, s{S_MB[0, 1]}, 0x10000"]
    C.tail += [f"    buffer_store_dwordx4 {q4(hreg(p, kk))}, v{VM}, {sq(SRD_OUT)}, s{S_MB[0, 1] if kk else S_T0} offen offset:{(p & 1) * 128} sc1" for p in (0, 1) for kk in range(2)]
C.tail += [f"    v_mov_b32 v{VT1}, 4", "    s_waitcnt vmcnt(0) lgkmcnt(0)",
           f"    buffer_store_dword v{VT1}, v{VFS}, {sq(SRD_WS)}, 0 offen offset:256 sc1", "    s_waitcnt vmcnt(0)", "    s_branch L_slow_done"]
C.stamp()

poolq = [RF + 4 * i for i in range(NPOOL)]
rem = poolq[9:21] + [RBI + 4 * i for i in range(4)] + [RX + 4 * i for i in range(8)]
def rq_(j, m, p): return rem[6 * j + 2 * (m - 1) + p]
units = []
for t in range(2):
    for rho in range(4):
        for p in range(2): units.append((2 * rho + t, p, RX + 8 * rho + 4 * p, ("sel", t), True, None))
def snake(jts, areg, m, far, kk, tag):
    for n, jt in enumerate(jts):
        for p in ((0, 1) if n % 2 == 0 else (1, 0)):
            units.append((jt, p, areg(p), ("o", m, far, kk, jt), False, tag(p)))
for far in (1, 0):
    for kk in range(2): snake(range(8), lambda p: hreg(2 * far + p, kk), 0, far, kk, lambda p: "xr" if far else None)
steps = [(j, m) for j in range(4) for m in (1, 2, 3)]
if P['fp']: steps = [(0,1),(0,2),(1,1),(1,2),(0,3),(1,3)] + steps[6:]
nbm = 2 * P["bm"]
def remote(jts, j, m): snake(jts, lambda p: rq_(j, m, p), m, 1 - j // 2, j & 1, lambda p: ("pl", j, m, p))
for j, m in steps[:12 - nbm]: remote(range(8), j, m)
for blk in range(4):
    for j, m in steps[12 - nbm:]: remote((2 * blk, 2 * blk + 1), j, m)
NU = len(units)
def rd2(k, i, r):
    _, m, far, kk, jt = k
    base = (4 * m + kk) * 8192
    a_ = AD[4 * far + 2 * (jt & 1) + (base >= 65536)]
    C.lds(f"ds_read_b64_tr_b16 {q2(r + 2 * i)}, v{a_} offset:{base % 65536 + 4096 * i + 256 * (jt >> 1)}", k)
rq, reg, issue, fu = stream([(u[3],) if u[3][0] == "o" else () for u in units], rd2, Pool(poolq[2:9]))
first_remote = min(i for i, u in enumerate(units) if isinstance(u[5], tuple))
last = {blk: max(i for i, u in enumerate(units) if u[0] // 2 == blk) for blk in range(4)}
sched = {}
def at(i, kind, x): sched.setdefault(i, []).append((kind, x))
busy = []
def claim(a_, b_):
    assert a_ >= 0 and all(b_ < x or a_ > y for x, y in busy), ("checks overlap", a_, b_, busy)
    busy.append((a_, b_))
if P["fp"]: first_remote = min(i for i, u in enumerate(units) if u[3][0] == "o" and u[3][1] == 3)
iw = P.get("chkW", first_remote - P["pf2"] - 3)
assert iw <= first_remote - P["pf2"] - 3
if P['b16a'] is None or not P['wbar']:
    claim(iw - 3, iw)
    at(iw - 10, "m", lambda: C.lds(f"ds_read_b128 {q4(DQ)}, v{VRDY} offset:16", ("rdy", "W")))
    at(iw - 3, "m", lambda: C.need(("rdy", "W")))
    at(iw - 3, "v", f"v_min3_u32 v{VT0}, v{DQ}, v{DQ+1}, v{DQ+2}")
    at(iw - 2, "v", f"v_min_u32 v{VT0}, v{VT0}, v{DQ+3}")
    at(iw - 1, "v", f"v_readfirstlane_b32 s{S_T1}, v{VT0}")
    at(iw, "m", lambda: check("W", 1 + P["fp"], True))
nextld = 0
assert not P["fp"] or (P["chk"][1] is None and LS != 0)
for j0 in range(4):
    j = j0
    i0 = P["chk"][j]
    if i0 is not None:
        top = max(x for x in range(j, 4) if all(P["chk"][y] is None for y in range(j + 1, x + 1)))
        claim(i0 - 7, i0)
        at(i0 - 7, "m", lambda j=j: C.lds(f"ds_read_b32 v{VT0}, v{VRDY}", ("rdy", j)))
        at(i0 - 1, "m", lambda j=j: C.need(("rdy", j)))
        at(i0 - 1, "v", f"v_readfirstlane_b32 s{S_T1}, v{VT0}")
        at(i0, "m", lambda j=j, top=top: check(j, top + 1))
        assert P["fl"][top] is not None and P["fl"][top] <= i0
        nextld = max(nextld, 2 * i0)
    for j, m in steps[3 * j0:3 * j0 + 3]:
        for p in range(2):
            assert j < 2 or nextld // 2 >= 18
            assert nextld // 2 < min(i for i, u in enumerate(units) if u[5] == ("pl", j, m, p))
            if LS == j // 2:
                def ld(j=j, m=m, p=p):
                    C.vm(f"buffer_load_dwordx4 {q4(rq_(j, m, p))}, v{VM}, {sq(SRD_OUT)}, s{S_MB[m, LS]} offen offset:{p * 128} sc1", ("pl", j, m, p))
                    if j % 2 == 0 and p == 1: C.e(f"s_add_u32 s{S_MB[m, LS]}, s{S_MB[m, LS]}, 0x10000")
                at(nextld // 2, "m", ld)
            elif not (P["exp"] & 4) and not (P["exp"] & 128 and j < 2): at(nextld // 2, "m", lambda j=j, m=m, p=p: C.vm(
                f"buffer_load_dwordx4 {q4(rq_(j, m, p))}, v{VL16}, {sq(SRD_WS)}, s{S_MB[m, j // 2]} offen offset:{(2 * (j & 1) + p) * P['hl']}{POL[P.get('ldpol', 'sc1')]}", ("pl", j, m, p)))
            nextld += P["ldgap"] if isinstance(P["ldgap"], int) else P["ldgap"][j]
    j = j0
    if P["fl"][j] is not None and P["fl"][j] >= 0: at(P["fl"][j], "m", lambda j=j: flag(j))
assert P["fl"][3] >= 16
if P["l2"]:
    def ack():
        C.vneed(("pl", 2 * LS + 1, 3, 1))
        C.e(f"v_mov_b32 v{VT1}, 5")
        C.vm(f"buffer_store_dword v{VT1}, v{VFL}, {sq(SRD_WS)}, 0 offen offset:256", "ack")
        C.vm(f"buffer_store_dword v{VT1}, v{VFS}, {sq(SRD_WS)}, 0 offen offset:256 sc1", "ack")
    at(P["ack"], "m", ack)
    assert P["ack"] > P["fl"][3]
    io = last[2] + P.get('iod', -4)
    assert io < last[2] + 18
    assert P["ack"] < io - 7
    claim(io - 7, io)
    at(io - 7, "m", lambda: C.lds(f"ds_read_b32 v{VT0}, v{VRDY}", ("rdy", "O")))
    at(io - 1, "m", lambda: C.need(("rdy", "O")))
    at(io - 1, "v", f"v_readfirstlane_b32 s{S_T1}, v{VT0}")
    at(io, "m", lambda: check("O", 5))
    P["outpol"] = list(P["outpol"][:2]) + ["plain", "plain"]
for f, pos in enumerate(HOLD):
    if pos >= 0:
        at(pos, "m", lambda f=f: gstore(2 * f + 1))
        assert all(x is None or x > pos for x in P["fl"][f // 2:])
if SLOWPOS >= 0:
    at(SLOWPOS + 1, "m", slow)
    assert SLOWPOS + 1 < min(x for x in P["chk"] if x is not None) - 7
TMP = RF
if P["full"]:
    for blk in range(4):
        t0 = last[blk] + 5
        dat = RA + 16 * blk; so = (blk & 1) * 8704
        for g in range(4):
            for o in range(2): at(t0 + 2 * g + o, "v", f"v_cvt_pk_bf16_f32 v{TMP + 2*g + o}, v{dat + 4*g + 2*o}, v{dat + 4*g + 2*o + 1}")
            at(t0 + 2 * g + 2, "m", lambda g=g, so=so, blk=blk: C.lds(f"ds_write_b64 v{VSW}, {q2(TMP + 2*g)} offset:{so + 16 * 272 * (g >> 1) + 32 * (g & 1)}", ("sw", blk)))
        def sync(blk=blk, so=so, dat=dat):
            C.need(("sw", blk), ("sr", blk - 1, 1))
            C.e("s_barrier")
            for k in range(2): C.lds(f"ds_read_b128 {q4(dat + 4*k)}, v{VSR} offset:{so + 4 * 272 * k}", ("sr", blk, k))
        at(t0 + 8 + P["full"], "m", sync)
        def st(k, blk=blk, dat=dat):
            C.need(("sr", blk, k))
            C.vm(f"buffer_store_dwordx4 {q4(dat + 4*k)}, v{VOUT}, {sq(SRD_OUT)}, s{S_OB} offen{POL[P['outpol'][blk]]}", ("out", blk))
            if (blk, k) != (3, 1): C.e(f"s_add_u32 s{S_OB}, s{S_OB}, {hex(0x38000 if k else 0x8000)}")
        for k in range(2): at(t0 + 8 + P["full"] + 7 + 4 * k, "m", lambda k=k, st=st: st(k))
else:
    for blk in range(4):
        t0 = last[blk] + 5
        dat = RA + 16 * blk; so = (blk & 1) * 2560
        for g in range(4):
            for o in range(2): at(t0 + 2 * g + o, "v", f"v_cvt_pk_bf16_f32 v{TMP + 2*g + o}, v{dat + 4*g + 2*o}, v{dat + 4*g + 2*o + 1}")
            at(t0 + 2 * g + 2, "m", lambda g=g, so=so, blk=blk: C.lds(f"ds_write_b64 v{VSW}, {q2(TMP + 2*g)} offset:{so + 1280 * (g >> 1) + 32 * (g & 1)}", ("sw", blk)))
        for k in range(2):
            at(t0 + 5 + 4 * k, "m", lambda k=k, so=so, blk=blk, dat=dat: C.lds(f"ds_read_b128 {q4(dat + 4*k)}, v{VSR} offset:{so + 1280*k}", ("sr", blk, k)))
        def st(k, blk=blk, dat=dat):
            C.need(("sr", blk, k))
            if not (P["exp"] & 16) or blk == 3: C.vm(f"buffer_store_dwordx4 {q4(dat + 4*k)}, v{VOUT}, {sq(SRD_OUT)}, s{S_OB} offen{POL[P['outpol'][blk]]}", ("out", blk))
            if (blk, k) != (3, 1): C.e(f"s_add_u32 s{S_OB}, s{S_OB}, 0x20000")
        for k in range(2): at(t0 + 13 + 5 * k, "m", lambda k=k, st=st: st(k))
ie = nextld // 2 + 4
at(ie, "m", lambda: (C.c("member 0 moves the group's epoch on (every member read it long ago: their progress words came after it)"),
                     C.e(f"s_lshl_b32 s{S_T0}, s{S_Q}, 28")))
at(ie, "v", f"v_lshl_or_b32 v{TMP}, v0, 24, s{S_T0}")
at(ie + 1, "v", f"v_mov_b32 v{TMP+1}, s{S_EN}")
at(ie + 2, "m", lambda: C.vm(f"buffer_store_dword v{TMP+1}, v{TMP}, {sq(SRD_WS)}, s{S_EP} offen sc1", "epst"))
assert ie + 3 < last[0] + 5
def pre_wait(i):
    if i >= NU: return
    u = units[i]
    if isinstance(u[5], tuple): C.vneed(u[5])
    ks = [u[3]]
    if P["w4"] and u[3] in C.lq and i + 2 < NU: ks.append(units[i + 2][3])
    C.need(*ks, *([u[5]] if u[5] == "xr" else []))
for i, u in enumerate(units):
    jt, p, ar, bk, first, tag = u
    if i in P["xs"]:
        C.stamp(); C.smem = False
    pre_wait(i)
    br = RS + 2 - 2 * bk[1] if bk[0] == "sel" else reg[bk]
    acc = RA + 4 * (2 * jt + p)
    if not any(a_ <= i < b_ for a_, b_ in P.get("skip", ())):
        C.e(f"v_mfma_f32_16x16x32_bf16 {q4(acc)}, {q4(ar)}, {q4(br)}, {'0' if first else q4(acc)}")
    if rq and fu[rq[0][0]] <= i + P["pf2"] + 1: issue(i)
    items = sched.pop(i, [])
    for k, x in items:
        if k == "m": x()
    pre_wait(i + 1)
    for k, x in items:
        if k == "v": C.e(x)
C.stamp()
C.e("s_nop 5")
for i in sorted(sched):
    for k, x in sorted(sched[i], key=lambda y: y[0]):
        if k == "v": C.e(x)
        else: x()
C.stamp()
if P["stamps"] or "probe" in P:
    C.e("s_waitcnt vmcnt(0)")
    if P.get("probe") == -1: P["probe"] = C.nst
    C.stamp()
if "probe" in P or P.get("rt"):
    C.e("s_waitcnt lgkmcnt(0)")
    if "probe" in P:
        C.e("s_sub_u32 s96, s96, s100"); C.e("s_lshl_b32 s96, s96, 2"); C.e("s_add_u32 s96, s96, 2000")
        if "pwg" in P:
            C.e(f"s_cmp_eq_u32 s2, {P['pwg']}"); C.e("s_cselect_b32 s96, s96, 0")
    else:
        C.e(f"s_mov_b32 s96, {P['rt']}")
        if "pwg" in P:
            C.e(f"s_cmp_eq_u32 s2, {P['pwg']}"); C.e("s_cselect_b32 s96, s96, 0")
    C.lab("L_rt")
    C.e("s_memrealtime s[98:99]"); C.e("s_waitcnt lgkmcnt(0)"); C.e("s_sub_u32 s98, s98, s100")
    C.e("s_cmp_lt_u32 s98, s96"); C.e("s_cbranch_scc1 L_rt")
C.dump_stamps()
C.e("s_endpgm")

nm = P["name"]
hdr = open("standalone__edm_precond__diffusion.s.ref").read().split("; Override")[0]
out = [hdr.rstrip(),
       "; generated by gen/gen.py  " + " ".join(sys.argv[1:]),
       f"; @launch grid=(256,1,1) block=(512,1,1) lds={LDS_TOTAL}",
       '.amdgcn_target "amdgcn-amd-amdhsa--gfx950"', ".text", f".globl {nm}_kernel", f".p2align {P['align']}",
       f".type {nm}_kernel,@function", f"{nm}_kernel:"]
out += h.l + L.l + C.l + C.tail + ["L_end:"]
out += ['.section .rodata,"a"', ".p2align 6", f".amdhsa_kernel {nm}_kernel",
        "  .amdhsa_next_free_vgpr 256", "  .amdhsa_next_free_sgpr 102", "  .amdhsa_accum_offset 256",
        "  .amdhsa_group_segment_fixed_size 0", "  .amdhsa_kernarg_size 64", "  .amdhsa_user_sgpr_count 2",
        "  .amdhsa_user_sgpr_kernarg_segment_ptr 1", "  .amdhsa_system_sgpr_workgroup_id_x 1", ".end_amdhsa_kernel"]
print("\n".join(out))
```

```python
import sys, json

P = dict(align=12, ntx=0, D=4, thr=4, stamps=0, codepf=1, wo_touch=99, prime=1, lt=(2, 4, 1), exp=0, fine=6, noown=1, inl=(), hl=256, lay=1, full=0, wrot=0, gmap=0, pre=1, cap=1, rmask=None, fp=0, nb=12, hold=None, b16a=None, na=22, wbar=1, l2=0, fillpos=18, ack=150, stlb=0, perm=tuple(range(16)), chkn=8, w4=1, sil=0, fstart=20, xs=(),
         lead=12, pf2=8,
         fl=(None, -15, None, 42),
         chk=(56, None, 116, None), ldgap=(10, 10, 6, 6), bm=3,
         outpol=("nt", "nt", "nt", "nt"),
         name="standalone__edm_precond__diffusion")
for a in sys.argv[1:]:
    k, v = a.split("=", 1)
    try: P[k] = json.loads(v)
    except Exception: P[k] = v

POL = {"plain": "", "sc1": " sc1", "nt": " nt", "ntsc1": " sc1 nt", "sc01": " sc0 sc1"}
WS_BYTES = 0x808000 if P['lay'] else 0x1000000
HC0, HK0, HC1, HK1 = 0x9E3779B1, 0x7F4A7C15, 0x85EBCA77, 0xC2B2AE3D
STAMP_OFF = 0x1100000
LDS_MISC = 131072
LDS_BIAS = LDS_MISC
LDS_RDY = LDS_MISC + 2048
LDS_STG = LDS_MISC + 4096
LDS_TOTAL = LDS_STG + 4 * 5120

LS = P['l2'] - 1
ROTS = [(0, 1, 2, 3), (0, 2, 3, 1), (0, 3, 1, 2), (0, 1, 2, 3)]
ROTTAB = sum(x << (8 * k + 2 * m) for k, r in enumerate(ROTS) for m, x in enumerate(r))
class Prog:
    def __init__(s):
        s.l = []; s.lq = []; s.vq = []; s.smem = False; s.nst = 0; s.tail = []; s.is_c = False
    def e(s, t): s.l.append("    " + t)
    def lab(s, t): s.l.append(t + ":")
    def c(s, t): s.l.append("    ; " + t)
    def lds(s, t, tag):
        s.e(t); s.lq.append(tag)
    def vm(s, t, tag):
        s.e(t); s.vq.append(tag); assert len(s.vq) <= 63
    def need(s, *tags):
        idx = max([i for i, t in enumerate(s.lq) if t in tags], default=-1)
        if idx < 0: return False
        n = min(len(s.lq) - 1 - idx, 15)
        if s.smem: n = 0; s.smem = False
        s.e(f"s_waitcnt lgkmcnt({n})"); s.lq = s.lq[len(s.lq) - n:] if n else []
        return True
    def vneed(s, *tags):
        idx = max([i for i, t in enumerate(s.vq) if t in tags], default=-1)
        if idx < 0: return False
        n = len(s.vq) - 1 - idx
        s.e(f"s_waitcnt vmcnt({n})"); s.vq = s.vq[len(s.vq) - n:] if n else []
        return True
    def stamp(s):
        if "probe" in P:
            if s.nst == P["probe"] and s.is_c:
                s.e("s_memrealtime s[96:97]"); s.smem = True
            s.nst += 1
        if P["stamps"]:
            s.e(f"{'s_memtime' if P['stamps'] == 1 else 's_memrealtime'} s[{68 + 2 * s.nst}:{69 + 2 * s.nst}]"); s.nst += 1; s.smem = True
            assert s.nst <= 17
    def dump_stamps(s):
        if not P["stamps"]: return
        s.e("s_waitcnt lgkmcnt(0) vmcnt(0)")
        s.e("v_mov_b32 v14, 0")
        for i in range(1, s.nst):
            s.e(f"s_sub_u32 s{68+2*i}, s{68+2*i}, s68")
            s.e(f"v_writelane_b32 v14, s{68+2*i}, {i}")
        s.e("v_writelane_b32 v14, s68, 0")
        s.e("s_lshl_b32 s3, s2, 11")
        s.e(f"s_add_u32 s3, s3, {STAMP_OFF}")
        s.e("v_lshl_add_u32 v15, v0, 2, s3")
        s.e("global_store_dword v15, v14, s[18:19]")

def q4(r): return f"v[{r}:{r+3}]"
def q2(r): return f"v[{r}:{r+1}]"
def sq(d): return f"s[{d}:{d+3}]"
def sp(d): return f"s[{d}:{d+1}]"

S_EP, S_EN = 20, 21
S_W, S_Q, S_GL, S_G, S_OWN, S_TILE = 22, 23, 24, 25, 26, 27
SRD_A, SRD_B, SRD_C = 28, 32, 36
S_OB = 40
S_T0, S_T1, S_T2, S_T3 = 44, 45, 46, 47
S_S1, S_IK, S_MSK = 48, 50, 52
S_MB = {(m, s): 54 + 2 * m + s for m in range(4) for s in range(2)}
S_CNT, S_H0, S_H1, S_XCC, S_MODE = 62, 63, 64, 65, 66
S_N, S_LB, S_XO, S_WO = 40, 41, 42, 43

h = Prog()
h.stamp()
if P.get("rt") or "probe" in P: h.e("s_memrealtime s[100:101]")
h.e("s_load_dwordx16 s[4:19], s[0:1], 0")
h.e("s_cmp_ge_u32 s2, 0x100")
h.e("s_cbranch_scc1 L_exit")
h.e("v_lshrrev_b32 v2, 6, v0")
h.e("v_and_b32 v1, 63, v0")
h.e(f"v_readfirstlane_b32 s{S_W}, v2")
h.e(f"s_lshr_b32 s{S_T0}, s2, 3")
if P["codepf"]:
    h.c("pull this kernel's code into the L2 (one 128-byte line per wave)")
    h.e("s_getpc_b64 s[20:21]")
    h.lab("L_pc")
    h.e(f"s_lshl_b32 s{S_T1}, s{S_T0}, 3")
    h.e(f"v_add_lshl_u32 v3, v2, s{S_T1}, 7")
    h.e("v_min_u32 v3, L_end-L_pc-4, v3")
    h.e("global_load_dword v15, v3, s[20:21]")
h.e(f"s_and_b32 s{S_Q}, s{S_T0}, 3")
h.e(f"s_lshr_b32 s{S_GL}, s{S_T0}, 2")
h.e(f"s_and_b32 s{S_T1}, s2, 7")
if P["gmap"] == 1: h.e(f"s_lshl3_add_u32 s{S_G}, s{S_T1}, s{S_GL}")
elif P["gmap"] == 2:
    h.e(f"s_and_b32 s{S_G}, s{S_GL}, 3"); h.e(f"s_lshl2_add_u32 s{S_G}, s{S_T1}, s{S_G}")
    h.e(f"s_and_b32 s{S_T1}, s{S_GL}, 4"); h.e(f"s_lshl3_add_u32 s{S_G}, s{S_T1}, s{S_G}")
else: h.e(f"s_lshl3_add_u32 s{S_G}, s{S_GL}, s{S_T1}")
h.e(f"s_lshr_b32 s{S_T0}, s{S_G}, 5")
h.e(f"s_lshl_b32 s{S_TILE}, s{S_T0}, 22")
h.e(f"s_and_b32 s{S_T1}, s{S_G}, 31")
h.e(f"s_lshl_b32 s{S_T1}, s{S_T1}, 8")
h.e(f"s_add_u32 s{S_TILE}, s{S_TILE}, s{S_T1}")
h.e(f"s_cmp_lt_u32 s{S_W}, 4")
h.e("s_cbranch_scc1 L_compute")

L = Prog(); L.nst = h.nst
D = P["D"]
ntx = " nt" if P["ntx"] == 1 else ""
L.c("---------------- loader waves: wave 4+i brings rows 4i..4i+3 of every 16-row step")
if P.get("priol"): L.e(f"s_setprio {P['priol']}")
L.e("v_lshrrev_b32 v4, 4, v1")
L.e("v_lshlrev_b32 v6, 1, v2")
L.e("v_xor_b32 v6, v6, v1")
L.e("v_and_b32 v6, 3, v6")
L.e("v_lshlrev_b32 v6, 4, v6")
L.e("v_bfe_u32 v5, v0, 2, 2")
L.e("v_and_b32 v2, 3, v2")
L.e("v_lshl_add_u32 v5, v2, 2, v5")
L.e("v_lshl_add_u32 v7, v4, 6, v6")
L.e("v_lshl_add_u32 v2, v5, 13, v7")
L.e(f"v_add_u32 v2, s{S_TILE}, v2")
L.e(f"s_lshl_b32 s{S_T0}, s{S_Q}, 8")
L.e(f"v_lshl_add_u32 v5, v5, 10, s{S_T0}")
L.e("v_add_u32 v3, v5, v7")
L.e(f"s_and_b32 s{S_LB}, s{S_W}, 3")
L.e(f"s_lshl_b32 s{S_LB}, s{S_LB}, 10")
L.e(f"s_mov_b32 s{S_N}, 0")
L.e(f"s_add_u32 s{S_T2}, s{S_Q}, s{S_GL}")
PERM = list(P["perm"]); assert sorted(PERM) == list(range(16))
tab = sum(v << (4 * n) for n, v in enumerate(PERM))
if P["rmask"]: L.e(f"s_mov_b32 s50, {hex(sum(P['rmask'][v // 4] << (2 * n) for n, v in enumerate(PERM)))}")
L.e(f"s_mov_b32 s48, {hex(tab & 0xffffffff)}"); L.e(f"s_mov_b32 s49, {hex(tab >> 32)}")
if P["lt"]:
    per = P["lt"][0]
    L.e(f"s_lshl_b32 s{S_T1}, s{S_GL}, 16"); L.e(f"s_add_u32 s{S_T0}, s{S_T0}, s{S_T1}")
    L.e(f"s_lshl_b32 s{S_T1}, s{S_LB}, 4"); L.e(f"s_add_u32 s{S_T0}, s{S_T0}, s{S_T1}")
    L.e(f"s_lshl_b32 s{S_T1}, s2, 11"); L.e(f"s_and_b32 s{S_T1}, s{S_T1}, {hex(0x3c00 & ~(per * 1024 - 1))}"); L.e(f"s_add_u32 s{S_T0}, s{S_T0}, s{S_T1}")
    L.e(f"v_bfe_u32 v13, v1, 1, {per.bit_length() - 1}" if per > 1 else "v_mov_b32 v13, 0")
    L.e(f"v_lshl_add_u32 v14, v13, 10, s{S_T0}")
    L.e("v_and_b32 v13, 1, v1"); L.e("v_lshl_add_u32 v14, v13, 7, v14")
    L.e(f"s_mov_b32 s{S_T3}, 0x3c00")
L.e("v_and_b32 v8, 7, v1")
L.e("v_lshlrev_b32 v8, 2, v8")
L.e(f"v_add_u32 v8, {LDS_RDY}, v8")
L.e("v_mov_b32 v9, 0")
L.e("ds_write_b32 v8, v9")
L.e("v_and_b32 v11, 3, v1")
L.e(f"s_lshl_b32 s{S_T0}, s{S_G}, {9 if P['lay'] else 18}")
if P["noown"]:
    L.e("v_max_u32 v12, 1, v11"); L.e(f"v_add_u32 v12, s{S_Q}, v12"); L.e("v_and_b32 v12, 3, v12")
    L.e(f"v_lshl_add_u32 v12, v12, 4, s{S_T0}")
else: L.e(f"v_lshl_add_u32 v12, v11, 4, s{S_T0}")
L.e(f"s_mov_b32 s{SRD_A+2}, 0x800000"); L.e(f"s_mov_b32 s{SRD_A+3}, 0x20000")
L.e(f"s_mov_b32 s{SRD_B+2}, 0x80000"); L.e(f"s_mov_b32 s{SRD_B+3}, 0x20000")
if P.get("lst"): L.stamp()
L.e("s_waitcnt lgkmcnt(0)")
if P.get("lst"): L.stamp()
L.e(f"s_mov_b64 {sp(SRD_A)}, s[4:5]")
L.e(f"s_mov_b64 {sp(SRD_B)}, s[8:9]")
L.lab("L_ld1")
L.c("slot n holds 32 rows: block n/4 of quarter (n+member+group)&3, so that every row is first fetched by few workgroups")
if P["rmask"]:
    L.e(f"s_and_b32 s{S_T0}, s50, s{S_T2}")
    L.e("s_lshr_b32 s50, s50, 2")
    L.e(f"s_xor_b32 s{S_T0}, s{S_T0}, s48")
else: L.e(f"s_add_u32 s{S_T0}, s48, s{S_T2}")
L.e(f"s_and_b32 s{S_T0}, s{S_T0}, 3")
L.e(f"s_bfe_u32 s{S_T1}, s48, 0x20002")
L.e("s_lshr_b64 s[48:49], s[48:49], 4")
if P.get("xrot"):
    sh, mk = P["xrot"]
    L.e(f"s_lshl_b32 s55, s2, {sh}"); L.e(f"s_and_b32 s55, s55, {mk}"); L.e(f"s_add_u32 s{S_T1}, s{S_T1}, s55"); L.e(f"s_and_b32 s{S_T1}, s{S_T1}, 3")
L.e(f"s_lshl2_add_u32 s{S_T0}, s{S_T0}, s{S_T1}")
if P["ntx"] >= 2:
    L.e(f"s_and_b32 s{S_T1}, s{S_N}, 3")
    L.e(f"s_cmp_eq_u32 s{S_T1}, {0 if P['ntx'] < 4 else 3}")
    L.e(f"s_cbranch_scc{int(P['ntx'] == 3)} L_pl")
    for pol, lab in ((" nt", None), ("", "L_pl")):
        if lab: L.lab(lab)
        L.e(f"s_mov_b32 m0, s{S_LB}")
        L.e(f"s_lshl_b32 s{S_XO}, s{S_T0}, 18")
        L.e(f"buffer_load_dwordx4 v2, {sq(SRD_A)}, s{S_XO} offen{pol} lds")
        L.e(f"s_add_u32 m0, s{S_LB}, 0x2000")
        L.e(f"s_add_u32 s{S_XO}, s{S_XO}, 0x20000")
        L.e(f"buffer_load_dwordx4 v2, {sq(SRD_A)}, s{S_XO} offen{pol} lds")
        if not lab: L.e("s_branch L_pw")
    L.lab("L_pw")
    L.e(f"s_add_u32 m0, s{S_LB}, 0x1000")
    L.e(f"s_lshl_b32 s{S_WO}, s{S_T0}, 15")
    L.e(f"buffer_load_dwordx4 v3, {sq(SRD_B)}, s{S_WO} offen lds")
    L.e(f"s_add_u32 m0, s{S_LB}, 0x3000")
    L.e(f"s_add_u32 s{S_WO}, s{S_WO}, 0x4000")
    L.e(f"buffer_load_dwordx4 v3, {sq(SRD_B)}, s{S_WO} offen lds")
elif P.get("xxww"):
    L.e(f"s_mov_b32 m0, s{S_LB}")
    L.e(f"s_lshl_b32 s{S_XO}, s{S_T0}, 18")
    L.e(f"buffer_load_dwordx4 v2, {sq(SRD_A)}, s{S_XO} offen{ntx} lds")
    L.e(f"s_add_u32 m0, s{S_LB}, 0x2000")
    L.e(f"s_add_u32 s{S_XO}, s{S_XO}, 0x20000")
    L.e(f"buffer_load_dwordx4 v2, {sq(SRD_A)}, s{S_XO} offen{ntx} lds")
    L.e(f"s_add_u32 m0, s{S_LB}, 0x1000")
    L.e(f"s_lshl_b32 s{S_WO}, s{S_T0}, 15")
    L.e(f"buffer_load_dwordx4 v3, {sq(SRD_B)}, s{S_WO} offen lds")
    L.e(f"s_add_u32 m0, s{S_LB}, 0x3000")
    L.e(f"s_add_u32 s{S_WO}, s{S_WO}, 0x4000")
    L.e(f"buffer_load_dwordx4 v3, {sq(SRD_B)}, s{S_WO} offen lds")
else:
    L.e(f"s_mov_b32 m0, s{S_LB}")
    L.e(f"s_lshl_b32 s{S_XO}, s{S_T0}, 18")
    L.e(f"buffer_load_dwordx4 v2, {sq(SRD_A)}, s{S_XO} offen{ntx} lds")
    L.e(f"s_add_u32 m0, s{S_LB}, 0x1000")
    L.e(f"s_lshl_b32 s{S_WO}, s{S_T0}, 15")
    L.e(f"buffer_load_dwordx4 v3, {sq(SRD_B)}, s{S_WO} offen lds")
    L.e(f"s_add_u32 m0, s{S_LB}, 0x2000")
    L.e(f"s_add_u32 s{S_XO}, s{S_XO}, 0x20000")
    L.e(f"buffer_load_dwordx4 v2, {sq(SRD_A)}, s{S_XO} offen{ntx} lds")
    L.e(f"s_add_u32 m0, s{S_LB}, 0x3000")
    L.e(f"s_add_u32 s{S_WO}, s{S_WO}, 0x4000")
    if not P.get("halfw"): L.e(f"buffer_load_dwordx4 v3, {sq(SRD_B)}, s{S_WO} offen lds")
if P.get("wi") is not None:
    L.e(f"s_cmp_lg_u32 s{S_N}, {P['wi']}")
    L.e("s_cbranch_scc1 L_nowi")
    L.e("global_load_dword v10, v14, s[8:9]")
    L.lab("L_nowi")
if P["lt"]:
    per, ph = P["lt"][:2]
    L.c("a few rows of w_out towards the caches; the values are not used")
    if len(P["lt"]) > 2:
        L.e(f"s_cmp_lg_u32 s{S_N}, {ph}")
        L.e("s_cbranch_scc1 L_notouch")
    elif per > 1:
        L.e(f"s_and_b32 s{S_T0}, s{S_N}, {per - 1}")
        L.e(f"s_cmp_lg_u32 s{S_T0}, {ph}")
        L.e("s_cbranch_scc1 L_notouch")
    L.e(f"global_load_dword v10, v14, s[12:13]")
    if P["stlb"]:
        L.c("first touch of the output page on the scalar path (address translation only)")
        L.e(f"s_lshl_b32 s{S_T0}, s{S_Q}, 20"); L.e(f"s_add_u32 s{S_T0}, s{S_T0}, s{S_TILE}")
        L.e(f"s_load_dword s54, s[14:15], s{S_T0}")
    L.e(f"v_add_u32 v13, {per * 1024}, v14")
    L.e(f"v_bfi_b32 v14, s{S_T3}, v13, v14")
    L.lab("L_notouch")
L.e(f"s_add_u32 s{S_LB}, s{S_LB}, 0x4000")
L.e(f"s_and_b32 s{S_LB}, s{S_LB}, 0x1ffff")
L.e(f"s_add_u32 s{S_N}, s{S_N}, 1")
L.e(f"s_cmp_lt_u32 s{S_N}, {D}")
L.e("s_cbranch_scc1 L_ld1")
L.e(f"s_waitcnt vmcnt({(3 if P.get('halfw') else 4) * (D - 1)})")
L.e("s_barrier")
L.e(f"s_cmp_lt_u32 s{S_N}, 16")
L.e("s_cbranch_scc1 L_ld1")
L.stamp()
if P["l2"]:
    L.e(f"s_lshl_b32 s{S_T0}, s{S_W}, 4"); L.e(f"s_lshl_b32 s{S_T1}, s{S_Q}, 7"); L.e(f"s_add_u32 s{S_T0}, s{S_T0}, s{S_T1}")
    L.e("v_lshrrev_b32 v24, 2, v1"); L.e(f"v_add_lshl_u32 v24, v24, s{S_T0}, 13"); L.e("v_lshl_add_u32 v24, v11, 6, v24"); L.e(f"v_add_u32 v24, s{S_TILE}, v24")
L.c("w_out: 64 rows per step, starting at this member's own quarter")
L.e(f"s_mov_b64 {sp(SRD_B)}, s[12:13]")
L.e(f"s_lshl_b32 s{S_WO}, s{S_Q}, 17")
if P["wrot"]:
    assert not P["fp"] and P.get("n16", 22) == 22 and D <= 5
    L.c("the order of the other members, and of the two steps of a member, differs between groups: few fetch a row first")
    L.e(f"s_lshr_b32 s{S_T1}, s{S_GL}, 1")
    L.e(f"s_lshl_b32 s{S_T1}, s{S_T1}, 3")
    L.e(f"s_lshr_b32 s51, {hex(ROTTAB)}, s{S_T1}")
    L.e(f"s_and_b32 s52, s{S_GL}, {1 if P['wrot'] == 1 else 0}")
    L.e(f"s_mov_b32 s53, s{S_LB}")
L.lab("L_ld2")
if P["wrot"]:
    L.e(f"s_xor_b32 s{S_T0}, s{S_N}, s52")
    L.e(f"s_and_b32 s{S_T0}, s{S_T0}, 7")
    L.e(f"s_lshl_b32 s{S_LB}, s{S_T0}, 14")
    L.e(f"s_add_u32 s{S_LB}, s{S_LB}, s53")
    L.e(f"s_and_b32 s{S_T1}, s{S_T0}, 6")
    L.e(f"s_lshr_b32 s{S_T1}, s51, s{S_T1}")
    L.e(f"s_add_u32 s{S_T1}, s{S_T1}, s{S_Q}")
    L.e(f"s_and_b32 s{S_T1}, s{S_T1}, 3")
    L.e(f"s_and_b32 s{S_T0}, s{S_T0}, 1")
    L.e(f"s_lshl1_add_u32 s{S_T0}, s{S_T1}, s{S_T0}")
    L.e(f"s_lshl_b32 s{S_WO}, s{S_T0}, 16")
if P["l2"] and P["fillpos"]:
    L.e(f"s_cmp_lg_u32 s{S_N}, {P['fillpos']}")
    L.e("s_cbranch_scc1 L_nofill")
    L.c("make the L2-local hand-off lines valid ahead of their readers; the values are not used")
    L.e("global_load_dword v10, v24, s[14:15]")
    L.lab("L_nofill")
for p in range(4):
    L.e(f"s_add_u32 m0, s{S_LB}, {hex(p * 4096)}" if p else f"s_mov_b32 m0, s{S_LB}")
    L.e(f"s_add_u32 s{S_T0}, s{S_WO}, {hex(p * 0x4000)}" if p else f"s_add_u32 s{S_N}, s{S_N}, 1")
    L.e(f"buffer_load_dwordx4 v3, {sq(SRD_B)}, s{S_T0 if p else S_WO} offen lds")
if not P["wrot"]:
    L.e(f"s_add_u32 s{S_LB}, s{S_LB}, 0x4000")
    L.e(f"s_add_u32 s{S_WO}, s{S_WO}, 0x10000")
    L.e(f"s_and_b32 s{S_WO}, s{S_WO}, 0x7ffff")
L.e(f"s_cmp_lt_u32 s{S_N}, {16 + D + P['cap']}")
L.e("s_cbranch_scc0 L_ld3")
L.e(f"s_waitcnt vmcnt({4 * (D - 1)})")
L.e("s_barrier")
L.e("s_branch L_ld2")
if P["fp"]:
    L.lab("L_ld3")
    L.e(f"s_waitcnt vmcnt({P['thr']})")
    L.e(f"s_cmp_lt_u32 s{S_N}, 22")
    L.e("s_cbranch_scc1 L_ld2")
    L.e(f"s_cmp_gt_u32 s{S_N}, 22")
    L.e("s_cbranch_scc1 L_ld4")
    if P["prime"]:
        L.c("bring the progress line into the L2 early; this value is not used")
        L.e("global_load_dword v16, v12, s[18:19] offset:256 sc1")
    L.e(f"s_lshl_b32 s{S_T0}, s{S_W}, 2")
    L.e(f"s_add_u32 s{S_T0}, s{S_T0}, {LDS_RDY}")
    L.e(f"v_mov_b32 v8, s{S_T0}")
    L.e(f"s_cmp_lt_u32 s{S_W}, 6")
    L.e(f"s_cselect_b32 s{S_T0}, 2, 1")
    L.e(f"v_mov_b32 v9, s{S_T0}")
    L.e(f"v_mov_b32 v13, {LDS_RDY}")
    L.e(f"s_mov_b32 s{S_CNT}, 0")
    L.e("s_waitcnt vmcnt(0)")
    L.e("ds_write_b32 v8, v9")
    L.e("s_barrier")
    L.e("s_cbranch_scc1 L_ld5")
    L.c("waves 6 and 7 bring the last two steps: their own pieces, then those of waves 4 and 5")
    L.lab("L_ld4")
    L.e(f"s_cmp_lg_u32 s{S_N}, 24")
    L.e("s_cbranch_scc1 L_ld4b")
    L.e("v_subrev_u32 v3, 0x2000, v3")
    L.e(f"s_sub_u32 s{S_LB}, s{S_LB}, 0x8800")
    L.e(f"s_sub_u32 s{S_WO}, s{S_WO}, 0x20000")
    L.e(f"s_and_b32 s{S_WO}, s{S_WO}, 0x7ffff")
    L.lab("L_ld4b")
    L.e(f"s_cmp_lt_u32 s{S_N}, 26")
    L.e("s_cbranch_scc1 L_ld2")
    L.e("v_mov_b32 v9, 2")
    L.e("s_waitcnt vmcnt(0)")
    L.e("ds_write_b32 v8, v9")
    L.lab("L_ld5")
    L.stamp()
elif P["b16a"] is None:
    L.lab("L_ld3")
    assert P["thr"] <= 16 and D <= 6
    L.e(f"s_waitcnt vmcnt({P['thr']})")
    assert P.get("n16", 22) <= 22 + P["cap"]
    L.e(f"s_cmp_lg_u32 s{S_N}, {P.get('n16', 22)}")
    L.e("s_cbranch_scc1 L_ld4")
    if P["prime"]:
        L.c("bring the progress line into the L2 early; this value is not used")
        L.e("global_load_dword v16, v12, s[18:19] offset:256 sc1")
    L.e("s_barrier")
    L.lab("L_ld4")
    L.e(f"s_cmp_lt_u32 s{S_N}, 24")
    L.e("s_cbranch_scc1 L_ld2")
    L.e(f"s_lshl_b32 s{S_T0}, s{S_W}, 2")
    L.e(f"s_add_u32 s{S_T0}, s{S_T0}, {LDS_RDY}")
    L.e(f"v_mov_b32 v8, s{S_T0}")
    L.e("v_mov_b32 v9, 1")
    L.e(f"v_mov_b32 v13, {LDS_RDY}")
    L.e(f"s_mov_b32 s{S_CNT}, 0")
    L.e("s_waitcnt vmcnt(0)")
    L.e("ds_write_b32 v8, v9")
    L.stamp()
else:
    L.lab("L_ld3")
    assert 16 + D <= P["na"] <= 22
    L.e(f"s_cmp_lg_u32 s{S_N}, {P['na']}")
    L.e("s_cbranch_scc1 L_ld4")
    L.e("s_barrier")
    L.lab("L_ld4")
    L.e(f"s_waitcnt vmcnt({P['thr']})")
    L.e(f"s_cmp_lt_u32 s{S_N}, 24")
    L.e("s_cbranch_scc1 L_ld2")
    if P["prime"]:
        L.c("bring the progress line into the L2 early; this value is not used")
        L.e("global_load_dword v16, v12, s[18:19] offset:256 sc1")
    L.e(f"v_mov_b32 v13, {LDS_RDY}")
    L.e(f"s_mov_b32 s{S_CNT}, 0")
    if P["wbar"]:
        L.e(f"s_waitcnt vmcnt({int(bool(P['prime']))})")
        L.stamp()
        L.e("s_barrier")
    else:
        L.e(f"s_lshl_b32 s{S_T0}, s{S_W}, 2")
        L.e(f"s_add_u32 s{S_T0}, s{S_T0}, {LDS_RDY}")
        L.e(f"v_mov_b32 v8, s{S_T0}")
        L.e("v_mov_b32 v9, 1")
        L.e("s_barrier")
        L.e("s_waitcnt vmcnt(0)")
        L.e("ds_write_b32 v8, v9")
        L.stamp()
L.e(f"s_cmp_lg_u32 s{S_W}, 4")
L.e("s_cbranch_scc1 L_fin")
L.c("wave 4: relay the smallest progress word of the group into LDS")
L.lab("L_poll")
L.e("global_load_dwordx4 v[16:19], v12, s[18:19] offset:256 sc1")
L.e(f"s_add_u32 s{S_CNT}, s{S_CNT}, 1")
L.e("s_waitcnt vmcnt(0)")
L.e("v_min3_u32 v16, v16, v17, v18")
L.e("v_min_u32 v16, v16, v19")
L.e("s_nop 1")
L.e("v_min_u32_dpp v16, v16, v16 quad_perm:[1,0,3,2] row_mask:0xf bank_mask:0xf")
L.e("s_nop 1")
L.e("v_min_u32_dpp v16, v16, v16 quad_perm:[2,3,0,1] row_mask:0xf bank_mask:0xf")
L.e("ds_write_b32 v13, v16")
L.e(f"v_readfirstlane_b32 s{S_T0}, v16")
L.e(f"s_cmp_ge_u32 s{S_CNT}, 0x1000000")
L.e(f"s_cselect_b32 s{S_T0}, 5, s{S_T0}")
L.e(f"s_cmp_lt_u32 s{S_T0}, {4 + bool(P['l2'])}")
L.e("s_cbranch_scc1 L_poll")
L.lab("L_fin")
L.stamp()
L.dump_stamps()
L.lab("L_exit")
L.e("s_endpgm")

C = Prog(); C.nst = h.nst; C.is_c = True
if P["codepf"]: C.vq.append("code")
AD = list(range(2, 10))
VL16, VXW, VFL, VXR, VT0, VT1, VSW, VSR, VOUT, VRDY = 10, 11, 12, 13, 14, 15, 16, 17, 18, 19
RA, RH, RX, RBI, RS = 20, 84, 116, 148, 164
VFS, VM = 170, 171
RF = 172; NPOOL = (256 - RF) // 4
SRD_WS, SRD_OUT, SRD_WO = SRD_A, SRD_B, SRD_C
C.lab("L_compute")
C.c("---------------- compute waves")
if P.get("prioc"): C.e(f"s_setprio {P['prioc']}")
T = RH
vG, vC, vEMBA, vSIGA, vT0A, vSIG, vEMB, vEP, vZ, vANN, vJ, vL4, vTCH, vBW, vBR, vCHK, vCHA = \
    T, T+1, T+2, T+3, T+4, T+5, T+6, T+7, T+8, T+12, T+14, T+15, T+16, T+17, T+18, T+26, T+28
C.e(f"s_lshl_b32 s{S_T0}, s{S_Q}, 8")
C.e(f"v_lshl_add_u32 v{vEMBA}, v1, 2, s{S_T0}")
C.e(f"s_lshr_b32 s{S_T0}, s{S_TILE}, 21")
C.e(f"v_mov_b32 v{vSIGA}, s{S_T0}")
C.c("thread 0 resets this workgroup's four progress words, then announces that (and its XCD) under this launch's tag")
C.e(f"v_lshlrev_b32 v{vT0A}, 24, v0")
for i in range(4): C.e(f"v_mov_b32 v{vZ+i}, 0")
C.e(f"s_lshl_b32 s{S_EP}, s{S_G}, {9 if P['lay'] else 18}")
C.e(f"s_lshl4_add_u32 s{S_T2}, s{S_Q}, s{S_EP}")
C.e(f"s_mov_b32 s{SRD_WS+2}, {hex(WS_BYTES)}"); C.e(f"s_mov_b32 s{SRD_WS+3}, 0x20000")
C.e(f"s_getreg_b32 s{S_XCC}, hwreg(HW_REG_XCC_ID, 0, 4)")
C.e("s_waitcnt lgkmcnt(0)")
C.vm(f"global_load_ushort v{vSIG}, v{vSIGA}, s[6:7]", "sig")
C.vm(f"global_load_dword v{vEMB}, v{vEMBA}, s[10:11]", "emb")
C.e(f"s_mov_b64 {sp(SRD_WS)}, s[18:19]")
C.vm(f"buffer_load_dword v{vEP}, v{vZ}, {sq(SRD_WS)}, s{S_EP} offen sc1", "ep")
C.vm(f"buffer_store_dwordx4 {q4(vZ)}, v{vT0A}, {sq(SRD_WS)}, s{S_T2} offen offset:256 sc1", "clr")
for t in [
    f"v_lshrrev_b32 v{vG}, 4, v1", f"v_bfe_u32 v{vC}, v1, 2, 2", f"v_lshlrev_b32 v{vC}, 6, v{vC}",
    f"v_lshl_add_u32 v{AD[0]}, v{vG}, 10, v{vC}", f"v_and_b32 v{vC}, 1, v{vG}", f"v_lshl_add_u32 v{AD[0]}, v{vC}, 5, v{AD[0]}",
    f"v_and_b32 v{vC}, 3, v1", f"v_lshl_add_u32 v{AD[6]}, v{vC}, 3, v{AD[0]}",
    f"s_lshl_b32 s{S_T0}, s{S_W}, 8", f"v_add_u32 v{AD[2]}, s{S_T0}, v{AD[6]}",
    f"s_and_b32 s{S_T3}, s{S_W}, 1", f"s_lshl_b32 s{S_T1}, s{S_T3}, 9",
    f"v_add_u32 v{AD[0]}, s{S_T1}, v{AD[6]}",
    f"v_xor_b32 v{AD[1]}, 32, v{AD[0]}", f"v_xor_b32 v{AD[3]}, 32, v{AD[2]}",
    f"v_xor_b32 v{AD[4]}, 0x100, v{AD[2]}", f"v_xor_b32 v{AD[5]}, 0x100, v{AD[3]}",
    f"s_lshl_b32 s{S_T1}, s{S_T3}, 14", f"v_add_u32 v{AD[6]}, s{S_T1}, v{AD[6]}",
    *([f"s_mov_b64 {sp(SRD_WO)}, s[12:13]", f"s_mov_b32 s{SRD_WO+2}, 0x80000", f"s_mov_b32 s{SRD_WO+3}, 0x20000"] if P["wo_touch"] < 16 else []),
    f"s_mov_b64 {sp(SRD_OUT)}, s[14:15]", f"s_mov_b32 s{SRD_OUT+2}, 0x800000", f"s_mov_b32 s{SRD_OUT+3}, 0x20000",
    f"v_lshrrev_b32 v{vL4}, 2, v1", f"v_and_b32 v{vJ}, 15, v1",
    *([f"s_lshl_b32 s{S_T0}, s{S_GL}, 16", f"s_lshl_b32 s{S_T1}, s{S_W}, 14", f"s_add_u32 s{S_T0}, s{S_T0}, s{S_T1}",
       f"s_lshl_b32 s{S_T1}, s{S_Q}, 8", f"s_add_u32 s{S_T0}, s{S_T0}, s{S_T1}",
       f"v_lshl_add_u32 v{vTCH}, v{vL4}, 10, s{S_T0}", f"v_lshl_add_u32 v{vTCH}, v{vC}, 6, v{vTCH}"] if P["wo_touch"] < 16 else []),
    f"s_lshl2_add_u32 s{S_T2}, s{S_W}, s{S_T2}", f"v_lshl_add_u32 v{VFL}, v1, 24, s{S_T2}",
    f"v_lshlrev_b32 v{vCHA}, 3, v{vC}", f"s_mov_b32 s{S_MODE}, 0",
    f"s_lshl_b32 s{S_T0}, s{S_W}, 9", f"s_add_u32 s{S_T0}, s{S_T0}, {LDS_BIAS}", f"v_lshl_add_u32 v{vBW}, v1, 3, s{S_T0}",
    f"s_lshl_b32 s{S_T1}, s{S_T3}, 8", f"s_add_u32 s{S_T0}, s{S_T0}, s{S_T1}",
    f"v_lshl_add_u32 v{vBR}, v{vG}, 4, s{S_T0}",
    f"s_mul_i32 s{S_T0}, s{S_W}, 5120", f"s_add_u32 s{S_T0}, s{S_T0}, {LDS_STG}",
    f"v_lshlrev_b32 v{VL16}, 4, v1", f"v_add_u32 v{VXR}, s{S_T0}, v{VL16}",
    f"v_mul_u32_u24 v{VSW}, 80, v{vJ}", f"v_lshl_add_u32 v{VSW}, v{vG}, 3, v{VSW}", f"v_add_u32 v{VSW}, s{S_T0}, v{VSW}",
    f"v_mul_u32_u24 v{VSR}, 80, v{vL4}", f"v_lshl_add_u32 v{VSR}, v{vC}, 4, v{VSR}", f"v_add_u32 v{VSR}, s{S_T0}, v{VSR}",
    f"s_xor_b32 s{S_T0}, s{S_W}, 1", f"s_mul_i32 s{S_T0}, s{S_T0}, 5120", f"s_add_u32 s{S_T0}, s{S_T0}, {LDS_STG}",
    f"v_add_u32 v{VXW}, s{S_T0}, v{VL16}",
    f"s_lshl_b32 s{S_T0}, s{S_Q}, 20", f"s_add_u32 s{S_T0}, s{S_T0}, s{S_TILE}", f"s_lshl_b32 s{S_T1}, s{S_W}, 6",
    f"s_add_u32 s{S_T0}, s{S_T0}, s{S_T1}", f"v_lshl_add_u32 v{VOUT}, v{vL4}, 13, s{S_T0}", f"v_lshl_add_u32 v{VOUT}, v{vC}, 4, v{VOUT}",
    f"v_mov_b32 v{VRDY}, {LDS_RDY}", f"s_sub_u32 s{S_OWN}, 0, s{S_GL}", f"s_and_b32 s{S_OWN}, s{S_OWN}, 3", f"s_mov_b32 s{S_OB}, 0",
    *([f"s_lshl_b32 s{S_T1}, s{S_W}, 12", f"s_add_u32 s{S_T1}, s{S_T1}, s{S_EP}", f"s_add_u32 s{S_T1}, s{S_T1}, 0x10000"] if not P["lay"] else []),
    ]: C.e(t)
if P["cap"]:
    C.e(f"s_lshl_b32 s{S_T0}, s{S_OWN}, 14"); C.e(f"v_add_u32 v{AD[7]}, s{S_T0}, v{AD[2]}"); C.e(f"v_add_u32 v{VT0}, s{S_T0}, v{AD[3]}")
if P["hl"] < 1024:
    sh = P["hl"].bit_length() - 1 - 4
    C.e(f"v_lshrrev_b32 v{VT1-1 if False else vANN}, {sh}, v1"); C.e(f"v_and_b32 v{VL16}, {(1 << sh) - 1}, v1"); C.e(f"v_lshlrev_b32 v{VL16}, 4, v{VL16}")
    C.e(f"v_lshl_add_u32 v{VL16}, v{vANN}, {sh + 6 + (P['lay'] == 1)}, v{VL16}")
if P["lay"] == 1:
    C.e(f"s_lshl4_add_u32 s{S_T1}, s{S_G}, s{S_W}"); C.e(f"s_lshl_b32 s{S_T1}, s{S_T1}, 13"); C.e(f"s_add_u32 s{S_T1}, s{S_T1}, 0x8000")
if P["lay"] == 2:
    C.e(f"s_lshl4_add_u32 s{S_T1}, s{S_G}, s{S_W}"); C.e(f"s_lshl_b32 s{S_T1}, s{S_T1}, 12"); C.e(f"s_add_u32 s{S_T1}, s{S_T1}, 0x8000")
if P["full"]:
    for t in [f"s_lshl_b32 s{S_T0}, s{S_Q}, 20", f"s_add_u32 s{S_T0}, s{S_T0}, s{S_TILE}", f"s_lshl_b32 s{S_CNT}, s{S_W}, 16",
              f"s_add_u32 s{S_T0}, s{S_T0}, s{S_CNT}", f"v_lshl_add_u32 v{VOUT}, v{vG}, 13, s{S_T0}", f"v_lshl_add_u32 v{VOUT}, v{vJ}, 4, v{VOUT}",
              f"s_lshl_b32 s{S_T0}, s{S_W}, 6", f"s_add_u32 s{S_T0}, s{S_T0}, {LDS_STG}",
              f"v_mul_u32_u24 v{VSW}, 0x110, v{vJ}", f"v_lshl_add_u32 v{VSW}, v{vG}, 3, v{VSW}", f"v_add_u32 v{VSW}, s{S_T0}, v{VSW}",
              f"s_mul_i32 s{S_T0}, s{S_W}, {8 * 272}", f"s_add_u32 s{S_T0}, s{S_T0}, {LDS_STG}",
              f"v_mul_u32_u24 v{VSR}, 0x110, v{vG}", f"v_lshl_add_u32 v{VSR}, v{vJ}, 4, v{VSR}", f"v_add_u32 v{VSR}, s{S_T0}, v{VSR}"]: C.e(t)
OWNR = {0: S_Q, 1: 41, 2: 42, 3: 43}
if P["rmask"]:
    C.e(f"s_add_u32 s{S_T3}, s{S_Q}, s{S_GL}")
    for k in set(P["rmask"]) - {0}:
        C.e(f"s_and_b32 s{OWNR[k]}, s{S_T3}, {k}"); C.e(f"s_xor_b32 s{OWNR[k]}, s{OWNR[k]}, s{S_Q}")
if P["wrot"]:
    C.e(f"s_lshr_b32 s{S_CNT}, s{S_GL}, 1"); C.e(f"s_lshl_b32 s{S_CNT}, s{S_CNT}, 3"); C.e(f"s_lshr_b32 s{S_CNT}, {hex(ROTTAB)}, s{S_CNT}")
for m in range(4):
    if P["wrot"]:
        C.e(f"s_add_u32 s{S_T3}, s{S_Q}, s{S_CNT}"); C.e(f"s_lshr_b32 s{S_CNT}, s{S_CNT}, 2")
    else: C.e(f"s_add_u32 s{S_T3}, s{S_Q}, {m}")
    C.e(f"s_and_b32 s{S_T3}, s{S_T3}, 3"); C.e(f"s_lshl_b32 s{S_T3}, s{S_T3}, {14 + (P['lay'] == 1)}")
    C.e(f"s_add_u32 s{S_MB[m, 1]}, s{S_T3}, s{S_T1}")
    C.e(f"s_xor_b32 s{S_MB[m, 0]}, s{S_MB[m, 1]}, {hex((0x2000 if P['lay'] == 1 else 0x1000) * (m > 0))}")
    C.e(f"s_add_u32 s{S_MB[m, 0]}, s{S_MB[m, 0]}, {hex((0x10000, 4 * P['hl'], 0x400000)[P['lay']])}")
    if P["l2"]:
        C.e(f"s_lshl_b32 s{S_T3}, s{S_T3}, {6 - (P['lay'] == 1)}"); C.e(f"s_xor_b32 s{S_T0}, s{S_W}, {int(m > 0 and LS == 0)}"); C.e(f"s_add_u32 s{S_T0}, s{S_T0}, 4")
        C.e(f"s_lshl_b32 s{S_T0}, s{S_T0}, 17"); C.e(f"s_add_u32 s{S_MB[m, LS]}, s{S_T3}, s{S_T0}")

if P["l2"]:
    for t in [f"v_lshrrev_b32 v{VM}, 3, v1", f"v_lshlrev_b32 v{VM}, 13, v{VM}", f"v_and_b32 v{VFS}, 7, v1",
              f"v_lshl_add_u32 v{VM}, v{VFS}, 4, v{VM}", f"v_add_u32 v{VM}, s{S_TILE}, v{VM}", f"v_mov_b32 v{VFS}, 2.0"]: C.e(t)
F = []
F.append(lambda: C.vneed("clr", "ep", "sig", "emb"))
F += [f"v_readfirstlane_b32 s{S_T3}, v{vEP}",
      f"s_mul_i32 s{S_H0}, s{S_T3}, {hex(HC0)}", f"s_add_u32 s{S_H0}, s{S_H0}, {hex(HK0)}",
      f"s_mul_i32 s{S_H1}, s{S_T3}, {hex(HC1)}", f"s_add_u32 s{S_H1}, s{S_H1}, {hex(HK1)}",
      f"s_add_u32 s{S_H0}, s{S_H0}, s{S_XCC}", f"s_add_u32 s{S_H1}, s{S_H1}, s{S_XCC}",
      f"v_mov_b32 v{vANN}, s{S_H0}", f"v_mov_b32 v{vANN+1}, s{S_H1}", f"s_lshl3_add_u32 s{S_T0}, s{S_Q}, s{S_EP}"]
F.append(lambda: C.vm(f"buffer_store_dwordx2 {q2(vANN)}, v{vT0A}, {sq(SRD_WS)}, s{S_T0} offen offset:128 sc1", "ann"))
F += [f"s_add_u32 s{S_EN}, s{S_T3}, 1"]
sg, a, b2, cs, cn = vSIG, T + 20, T + 21, T + 22, T + 23
def rnd(r): return [f"v_cvt_pk_bf16_f32 v{r}, v{r}, v{r}", f"v_lshlrev_b32 v{r}, 16, v{r}"]
F += [f"v_lshlrev_b32 v{sg}, 16, v{sg}", f"v_mul_f32 v{a}, v{sg}, v{sg}"] + rnd(a)
F += [f"v_add_f32 v{a}, 0x3e800000, v{a}"] + rnd(a)
F += [f"v_rcp_f32 v{cs}, v{a}", f"v_sqrt_f32 v{a}, v{a}"] + rnd(cs) + rnd(a)
F += [f"v_mul_f32 v{cs}, 0x3e800000, v{cs}", f"v_rcp_f32 v{a}, v{a}", f"v_lshrrev_b32 v{cs}, 16, v{cs}", f"v_mul_f32 v{b2}, 0.5, v{sg}"]
F += [f"v_mul_f32 v{b2}, v{b2}, v{a}"] + rnd(b2) + rnd(a)
F += [f"v_log_f32 v{cn}, v{sg}", f"v_mul_f32 v{a}, 0xbfb8aa3b, v{a}", f"v_mul_f32 v{cn}, 0x3f317218, v{cn}"] + rnd(cn)
F += [f"v_max_f32 v{b2}, 0x03800000, v{b2}", f"v_mul_f32 v{b2}, 0xbf317218, v{b2}", f"v_rcp_f32 v{b2}, v{b2}"]
F += [f"v_mul_f32 v{cn}, 0x3e800000, v{cn}"]
F += [f"v_readfirstlane_b32 s{S_S1}, v{a}", f"v_readfirstlane_b32 s{S_IK}, v{b2}", f"s_mov_b32 s{S_S1+1}, s{S_S1}", f"s_mov_b32 s{S_IK+1}, s{S_IK}"]
e0, e1 = T + 24, T + 25
F += [f"v_lshlrev_b32 v{e0}, 16, v{vEMB}", f"v_and_b32 v{e1}, 0xffff0000, v{vEMB}",
      f"v_mul_f32 v{e0}, v{cn}, v{e0}", f"v_mul_f32 v{e1}, v{cn}, v{e1}",
      f"v_cvt_pk_bf16_f32 v{e1}, v{e0}, v{e1}", f"v_lshlrev_b32 v{e0}, 16, v{e1}", f"v_and_b32 v{e1}, 0xffff0000, v{e1}",
      f"v_mul_f32 v{e0}, 0xbfb8aa3b, v{e0}", f"v_mul_f32 v{e1}, 0xbfb8aa3b, v{e1}"]
F.append(("lds", f"ds_write_b64 v{vBW}, {q2(e0)}", "biasw"))
for i in range(4):
    F.append(("lds", f"ds_read_b128 {q4(RBI + 4 * i)}, v{vBR} offset:{i * 64}", "bias"))
F += [f"v_and_b32 v{e0}, 1, v1", f"v_lshlrev_b32 v{e0}, 4, v{e0}", f"v_lshlrev_b32 v{cs}, v{e0}, v{cs}",
      f"v_lshrrev_b32 v{e0}, 1, v{vJ}", f"v_lshlrev_b32 v{e1}, 1, v{vG}", f"v_sub_u32 v{e0}, v{e0}, v{e1}",
      f"v_cmp_eq_u32 vcc, 0, v{e0}", f"v_mov_b32 v{RS}, 0", f"v_cndmask_b32 v{RS+2}, 0, v{cs}, vcc",
      f"v_cmp_eq_u32 vcc, 1, v{e0}", f"v_mov_b32 v{RS+1}, 0", f"v_cndmask_b32 v{RS+3}, 0, v{cs}, vcc",
      f"v_mov_b32 v{RS+4}, 0", f"v_mov_b32 v{RS+5}, 0"]
def ann_check():
    C.e(f"s_or_b64 vcc, vcc, {sp(S_MSK)}")
    if P.get("forceslow"): C.e("s_cmp_eq_u32 0, 0")
    C.e("s_cbranch_scc1 L_ann_wait")
    C.lab("L_ann_ok")
G = [lambda: (C.c("all four members have reset their progress words in this launch, and one L2 serves all of them"), C.vneed("chk", "touch")),
     f"v_cmp_ne_u32 vcc, s{S_H0}, v{vCHK}", f"v_cmp_ne_u32 {sp(S_MSK)}, s{S_H1}, v{vCHK+1}", f"v_mov_b32 v{AD[0]}, v{AD[6]}", ann_check,
     f"v_xor_b32 v{AD[2]}, 32, v{AD[0]}", f"v_xor_b32 v{AD[4]}, 0x4000, v{AD[0]}", f"v_xor_b32 v{AD[6]}, 0x4000, v{AD[2]}"]
G += [f"v_add_u32 v{AD[r+1]}, 0x10000, v{AD[r]}" for r in (0, 2, 4, 6)]
C.tail += ["L_ann_wait:", f"    s_mov_b32 s{S_CNT}, 0",
           f"    s_sub_u32 s{S_H0}, s{S_H0}, s{S_XCC}", f"    s_sub_u32 s{S_H1}, s{S_H1}, s{S_XCC}", "L_ann_l:",
           f"    buffer_load_dwordx2 {q2(vCHK)}, v{vCHA}, {sq(SRD_WS)}, s{S_EP} offen offset:128 sc1",
           f"    s_add_u32 s{S_CNT}, s{S_CNT}, 1", "    s_waitcnt vmcnt(0)",
           f"    v_subrev_u32 v{vCHK}, s{S_H0}, v{vCHK}", f"    v_subrev_u32 v{vCHK+1}, s{S_H1}, v{vCHK+1}",
           f"    v_cmp_ne_u32 vcc, v{vCHK}, v{vCHK+1}", f"    v_cmp_le_u32 {sp(S_MSK)}, 16, v{vCHK}",
           f"    s_cmp_ge_u32 s{S_CNT}, 0x1000000", "    s_cbranch_scc1 L_ann_ok",
           f"    s_or_b64 vcc, vcc, {sp(S_MSK)}", "    s_cbranch_scc1 L_ann_l",
           f"    v_cmp_ne_u32 vcc, s{S_XCC}, v{vCHK}", "    s_nop 1", "    s_cmp_lg_u64 vcc, 0"]
if not P.get("forceslow"): C.tail += ["    s_cbranch_scc0 L_ann_ok"]
C.tail += ["    ; members on several XCDs: the L2-local progress stores fall out of range; L_slow stores through memory instead",
           f"    s_mov_b32 s{S_MODE}, 1", f"    v_mov_b32 v{VFS}, v{VFL}", f"    v_mov_b32 v{VFL}, 2.0"]
if P["l2"]: C.tail += [f"    v_or_b32 v{VM}, 2.0, v{VM}"]
C.tail += ["    s_branch L_ann_ok"]

if P.get('nofill'): F = F[:13]
class Pool:
    def __init__(s, regs): s.free = list(regs); s.rel = []
    def get(s, now):
        s.free += [r for t, r in s.rel if t <= now]; s.rel = [(t, r) for t, r in s.rel if t > now]
        assert s.free, "fragment pool empty"
        return s.free.pop(0)
    def put(s, t, r): s.rel.append((t, r))

def stream(units, read, pool):
    firstuse, lastuse = {}, {}
    for i, u in enumerate(units):
        for k in u:
            firstuse.setdefault(k, i); lastuse[k] = i
    rq = [(k, i) for k in sorted(firstuse, key=lambda k: firstuse[k]) for i in range(2)]
    reg = {}
    def issue(now):
        k, i = rq.pop(0)
        if i == 0:
            reg[k] = pool.get(now); pool.put(lastuse[k] + 2, reg[k])
        read(k, i, reg[k])
    return rq, reg, issue, firstuse
def run(f):
    if isinstance(f, str): C.e(f)
    elif isinstance(f, tuple): C.lds(f[1], f[2])
    else: f()

SEQ = [(0,0),(0,1),(1,1),(1,0),(1,2),(0,2),(2,2),(2,1),(2,0),(2,3),(1,3),(0,3),(3,3),(3,2),(3,1),(3,0)]
u1 = [(("w", n, a), ("x", n, p)) for n in range(16) for a, p in SEQ]
def rd1(k, i, r):
    kind, n, t = k
    base = (n % 4) * 16384 + 8192 * i
    if kind == "w": a_, off = AD[t & 1], 4096 + 256 * (t >> 1)
    else: a_, off = AD[2 + 2 * (t >> 1) + (t & 1)], 0
    C.lds(f"ds_read_b64_tr_b16 {q2(r + 2 * i)}, v{a_} offset:{base + off}", k)
rq, reg, issue, fu = stream(u1, rd1, Pool([RF + 4 * i for i in range(NPOOL)]))
if P["pre"]:
    import re
    FA, FB = F[:13], F[13:]
    C.c("per-launch constants, while the first rows are still under way")
    C.vneed("sig", "emb")
    prev = ""
    for f in FB + (FA if P["pre"] == 2 else []):
        if isinstance(f, str):
            d = re.match(r"(v_\w+) (v\d+|vcc),", prev)
            if d and re.search(rf"\b{d.group(2)}\b", f.split(",", 1)[1]):
                if d.group(1).startswith(("v_rcp", "v_sqrt", "v_log")) or f.startswith("v_readfirstlane"): C.e("s_nop 0")
            if f.startswith("v_cndmask"): C.e("s_nop 0")
            prev = f
        run(f)
    F = FA if P["pre"] == 1 else []
C.stamp()
C.e("s_barrier")
C.stamp()
barred = 0
def issue1(now):
    global barred
    n = rq[0][0][1]
    if n > barred:
        barred = n
        if n % 4 == 0:
            assert not any(t[0] == "cap" for t in C.lq if isinstance(t, tuple))
            for r in AD[:6] + ([AD[7], VT0] if P["cap"] else []): C.e(f"v_xor_b32 v{r}, 0x10000, v{r}")
        C.e("s_barrier")
        if P["cap"] and n % 4 == 3:
            C.c("keep this member's own rows of x (all four slots of the round are still in place)")
            for t in range(2):
                for i in range(2): C.lds(f"ds_read_b64_tr_b16 {q2(RX + 8 * (n // 4) + 4 * t + 2 * i)}, v{(AD[7], VT0)[t]} offset:{8192 * i}", ("cap", n))
        if n == P.get("afill"):
            C.e(f"v_lshlrev_b32 v{vTCH}, 13, v{vL4}"); C.e(f"v_lshl_add_u32 v{vTCH}, v{vC}, 6, v{vTCH}"); C.e(f"v_add_u32 v{vTCH}, s{S_TILE}, v{vTCH}")
            C.vm(f"buffer_atomic_or v{vZ}, v{vTCH}, {sq(SRD_OUT)}, s{S_MB[0, LS]} offen", "touch")
        if n == P["wo_touch"]:
            C.c("this workgroup's share of w_out into the L2; the values are not used")
            C.vm(f"buffer_load_dword v{VT1}, v{vTCH}, {sq(SRD_WO)}, 0 offen", "touch")
        if n == P['chkn']: C.vm(f"buffer_load_dwordx2 {q2(vCHK)}, v{vCHA}, {sq(SRD_WS)}, s{S_EP} offen offset:128 sc1", "chk")
    issue(now)
for _ in range(P["lead"]): issue1(0)
for i, (ka, kb) in enumerate(u1):
    if i and i % 64 == 0 and not P["xs"]: C.stamp()
    if i in P.get("xs1", ()):
        C.stamp(); C.smem = False
    C.need(ka, kb)
    acc = RA + 4 * (4 * kb[2] + ka[2])
    if not (P.get("skip1") and i >= 16 and i % P["skip1"] == 0):
        C.e(f"v_mfma_f32_16x16x32_bf16 {q4(acc)}, {q4(reg[ka])}, {q4(reg[kb])}, {'0' if i < 16 else q4(acc)}")
    if rq: issue1(i)
    elif G: run(G.pop(0))
    if P["cap"] and i == 256 - P["lead"]:
        assert not any(t[0] == "cap" for t in C.lq if isinstance(t, tuple)) and D <= 4 and PERM == list(range(16)) and not P["rmask"]
        C.e("s_barrier")
    if i % 16 == 9 and not P.get('nocap') and not P["cap"]:
        n = i // 16
        C.e(f"s_cmp_eq_u32 s{OWNR[P['rmask'][PERM[n] // 4]] if P['rmask'] else S_OWN}, {PERM[n] & 3}")
        C.e(f"s_cbranch_scc0 L_keep{n}")
        for t in range(2):
            for o in range(4): C.e(f"v_mov_b32 v{RX + 8 * (PERM[n] // 4) + 4 * t + o}, v{reg['x', n, t] + o}")
        C.lab(f"L_keep{n}")
        continue
    waited = i + 1 < len(u1) and C.need(*u1[i + 1])
    if F and i >= P["fstart"] and not waited: run(F.pop(0))
for f in G: run(f)
assert not F and not C.lq
if P["b16a"] == -3: C.e("s_barrier")
C.stamp()

DQ = RF + 4
def hreg(p, kk): return RH + 4 * (2 * p + kk)
def flag(j):
    if not (P["exp"] & 2): C.vneed(("st", j))
    C.e(f"v_mov_b32 v{VT1}, {j + 1}")
    C.vm(f"buffer_store_dword v{VT1}, v{VFL}, {sq(SRD_WS)}, 0 offen offset:256", ("fl", j))
def check(name, v, done=False):
    rdi = f"ds_read_b128 {q4(DQ)}, v{VRDY} offset:16" if done else f"ds_read_b32 v{VT0}, v{VRDY}"
    red = [f"    v_min3_u32 v{VT0}, v{DQ}, v{DQ+1}, v{DQ+2}", f"    v_min_u32 v{VT0}, v{VT0}, v{DQ+3}", "    s_nop 0"] if done else []
    C.e(f"s_cmp_ge_u32 s{S_T1}, {v}")
    if name in P["inl"]:
        C.e(f"s_cbranch_scc1 L_back{name}")
        C.e(f"s_mov_b32 s{S_CNT}, 0")
        C.lab(f"L_spin{name}_l")
        for t in [rdi, f"s_add_u32 s{S_CNT}, s{S_CNT}, 1", "s_waitcnt lgkmcnt(0)", *[x.strip() for x in red], f"v_readfirstlane_b32 s{S_T1}, v{VT0}",
                  f"s_cmp_ge_u32 s{S_CNT}, 0x4000000", f"s_cselect_b32 s{S_T1}, {v}, s{S_T1}", f"s_cmp_ge_u32 s{S_T1}, {v}", f"s_cbranch_scc0 L_spin{name}_l"]: C.e(t)
        C.lab(f"L_back{name}")
        if not done and not P["xs"]: C.stamp()
        return
    if not (P["exp"] & 1) or done: C.e(f"s_cbranch_scc0 L_spin{name}")
    C.lab(f"L_back{name}")
    if not done and not P["xs"]: C.stamp()
    C.tail += [f"L_spin{name}:", f"    s_mov_b32 s{S_CNT}, 0", f"L_spin{name}_l:",
               "    " + rdi, f"    s_add_u32 s{S_CNT}, s{S_CNT}, 1", "    s_waitcnt lgkmcnt(0)", *red,
               f"    v_readfirstlane_b32 s{S_T1}, v{VT0}", f"    s_cmp_ge_u32 s{S_CNT}, 0x4000000", f"    s_cbranch_scc1 L_back{name}",
               f"    s_cmp_ge_u32 s{S_T1}, {v}", f"    s_cbranch_scc0 L_spin{name}_l", f"    s_branch L_back{name}"]

C.c("---- h = c_out * silu(c_in * acc + bias), two elements per packed op; the sibling's pixels first")
tiles = [(p0 + p, 2 * kk + a) for p0 in (2, 0) for kk in range(2) for p in range(2) for a in range(2)]
U = RF
def acc1(n): return RA + 4 * (4 * tiles[n][0] + tiles[n][1])
def ok(n): return 0 <= n < 16
def gstore(n):
    p, a = tiles[n]; kk = a >> 1
    if LS == 1 - p // 2:
        C.vm(f"buffer_store_dwordx4 {q4(hreg(p, kk))}, v{VM}, {sq(SRD_OUT)}, s{S_MB[0, LS]} offen offset:{(p & 1) * 128}", ("st", n // 4))
        if n % 8 == 3: C.e(f"s_add_u32 s{S_MB[0, LS]}, s{S_MB[0, LS]}, 0x10000")
    elif not (P["exp"] & 8) and not (P["exp"] & 64 and p >= 2):
        C.vm(f"buffer_store_dwordx4 {q4(hreg(p, kk))}, v{VL16}, {sq(SRD_WS)}, s{S_MB[0, 1 - p // 2]} offen offset:{(2 * kk + (p & 1)) * P['hl']}{POL[P.get('hpol', 'sc1')]}", ("st", n // 4))
def publish(n):
    p, a = tiles[n]; kk = a >> 1
    if P["hold"] is None: gstore(n)
    if p >= 2: C.lds(f"ds_write_b128 v{VXW}, {q4(hreg(p, kk))} offset:{((p & 1) * 2 + kk) * 1024}", "xw")
HOLD = P["hold"] or []
def xr(f):
    p2, kk = f & 1, f >> 1
    C.lds(f"ds_read_b128 {q4(hreg(2 + p2, kk))}, v{VXR} offset:{(p2 * 2 + kk) * 1024}", "xr")
for n in range(-2, 17):
    E = [f"v_exp_f32 v{acc1(n+1)+o}, v{U + 4*((n+1)&3) + o}" for o in range(4)] if ok(n + 1) else []
    M = [f"v_pk_mul_f32 {q2(acc1(n-1)+o)}, {q2(acc1(n-1)+o)}, {q2(U + 4*((n-1)&3) + o)}" for o in (0, 2)] if ok(n - 1) else []
    A1 = [f"v_pk_fma_f32 {q2(U + 4*((n+2)&3) + o)}, {q2(acc1(n+2)+o)}, {sp(S_S1)}, {q2(RBI + 4*tiles[n+2][1] + o)}" for o in (0, 2)] if ok(n + 2) else []
    R = [f"v_rcp_f32 v{acc1(n)+o}, v{acc1(n)+o}" for o in range(4)] if ok(n) else []
    if P.get("norcp"): R = []
    A2 = [f"v_pk_fma_f32 {q2(acc1(n+1)+o)}, {q2(acc1(n+1)+o)}, {sp(S_IK)}, {sp(S_IK)}" for o in (0, 2)] if ok(n + 1) else []
    V = []
    if ok(n - 1):
        p, a = tiles[n - 1]
        V = [f"v_cvt_pk_bf16_f32 v{hreg(p, a >> 1) + 2 * (a & 1) + o // 2}, v{acc1(n-1)+o}, v{acc1(n-1)+o+1}" for o in (0, 2)]
    def weave(a_, b_):
        r = []
        for i in range(max(len(a_), len(b_))): r += a_[i:i+1] + b_[i:i+1]
        return r
    if P["sil"]:
        if ok(n - 2) and n % 2 == 1: publish(n - 2)
        for t in weave(E, M + A1) + weave(R, V + A2): C.e(t)
    else:
        for t in E: C.e(t)
        if ok(n - 2) and n % 2 == 1: publish(n - 2)
        for t in M + A1 + R + A2 + V: C.e(t)
    if n == P["b16a"]: C.e("s_barrier")
    if n == 9 and LS == 0:
        C.e(f"s_cmp_lg_u32 s{S_MODE}, 0")
        C.e("s_cbranch_scc1 L_slow0")
        C.lab("L_slow0_done")
        C.tail += ["L_slow0:", f"    v_xor_b32 v{VM}, 2.0, v{VM}", f"    s_sub_u32 s{S_T0}, s{S_MB[0, 0]}, 0x10000"]
        C.tail += [f"    buffer_store_dwordx4 {q4(hreg(p, kk))}, v{VM}, {sq(SRD_OUT)}, s{S_MB[0, 0] if kk else S_T0} offen offset:{(p & 1) * 128} sc1" for p in (2, 3) for kk in range(2)]
        C.tail += ["    s_waitcnt vmcnt(0)", "    s_branch L_slow0_done"]
    if n == P["nb"]:
        C.need("xw")
        C.e("s_barrier")
        C.stamp()
    for f, pos in enumerate(HOLD):
        if pos == -n and n > 0:
            assert n >= 2 * f + 2
            gstore(2 * f + 1)
    if n == max([P["nb"]] + [-x for x in HOLD[:4]]):
        assert all(x < 0 for x in HOLD[:4])
        C.e("s_nop 0")
        for f in range(4): xr(f)
    for j in range(4):
        if P["fl"][j] is not None and P["fl"][j] == -n and n > 0:
            assert n >= 4 * j + 5
            flag(j)
publish(15)
def slow():
    C.e(f"s_cmp_lg_u32 s{S_MODE}, 0")
    C.e("s_cbranch_scc1 L_slow")
    C.lab("L_slow_done")
SLOWPOS = max(HOLD + [-1])
if SLOWPOS < 0: slow()
C.tail += ["L_slow:"]
if LS == 1:
    C.tail += [f"    v_xor_b32 v{VM}, 2.0, v{VM}", f"    s_sub_u32 s{S_T0}, s{S_MB[0, 1]}, 0x10000"]
    C.tail += [f"    buffer_store_dwordx4 {q4(hreg(p, kk))}, v{VM}, {sq(SRD_OUT)}, s{S_MB[0, 1] if kk else S_T0} offen offset:{(p & 1) * 128} sc1" for p in (0, 1) for kk in range(2)]
C.tail += [f"    v_mov_b32 v{VT1}, 4", "    s_waitcnt vmcnt(0) lgkmcnt(0)",
           f"    buffer_store_dword v{VT1}, v{VFS}, {sq(SRD_WS)}, 0 offen offset:256 sc1", "    s_waitcnt vmcnt(0)", "    s_branch L_slow_done"]
C.stamp()

poolq = [RF + 4 * i for i in range(NPOOL)]
rem = poolq[9:21] + [RBI + 4 * i for i in range(4)] + [RX + 4 * i for i in range(8)]
def rq_(j, m, p): return rem[6 * j + 2 * (m - 1) + p]
units = []
for t in range(2):
    for rho in range(4):
        for p in range(2): units.append((2 * rho + t, p, RX + 8 * rho + 4 * p, ("sel", t), True, None))
def snake(jts, areg, m, far, kk, tag):
    for n, jt in enumerate(jts):
        for p in ((0, 1) if n % 2 == 0 else (1, 0)):
            units.append((jt, p, areg(p), ("o", m, far, kk, jt), False, tag(p)))
for far in (1, 0):
    for kk in range(2): snake(range(8), lambda p: hreg(2 * far + p, kk), 0, far, kk, lambda p: "xr" if far else None)
steps = [(j, m) for j in range(4) for m in (1, 2, 3)]
if P['fp'] and P['chk'][1] is None: steps = [(0,1),(0,2),(1,1),(1,2),(0,3),(1,3)] + steps[6:]
nbm = 2 * P["bm"]
def remote(jts, j, m): snake(jts, lambda p: rq_(j, m, p), m, 1 - j // 2, j & 1, lambda p: ("pl", j, m, p))
for j, m in steps[:12 - nbm]: remote(range(8), j, m)
if P["fine"]:
    for jt in range(8):
        for j, m in steps[12 - nbm:]: remote((jt,), j, m)
else:
    for blk in range(4):
        for j, m in steps[12 - nbm:]: remote((2 * blk, 2 * blk + 1), j, m)
NU = len(units)
def rd2(k, i, r):
    _, m, far, kk, jt = k
    base = (4 * m + kk) * 8192
    a_ = AD[4 * far + 2 * (jt & 1) + (base >= 65536)]
    C.lds(f"ds_read_b64_tr_b16 {q2(r + 2 * i)}, v{a_} offset:{base % 65536 + 4096 * i + 256 * (jt >> 1)}", k)
rq, reg, issue, fu = stream([(u[3],) if u[3][0] == "o" else () for u in units], rd2, Pool(poolq[2:9]))
first_remote = min(i for i, u in enumerate(units) if isinstance(u[5], tuple))
last = {blk: max(i for i, u in enumerate(units) if u[0] // 2 == blk) for blk in range(4)}
sched = {}
def at(i, kind, x): sched.setdefault(i, []).append((kind, x))
busy = []
def claim(a_, b_):
    assert a_ >= 0 and all(b_ < x or a_ > y for x, y in busy), ("checks overlap", a_, b_, busy)
    busy.append((a_, b_))
if P["fp"]: first_remote = min(i for i, u in enumerate(units) if u[3][0] == "o" and u[3][1] == 3)
iw = P.get("chkW", first_remote - P["pf2"] - 3)
assert iw <= first_remote - P["pf2"] - 3
if P['b16a'] is None or not P['wbar']:
    claim(iw - 3, iw)
    at(iw - 10, "m", lambda: C.lds(f"ds_read_b128 {q4(DQ)}, v{VRDY} offset:16", ("rdy", "W")))
    at(iw - 3, "m", lambda: C.need(("rdy", "W")))
    at(iw - 3, "v", f"v_min3_u32 v{VT0}, v{DQ}, v{DQ+1}, v{DQ+2}")
    at(iw - 2, "v", f"v_min_u32 v{VT0}, v{VT0}, v{DQ+3}")
    at(iw - 1, "v", f"v_readfirstlane_b32 s{S_T1}, v{VT0}")
    at(iw, "m", lambda: check("W", 1 + P["fp"], True))
nextld = 0
assert not P["fp"] or LS != 0
for j0 in range(4):
    j = j0
    i0 = P["chk"][j]
    if i0 is not None:
        top = max(x for x in range(j, 4) if all(P["chk"][y] is None for y in range(j + 1, x + 1)))
        claim(i0 - 7, i0)
        at(i0 - 7, "m", lambda j=j: C.lds(f"ds_read_b32 v{VT0}, v{VRDY}", ("rdy", j)))
        at(i0 - 1, "m", lambda j=j: C.need(("rdy", j)))
        at(i0 - 1, "v", f"v_readfirstlane_b32 s{S_T1}, v{VT0}")
        at(i0, "m", lambda j=j, top=top: check(j, top + 1))
        assert P["fl"][top] is not None and P["fl"][top] <= i0
        nextld = max(nextld, 2 * i0)
    for j, m in steps[3 * j0:3 * j0 + 3]:
        for p in range(2):
            assert j < 2 or nextld // 2 >= 18
            assert nextld // 2 < min(i for i, u in enumerate(units) if u[5] == ("pl", j, m, p))
            if LS == j // 2:
                def ld(j=j, m=m, p=p):
                    C.vm(f"buffer_load_dwordx4 {q4(rq_(j, m, p))}, v{VM}, {sq(SRD_OUT)}, s{S_MB[m, LS]} offen offset:{p * 128} sc1", ("pl", j, m, p))
                    if j % 2 == 0 and p == 1: C.e(f"s_add_u32 s{S_MB[m, LS]}, s{S_MB[m, LS]}, 0x10000")
                at(nextld // 2, "m", ld)
            elif not (P["exp"] & 4) and not (P["exp"] & 128 and j < 2): at(nextld // 2, "m", lambda j=j, m=m, p=p: C.vm(
                f"buffer_load_dwordx4 {q4(rq_(j, m, p))}, v{VL16}, {sq(SRD_WS)}, s{S_MB[m, j // 2]} offen offset:{(2 * (j & 1) + p) * P['hl']}{POL[P.get('ldpol', 'sc1')]}", ("pl", j, m, p)))
            nextld += P["ldgap"] if isinstance(P["ldgap"], int) else P["ldgap"][j]
    j = j0
    if P["fl"][j] is not None and P["fl"][j] >= 0: at(P["fl"][j], "m", lambda j=j: flag(j))
assert not (P["full"] and P["noown"]) and not (P["l2"] and P["noown"])
if P["l2"]:
    def ack():
        C.vneed(("pl", 2 * LS + 1, 3, 1))
        C.e(f"v_mov_b32 v{VT1}, 5")
        C.vm(f"buffer_store_dword v{VT1}, v{VFL}, {sq(SRD_WS)}, 0 offen offset:256", "ack")
        C.vm(f"buffer_store_dword v{VT1}, v{VFS}, {sq(SRD_WS)}, 0 offen offset:256 sc1", "ack")
    at(P["ack"], "m", ack)
    assert P["ack"] > P["fl"][3]
    io = last[2] + P.get('iod', -4)
    assert io < last[2] + 18
    assert P["ack"] < io - 7
    claim(io - 7, io)
    at(io - 7, "m", lambda: C.lds(f"ds_read_b32 v{VT0}, v{VRDY}", ("rdy", "O")))
    at(io - 1, "m", lambda: C.need(("rdy", "O")))
    at(io - 1, "v", f"v_readfirstlane_b32 s{S_T1}, v{VT0}")
    at(io, "m", lambda: check("O", 5))
    P["outpol"] = list(P["outpol"][:2]) + ["plain", "plain"]
for f, pos in enumerate(HOLD):
    if pos >= 0:
        at(pos, "m", lambda f=f: gstore(2 * f + 1))
        assert all(x is None or x > pos for x in P["fl"][f // 2:])
if SLOWPOS >= 0:
    at(SLOWPOS + 1, "m", slow)
    assert P.get("noslowchk") or SLOWPOS + 1 < min(x for x in P["chk"] if x is not None) - 7
TMP = RF
if P["fine"]:
    for jt in range(8):
        t0 = max(i for i, u in enumerate(units) if u[0] == jt) + 4
        dat = RA + 8 * jt; so = (jt & 3) * 1280; tm_ = TMP + 4 * (jt & 1)
        for p in range(2):
            for o in range(2): at(t0 + 2 * p + o, "v", f"v_cvt_pk_bf16_f32 v{tm_ + 2*p + o}, v{dat + 4*p + 2*o}, v{dat + 4*p + 2*o + 1}")
            at(t0 + 2 * p + 2, "m", lambda p=p, so=so, jt=jt, tm_=tm_: C.lds(f"ds_write_b64 v{VSW}, {q2(tm_ + 2*p)} offset:{so + 32 * p}", ("sw", jt)))
        at(t0 + 5, "m", lambda so=so, jt=jt, dat=dat: C.lds(f"ds_read_b128 {q4(dat)}, v{VSR} offset:{so}", ("sr", jt)))
        def st(jt=jt, dat=dat):
            C.need(("sr", jt))
            C.vm(f"buffer_store_dwordx4 {q4(dat)}, v{VOUT}, {sq(SRD_OUT)}, s{S_OB} offen{POL[P['outpol'][jt // 2]]}", ("out", jt))
            if jt != 7: C.e(f"s_add_u32 s{S_OB}, s{S_OB}, 0x20000")
        at(t0 + 5 + P["fine"], "m", st)
    last[0] = max(i for i, u in enumerate(units) if u[0] == 0) - 1
elif P["full"]:
    for blk in range(4):
        t0 = last[blk] + 5
        dat = RA + 16 * blk; so = (blk & 1) * 8704
        for g in range(4):
            for o in range(2): at(t0 + 2 * g + o, "v", f"v_cvt_pk_bf16_f32 v{TMP + 2*g + o}, v{dat + 4*g + 2*o}, v{dat + 4*g + 2*o + 1}")
            at(t0 + 2 * g + 2, "m", lambda g=g, so=so, blk=blk: C.lds(f"ds_write_b64 v{VSW}, {q2(TMP + 2*g)} offset:{so + 16 * 272 * (g >> 1) + 32 * (g & 1)}", ("sw", blk)))
        def sync(blk=blk, so=so, dat=dat):
            C.need(("sw", blk), ("sr", blk - 1, 1))
            C.e("s_barrier")
            for k in range(2): C.lds(f"ds_read_b128 {q4(dat + 4*k)}, v{VSR} offset:{so + 4 * 272 * k}", ("sr", blk, k))
        at(t0 + 8 + P["full"], "m", sync)
        def st(k, blk=blk, dat=dat):
            C.need(("sr", blk, k))
            C.vm(f"buffer_store_dwordx4 {q4(dat + 4*k)}, v{VOUT}, {sq(SRD_OUT)}, s{S_OB} offen{POL[P['outpol'][blk]]}", ("out", blk))
            if (blk, k) != (3, 1): C.e(f"s_add_u32 s{S_OB}, s{S_OB}, {hex(0x38000 if k else 0x8000)}")
        for k in range(2): at(t0 + 8 + P["full"] + 7 + 4 * k, "m", lambda k=k, st=st: st(k))
else:
    for blk in range(4):
        t0 = last[blk] + 5
        dat = RA + 16 * blk; so = (blk & 1) * 2560
        for g in range(4):
            for o in range(2): at(t0 + 2 * g + o, "v", f"v_cvt_pk_bf16_f32 v{TMP + 2*g + o}, v{dat + 4*g + 2*o}, v{dat + 4*g + 2*o + 1}")
            at(t0 + 2 * g + 2, "m", lambda g=g, so=so, blk=blk: C.lds(f"ds_write_b64 v{VSW}, {q2(TMP + 2*g)} offset:{so + 1280 * (g >> 1) + 32 * (g & 1)}", ("sw", blk)))
        for k in range(2):
            at(t0 + 5 + 4 * k, "m", lambda k=k, so=so, blk=blk, dat=dat: C.lds(f"ds_read_b128 {q4(dat + 4*k)}, v{VSR} offset:{so + 1280*k}", ("sr", blk, k)))
        def st(k, blk=blk, dat=dat):
            C.need(("sr", blk, k))
            if not (P["exp"] & 16) or blk == 3: C.vm(f"buffer_store_dwordx4 {q4(dat + 4*k)}, v{VOUT}, {sq(SRD_OUT)}, s{S_OB} offen{POL[P['outpol'][blk]]}", ("out", blk))
            if (blk, k) != (3, 1): C.e(f"s_add_u32 s{S_OB}, s{S_OB}, 0x20000")
        for k in range(2): at(t0 + 13 + 5 * k, "m", lambda k=k, st=st: st(k))
ie = nextld // 2 + 4
at(ie, "m", lambda: (C.c("member 0 moves the group's epoch on (every member read it long ago: their progress words came after it)"),
                     C.e(f"s_lshl_b32 s{S_T0}, s{S_Q}, 28")))
at(ie, "v", f"v_lshl_or_b32 v{TMP}, v0, 24, s{S_T0}")
at(ie + 1, "v", f"v_mov_b32 v{TMP+1}, s{S_EN}")
at(ie + 2, "m", lambda: C.vm(f"buffer_store_dword v{TMP+1}, v{TMP}, {sq(SRD_WS)}, s{S_EP} offen sc1", "epst"))
assert ie + 3 < last[0] + 5
def pre_wait(i):
    if i >= NU: return
    u = units[i]
    if isinstance(u[5], tuple): C.vneed(u[5])
    ks = [u[3]]
    if P["w4"] and u[3] in C.lq and i + 2 < NU: ks.append(units[i + 2][3])
    C.need(*ks, *([u[5]] if u[5] == "xr" else []))
for i, u in enumerate(units):
    jt, p, ar, bk, first, tag = u
    if i in P["xs"]:
        C.stamp(); C.smem = False
    pre_wait(i)
    br = RS + 2 - 2 * bk[1] if bk[0] == "sel" else reg[bk]
    acc = RA + 4 * (2 * jt + p)
    if not any(a_ <= i < b_ for a_, b_ in P.get("skip", ())):
        C.e(f"v_mfma_f32_16x16x32_bf16 {q4(acc)}, {q4(ar)}, {q4(br)}, {'0' if first else q4(acc)}")
    if rq and fu[rq[0][0]] <= i + P["pf2"] + 1: issue(i)
    items = sched.pop(i, [])
    for k, x in items:
        if k == "m": x()
    pre_wait(i + 1)
    for k, x in items:
        if k == "v": C.e(x)
C.stamp()
C.e("s_nop 6" if P["fine"] else "s_nop 5")
for i in sorted(sched):
    for k, x in sorted(sched[i], key=lambda y: y[0]):
        if k == "v": C.e(x)
        else: x()
C.stamp()
if P["stamps"] or "probe" in P:
    C.e("s_waitcnt vmcnt(0)")
    if P.get("probe") == -1: P["probe"] = C.nst
    C.stamp()
if "probe" in P or P.get("rt"):
    C.e("s_waitcnt lgkmcnt(0)")
    if "probe" in P:
        C.e("s_sub_u32 s96, s96, s100"); C.e("s_lshl_b32 s96, s96, 2"); C.e("s_add_u32 s96, s96, 2000")
        if "pwg" in P:
            C.e(f"s_cmp_eq_u32 s2, {P['pwg']}"); C.e("s_cselect_b32 s96, s96, 0")
    else:
        C.e(f"s_mov_b32 s96, {P['rt']}")
        if "pwg" in P:
            C.e(f"s_cmp_eq_u32 s2, {P['pwg']}"); C.e("s_cselect_b32 s96, s96, 0")
    C.lab("L_rt")
    C.e("s_memrealtime s[98:99]"); C.e("s_waitcnt lgkmcnt(0)"); C.e("s_sub_u32 s98, s98, s100")
    C.e("s_cmp_lt_u32 s98, s96"); C.e("s_cbranch_scc1 L_rt")
C.dump_stamps()
C.e("s_endpgm")

DOC = """
;   waves 4-7: LDS-DMA of x / w_in (32-row slots, ring of 8) and then of w_out; wave 4 afterwards relays the group's progress words.
;              GEMM2 (32 px x 128 ch each; c_skip*x enters through MFMAs against a scaled selector), transpose through LDS, store.
; The members pass h to each other through d_ws: write-through stores, then (once acknowledged) a progress word per wave.
; when all four members share it, otherwise they are written through as well.
"""
nm = P["name"]
hdr = open("standalone__edm_precond__diffusion.s.ref").read().split("; Override")[0]
out = [hdr.rstrip(),
       "; generated by gen/gen.py  " + " ".join(sys.argv[1:]),
       f"; @launch grid=(256,1,1) block=(512,1,1) lds={LDS_TOTAL}",
       *DOC.strip().splitlines(),
       '.amdgcn_target "amdgcn-amd-amdhsa--gfx950"', ".text", f".globl {nm}_kernel", f".p2align {P['align']}", ".p2align 8",
       f".type {nm}_kernel,@function", f"{nm}_kernel:"]
out += h.l + L.l + C.l + C.tail + ["L_end:"]
out += ['.section .rodata,"a"', ".p2align 6", f".amdhsa_kernel {nm}_kernel",
        "  .amdhsa_next_free_vgpr 256", "  .amdhsa_next_free_sgpr 102", "  .amdhsa_accum_offset 256",
        "  .amdhsa_group_segment_fixed_size 0", "  .amdhsa_kernarg_size 64", "  .amdhsa_user_sgpr_count 2",
        "  .amdhsa_user_sgpr_kernarg_segment_ptr 1", "  .amdhsa_system_sgpr_workgroup_id_x 1", ".end_amdhsa_kernel"]
print("\n".join(out))
```
